```python
import torch

def _softmax(x, axis=-1):
    return torch.softmax(x, dim=axis)
def _gelu(x):
    return torch.nn.functional.gelu(x, approximate="tanh")
def _silu(x):
    return torch.nn.functional.silu(x)
def _sigmoid(x):
    return torch.sigmoid(x)
def _layernorm(x, axis=-1, eps=1e-5):
    m = x.mean(dim=axis, keepdim=True)
    v = x.var(dim=axis, keepdim=True, unbiased=False)
    return (x - m) / torch.sqrt(v + eps)
def _scatter_add(tgt, idx, src, axis=0):
    return tgt.clone().index_add_(axis, idx, src)
def _segment_sum(src, seg, n):
    out = torch.zeros((n,) + src.shape[1:], dtype=src.dtype)
    return out.index_add_(0, seg, src)
def _pad(x, pw):
    flat = tuple(v for pair in reversed(pw) for v in pair)
    return torch.nn.functional.pad(x, flat)

kernel_name = 'gather_scatter__cheap_equivariant_egnn__graph'

def setup_inputs():

    _w = (lambda a: (lambda t: t.to(torch.bfloat16) if t.is_floating_point() else t)(torch.as_tensor(a)))
    N, deg, D, De = 12500, 64, 64, max(0, 1)
    E = N * deg
    return {
        "h": _w((lambda *s: torch.randn(*s, dtype=torch.bfloat16) * 0.1)(N, D)),
        "pos": _w((lambda *s: torch.randn(*s, dtype=torch.bfloat16) * 0.8)(N, 3)),
        "e_attr": _w((lambda *s: torch.randn(*s, dtype=torch.bfloat16) * 0.8)(E, De)),
        "src": _w((lambda lo, hi, *s: torch.randint(lo, hi, s))(0, N, E).to(torch.int64)),
        "dst": _w((lambda lo, hi, *s: torch.randint(lo, hi, s))(0, N, E).to(torch.int64)),
        "w_e": _w(0.1 * (lambda *s: torch.randn(*s, dtype=torch.bfloat16) * 0.8)(2 * D + 1 + De, D)),
        "w_x": _w(0.1 * (lambda *s: torch.randn(*s, dtype=torch.bfloat16) * 0.1)(D, 1)),
        "w_h": _w(0.1 * (lambda *s: torch.randn(*s, dtype=torch.bfloat16) * 0.1)(2 * D, D)),
    }

def reference(h, pos, e_attr, src, dst, w_e, w_x, w_h):
    N, D = h.shape[0], h.shape[1]
    diff = pos[dst] - pos[src]
    dist2 = torch.sum(diff * diff, axis=-1, keepdims=True)
    e_in = torch.concatenate([h[dst], h[src], dist2, e_attr], axis=-1)
    m_ij = _silu(e_in @ w_e)
    coord_scale = m_ij @ w_x
    pos_new = pos + _segment_sum(diff * coord_scale, dst, N)
    m_i = _segment_sum(m_ij, dst, N)
    h_new = h + _silu(torch.concatenate([h, m_i], axis=-1) @ w_h)
    return h_new, pos_new
```

```python
import sys, struct

N = 12500; E = 800000
NPB = 49
CH = 3136
PSTR = 16768
L_OFF = CH * 4
OFF_OFF = L_OFF + CH
WF = 256 * PSTR
WS_USED = WF + 34 * 1024
DBG_WS = WS_USED + 4096
WS_SRD = DBG_WS + (1 << 20)
L2E = 1.4426950408889634
LN2 = 0.6931471805599453

def f32(x):
    return "0x%08x" % struct.unpack("<I", struct.pack("<f", x))[0]

class Asm:
    def __init__(self):
        self.L = []
    def __call__(self, s):
        for ln in s.strip("\n").split("\n"):
            ln = ln.strip()
            if ln:
                self.L.append(ln if ln.endswith(":") else "    " + ln)
    def label(self, s):
        self.L.append(s + ":")
    def text(self):
        return "\n".join(self.L) + "\n"

def vr(a, n):
    return f"v[{a}:{a+n-1}]"

def srd(a, base, nbytes, sub=0):
    o = []
    if sub:
        o.append(f"s_sub_u32 s{a}, s{base}, {sub}")
        o.append(f"s_subb_u32 s{a+1}, s{base+1}, 0")
    else:
        o.append(f"s_mov_b32 s{a}, s{base}")
        o.append(f"s_mov_b32 s{a+1}, s{base+1}")
    o.append(f"s_mov_b32 s{a+2}, {nbytes}")
    o.append(f"s_mov_b32 s{a+3}, 0x00020000")
    return "\n".join(o)

def wave_scan(a, v):
    for ctl in ("row_shr:1", "row_shr:2", "row_shr:4", "row_shr:8"):
        a("s_nop 1")
        a(f"v_add_u32_dpp v{v}, v{v}, v{v} {ctl} row_mask:0xf bank_mask:0xf bound_ctrl:0")
    a("s_nop 1")
    a(f"v_add_u32_dpp v{v}, v{v}, v{v} row_bcast:15 row_mask:0xa bank_mask:0xf")
    a("s_nop 1")
    a(f"v_add_u32_dpp v{v}, v{v}, v{v} row_bcast:31 row_mask:0xc bank_mask:0xf")

class Opt:
    stamps = False
OPT = Opt()

def stamp(a, kern, idx, stmp):
    if not OPT.stamps:
        return
    sv = 230 if kern == 2 else 70
    a(f"""
    s_memtime s[{stmp}:{stmp+1}]
    s_waitcnt lgkmcnt(0)
    v_mov_b32 v{sv}, s{stmp}
    v_mov_b32 v{sv+1}, s{stmp+2}
    s_mov_b64 s[{stmp}:{stmp+1}], exec
    s_mov_b64 exec, 1
    buffer_store_dword v{sv}, v{sv+1}, s[{12 if kern == 2 else 20}:{15 if kern == 2 else 23}], 0 offen offset:{idx*4}
    s_mov_b64 exec, s[{stmp}:{stmp+1}]
    """)

def gen_k1(a):
    CNT, PRE, RB = 0, 1024, 2048
    a.label("egnn_bin_kernel")
    a(f"""
    s_cmp_ge_u32 s2, 256
    s_cbranch_scc1 K1_END
    s_load_dwordx4 s[32:35], s[0:1], 16
    s_load_dwordx4 s[36:39], s[0:1], 32
    s_load_dwordx2 s[40:41], s[0:1], 56
    s_load_dwordx2 s[42:43], s[0:1], 80
    v_lshrrev_b32 v1, 6, v0
    v_and_b32 v6, 63, v0
    v_readfirstlane_b32 s3, v1
    v_lshlrev_b32 v2, 2, v0
    v_mov_b32 v3, 0
    s_mul_i32 s44, s2, {CH}
    s_sub_u32 s45, {E}, s44
    s_lshr_b32 s45, s45, 2
    s_min_u32 s45, s45, {CH//4}
    s_mul_i32 s49, s2, {PSTR}
    s_lshl_b32 s46, s44, 2
    s_lshl_b32 s47, s44, 1
    v_lshlrev_b32 v4, 4, v0
    v_lshlrev_b32 v5, 3, v0
    v_add_u32 v4, s46, v4
    v_add_u32 v5, s47, v5
    s_cmp_ge_u32 s3, 4
    s_cbranch_scc1 K1_NOZERO
    ds_write_b32 v2, v3 offset:{CNT}
    K1_NOZERO:
    s_waitcnt lgkmcnt(0)
    {srd(8, 36, E*4)}
    {srd(12, 34, E*4)}
    {srd(16, 32, E*2)}
    {srd(20, 42, WS_SRD)}
    """)
    if OPT.stamps:
        a(f"s_lshl_b32 s62, s2, 4\ns_add_u32 s62, s62, s3\ns_lshl_b32 s62, s62, 6\ns_add_u32 s62, s62, {DBG_WS}")
    stamp(a, 1, 0, 60)
    a(f"""
    v_cmp_gt_u32 vcc, s45, v0
    s_and_saveexec_b64 s[50:51], vcc
    s_mov_b64 s[52:53], exec
    s_cbranch_execz K1_NOLOAD
    buffer_load_dwordx4 v[8:11], v4, s[8:11], 0 offen
    buffer_load_dwordx4 v[12:15], v4, s[12:15], 0 offen
    buffer_load_dwordx2 v[16:17], v5, s[16:19], 0 offen
    K1_NOLOAD:
    s_mov_b64 exec, -1
    s_cmp_lg_u32 s3, 15
    s_cbranch_scc1 K1_NOW
    s_cmp_ge_u32 s2, 34
    s_cbranch_scc1 K1_NOW
    """)
    a(f"""
    s_lshl_b32 s54, s2, 10
    s_add_u32 s54, s54, {WF}
    v_lshlrev_b32 v50, 4, v6
    v_add_u32 v50, s54, v50
    s_cmp_ge_u32 s2, 32
    s_cbranch_scc1 K1_WEXTRA
    s_cmp_ge_u32 s2, 16
    s_cbranch_scc1 K1_WH
    {srd(24, 38, 130*128)}
    s_and_b32 s55, s2, 3
    s_lshl_b32 s55, s55, 11
    s_lshr_b32 s56, s2, 2
    s_and_b32 s56, s56, 1
    s_lshl_b32 s56, s56, 6
    s_add_u32 s55, s55, s56
    s_cmp_lt_u32 s2, 8
    s_cselect_b32 s56, {64*128}, 0
    s_add_u32 s55, s55, s56
    s_cmp_lt_u32 s2, 8
    s_cselect_b32 s57, {f32(-L2E)}, 1.0
    v_lshrrev_b32 v51, 5, v6
    v_lshlrev_b32 v51, 10, v51
    v_and_b32 v52, 31, v6
    v_lshl_add_u32 v51, v52, 1, v51
    v_add_u32 v51, s55, v51
    s_branch K1_WGEN
    K1_WH:
    {srd(24, 40, 128*128)}
    s_and_b32 s55, s2, 3
    s_lshl_b32 s55, s55, 12
    s_lshr_b32 s56, s2, 3
    s_and_b32 s56, s56, 1
    s_lshl_b32 s56, s56, 6
    s_add_u32 s55, s55, s56
    s_lshr_b32 s56, s2, 2
    s_and_b32 s56, s56, 1
    s_lshl_b32 s56, s56, 3
    s_add_u32 s55, s55, s56
    s_mov_b32 s57, 1.0
    v_lshrrev_b32 v51, 4, v6
    v_lshlrev_b32 v51, 10, v51
    v_bfe_u32 v52, v6, 2, 2
    v_lshl_add_u32 v51, v52, 4, v51
    v_and_b32 v52, 3, v6
    v_lshl_add_u32 v51, v52, 1, v51
    v_add_u32 v51, s55, v51
    K1_WGEN:
    """)
    for j in range(8):
        a(f"buffer_load_ushort v{54+j}, v51, s[24:27], 0 offen offset:{128*j}")
    a("s_waitcnt vmcnt(0)")
    for j in range(8):
        a(f"v_lshlrev_b32 v{54+j}, 16, v{54+j}")
    for j in range(8):
        a(f"v_mul_f32 v{54+j}, s57, v{54+j}")
    for j in range(4):
        a(f"v_cvt_pk_bf16_f32 v{64+j}, v{54+2*j}, v{55+2*j}")
    a(f"""
    buffer_store_dwordx4 v[64:67], v50, s[20:23], 0 offen
    s_branch K1_NOW
    K1_WEXTRA:
    {srd(24, 38, 130*128)}
    s_and_b32 s55, s2, 1
    s_lshl_b32 s55, s55, 6
    s_add_u32 s55, s55, {128*128}
    v_and_b32 v52, 31, v6
    v_lshlrev_b32 v51, 1, v52
    v_add_u32 v51, s55, v51
    buffer_load_ushort v54, v51, s[24:27], 0 offen
    buffer_load_ushort v55, v51, s[24:27], 0 offen offset:128
    s_mov_b32 s57, {f32(-L2E)}
    s_waitcnt vmcnt(0)
    v_lshlrev_b32 v54, 16, v54
    v_lshlrev_b32 v55, 16, v55
    v_mul_f32 v54, s57, v54
    v_mul_f32 v55, s57, v55
    v_cvt_pk_bf16_f32 v56, v54, v54
    v_lshlrev_b32 v56, 16, v56
    v_sub_f32 v57, v54, v56
    v_cvt_pk_bf16_f32 v58, v56, v57
    v_cvt_pk_bf16_f32 v59, 0, v55
    v_cmp_gt_u32 vcc, 32, v6
    s_nop 1
    v_cndmask_b32 v64, v58, 0, vcc
    v_cndmask_b32 v65, v59, 0, vcc
    v_cndmask_b32 v66, 0, v58, vcc
    v_cndmask_b32 v67, 0, v59, vcc
    buffer_store_dwordx4 v[64:67], v50, s[20:23], 0 offen
    K1_NOW:
    s_waitcnt lgkmcnt(0)
    s_barrier
    s_mov_b64 exec, s[52:53]
    s_cbranch_execz K1_NOCNT
    s_movk_i32 s48, 21400
    v_mov_b32 v36, 1
    s_waitcnt vmcnt(2)
    """)
    for j in range(4):
        a(f"""
        v_mul_u32_u24 v{20+j}, s48, v{8+j}
        v_lshrrev_b32 v{20+j}, 20, v{20+j}
        v_mul_u32_u24 v{24+j}, {NPB}, v{20+j}
        v_lshlrev_b32 v{28+j}, 2, v{20+j}
        ds_add_rtn_u32 v{32+j}, v{28+j}, v36 offset:{CNT}
        v_sub_u32 v{24+j}, v{8+j}, v{24+j}
        v_lshlrev_b32 v{24+j}, 2, v{24+j}
        """)
    a(f"""
    K1_NOCNT:
    s_mov_b64 exec, -1
    s_waitcnt lgkmcnt(0)
    s_barrier
    """)
    stamp(a, 1, 1, 60)
    a(f"""
    s_cmp_eq_u64 s[52:53], 0
    s_cbranch_scc1 K1_NOSCAT
    v_lshlrev_b32 v7, 4, v6
    ds_read_b128 v[40:43], v7 offset:{CNT}
    s_waitcnt lgkmcnt(0)
    v_add_u32 v41, v40, v41
    v_add_u32 v42, v41, v42
    v_add_u32 v43, v42, v43
    v_mov_b32 v44, v43
    """)
    wave_scan(a, 44)
    a(f"""
    v_sub_u32 v46, v44, v43
    v_add_u32 v47, v46, v40
    v_add_u32 v48, v46, v41
    v_add_u32 v49, v46, v42
    ds_write_b128 v7, v[46:49] offset:{PRE}
    s_waitcnt vmcnt(0)
    s_cmp_lg_u32 s3, 0
    s_cbranch_scc1 K1_NOOFF
    v_lshl_or_b32 v52, v47, 16, v46
    v_lshl_or_b32 v53, v48, 16, v47
    v_lshl_or_b32 v54, v49, 16, v48
    v_lshl_or_b32 v55, v44, 16, v49
    s_add_u32 s54, s49, {OFF_OFF}
    v_add_u32 v56, s54, v7
    buffer_store_dwordx4 v[52:55], v56, s[20:23], 0 offen
    K1_NOOFF:
    s_mov_b64 exec, s[52:53]
    """)
    for j in range(4):
        a(f"ds_read_b32 v{40+j}, v{28+j} offset:{PRE}")
    a(f"""
    s_mov_b32 s55, 0xffff0000
    v_lshl_or_b32 v12, v16, 16, v12
    v_and_or_b32 v13, v16, s55, v13
    v_lshl_or_b32 v14, v17, 16, v14
    v_and_or_b32 v15, v17, s55, v15
    """)
    for j in range(4):
        a(f"""
        s_waitcnt lgkmcnt({3-j + (2*j)})
        v_add_u32 v{40+j}, v{40+j}, v{32+j}
        v_lshlrev_b32 v{44+j}, 2, v{40+j}
        ds_write_b8 v{40+j}, v{24+j} offset:{RB + L_OFF}
        ds_write_b32 v{44+j}, v{12+j} offset:{RB}
        """)
    a(f"""
    K1_NOSCAT:
    s_mov_b64 exec, -1
    s_waitcnt lgkmcnt(0)
    s_barrier
    """)
    stamp(a, 1, 2, 60)
    a(f"""
    v_lshlrev_b32 v4, 4, v0
    v_add_u32 v5, s49, v4
    v_cmp_gt_u32 vcc, {OFF_OFF//16}, v0
    s_and_saveexec_b64 s[50:51], vcc
    s_cbranch_execz K1_END
    ds_read_b128 v[8:11], v4 offset:{RB}
    s_waitcnt lgkmcnt(0)
    buffer_store_dwordx4 v[8:11], v5, s[20:23], 0 offen
    """)
    if OPT.stamps:
        a("s_waitcnt vmcnt(0)")
    stamp(a, 1, 3, 60)
    a("K1_END:\ns_endpgm")
    return RB + OFF_OFF

CAP = 3456
RS = 272
CNT2 = 0; PRE2 = 256; FLAG = 512; LUT = 528; POSD = 672; ACCP = POSD + 800
LISTL = ACCP + 784 + 0
LISTL = (LISTL + 15) // 16 * 16
LISTR = LISTL + CAP + 64
AT = LISTR + (CAP + 64) * 4
ACCM = AT + NPB * 128
SB = ACCM + NPB * RS
SB = (SB + 63) // 64 * 64
STG = SB + 8 * 2048
POSB = STG + 8 * 4096
LDS2 = POSB + 75008
assert LDS2 <= 163840, LDS2
assert LISTR % 16 == 0 and AT % 16 == 0 and ACCM % 16 == 0 and STG % 16 == 0

ACC = [2, 18]; D = [34, 50]; M = [66, 74]; X = [82, 98]
W2 = 114; WX = [146, 152]; XX = 158; S = 164; T = 172
CDMA = 180; AX = 184; AS = 188; LANE = 189; G4 = 190; SROW = 191
R4 = 192; REC = 196; DL4 = 197; REL = 198; TA = 199
PS = 200; PD = 202; DX = 206; DD = 209; DXY = 210; SADDR = 212; A4 = 213
ZERO = 214; WXS = [216, 218]; MADDR = 220; POFF = 221; AWT = 222; T1 = 223; T2 = 224
LANE4 = 225; ALUT = 226; START = 227; ENDV = 228
NV2 = 232
sH, sWS, sPOS, sOUT, sWXD = 8, 12, 16, 20, 24
sNB, sNN, sC128, sPOSB, sM10, s0M1 = 28, 29, 30, 31, 32, 33
sPN, sEND, sWB, sWBO, sFWX, sFFL = 34, 35, 36, 37, 38, 39
sMA, sMB, sVN, sMR = 40, 42, 44, 46
sNX, sQ, sFIRST, sT, sPN4, sMORE = 48, 49, 50, 51, 52, 53
sTMP = 56

def mfma32(d, a_, b_, c):
    cc = "0" if c is None else vr(c, 16)
    return f"v_mfma_f32_32x32x16_bf16 {vr(d,16)}, {vr(a_,4)}, {vr(b_,4)}, {cc}"

def flush_code(a, rezero):
    a(f"""
    s_mul_i32 s{sTMP}, s{sWBO}, {RS//4}
    s_lshl_b32 s{sTMP+1}, s{sWBO}, 2
    v_add_u32 v{T1}, s{sTMP}, v{MADDR}
    v_add_u32 v{T2}, s{sTMP+1}, v{POFF}
    """)
    for q in range(4):
        for h in range(2):
            a(f"ds_add_f32 v{T1}, v{ACC[h]+4*q+3} offset:{2*q*RS + 128*h}")
    for q in range(4):
        r0 = ACC[0] + 4*q; r1 = ACC[1] + 4*q
        a(f"v_pk_mul_f32 {vr(r0,2)}, {vr(r0,2)}, {vr(WXS[0],2)} op_sel_hi:[1,0]")
        a(f"v_mul_f32 v{r0+2}, v{r0+2}, v{WXS[0]}")
        a(f"v_pk_fma_f32 {vr(r0,2)}, {vr(r1,2)}, {vr(WXS[1],2)}, {vr(r0,2)} op_sel_hi:[1,0,1]")
        a(f"v_fmac_f32 v{r0+2}, v{r1+2}, v{WXS[1]}")
    a("s_nop 1")
    for q in range(2):
        for c in range(3):
            a(f"v_permlane16_swap_b32 v{ACC[0]+4*q+c}, v{ACC[0]+4*(q+2)+c}")
    a("s_nop 1")
    for q in range(2):
        for c in range(3):
            a(f"v_add_f32 v{ACC[0]+4*q+c}, v{ACC[0]+4*q+c}, v{ACC[0]+4*(q+2)+c}")
    a("s_nop 1")
    for c in range(3):
        a(f"v_add_f32_dpp v{ACC[0]+c}, v{ACC[0]+c}, v{ACC[0]+c} row_ror:8 row_mask:0xf bank_mask:0x3")
    for c in range(3):
        a(f"v_add_f32_dpp v{ACC[0]+c}, v{ACC[0]+4+c}, v{ACC[0]+4+c} row_ror:8 row_mask:0xf bank_mask:0xc")
    for c in range(3):
        a(f"ds_add_f32 v{T2}, v{ACC[0]+c} offset:{ACCP + 4*c}")
    if rezero:
        a("s_waitcnt lgkmcnt(0)")
        for h in range(2):
            for r in range(16):
                a(f"v_mov_b32 v{ACC[h]+r}, 0")

def window_masks(a):
    a(f"""
    v_subrev_u32 v{REL}, s{sWB}, v{DL4}
    v_cmp_gt_u32 vcc, 32, v{REL}
    s_and_b64 s[{sVN}:{sVN+1}], vcc, s[{sMR}:{sMR+1}]
    """)

def wx_load(a):
    a(f"""
    s_lshl_b32 s{sTMP}, s{sWB}, 5
    v_add_u32 v{T1}, s{sTMP}, v{AWT}
    ds_read_b64_tr_b16 {vr(WX[0]+2,2)}, v{T1}
    ds_read_b64_tr_b16 {vr(WX[1]+2,2)}, v{T1} offset:64
    """)

def epi_loads(a):
    a(f"""
    s_lshr_b32 s{sTMP}, s3, 2
    s_lshl_b32 s{sTMP}, s{sTMP}, 13
    s_add_u32 s{sTMP}, s{sTMP}, {WF + 16*1024}
    v_lshlrev_b32 v{T1}, 4, v{LANE}
    v_add_u32 v{T1}, s{sTMP}, v{T1}
    s_and_b32 s{sTMP}, s3, 3
    s_lshl_b32 s{sTMP}, s{sTMP}, 4
    s_add_u32 s{sTMP}, s{sTMP}, s{sNB}
    s_lshl_b32 s{sTMP}, s{sTMP}, 7
    s_add_u32 s{sTMP}, s{sTMP}, 3072
    v_and_b32 v{T2}, 15, v{LANE}
    v_lshlrev_b32 v{T2}, 7, v{T2}
    v_and_b32 v{TA}, 48, v{LANE}
    v_add3_u32 v{T2}, v{T2}, v{TA}, s{sTMP}
    """)
    for i in range(4):
        a(f"buffer_load_dwordx4 {vr(X[0]+4*i,4)}, v{T1}, s[{sWS}:{sWS+3}], 0 offen offset:{1024*i}")
    a(f"v_add_u32 v{T1}, 4096, v{T1}")
    for i in range(4):
        a(f"buffer_load_dwordx4 {vr(X[0]+16+4*i,4)}, v{T1}, s[{sWS}:{sWS+3}], 0 offen offset:{1024*i}")
    a(f"buffer_load_dwordx4 {vr(D[0],4)}, v{T2}, s[{sH}:{sH+3}], 0 offen")
    a(f"buffer_load_dwordx4 {vr(D[0]+4,4)}, v{T2}, s[{sH}:{sH+3}], 0 offen offset:64")

def dma_tile(a):
    for i in range(4):
        a(f"buffer_load_dwordx4 v{R4+i}, s[{sH}:{sH+3}], 0 offen offset:{1024*i} lds")

def mads(src):
    return [f"v_mad_u32_u16 v{R4+i}, v{src+i}, s{sC128}, v{CDMA+i}" for i in range(4)]

class Body:
    def __init__(self):
        self.it = []
    def op(self, s): self.it.append(("op", s))
    def ds(self, s, tag=None): self.it.append(("ds", s, tag))
    def wait(self, tag): self.it.append(("wait", tag))
    def emit(self, a):
        n = len(self.it)
        for i, x in enumerate(self.it):
            if x[0] == "wait":
                cnt = 0; j = i - 1; found = False
                for _ in range(n):
                    y = self.it[j % n]
                    if y[0] == "ds":
                        if y[2] == x[1]:
                            found = True; break
                        cnt += 1
                    j -= 1
                assert found, x
                a(f"s_waitcnt lgkmcnt({min(cnt,15)})")
            else:
                a(x[1])

def unit_groups(b, u, pre, mid, post):
    h = u % 2; ph = 1 - h
    ntile = (u + 1) // 2 % 2
    xx = XX if ntile == 0 else XX + 2
    wx = WX[ph] + 2 if ntile == 0 else WX[ph]
    mf = {0: mfma32(ACC[ph], S, M[ph], ACC[ph]),
          1: mfma32(D[ph], xx, wx, None),
          2: mfma32(ACC[ph], S + 4, M[ph] + 4, ACC[ph])}
    for s in range(4):
        mf[3 + s] = mfma32(D[ph], X[ntile] + 4*s, W2 + 16*ph + 4*s, D[ph])
    def put(lst):
        for x in lst:
            if isinstance(x, str): b.op(x)
            elif x[0] == "ds": b.ds(x[1], x[2] if len(x) > 2 else None)
            elif x[0] == "wait": b.wait(x[1])
    for g in range(8):
        put(pre.get(g, []))
        if g in mf: b.op(mf[g])
        p = g - 2; hh = h
        if p < 0: p += 8; hh = ph
        t = T + 2 * (p % 4)
        b.op(f"v_cvt_pk_bf16_f32 v{M[hh]+p}, v{t}, v{t+1}")
        t = T + 2 * (g % 4); y = D[h] + 2 * g
        b.op(f"v_exp_f32 v{t}, v{y}")
        b.op(f"v_exp_f32 v{t+1}, v{y+1}")
        p = g - 1; hh = h
        if p < 0: p += 8; hh = ph
        t2 = T + 2 * (p % 4); y2 = D[hh] + 2 * p
        b.op(f"v_rcp_f32 v{t2}, v{t2}")
        b.op(f"v_rcp_f32 v{t2+1}, v{t2+1}")
        put(mid.get(g, []))
        b.op(f"v_pk_add_f32 {vr(t,2)}, {vr(t,2)}, 1.0 op_sel_hi:[1,0]")
        b.op(f"v_pk_mul_f32 {vr(t2,2)}, {vr(t2,2)}, {vr(y2,2)}")
        put(post.get(g, []))

def s_build(mask):
    o = [f"s_mov_b64 exec, s[{mask}:{mask+1}]",
         ("ds", f"ds_write_b64 v{SADDR}, {vr(DXY,2)}"),
         "s_mov_b64 exec, -1"]
    for k in range(4):
        o.append(("ds", f"ds_read_b64_tr_b16 {vr(S+2*k,2)}, v{AS} offset:{512*k}", "S" if k == 3 else None))
    o += [f"s_mov_b64 exec, s[{mask}:{mask+1}]",
          ("ds", f"ds_write_b64 v{SADDR}, {vr(ZERO,2)}"),
          "s_mov_b64 exec, -1"]
    return o

def x_read(t):
    o = ["s_waitcnt vmcnt(0)"]
    for s in range(4):
        o.append(("ds", f"ds_read_b128 {vr(X[t]+4*s,4)}, v{AX+s}", "X" if s == 3 else None))
    return o

def dma_ops():
    return [f"buffer_load_dwordx4 v{R4+i}, s[{sH}:{sH+3}], 0 offen offset:{1024*i} lds" for i in range(4)]

def geo_addr():
    return [f"v_mad_u32_u16 v{TA}, v{REC}, 6, s{sPOSB}",
            ("ds", f"ds_read_b64 {vr(PS,2)}, v{TA}"),
            f"v_lshlrev_b32 v{TA}, 2, v{DL4}",
            ("ds", f"ds_read_b128 {vr(PD,4)}, v{TA} offset:{POSD}", "P"),
            f"v_min_u32 v{REL}, 32, v{REL}",
            f"v_lshlrev_b32 v{ALUT}, 2, v{REL}"]
def geo_lut():
    return [("ds", f"ds_read_b64 {vr(XX,2)}, v{ALUT} offset:{LUT}"),
            ("ds", f"ds_read_b64 {vr(XX+4,2)}, v{ALUT} offset:{LUT+8}", "L"),
            f"v_mov_b32 v{XX+3}, v{REC}"]
def geo_diff():
    return [f"v_dot2_f32_bf16 v{DX}, v{PS}, s{sM10}, v{PD}",
            f"v_dot2_f32_bf16 v{DX+1}, v{PS}, s{s0M1}, v{PD+1}",
            f"v_dot2_f32_bf16 v{DX+2}, v{PS+1}, s{sM10}, v{PD+2}"]
def geo_cvt():
    return [f"v_cvt_pk_bf16_f32 v{DXY}, v{DX}, v{DX+1}",
            f"v_cvt_pk_bf16_f32 v{DXY+1}, v{DX+2}, 1.0",
            f"v_lshl_add_u32 v{SADDR}, v{REL}, 1, v{SROW}"]
def geo_d2():
    return [f"v_dot2_f32_bf16 v{DD}, v{DXY+1}, v{DXY+1}, -1.0",
            f"v_dot2_f32_bf16 v{DD}, v{DXY}, v{DXY}, v{DD}"]
def geo_fin():
    return [f"v_cvt_pk_bf16_f32 v{XX+2}, v{DD}, v{DD}",
            f"v_permlane32_swap_b32 v{XX}, v{XX+4}",
            f"v_permlane32_swap_b32 v{XX+1}, v{XX+5}"]

def plain(a, lst):
    for x in lst:
        a(x if isinstance(x, str) else x[1])

def gen_main_loop(a):
    b = Body()
    unit_groups(b, 0,
        pre={0: [("wait", "S")] if False else [],
             3: s_build(sMA),
             4: [f"v_add_u32 v{A4}, s{sPN4}, v{G4}",
                 ("ds", f"ds_read_b128 {vr(R4,4)}, v{A4} offset:{LISTR}", "R"),
                 f"v_add_u32 v{TA}, s{sPN4}, v{LANE4}",
                 ("ds", f"ds_read_b32 v{REC}, v{TA} offset:{LISTR}"),
                 f"v_add_u32 v{TA}, s{sPN}, v{LANE}",
                 ("ds", f"ds_read_u8 v{DL4}, v{TA} offset:{LISTL}", "E")],
             5: [f"s_cmp_lg_u32 s{sFFL}, 0", "s_cbranch_scc1 K2_FLUSH", "K2_FLUSH_RET:"],
             6: x_read(1),
             7: [("wait", "R")] + mads(R4)},
        mid={}, post={})
    unit_groups(b, 1,
        pre={0: [("wait", "E"),
                 f"s_sub_u32 s{sTMP}, s{sEND}, s{sPN}",
                 f"v_subrev_u32 v{REL}, s{sWB}, v{DL4}",
                 f"v_cmp_gt_i32 s[{sMR}:{sMR+1}], s{sTMP}, v{LANE}",
                 f"v_cmp_gt_u32 vcc, 32, v{REL}"],
             1: [f"s_and_b64 s[{sVN}:{sVN+1}], vcc, s[{sMR}:{sMR+1}]",
                 f"s_cmp_lg_u64 s[{sVN}:{sVN+1}], s[{sMR}:{sMR+1}]",
                 "s_cbranch_scc1 K2_REBASE", "K2_REBASE_RET:",
                 f"s_bcnt1_i32_b64 s{sNX}, s[{sVN}:{sVN+1}]",
                 f"s_add_u32 s{sPN}, s{sPN}, s{sNX}",
                 f"s_lshl_b32 s{sPN4}, s{sPN}, 2",
                 f"s_mov_b32 s{sMA}, s{sVN}",
                 ("wait", "X")] + dma_ops(),
             2: geo_addr()},
        mid={}, post={})
    unit_groups(b, 2,
        pre={2: [f"s_cmp_lg_u32 s{sFWX}, 0", "s_cbranch_scc1 K2_WXL", "K2_WXL_RET:"] + geo_lut(),
             3: s_build(sMB) + [f"s_mov_b32 s{sMB+1}, s{sVN+1}"],
             4: [("ds", f"ds_read_b128 {vr(R4,4)}, v{A4} offset:{LISTR+128}", "R")] + geo_cvt(),
             6: x_read(0) + [("wait", "L")] + geo_fin(),
             7: [("wait", "R")] + mads(R4)},
        mid={},
        post={2: [("wait", "P")] + geo_diff(),
              4: geo_d2()})
    unit_groups(b, 3,
        pre={0: [("wait", "S")],
             1: [("wait", "X")] + dma_ops()},
        mid={}, post={})
    a(".p2align 6")
    a.label("K2_LOOP")
    b.emit(a)
    a(f"""
    s_cmp_lg_u32 s{sNX}, 0
    s_cbranch_scc1 K2_LOOP
    """)

def gen_k2(a):
    a.label("gather_scatter__cheap_equivariant_egnn__graph_kernel")
    tmp = D[0]
    a(f"""
    s_cmp_ge_u32 s2, 256
    s_cbranch_scc1 K2_END
    s_load_dwordx4 s[4:7], s[0:1], 0
    s_load_dwordx2 s[56:57], s[0:1], 48
    s_load_dwordx2 s[58:59], s[0:1], 64
    s_load_dwordx2 s[60:61], s[0:1], 80
    v_lshrrev_b32 v1, 6, v0
    v_and_b32 v{LANE}, 63, v0
    v_readfirstlane_b32 s3, v1
    v_lshrrev_b32 v{tmp}, 1, v0
    s_movk_i32 s{sTMP+6}, {PSTR}
    v_mul_u32_u24 v{tmp}, s{sTMP+6}, v{tmp}
    s_lshl_b32 s{sTMP+7}, s2, 2
    s_add_u32 s{sTMP+7}, s{sTMP+7}, {OFF_OFF}
    v_add_u32 v{tmp+1}, s{sTMP+7}, v{tmp}
    s_mul_i32 s{sNB}, s2, {NPB}
    s_sub_u32 s{sNN}, {N}, s{sNB}
    s_min_u32 s{sNN}, s{sNN}, {NPB}
    s_movk_i32 s{sC128}, 128
    s_mov_b32 s{sPOSB}, {POSB}
    s_mov_b32 s{sM10}, 0x0000bf80
    s_mov_b32 s{s0M1}, 0xbf800000
    s_mov_b32 s{sQ}, 32
    s_mov_b32 s{sFIRST}, 1
    v_lshlrev_b32 v{LANE4}, 2, v{LANE}
    v_lshlrev_b32 v{tmp+2}, 4, v{LANE}
    s_waitcnt lgkmcnt(0)
    {srd(sWS, 60, WS_SRD)}
    buffer_load_dword v{tmp+3}, v{tmp+1}, s[{sWS}:{sWS+3}], 0 offen
    {srd(sH, 4, N*128 + 3072, sub=3072)}
    {srd(sPOS, 6, N*6)}
    {srd(sOUT, 58, N*134)}
    {srd(sWXD, 56, 128)}
    """)
    if OPT.stamps:
        a(f"s_lshl_b32 s66, s2, 4\ns_add_u32 s66, s66, s3\ns_lshl_b32 s66, s66, 6\ns_add_u32 s66, s66, {DBG_WS + 256*16*64}")
    stamp(a, 2, 0, 64)
    nvm = 0 + (1 if OPT.stamps else 0)
    a(f"v_add_u32 v{tmp+4}, {WF}, v{tmp+2}")
    for i in range(4):
        a(f"buffer_load_dwordx4 {vr(W2+4*i,4)}, v{tmp+4}, s[{sWS}:{sWS+3}], 0 offen offset:{1024*i}"); nvm += 1
    a(f"v_add_u32 v{tmp+5}, {WF+4096}, v{tmp+2}")
    for i in range(4):
        a(f"buffer_load_dwordx4 {vr(W2+16+4*i,4)}, v{tmp+5}, s[{sWS}:{sWS+3}], 0 offen offset:{1024*i}"); nvm += 1
    a(f"v_add_u32 v{tmp+5}, {WF+32*1024}, v{tmp+2}")
    for h in range(2):
        a(f"buffer_load_dwordx2 {vr(WX[h],2)}, v{tmp+5}, s[{sWS}:{sWS+3}], 0 offen offset:{1024*h}"); nvm += 1
        a(f"buffer_load_dwordx2 {vr(WX[h]+4,2)}, v{tmp+5}, s[{sWS}:{sWS+3}], 0 offen offset:{1024*h+8}"); nvm += 1
    a(f"""
    v_and_b32 v{tmp+6}, 31, v{LANE}
    v_lshlrev_b32 v{tmp+6}, 1, v{tmp+6}
    buffer_load_ushort v{WXS[0]}, v{tmp+6}, s[{sWXD}:{sWXD+3}], 0 offen
    buffer_load_ushort v{WXS[1]}, v{tmp+6}, s[{sWXD}:{sWXD+3}], 0 offen offset:64
    """); nvm += 2
    a(f"""
    s_lshr_b32 s{sTMP}, s3, 1
    s_and_b32 s{sTMP}, s{sTMP}, 1
    s_lshl_b32 s{sTMP}, s{sTMP}, 12
    s_add_u32 s{sTMP}, s{sTMP}, {WF + 8*1024}
    v_add_u32 v{tmp+5}, s{sTMP}, v{tmp+2}
    s_and_b32 s{sTMP}, s3, 1
    s_lshl_b32 s{sTMP}, s{sTMP}, 5
    s_add_u32 s{sTMP}, s{sTMP}, s{sNB}
    s_lshl_b32 s{sTMP}, s{sTMP}, 7
    s_add_u32 s{sTMP}, s{sTMP}, 3072
    v_and_b32 v{tmp+6}, 31, v{LANE}
    v_lshlrev_b32 v{tmp+6}, 7, v{tmp+6}
    v_lshrrev_b32 v{tmp+7}, 5, v{LANE}
    v_lshlrev_b32 v{tmp+7}, 4, v{tmp+7}
    v_add3_u32 v{tmp+6}, v{tmp+6}, v{tmp+7}, s{sTMP}
    s_cmp_ge_u32 s3, 4
    s_cbranch_scc1 K2_NOA1
    """)
    for i in range(4):
        a(f"buffer_load_dwordx4 {vr(ACC[0]+4*i,4)}, v{tmp+5}, s[{sWS}:{sWS+3}], 0 offen offset:{1024*i}")
    for i in range(4):
        a(f"buffer_load_dwordx4 {vr(ACC[1]+4*i,4)}, v{tmp+6}, s[{sH}:{sH+3}], 0 offen offset:{32*i}")
    a(f"""
    s_branch K2_A1DONE
    K2_NOA1:
    v_mov_b32 v{ACC[0]}, 0
    v_mov_b32 v{ACC[0]+1}, 0
    v_mov_b32 v{ACC[0]+2}, 0
    v_mov_b32 v{ACC[0]+3}, 0
    v_add_u32 v{tmp+5}, s{sNB}, v{LANE}
    v_mul_u32_u24 v{tmp+5}, 6, v{tmp+5}
    buffer_load_short_d16_hi v{ACC[0]}, v{tmp+5}, s[{sPOS}:{sPOS+3}], 0 offen
    buffer_load_short_d16_hi v{ACC[0]+1}, v{tmp+5}, s[{sPOS}:{sPOS+3}], 0 offen offset:2
    buffer_load_short_d16_hi v{ACC[0]+2}, v{tmp+5}, s[{sPOS}:{sPOS+3}], 0 offen offset:4
    K2_A1DONE:
    """); nvm += 3
    z = tmp + 8
    a(f"""
    v_mov_b32 v{z}, 0
    v_mov_b32 v{z+1}, 0
    v_mov_b32 v{z+2}, 0
    v_mov_b32 v{z+3}, 0
    v_mov_b32 v{ZERO}, 0
    v_mov_b32 v{ZERO+1}, 0
    v_lshlrev_b32 v{z+4}, 4, v0
    """)
    nz = (STG - ACCM + 8191) // 8192
    for i in range(nz):
        lim = (STG - ACCM - 8192*i) // 16
        if lim < 512:
            a(f"v_cmp_gt_u32 vcc, {lim}, v0\ns_and_saveexec_b64 s[{sTMP}:{sTMP+1}], vcc")
        a(f"ds_write_b128 v{z+4}, {vr(z,4)} offset:{ACCM + 8192*i}")
        if lim < 512:
            a("s_mov_b64 exec, -1")
    a(f"""
    v_cmp_gt_u32 vcc, {LISTL//16}, v0
    s_and_saveexec_b64 s[{sTMP}:{sTMP+1}], vcc
    ds_write_b128 v{z+4}, {vr(z,4)}
    s_mov_b64 exec, -1
    """)
    a(f"""
    v_lshrrev_b32 v{tmp+14}, 3, v{LANE}
    v_lshlrev_b32 v{G4}, 4, v{tmp+14}
    v_lshrrev_b32 v{tmp+14}, 5, v{LANE}
    v_lshlrev_b32 v{tmp+15}, 2, v{tmp+14}
    v_and_b32 v{tmp+16}, 7, v{LANE}
    v_xor_b32 v{tmp+16}, v{tmp+16}, v{tmp+15}
    """)
    for i in range(4):
        a(f"""
        v_xor_b32 v{CDMA+i}, {i}, v{tmp+16}
        v_lshlrev_b32 v{CDMA+i}, 4, v{CDMA+i}
        v_add_u32 v{CDMA+i}, {3072 - 1024*i}, v{CDMA+i}
        """)
    a(f"""
    s_lshl_b32 s{sTMP}, s3, 12
    s_add_u32 s{sTMP}, s{sTMP}, {STG}
    v_and_b32 v{tmp+15}, 3, v{LANE}
    v_bfe_u32 v{tmp+16}, v{LANE}, 2, 3
    v_lshl_add_u32 v{tmp+16}, v{tmp+15}, 3, v{tmp+16}
    v_lshlrev_b32 v{tmp+16}, 7, v{tmp+16}
    v_add_u32 v{tmp+16}, s{sTMP}, v{tmp+16}
    v_bfe_u32 v{tmp+17}, v{LANE}, 4, 1
    v_lshl_or_b32 v{tmp+15}, v{tmp+17}, 2, v{tmp+15}
    v_xor_b32 v{tmp+15}, v{tmp+15}, v{tmp+14}
    """)
    for s in range(4):
        a(f"""
        v_xor_b32 v{AX+s}, {2*s}, v{tmp+15}
        v_lshl_add_u32 v{AX+s}, v{AX+s}, 4, v{tmp+16}
        """)
    a(f"""
    s_lshl_b32 s{sTMP}, s3, 11
    s_add_u32 s{sTMP}, s{sTMP}, {SB}
    v_and_b32 v{tmp+15}, 31, v{LANE}
    v_lshlrev_b32 v{SROW}, 6, v{tmp+15}
    v_add_u32 v{SROW}, s{sTMP}, v{SROW}
    v_bfe_u32 v{tmp+16}, v{LANE}, 2, 2
    v_lshl_add_u32 v{tmp+16}, v{tmp+14}, 2, v{tmp+16}
    v_and_b32 v{tmp+18}, 3, v{LANE}
    v_lshl_add_u32 v{tmp+18}, v{tmp+17}, 2, v{tmp+18}
    v_lshlrev_b32 v{AS}, 6, v{tmp+16}
    v_lshl_add_u32 v{AS}, v{tmp+18}, 3, v{AS}
    v_add_u32 v{AS}, s{sTMP}, v{AS}
    v_lshlrev_b32 v{AWT}, 7, v{tmp+16}
    v_lshl_add_u32 v{AWT}, v{tmp+18}, 3, v{AWT}
    v_add_u32 v{AWT}, {AT}, v{AWT}
    v_mul_u32_u24 v{MADDR}, {RS}, v{tmp+14}
    v_lshl_add_u32 v{MADDR}, v{tmp+15}, 2, v{MADDR}
    v_add_u32 v{MADDR}, {ACCM}, v{MADDR}
    v_bfe_u32 v{tmp+16}, v{LANE}, 3, 2
    v_lshl_add_u32 v{tmp+16}, v{tmp+16}, 1, v{tmp+14}
    v_lshlrev_b32 v{POFF}, 4, v{tmp+16}
    """)
    NP1 = OPT.np1
    a(f"s_lshl_b32 s{sTMP}, s3, 10\nv_add_u32 v{tmp+19}, s{sTMP}, v{tmp+2}\ns_add_u32 s{sTMP+1}, s{sTMP}, {POSB}")
    def pos_piece(k):
        a(f"s_add_u32 m0, s{sTMP+1}, {8192*k}\ns_mov_b32 s{sTMP+2}, {8192*k}")
        a(f"buffer_load_dwordx4 v{tmp+19}, s[{sPOS}:{sPOS+3}], s{sTMP+2} offen lds")
    for k in range(NP1):
        pos_piece(k); nvm += 1
    a(f"""
    s_waitcnt vmcnt({nvm})
    v_and_b32 v{START}, 0xffff, v{tmp+3}
    v_lshrrev_b32 v{ENDV}, 16, v{tmp+3}
    v_and_b32 v{tmp+1}, 1, v0
    v_lshlrev_b32 v{tmp+1}, 2, v{tmp+1}
    v_add_u32 v{START}, v{START}, v{tmp+1}
    v_mov_b32 v1, v{tmp}
    """)
    stamp(a, 2, 1, 64)
    RECS = tmp
    LW = tmp + 16
    DLS = tmp + 20
    RK = tmp + 36
    BS = tmp + 52
    REM = tmp + 68; AR = tmp + 69; AL = tmp + 70; ONE = tmp + 71; PV = tmp + 72; AP = tmp + 73
    a.label("K2_ROUND")
    a(f"""
    v_mov_b32 v{AP}, v{tmp+19}
    v_and_b32 v{REM}, 1, v0
    v_lshlrev_b32 v{REM}, 2, v{REM}
    v_sub_u32 v{REM}, s{sQ}, v{REM}
    v_sub_u32 v{AR}, v{ENDV}, v{START}
    v_min_i32 v{REM}, v{REM}, v{AR}
    v_lshl_add_u32 v{AR}, v{START}, 2, v1
    v_add_u32 v{AL}, v{START}, v1
    v_add_u32 v{AL}, {L_OFF}, v{AL}
    v_mov_b32 v{ONE}, 1
    """)
    for i in range(4):
        if i >= 2:
            a(f"v_cmpx_lt_i32 vcc, {8*i}, v{REM}\ns_cbranch_execz K2_LD_DONE")
        a(f"""
        buffer_load_dwordx4 {vr(RECS+4*i,4)}, v{AR}, s[{sWS}:{sWS+3}], 0 offen offset:{32*i}
        buffer_load_dword v{LW+i}, v{AL}, s[{sWS}:{sWS+3}], 0 offen offset:{8*i}
        """)
    a(f"""
    K2_LD_DONE:
    s_mov_b64 exec, -1
    s_cmp_eq_u32 s{sFIRST}, 0
    s_cbranch_scc1 K2_NOTFIRST
    s_lshl_b32 s{sTMP}, s3, 10
    s_add_u32 s{sTMP+1}, s{sTMP}, {POSB}
    """)
    nlater = 0
    def pos_piece2(k):
        a(f"s_add_u32 m0, s{sTMP+1}, {8192*k}\ns_mov_b32 s{sTMP+2}, {8192*k}")
        a(f"buffer_load_dwordx4 v{AP}, s[{sPOS}:{sPOS+3}], s{sTMP+2} offen lds")
    for k in range(NP1, 9):
        pos_piece2(k); nlater += 1
    a(f"""
    s_cmp_ge_u32 s3, 2
    s_cbranch_scc1 K2_POSDONE
    s_cmp_eq_u32 s3, 1
    s_cselect_b64 exec, 0xffff, -1
    """)
    pos_piece2(9)
    a(f"""
    s_mov_b64 exec, -1
    K2_POSDONE:
    s_waitcnt vmcnt({nlater + 4})
    s_mov_b32 s{sTMP}, {f32(-LN2)}
    v_lshlrev_b32 v{WXS[0]}, 16, v{WXS[0]}
    v_lshlrev_b32 v{WXS[1]}, 16, v{WXS[1]}
    v_mul_f32 v{WXS[0]}, s{sTMP}, v{WXS[0]}
    v_mul_f32 v{WXS[1]}, s{sTMP}, v{WXS[1]}
    s_waitcnt lgkmcnt(0)
    s_barrier
    s_cmp_ge_u32 s3, 4
    s_cbranch_scc1 K2_NOA2
    """)
    AD = X[1]
    AD = 232 if False else None
    AD = 196 - 32
    AD = S
    a(mfma32(AD, ACC[0], ACC[1], None))
    for s in range(1, 4):
        a(mfma32(AD, ACC[0]+4*s, ACC[1]+4*s, AD))
    a(f"""
    s_and_b32 s{sTMP}, s3, 1
    s_lshl_b32 s{sTMP}, s{sTMP}, 5
    v_and_b32 v{T1}, 31, v{LANE}
    v_add_u32 v{T1}, s{sTMP}, v{T1}
    v_cmp_gt_u32 vcc, {NPB}, v{T1}
    v_lshlrev_b32 v{T1}, 7, v{T1}
    v_lshrrev_b32 v{T2}, 5, v{LANE}
    v_lshl_add_u32 v{T1}, v{T2}, 3, v{T1}
    s_lshr_b32 s{sTMP}, s3, 1
    s_lshl_b32 s{sTMP}, s{sTMP}, 6
    v_add_u32 v{T1}, s{sTMP}, v{T1}
    s_mov_b32 s{sTMP}, {f32(-L2E)}
    s_nop 7
    """)
    for r in range(16):
        a(f"v_mul_f32 v{AD+r}, s{sTMP}, v{AD+r}")
    for r in range(8):
        a(f"v_cvt_pk_bf16_f32 v{AD+r}, v{AD+2*r}, v{AD+2*r+1}")
    a(f"s_and_saveexec_b64 s[{sTMP}:{sTMP+1}], vcc")
    for q in range(4):
        a(f"ds_write_b64 v{T1}, {vr(AD+2*q,2)} offset:{AT + 16*q}")
    a(f"""
    s_mov_b64 exec, -1
    s_branch K2_A2DONE
    K2_NOA2:
    s_cmp_lg_u32 s3, 4
    s_cbranch_scc1 K2_NOPD
    v_lshlrev_b32 v{T1}, 4, v{LANE}
    v_cmp_gt_u32 vcc, {NPB}, v{LANE}
    s_and_saveexec_b64 s[{sTMP}:{sTMP+1}], vcc
    ds_write_b128 v{T1}, {vr(ACC[0],4)} offset:{POSD}
    s_mov_b64 exec, -1
    K2_NOPD:
    s_cmp_lg_u32 s3, 5
    s_cbranch_scc1 K2_A2DONE
    v_and_b32 v{T1}, 1, v{LANE}
    v_lshlrev_b32 v{T1}, 4, v{T1}
    v_mov_b32 v{T2}, 0x3f80
    v_lshlrev_b32 v{T2}, v{T1}, v{T2}
    v_lshrrev_b32 v{T1}, 1, v{LANE}
    v_lshlrev_b32 v{T1}, 2, v{T1}
    v_lshl_add_u32 v{T1}, v{LANE}, 4, v{T1}
    s_mov_b64 exec, 0xff
    ds_write_b32 v{T1}, v{T2} offset:{LUT}
    s_mov_b64 exec, -1
    K2_A2DONE:
    s_waitcnt vmcnt({nlater})
    s_branch K2_COUNT
    K2_NOTFIRST:
    s_waitcnt lgkmcnt(0)
    s_barrier
    s_waitcnt vmcnt(0)
    K2_COUNT:
    """)
    stamp(a, 2, 2, 64)
    a(f"""
    v_and_b32 v{PV}, 1, v0
    v_lshlrev_b32 v{PV}, 2, v{PV}
    v_sub_u32 v{PV}, v{START}, v{PV}
    v_add_u32 v{PV}, s{sQ}, v{PV}
    v_cmp_lt_u32 vcc, v{PV}, v{ENDV}
    s_and_saveexec_b64 s[{sTMP}:{sTMP+1}], vcc
    v_mov_b32 v{PV}, {FLAG}
    ds_write_b32 v{PV}, v{ONE}
    s_mov_b64 exec, -1
    """)
    for i in range(4):
        for k in range(4):
            s = 4*i + k
            a(f"v_cmpx_lt_i32 vcc, {8*i+k}, v{REM}")
            if k == 0:
                a("s_cbranch_execz K2_CNT_DONE")
            a(f"v_bfe_u32 v{DLS+s}, v{LW+i}, {8*k}, 8")
            a(f"ds_add_rtn_u32 v{RK+s}, v{DLS+s}, v{ONE} offset:{CNT2}")
    a(f"""
    K2_CNT_DONE:
    s_mov_b64 exec, -1
    s_waitcnt lgkmcnt(0)
    s_barrier
    """)
    stamp(a, 2, 3, 64)
    a(f"""
    ds_read_b32 v{PV}, v{LANE4} offset:{CNT2}
    v_mov_b32 v{AR}, {FLAG}
    ds_read_b32 v{AL}, v{AR}
    s_waitcnt lgkmcnt(0)
    v_mov_b32 v{AR}, v{PV}
    v_readfirstlane_b32 s{sMORE}, v{AL}
    """)
    wave_scan(a, AR)
    a(f"""
    s_nop 0
    v_readlane_b32 s{sT}, v{AR}, 63
    v_sub_u32 v{AR}, v{AR}, v{PV}
    s_cmp_le_u32 s{sT}, {CAP}
    s_cbranch_scc1 K2_FITS
    s_mov_b32 s{sQ}, 8
    s_mov_b32 s{sMORE}, 0
    s_branch K2_AGAIN
    K2_FITS:
    ds_write_b32 v{LANE4}, v{AR} offset:{PRE2}
    s_cmp_lg_u32 s3, 0
    s_cbranch_scc1 K2_NOPAD
    v_add_u32 v{AL}, s{sT}, v{LANE}
    v_mov_b32 v{PV}, {4*NPB}
    ds_write_b8 v{AL}, v{PV} offset:{LISTL}
    v_lshlrev_b32 v{AL}, 2, v{AL}
    ds_write_b32 v{AL}, v{ZERO} offset:{LISTR}
    K2_NOPAD:
    """)
    for i in range(4):
        a(f"v_cmpx_lt_i32 vcc, {8*i}, v{REM}")
        a("s_cbranch_execz K2_SR_DONE")
        for k in range(4):
            s = 4*i + k
            a(f"ds_read_b32 v{BS+s}, v{DLS+s} offset:{PRE2}")
    a("K2_SR_DONE:\ns_mov_b64 exec, -1\ns_waitcnt lgkmcnt(0)")
    for i in range(4):
        for k in range(4):
            s = 4*i + k
            a(f"v_cmpx_lt_i32 vcc, {8*i+k}, v{REM}")
            if k == 0: a("s_cbranch_execz K2_SC_DONE")
            a(f"v_add_u32 v{BS+s}, v{BS+s}, v{RK+s}")
            a(f"v_lshlrev_b32 v{RK+s}, 2, v{BS+s}")
            a(f"ds_write_b8 v{BS+s}, v{DLS+s} offset:{LISTL}")
            a(f"ds_write_b32 v{RK+s}, v{RECS+s} offset:{LISTR}")
    a(f"""
    K2_SC_DONE:
    s_mov_b64 exec, -1
    s_add_u32 s{sTMP}, s{sT}, 63
    s_lshr_b32 s{sTMP}, s{sTMP}, 6
    s_lshr_b32 s{sTMP+1}, s{sTMP}, 3
    s_and_b32 s{sTMP+2}, s{sTMP}, 7
    s_mul_i32 s{sPN}, s3, s{sTMP+1}
    s_min_u32 s{sTMP+3}, s3, s{sTMP+2}
    s_add_u32 s{sPN}, s{sPN}, s{sTMP+3}
    s_cmp_lt_u32 s3, s{sTMP+2}
    s_addc_u32 s{sTMP+1}, s{sTMP+1}, s{sPN}
    s_lshl_b32 s{sPN}, s{sPN}, 6
    s_lshl_b32 s{sEND}, s{sTMP+1}, 6
    s_min_u32 s{sEND}, s{sEND}, s{sT}
    s_lshl_b32 s{sPN4}, s{sPN}, 2
    s_lshl_b32 s{sTMP}, s3, 12
    s_add_u32 m0, s{sTMP}, {STG}
    s_waitcnt vmcnt(0) lgkmcnt(0)
    s_barrier
    """)
    stamp(a, 2, 4, 64)
    a(f"""
    s_cmp_ge_u32 s{sPN}, s{sEND}
    s_cbranch_scc1 K2_NOWORK
    """)
    RB4 = D[1]
    a(f"""
    v_add_u32 v{A4}, s{sPN4}, v{G4}
    ds_read_b128 {vr(R4,4)}, v{A4} offset:{LISTR}
    v_add_u32 v{TA}, s{sPN4}, v{LANE4}
    ds_read_b32 v{REC}, v{TA} offset:{LISTR}
    v_add_u32 v{TA}, s{sPN}, v{LANE}
    ds_read_u8 v{DL4}, v{TA} offset:{LISTL}
    ds_read_b128 {vr(RB4,4)}, v{A4} offset:{LISTR+128}
    s_sub_u32 s{sTMP}, s{sEND}, s{sPN}
    v_cmp_gt_i32 s[{sMR}:{sMR+1}], s{sTMP}, v{LANE}
    s_mov_b32 s{sFWX}, 0
    s_mov_b32 s{sFFL}, 0
    s_mov_b32 s{sMA+1}, 0
    s_mov_b32 s{sMB}, 0
    s_waitcnt lgkmcnt(3)
    """)
    plain(a, mads(R4))
    plain(a, dma_ops())
    a(f"""
    s_waitcnt lgkmcnt(0)
    v_readfirstlane_b32 s{sWB}, v{DL4}
    s_nop 0
    s_min_u32 s{sWB}, s{sWB}, {4*(NPB-8)}
    """)
    window_masks(a)
    wx_load(a)
    plain(a, geo_addr())
    plain(a, geo_lut())
    a(f"""
    s_bcnt1_i32_b64 s{sNX}, s[{sVN}:{sVN+1}]
    s_add_u32 s{sPN}, s{sPN}, s{sNX}
    s_lshl_b32 s{sPN4}, s{sPN}, 2
    s_mov_b32 s{sMA}, s{sVN}
    s_mov_b32 s{sMB+1}, s{sVN+1}
    """)
    plain(a, mads(RB4))
    for h in range(2):
        for r in range(16):
            a(f"v_mov_b32 v{ACC[h]+r}, 0")
    for r in range(8):
        a(f"v_mov_b32 v{S+r}, 0\nv_mov_b32 v{M[1]+r}, 0\nv_mov_b32 v{T+r}, 1.0")
    a(f"v_mov_b32 v{D[1]+14}, 0\nv_mov_b32 v{D[1]+15}, 0")
    a("s_waitcnt lgkmcnt(0)")
    plain(a, geo_diff())
    a("s_nop 2")
    plain(a, geo_cvt())
    a("s_nop 2")
    plain(a, geo_d2())
    a("s_nop 2")
    plain(a, geo_fin())
    plain(a, x_read(0))
    a("s_nop 0")
    a(mfma32(D[0], XX, WX[0] + 2, None))
    a("s_waitcnt lgkmcnt(0)")
    plain(a, dma_ops())
    for s in range(4):
        a(mfma32(D[0], X[0] + 4*s, W2 + 4*s, D[0]))
    a("s_nop 10")
    stamp(a, 2, 5, 64)
    gen_main_loop(a)
    stamp(a, 2, 6, 64)
    t2 = T + 2 * (7 % 4); y2 = D[1] + 14; t6 = T + 2 * (6 % 4)
    a(f"""
    {mfma32(ACC[1], S, M[1], ACC[1])}
    v_cvt_pk_bf16_f32 v{M[1]+6}, v{t6}, v{t6+1}
    v_rcp_f32 v{t2}, v{t2}
    v_rcp_f32 v{t2+1}, v{t2+1}
    s_nop 0
    v_pk_mul_f32 {vr(t2,2)}, {vr(t2,2)}, {vr(y2,2)}
    v_cvt_pk_bf16_f32 v{M[1]+7}, v{t2}, v{t2+1}
    s_nop 1
    {mfma32(ACC[1], S+4, M[1]+4, ACC[1])}
    s_mov_b32 s{sWBO}, s{sWB}
    """)
    epi_loads(a)
    flush_code(a, False)
    a("s_branch K2_WDONE")
    a.label("K2_FLUSH")
    flush_code(a, True)
    a(f"s_mov_b32 s{sFFL}, 0\ns_branch K2_FLUSH_RET")
    a.label("K2_REBASE")
    a(f"""
    s_mov_b32 s{sWBO}, s{sWB}
    v_readfirstlane_b32 s{sWB}, v{DL4}
    s_mov_b32 s{sFWX}, 1
    s_mov_b32 s{sFFL}, 1
    s_min_u32 s{sWB}, s{sWB}, {4*(NPB-8)}
    """)
    window_masks(a)
    a("s_branch K2_REBASE_RET")
    a.label("K2_WXL")
    wx_load(a)
    a(f"s_mov_b32 s{sFWX}, 0\ns_branch K2_WXL_RET")
    a.label("K2_NOWORK")
    epi_loads(a)
    a.label("K2_WDONE")
    stamp(a, 2, 7, 64)
    a(f"""
    s_cmp_eq_u32 s{sMORE}, 0
    s_cbranch_scc1 K2_EPI
    v_add_u32 v{START}, s{sQ}, v{START}
    v_and_b32 v{T1}, 1, v0
    v_lshlrev_b32 v{T1}, 2, v{T1}
    v_add_u32 v{T1}, v{T1}, v{ENDV}
    v_min_u32 v{START}, v{START}, v{T1}
    K2_AGAIN:
    s_waitcnt vmcnt(0) lgkmcnt(0)
    s_barrier
    s_mov_b32 s{sFIRST}, 0
    s_cmp_lg_u32 s3, 0
    s_cbranch_scc1 K2_ROUND
    ds_write_b32 v{LANE4}, v{ZERO} offset:{CNT2}
    v_mov_b32 v{T1}, {FLAG}
    ds_write_b32 v{T1}, v{ZERO}
    s_branch K2_ROUND
    """)
    MF = D[1]
    MB_ = M[0]
    U = ACC[0]
    a(f"""
    K2_EPI:
    s_and_b32 s{sTMP}, s3, 3
    s_lshl_b32 s{sTMP}, s{sTMP}, 4
    v_and_b32 v{T1}, 15, v{LANE}
    v_add_u32 v{T1}, s{sTMP}, v{T1}
    v_mul_u32_u24 v{T2}, {RS}, v{T1}
    v_and_b32 v{TA}, 48, v{LANE}
    v_lshl_add_u32 v{T2}, v{TA}, 1, v{T2}
    s_mov_b32 s{sTMP+2}, {f32(-LN2)}
    v_mov_b32 v{PS}, s{sTMP+2}
    s_waitcnt lgkmcnt(0)
    s_barrier
    """)
    stamp(a, 2, 8, 64)
    for s in range(2):
        a(f"ds_read_b128 {vr(MF+8*s,4)}, v{T2} offset:{ACCM + 128*s}")
        a(f"ds_read_b128 {vr(MF+8*s+4,4)}, v{T2} offset:{ACCM + 128*s + 16}")
    a(f"""
    s_movk_i32 s{sTMP+3}, 21846
    v_mul_u32_u24 v{DX}, s{sTMP+3}, v0
    v_lshrrev_b32 v{DX}, 16, v{DX}
    v_add_lshl_u32 v{DX}, v{DX}, v0, 2
    ds_read_b32 v{DX+1}, v{DX} offset:{POSD}
    ds_read_b32 v{DX+2}, v{DX} offset:{ACCP}
    s_waitcnt vmcnt(0)
    v_mfma_f32_16x16x32_bf16 {vr(U,4)}, {vr(X[0],4)}, {vr(D[0],4)}, 0
    v_mfma_f32_16x16x32_bf16 {vr(U+4,4)}, {vr(X[0]+16,4)}, {vr(D[0],4)}, 0
    v_mfma_f32_16x16x32_bf16 {vr(U,4)}, {vr(X[0]+4,4)}, {vr(D[0]+4,4)}, {vr(U,4)}
    v_mfma_f32_16x16x32_bf16 {vr(U+4,4)}, {vr(X[0]+20,4)}, {vr(D[0]+4,4)}, {vr(U+4,4)}
    s_waitcnt lgkmcnt(2)
    """)
    for r in range(16):
        a(f"v_mul_f32 v{MF+r}, s{sTMP+2}, v{MF+r}")
    for r in range(8):
        a(f"v_cvt_pk_bf16_f32 v{MB_+r}, v{MF+2*r}, v{MF+2*r+1}")
    a(f"""
    s_nop 1
    v_mfma_f32_16x16x32_bf16 {vr(U,4)}, {vr(X[0]+8,4)}, {vr(MB_,4)}, {vr(U,4)}
    v_mfma_f32_16x16x32_bf16 {vr(U+4,4)}, {vr(X[0]+24,4)}, {vr(MB_,4)}, {vr(U+4,4)}
    v_mfma_f32_16x16x32_bf16 {vr(U,4)}, {vr(X[0]+12,4)}, {vr(MB_+4,4)}, {vr(U,4)}
    v_mfma_f32_16x16x32_bf16 {vr(U+4,4)}, {vr(X[0]+28,4)}, {vr(MB_+4,4)}, {vr(U+4,4)}
    s_waitcnt lgkmcnt(0)
    v_add_f32 v{DX+1}, v{DX+1}, v{DX+2}
    v_cvt_pk_bf16_f32 v{DX+1}, v{DX+1}, v{DX+1}
    s_mul_i32 s{sTMP+4}, s{sNB}, 6
    s_add_u32 s{sTMP+4}, s{sTMP+4}, {N*128}
    v_lshl_add_u32 v{DX}, v0, 1, s{sTMP+4}
    s_mul_i32 s{sTMP+5}, s{sNN}, 3
    v_cmp_gt_u32 vcc, s{sTMP+5}, v0
    s_and_saveexec_b64 s[{sTMP+6}:{sTMP+7}], vcc
    s_cbranch_execz K2_NOPOS
    buffer_store_short v{DX+1}, v{DX}, s[{sOUT}:{sOUT+3}], 0 offen
    K2_NOPOS:
    s_mov_b64 exec, -1
    s_cmp_lt_u32 s3, 4
    s_cbranch_scc1 K2_HLO
    v_mov_b32 v{D[0]}, v{D[0]+4}
    v_mov_b32 v{D[0]+1}, v{D[0]+5}
    v_mov_b32 v{D[0]+2}, v{D[0]+6}
    v_mov_b32 v{D[0]+3}, v{D[0]+7}
    K2_HLO:
    s_mov_b32 s{sTMP+2}, {f32(-L2E)}
    s_mov_b32 s{sTMP+3}, 0xffff0000
    """)
    HR = MF
    for r in range(4):
        a(f"v_lshlrev_b32 v{HR+2*r}, 16, v{D[0]+r}")
        a(f"v_and_b32 v{HR+2*r+1}, s{sTMP+3}, v{D[0]+r}")
    EX = MF + 8
    for r in range(8):
        a(f"v_mul_f32 v{EX+r}, s{sTMP+2}, v{U+r}")
    for r in range(8):
        a(f"v_exp_f32 v{EX+r}, v{EX+r}")
    for r in range(8):
        a(f"v_add_f32 v{EX+r}, 1.0, v{EX+r}")
    for r in range(8):
        a(f"v_rcp_f32 v{EX+r}, v{EX+r}")
    for r in range(8):
        a(f"v_fmac_f32 v{HR+r}, v{EX+r}, v{U+r}")
    for r in range(4):
        a(f"v_cvt_pk_bf16_f32 v{EX+r}, v{HR+2*r}, v{HR+2*r+1}")
    a(f"""
    s_lshr_b32 s{sTMP+4}, s3, 2
    s_lshl_b32 s{sTMP+4}, s{sTMP+4}, 6
    s_lshl_b32 s{sTMP+5}, s{sNB}, 7
    s_add_u32 s{sTMP+4}, s{sTMP+4}, s{sTMP+5}
    v_lshlrev_b32 v{T2}, 7, v{T1}
    v_add3_u32 v{T2}, v{T2}, v{TA}, s{sTMP+4}
    v_cmp_gt_u32 vcc, s{sNN}, v{T1}
    s_and_saveexec_b64 s[{sTMP+6}:{sTMP+7}], vcc
    s_cbranch_execz K2_END
    buffer_store_dwordx4 {vr(EX,4)}, v{T2}, s[{sOUT}:{sOUT+3}], 0 offen
    """)
    if OPT.stamps:
        a("s_waitcnt vmcnt(0)")
    stamp(a, 2, 9, 64)
    a("K2_END:\ns_endpgm")

HEADER = """; EGNN layer (gather / edge MLP / scatter) for gfx950, two launches:
; Kernarg: h 0, pos 8, e_attr 16, src 24, dst 32, w_e 40, w_x 48, w_h 56, out 64, debug 72, ws 80
; @launch kernel=egnn_bin_kernel grid=(256,1,1) block=(1024,1,1) lds={l1}
; @launch kernel=gather_scatter__cheap_equivariant_egnn__graph_kernel grid=(256,1,1) block=(512,1,1) lds={l2}
.amdgcn_target "amdgcn-amd-amdhsa--gfx950"
.text
"""
KD = """.amdhsa_kernel {name}
  .amdhsa_next_free_vgpr {nv}
  .amdhsa_next_free_sgpr 96
  .amdhsa_accum_offset {nv}
  .amdhsa_group_segment_fixed_size 0
  .amdhsa_kernarg_size 88
  .amdhsa_user_sgpr_count 2
  .amdhsa_user_sgpr_kernarg_segment_ptr 1
  .amdhsa_system_sgpr_workgroup_id_x 1
.end_amdhsa_kernel
"""

def generate(stamps=False, np1=4):
    OPT.stamps = stamps; OPT.np1 = np1
    a1 = Asm(); l1 = gen_k1(a1)
    a2 = Asm(); gen_k2(a2)
    k1n = "egnn_bin_kernel"; k2n = "gather_scatter__cheap_equivariant_egnn__graph_kernel"
    s = HEADER.format(l1=l1, l2=LDS2)
    s += f".globl {k1n}\n.p2align 8\n.type {k1n},@function\n" + a1.text()
    s += f".globl {k2n}\n.p2align 8\n.type {k2n},@function\n" + a2.text()
    s += '.section .rodata,"a"\n.p2align 6\n' + KD.format(name=k1n, nv=72)
    s += ".p2align 6\n" + KD.format(name=k2n, nv=NV2)
    return s

if __name__ == "__main__":
    out = sys.argv[1]
    kw = {}
    for x in sys.argv[2:]:
        k, v = x.split("="); kw[k] = int(v)
    open(out, "w").write(generate(**kw))
    print("LDS2", LDS2, "LISTL", LISTL, "LISTR", LISTR, "AT", AT, "ACCM", ACCM, "SB", SB, "STG", STG, "POSB", POSB)
```

```python
import sys, struct

N = 12500; E = 800000
NPB = 49
CH = 3136
PSTR = 16768
L_OFF = CH * 4
OFF_OFF = L_OFF + CH
WF = 256 * PSTR
WS_USED = WF + 34 * 1024
DBG_WS = WS_USED + 4096
WS_SRD = DBG_WS + (1 << 20)
L2E = 1.4426950408889634
LN2 = 0.6931471805599453

def f32(x):
    return "0x%08x" % struct.unpack("<I", struct.pack("<f", x))[0]

class Asm:
    def __init__(self):
        self.L = []
    def __call__(self, s):
        for ln in s.strip("\n").split("\n"):
            ln = ln.strip()
            if ln:
                self.L.append(ln if ln.endswith(":") else "    " + ln)
    def label(self, s):
        self.L.append(s + ":")
    def text(self):
        return "\n".join(self.L) + "\n"

def vr(a, n):
    return f"v[{a}:{a+n-1}]"

def srd(a, base, nbytes, sub=0):
    o = []
    if sub:
        o.append(f"s_sub_u32 s{a}, s{base}, {sub}")
        o.append(f"s_subb_u32 s{a+1}, s{base+1}, 0")
    else:
        o.append(f"s_mov_b32 s{a}, s{base}")
        o.append(f"s_mov_b32 s{a+1}, s{base+1}")
    o.append(f"s_mov_b32 s{a+2}, {nbytes}")
    o.append(f"s_mov_b32 s{a+3}, 0x00020000")
    return "\n".join(o)

def wave_scan(a, v):
    for ctl in ("row_shr:1", "row_shr:2", "row_shr:4", "row_shr:8"):
        a("s_nop 1")
        a(f"v_add_u32_dpp v{v}, v{v}, v{v} {ctl} row_mask:0xf bank_mask:0xf bound_ctrl:0")
    a("s_nop 1")
    a(f"v_add_u32_dpp v{v}, v{v}, v{v} row_bcast:15 row_mask:0xa bank_mask:0xf")
    a("s_nop 1")
    a(f"v_add_u32_dpp v{v}, v{v}, v{v} row_bcast:31 row_mask:0xc bank_mask:0xf")

class Opt:
    stamps = False
OPT = Opt()

def stamp(a, kern, idx, stmp, real=False):
    if not OPT.stamps:
        return
    if not real and idx not in OPT.stampset: return
    sv = 250 if kern == 2 else 70
    a(f"""
    {'s_memrealtime' if real else 's_memtime'} s[{stmp}:{stmp+1}]
    s_waitcnt lgkmcnt(0)
    v_mov_b32 v{sv}, s{stmp}
    v_mov_b32 v{sv+1}, s{stmp+2}
    s_mov_b64 s[{stmp}:{stmp+1}], exec
    s_mov_b64 exec, 1
    buffer_store_dword v{sv}, v{sv+1}, s[{12 if kern == 2 else 20}:{15 if kern == 2 else 23}], 0 offen offset:{idx*4}
    s_mov_b64 exec, s[{stmp}:{stmp+1}]
    """)

def gen_k1(a):
    CNT, PRE, RB = 0, 1024, 2048
    a.label("egnn_bin_kernel")
    a(f"""
    s_cmp_ge_u32 s2, 256
    s_cbranch_scc1 K1_END
    s_load_dwordx4 s[32:35], s[0:1], 16
    s_load_dwordx4 s[36:39], s[0:1], 32
    s_load_dwordx2 s[40:41], s[0:1], 56
    s_load_dwordx2 s[42:43], s[0:1], 80
    v_lshrrev_b32 v1, 6, v0
    v_and_b32 v6, 63, v0
    v_readfirstlane_b32 s3, v1
    v_lshlrev_b32 v2, 2, v0
    v_mov_b32 v3, 0
    s_mul_i32 s44, s2, {CH}
    s_sub_u32 s45, {E}, s44
    s_lshr_b32 s45, s45, 2
    s_min_u32 s45, s45, {CH//4}
    s_mul_i32 s49, s2, {PSTR}
    s_lshl_b32 s46, s44, 2
    s_lshl_b32 s47, s44, 1
    v_lshlrev_b32 v4, 4, v0
    v_lshlrev_b32 v5, 3, v0
    v_add_u32 v4, s46, v4
    v_add_u32 v5, s47, v5
    s_cmp_ge_u32 s3, 4
    s_cbranch_scc1 K1_NOZERO
    ds_write_b32 v2, v3 offset:{CNT}
    K1_NOZERO:
    s_waitcnt lgkmcnt(0)
    {srd(8, 36, E*4)}
    {srd(12, 34, E*4)}
    {srd(16, 32, E*2)}
    {srd(20, 42, WS_SRD)}
    """)
    if OPT.stamps:
        a(f"s_lshl_b32 s62, s2, 4\ns_add_u32 s62, s62, s3\ns_lshl_b32 s62, s62, 6\ns_add_u32 s62, s62, {DBG_WS}")
    stamp(a, 1, 0, 60)
    stamp(a, 1, 14, 60, True)
    a(f"""
    v_cmp_gt_u32 vcc, s45, v0
    s_and_saveexec_b64 s[50:51], vcc
    s_mov_b64 s[52:53], exec
    s_cbranch_execz K1_NOLOAD
    buffer_load_dwordx4 v[8:11], v4, s[8:11], 0 offen
    K1_NOLOAD:
    s_mov_b64 exec, -1
    s_cmp_lg_u32 s3, 15
    s_cbranch_scc1 K1_NOW
    s_cmp_ge_u32 s2, 34
    s_cbranch_scc1 K1_NOW
    """)
    a(f"""
    s_lshl_b32 s54, s2, 10
    s_add_u32 s54, s54, {WF}
    v_lshlrev_b32 v50, 4, v6
    v_add_u32 v50, s54, v50
    s_cmp_ge_u32 s2, 32
    s_cbranch_scc1 K1_WEXTRA
    s_cmp_ge_u32 s2, 16
    s_cbranch_scc1 K1_WH
    {srd(24, 38, 130*128)}
    s_and_b32 s55, s2, 3
    s_lshl_b32 s55, s55, 11
    s_lshr_b32 s56, s2, 2
    s_and_b32 s56, s56, 1
    s_lshl_b32 s56, s56, 6
    s_add_u32 s55, s55, s56
    s_cmp_lt_u32 s2, 8
    s_cselect_b32 s56, {64*128}, 0
    s_add_u32 s55, s55, s56
    s_cmp_lt_u32 s2, 8
    s_cselect_b32 s57, {f32(-L2E)}, 1.0
    v_lshrrev_b32 v51, 5, v6
    v_lshlrev_b32 v51, 10, v51
    v_and_b32 v52, 31, v6
    v_lshl_add_u32 v51, v52, 1, v51
    v_add_u32 v51, s55, v51
    s_branch K1_WGEN
    K1_WH:
    {srd(24, 40, 128*128)}
    s_and_b32 s55, s2, 3
    s_lshl_b32 s55, s55, 12
    s_lshr_b32 s56, s2, 3
    s_and_b32 s56, s56, 1
    s_lshl_b32 s56, s56, 6
    s_add_u32 s55, s55, s56
    s_lshr_b32 s56, s2, 2
    s_and_b32 s56, s56, 1
    s_lshl_b32 s56, s56, 3
    s_add_u32 s55, s55, s56
    s_mov_b32 s57, 1.0
    v_lshrrev_b32 v51, 4, v6
    v_lshlrev_b32 v51, 10, v51
    v_bfe_u32 v52, v6, 2, 2
    v_lshl_add_u32 v51, v52, 4, v51
    v_and_b32 v52, 3, v6
    v_lshl_add_u32 v51, v52, 1, v51
    v_add_u32 v51, s55, v51
    K1_WGEN:
    """)
    for j in range(8):
        a(f"buffer_load_ushort v{54+j}, v51, s[24:27], 0 offen offset:{128*j}")
    a("s_waitcnt vmcnt(0)")
    for j in range(8):
        a(f"v_lshlrev_b32 v{54+j}, 16, v{54+j}")
    for j in range(8):
        a(f"v_mul_f32 v{54+j}, s57, v{54+j}")
    for j in range(4):
        a(f"v_cvt_pk_bf16_f32 v{64+j}, v{54+2*j}, v{55+2*j}")
    a(f"""
    buffer_store_dwordx4 v[64:67], v50, s[20:23], 0 offen
    s_branch K1_NOW
    K1_WEXTRA:
    {srd(24, 38, 130*128)}
    s_and_b32 s55, s2, 1
    s_lshl_b32 s55, s55, 6
    s_add_u32 s55, s55, {128*128}
    v_and_b32 v52, 31, v6
    v_lshlrev_b32 v51, 1, v52
    v_add_u32 v51, s55, v51
    buffer_load_ushort v54, v51, s[24:27], 0 offen
    buffer_load_ushort v55, v51, s[24:27], 0 offen offset:128
    s_mov_b32 s57, {f32(-L2E)}
    s_waitcnt vmcnt(0)
    v_lshlrev_b32 v54, 16, v54
    v_lshlrev_b32 v55, 16, v55
    v_mul_f32 v54, s57, v54
    v_mul_f32 v55, s57, v55
    v_cvt_pk_bf16_f32 v56, v54, v54
    v_lshlrev_b32 v56, 16, v56
    v_sub_f32 v57, v54, v56
    v_cvt_pk_bf16_f32 v58, v56, v57
    v_cvt_pk_bf16_f32 v59, 0, v55
    v_cmp_gt_u32 vcc, 32, v6
    s_nop 1
    v_cndmask_b32 v64, v58, 0, vcc
    v_cndmask_b32 v65, v59, 0, vcc
    v_cndmask_b32 v66, 0, v58, vcc
    v_cndmask_b32 v67, 0, v59, vcc
    buffer_store_dwordx4 v[64:67], v50, s[20:23], 0 offen
    K1_NOW:
    s_waitcnt lgkmcnt(0)
    s_barrier
    s_mov_b64 exec, s[52:53]
    s_cbranch_execz K1_NOCNT
    buffer_load_dwordx4 v[12:15], v4, s[12:15], 0 offen
    buffer_load_dwordx2 v[16:17], v5, s[16:19], 0 offen
    s_movk_i32 s48, 21400
    v_mov_b32 v36, 1
    s_waitcnt vmcnt(2)
    """)
    for j in range(4):
        a(f"""
        v_mul_u32_u24 v{20+j}, s48, v{8+j}
        v_lshrrev_b32 v{20+j}, 20, v{20+j}
        v_mul_u32_u24 v{24+j}, {NPB}, v{20+j}
        v_lshlrev_b32 v{28+j}, 2, v{20+j}
        ds_add_rtn_u32 v{32+j}, v{28+j}, v36 offset:{CNT}
        v_sub_u32 v{24+j}, v{8+j}, v{24+j}
        v_lshlrev_b32 v{24+j}, 2, v{24+j}
        """)
    a(f"""
    K1_NOCNT:
    s_mov_b64 exec, -1
    s_waitcnt lgkmcnt(0)
    s_barrier
    """)
    stamp(a, 1, 1, 60)
    a(f"""
    s_cmp_eq_u64 s[52:53], 0
    s_cbranch_scc1 K1_NOSCAT
    v_lshlrev_b32 v7, 4, v6
    ds_read_b128 v[40:43], v7 offset:{CNT}
    s_waitcnt lgkmcnt(0)
    v_add_u32 v41, v40, v41
    v_add_u32 v42, v41, v42
    v_add_u32 v43, v42, v43
    v_mov_b32 v44, v43
    """)
    wave_scan(a, 44)
    a(f"""
    v_sub_u32 v46, v44, v43
    v_add_u32 v47, v46, v40
    v_add_u32 v48, v46, v41
    v_add_u32 v49, v46, v42
    ds_write_b128 v7, v[46:49] offset:{PRE}
    s_waitcnt vmcnt(0)
    s_cmp_lg_u32 s3, 0
    s_cbranch_scc1 K1_NOOFF
    v_lshl_or_b32 v52, v47, 16, v46
    v_lshl_or_b32 v53, v48, 16, v47
    v_lshl_or_b32 v54, v49, 16, v48
    v_lshl_or_b32 v55, v44, 16, v49
    s_add_u32 s54, s49, {OFF_OFF}
    v_add_u32 v56, s54, v7
    buffer_store_dwordx4 v[52:55], v56, s[20:23], 0 offen
    K1_NOOFF:
    s_mov_b64 exec, s[52:53]
    """)
    for j in range(4):
        a(f"ds_read_b32 v{40+j}, v{28+j} offset:{PRE}")
    a(f"""
    s_mov_b32 s55, 0xffff0000
    v_lshl_or_b32 v12, v16, 16, v12
    v_and_or_b32 v13, v16, s55, v13
    v_lshl_or_b32 v14, v17, 16, v14
    v_and_or_b32 v15, v17, s55, v15
    """)
    for j in range(4):
        a(f"""
        s_waitcnt lgkmcnt({3-j + (2*j)})
        v_add_u32 v{40+j}, v{40+j}, v{32+j}
        v_lshlrev_b32 v{44+j}, 2, v{40+j}
        ds_write_b8 v{40+j}, v{24+j} offset:{RB + L_OFF}
        ds_write_b32 v{44+j}, v{12+j} offset:{RB}
        """)
    a(f"""
    K1_NOSCAT:
    s_mov_b64 exec, -1
    s_waitcnt lgkmcnt(0)
    s_barrier
    """)
    stamp(a, 1, 2, 60)
    a(f"""
    v_lshlrev_b32 v4, 4, v0
    v_add_u32 v5, s49, v4
    v_cmp_gt_u32 vcc, {OFF_OFF//16}, v0
    s_and_saveexec_b64 s[50:51], vcc
    s_cbranch_execz K1_END
    ds_read_b128 v[8:11], v4 offset:{RB}
    s_waitcnt lgkmcnt(0)
    buffer_store_dwordx4 v[8:11], v5, s[20:23], 0 offen
    """)
    if OPT.stamps:
        a("s_waitcnt vmcnt(0)")
    stamp(a, 1, 3, 60)
    stamp(a, 1, 15, 60, True)
    a("K1_END:\ns_endpgm")
    return RB + OFF_OFF

CAP = 3456
RS = 272
CNT2 = 0; PRE2 = 256; FLAG = 512; LUT = 528; POSD = 672; ACCP = POSD + 800
LISTL = ACCP + 784 + 0
LISTL = (LISTL + 15) // 16 * 16
LISTR = LISTL + CAP + 64
AT = LISTR + (CAP + 64) * 4
ACCM = AT + NPB * 128
SB = ACCM + NPB * RS
SB = (SB + 63) // 64 * 64
STG = SB + 8 * 2048
POSB = STG + 8 * 4096
LDS2 = POSB + 75008
assert LDS2 <= 163840, LDS2
assert LISTR % 16 == 0 and AT % 16 == 0 and ACCM % 16 == 0 and STG % 16 == 0

ACC = [2, 18]; D = [34, 50]; M = [66, 74]; X = [82, 98]
W2 = 114; WX = [146, 152]; XX = 158; S = 164; T = 172
CDMA = 180; AX = 184; AS = 188; LANE = 189; G4 = 190; SROW = 191
R4 = 192; REC = 196; DL4 = 197; REL = 198; TA = 199
PS = 229; PD = 202; DX = 206; DD = 209; DXY = 210; SADDR = 212; A4 = 213; AS1 = 200
ZERO = 214; WXS = [216, 218]; MADDR = 220; POFF = 221; AWT = 222; T1 = 223; T2 = 224
LANE4 = 225; ALUT = 226; START = 227; ENDV = 228
FL = 232
NV2 = 252
sH, sWS, sPOS, sOUT, sWXD = 8, 12, 16, 20, 24
sNB, sNN, sC128, sPOSB, sM10, s0M1 = 28, 29, 30, 31, 32, 33
sPN, sEND, sWB, sWBO, sFWX, sFFL = 34, 35, 36, 37, 38, 39
sMA, sMB, sVN, sMR = 40, 42, 44, 46
sNX, sQ, sFIRST, sT, sPN4, sMORE = 48, 49, 50, 51, 52, 53
sTMP = 56
sPM, sCM, sF0 = 72, 74, 76

def mfma32(d, a_, b_, c):
    cc = "0" if c is None else vr(c, 16)
    return f"v_mfma_f32_32x32x16_bf16 {vr(d,16)}, {vr(a_,4)}, {vr(b_,4)}, {cc}"

def flush_code(a, rezero, tag):
    OLD = FL; NEW = FL + 9
    items = [(T1, 2*q*RS + 128*h, ACC[h]+4*q+3) for q in range(4) for h in range(2)]
    a(f"""
    s_mul_i32 s{sTMP}, s{sWBO}, {RS//4}
    s_lshl_b32 s{sTMP+1}, s{sWBO}, 2
    v_add_u32 v{T1}, s{sTMP}, v{MADDR}
    v_add_u32 v{T2}, s{sTMP+1}, v{POFF}
    """)
    for i, (ad, off, x) in enumerate(items):
        a(f"ds_read_b32 v{OLD+i}, v{ad} offset:{off}")
    a(f"ds_read_b32 v{OLD+8}, v{T2} offset:{ACCP}")
    for q in range(4):
        r0 = ACC[0] + 4*q; r1 = ACC[1] + 4*q
        a(f"v_pk_mul_f32 {vr(r0,2)}, {vr(r0,2)}, {vr(WXS[0],2)} op_sel_hi:[1,0]")
        a(f"v_mul_f32 v{r0+2}, v{r0+2}, v{WXS[0]}")
        a(f"v_pk_fma_f32 {vr(r0,2)}, {vr(r1,2)}, {vr(WXS[1],2)}, {vr(r0,2)} op_sel_hi:[1,0,1]")
        a(f"v_fmac_f32 v{r0+2}, v{r1+2}, v{WXS[1]}")
    a("s_waitcnt lgkmcnt(0)")
    for i, (ad, off, x) in enumerate(items):
        a(f"v_add_f32 v{NEW+i}, v{OLD+i}, v{x}")
    for i, (ad, off, x) in enumerate(items):
        a(f"ds_cmpst_rtn_b32 v{NEW+i}, v{ad}, v{OLD+i}, v{NEW+i} offset:{off}")
    for q in range(2):
        for c in range(3):
            a(f"v_permlane16_swap_b32 v{ACC[0]+4*q+c}, v{ACC[0]+4*(q+2)+c}")
    a("s_nop 1")
    for q in range(2):
        for c in range(3):
            a(f"v_add_f32 v{ACC[0]+4*q+c}, v{ACC[0]+4*q+c}, v{ACC[0]+4*(q+2)+c}")
    c0 = ACC[0]
    a("s_nop 1")
    for c in range(3):
        a(f"v_add_f32_dpp v{c0+c}, v{c0+c}, v{c0+c} row_ror:8 row_mask:0xf bank_mask:0x3")
    for c in range(3):
        a(f"v_add_f32_dpp v{c0+c}, v{c0+4+c}, v{c0+4+c} row_ror:8 row_mask:0xf bank_mask:0xc")
    a(f"""
    s_nop 0
    v_add_f32_dpp v{c0}, v{c0}, v{c0} row_half_mirror row_mask:0xf bank_mask:0x5
    v_add_f32_dpp v{c0+2}, v{c0+2}, v{c0+2} row_half_mirror row_mask:0xf bank_mask:0xf
    v_add_f32_dpp v{c0}, v{c0+1}, v{c0+1} row_half_mirror row_mask:0xf bank_mask:0xa
    s_nop 0
    v_add_f32_dpp v{c0+2}, v{c0+2}, v{c0+2} quad_perm:[1,0,3,2] row_mask:0xf bank_mask:0xf
    v_add_f32_dpp v{c0}, v{c0}, v{c0} quad_perm:[1,0,3,2] row_mask:0xf bank_mask:0xf
    s_nop 0
    v_add_f32_dpp v{c0+2}, v{c0+2}, v{c0+2} quad_perm:[2,3,0,1] row_mask:0xf bank_mask:0xf
    v_add_f32_dpp v{c0}, v{c0}, v{c0} quad_perm:[2,3,0,1] row_mask:0xf bank_mask:0xf
    v_cndmask_b32 v{c0}, v{c0}, v{c0+2}, s[{sCM}:{sCM+1}]
    v_add_f32 v{NEW+8}, v{OLD+8}, v{c0}
    s_mov_b64 exec, s[{sPM}:{sPM+1}]
    ds_cmpst_rtn_b32 v{NEW+8}, v{T2}, v{OLD+8}, v{NEW+8} offset:{ACCP}
    s_mov_b64 exec, -1
    s_waitcnt lgkmcnt(1)
    """)
    for i in range(8):
        a(f"v_cmp_ne_u32 s[{sF0+2*i}:{sF0+2*i+1}], v{NEW+i}, v{OLD+i}")
    a(f"""
    s_waitcnt lgkmcnt(0)
    v_cmp_ne_u32 vcc, v{NEW+8}, v{OLD+8}
    s_and_b64 s[{sF0+16}:{sF0+17}], vcc, s[{sPM}:{sPM+1}]
    s_or_b64 s[{sTMP}:{sTMP+1}], s[{sF0+16}:{sF0+17}], s[{sF0}:{sF0+1}]
    """)
    for i in range(1, 8):
        a(f"s_or_b64 s[{sTMP}:{sTMP+1}], s[{sTMP}:{sTMP+1}], s[{sF0+2*i}:{sF0+2*i+1}]")
    a(f"s_cbranch_scc0 K2_FOK_{tag}")
    for i, (ad, off, x) in enumerate(items + [(T2, ACCP, c0)]):
        a(f"""
        v_cmp_neq_f32 vcc, 0, v{x}
        s_and_b64 exec, vcc, s[{sF0+2*i}:{sF0+2*i+1}]
        ds_add_f32 v{ad}, v{x} offset:{off}
        s_mov_b64 exec, -1
        """)
    a("s_waitcnt lgkmcnt(0)")
    a.label(f"K2_FOK_{tag}")
    if rezero:
        for h in range(2):
            for r in range(16):
                a(f"v_mov_b32 v{ACC[h]+r}, 0")

def window_masks(a):
    a(f"""
    v_subrev_u32 v{REL}, s{sWB}, v{DL4}
    v_cmp_gt_u32 vcc, 32, v{REL}
    s_and_b64 s[{sVN}:{sVN+1}], vcc, s[{sMR}:{sMR+1}]
    """)

def wx_load(a):
    a(f"""
    s_lshl_b32 s{sTMP}, s{sWB}, 5
    v_add_u32 v{T1}, s{sTMP}, v{AWT}
    ds_read_b64_tr_b16 {vr(WX[0]+2,2)}, v{T1}
    ds_read_b64_tr_b16 {vr(WX[1]+2,2)}, v{T1} offset:64
    """)

def epi_loads(a):
    a(f"""
    s_lshr_b32 s{sTMP}, s3, 2
    s_lshl_b32 s{sTMP}, s{sTMP}, 13
    s_add_u32 s{sTMP}, s{sTMP}, {WF + 16*1024}
    v_lshlrev_b32 v{T1}, 4, v{LANE}
    v_add_u32 v{T1}, s{sTMP}, v{T1}
    s_and_b32 s{sTMP}, s3, 3
    s_lshl_b32 s{sTMP}, s{sTMP}, 4
    s_add_u32 s{sTMP}, s{sTMP}, s{sNB}
    s_lshl_b32 s{sTMP}, s{sTMP}, 7
    s_add_u32 s{sTMP}, s{sTMP}, 3072
    v_and_b32 v{T2}, 15, v{LANE}
    v_lshlrev_b32 v{T2}, 7, v{T2}
    v_and_b32 v{TA}, 48, v{LANE}
    v_add3_u32 v{T2}, v{T2}, v{TA}, s{sTMP}
    """)
    for i in range(4):
        a(f"buffer_load_dwordx4 {vr(X[0]+4*i,4)}, v{T1}, s[{sWS}:{sWS+3}], 0 offen offset:{1024*i}")
    a(f"v_add_u32 v{T1}, 4096, v{T1}")
    for i in range(4):
        a(f"buffer_load_dwordx4 {vr(X[0]+16+4*i,4)}, v{T1}, s[{sWS}:{sWS+3}], 0 offen offset:{1024*i}")
    a(f"buffer_load_dwordx4 {vr(D[0],4)}, v{T2}, s[{sH}:{sH+3}], 0 offen")
    a(f"buffer_load_dwordx4 {vr(D[0]+4,4)}, v{T2}, s[{sH}:{sH+3}], 0 offen offset:64")

def dma_tile(a):
    for i in range(4):
        a(f"buffer_load_dwordx4 v{R4+i}, s[{sH}:{sH+3}], 0 offen offset:{1024*i} lds")

def mads(src):
    return [f"v_mad_u32_u16 v{R4+i}, v{src+i}, s{sC128}, v{CDMA+i}" for i in range(4)]

class Body:
    def __init__(self):
        self.it = []
    def op(self, s): self.it.append(("op", s))
    def ds(self, s, tag=None): self.it.append(("ds", s, tag))
    def wait(self, tag): self.it.append(("wait", tag))
    def emit(self, a):
        ab = OPT.abl
        def drop(x):
            t = x[1] if x[0] != "wait" else ""
            if ab & 1 and ("lds" in t and "buffer_load" in t or "vmcnt" in t): return True
            if ab & 2 and (("v%d" % SADDR in t and "ds_write" in t) or ("v%d offset" % AS in t and "tr_b16" in t)): return True
            if ab & 4 and ("ds_read_b64 v[%d" % PS in t): return True
            if ab & 8 and ("v_dot2" in t): return True
            if ab & 16 and ("ds_read_b128" in t and any("v%d" % (AX+k) == t.split()[-1] for k in range(4))): return True
            if ab & 32 and ("v_mfma" in t): return True
            if ab & 64 and ("ds_write" in t): return True
            if ab & 128 and ("s_cbranch" in t or "s_cmp" in t): return True
            if ab & 256 and x[0] == "ds": return True
            if ab & 2048 and ("ds_read_b128 v[%d" % R4 in t): return True
            if ab & 4096 and ("ds_read_b32" in t): return True
            if ab & 8192 and ("ds_read_b128 v[%d" % PD in t): return True
            if ab & 16384 and ("ds_read_b64 v[%d" % XX in t or "ds_read_b64 v[%d" % (XX+4) in t): return True
            if ab & 32768 and ("ds_read_u8" in t): return True
            if ab & 65536 and x[0] == "wait": return True
            if ab & 512 and t.startswith("s_"): return True
            if ab & 1024 and t.startswith("v_") and not any(k in t for k in ("v_exp", "v_rcp", "v_pk_", "v_cvt_pk_bf16_f32 v6", "v_cvt_pk_bf16_f32 v7", "v_cvt_pk_bf16_f32 v8", "v_mfma")): return True
            return False
        tags = {x[2] for x in self.it if x[0] == "ds" and drop(x)}
        self.it = [x for x in self.it if not drop(x) and not (x[0] == "wait" and x[1] in tags)]
        n = len(self.it)
        for i, x in enumerate(self.it):
            if x[0] == "wait":
                cnt = 0; j = i - 1; found = False
                for _ in range(n):
                    y = self.it[j % n]
                    if y[0] == "ds":
                        if y[2] == x[1]:
                            found = True; break
                        cnt += 1
                    j -= 1
                assert found, x
                a(f"s_waitcnt lgkmcnt({min(cnt,15)})")
            else:
                a(x[1])

def unit_groups(b, u, pre, mid, post):
    h = u % 2; ph = 1 - h
    ntile = (u + 1) // 2 % 2
    xx = XX if ntile == 0 else XX + 2
    wx = WX[ph] + 2 if ntile == 0 else WX[ph]
    mf = {0: mfma32(ACC[ph], S, M[ph], ACC[ph]),
          1: mfma32(D[ph], xx, wx, None),
          2: mfma32(ACC[ph], S + 4, M[ph] + 4, ACC[ph])}
    for s in range(4):
        mf[3 + s] = mfma32(D[ph], X[ntile] + 4*s, W2 + 16*ph + 4*s, D[ph])
    def put(lst):
        for x in lst:
            if isinstance(x, str): b.op(x)
            elif x[0] == "ds": b.ds(x[1], x[2] if len(x) > 2 else None)
            elif x[0] == "wait": b.wait(x[1])
    for g in range(8):
        put(pre.get(g, []))
        if g in mf: b.op(mf[g])
        p = g - 2; hh = h
        if p < 0: p += 8; hh = ph
        t = T + 2 * (p % 4)
        b.op(f"v_cvt_pk_bf16_f32 v{M[hh]+p}, v{t}, v{t+1}")
        t = T + 2 * (g % 4); y = D[h] + 2 * g
        b.op(f"v_exp_f32 v{t}, v{y}")
        b.op(f"v_exp_f32 v{t+1}, v{y+1}")
        p = g - 1; hh = h
        if p < 0: p += 8; hh = ph
        t2 = T + 2 * (p % 4); y2 = D[hh] + 2 * p
        b.op(f"v_rcp_f32 v{t2}, v{t2}")
        b.op(f"v_rcp_f32 v{t2+1}, v{t2+1}")
        put(mid.get(g, []))
        b.op(f"v_pk_add_f32 {vr(t,2)}, {vr(t,2)}, 1.0 op_sel_hi:[1,0]")
        b.op(f"v_pk_mul_f32 {vr(t2,2)}, {vr(t2,2)}, {vr(y2,2)}")
        put(post.get(g, []))

def s_build(mask):
    o = [f"s_mov_b64 exec, s[{mask}:{mask+1}]",
         ("ds", f"ds_write_b64 v{SADDR}, {vr(DXY,2)}"),
         "s_mov_b64 exec, -1"]
    for k in range(4):
        o.append(("ds", f"ds_read_b64_tr_b16 {vr(S+2*k,2)}, v{AS1 if k & 1 else AS} offset:{1024*(k>>1)}", "S" if k == 3 else None))
    o += [f"s_mov_b64 exec, s[{mask}:{mask+1}]",
          ("ds", f"ds_write_b64 v{SADDR}, {vr(ZERO,2)}"),
          "s_mov_b64 exec, -1"]
    return o

def x_read(t):
    o = ["s_waitcnt vmcnt(0)"]
    for s in range(4):
        o.append(("ds", f"ds_read_b128 {vr(X[t]+4*s,4)}, v{AX+s}", "X" if s == 3 else None))
    return o

def dma_ops():
    return [f"buffer_load_dwordx4 v{R4+i}, s[{sH}:{sH+3}], 0 offen offset:{1024*i} lds" for i in range(4)]

def geo_addr():
    return [f"v_mad_u32_u16 v{TA}, v{REC}, 6, s{sPOSB}",
            ("ds", f"ds_read_u16_d16_hi v{PS}, v{TA}"),
            ("ds", f"ds_read_u16_d16_hi v{PS+1}, v{TA} offset:2"),
            ("ds", f"ds_read_u16_d16_hi v{PS+2}, v{TA} offset:4"),
            f"v_lshlrev_b32 v{TA}, 2, v{DL4}",
            ("ds", f"ds_read_b128 {vr(PD,4)}, v{TA} offset:{POSD}", "P"),
            f"v_min_u32 v{REL}, 32, v{REL}",
            f"v_lshlrev_b32 v{ALUT}, 1, v{REL}"]
def geo_lut():
    return [("ds", f"ds_read_b64 {vr(XX,2)}, v{ALUT} offset:{LUT}"),
            ("ds", f"ds_read_b64 {vr(XX+4,2)}, v{ALUT} offset:{LUT+72}", "L"),
            f"v_mov_b32 v{XX+3}, v{REC}"]
def geo_diff():
    return [f"v_sub_f32 v{DX+c}, v{PD+c}, v{PS+c}" for c in range(3)]
def geo_cvt():
    return [f"v_cvt_pk_bf16_f32 v{DXY}, v{DX}, v{DX+1}",
            f"v_cvt_pk_bf16_f32 v{DXY+1}, v{DX+2}, 1.0",
            f"v_xor_b32 v{SADDR}, v{ALUT}, v{SROW}"]
def geo_d2():
    return [f"v_dot2_f32_bf16 v{DD}, v{DXY+1}, v{DXY+1}, -1.0",
            f"v_dot2_f32_bf16 v{DD}, v{DXY}, v{DXY}, v{DD}"]
def geo_fin():
    return [f"v_cvt_pk_bf16_f32 v{XX+2}, v{DD}, v{DD}",
            f"v_permlane32_swap_b32 v{XX}, v{XX+4}",
            f"v_permlane32_swap_b32 v{XX+1}, v{XX+5}"]

def plain(a, lst):
    for x in lst:
        a(x if isinstance(x, str) else x[1])

def gen_main_loop(a):
    b = Body()
    unit_groups(b, 0,
        pre={0: [("wait", "S")] if False else [],
             3: s_build(sMA),
             4: [f"v_add_u32 v{A4}, s{sPN4}, v{G4}",
                 ("ds", f"ds_read_b128 {vr(R4,4)}, v{A4} offset:{LISTR}", "R"),
                 f"v_add_u32 v{TA}, s{sPN4}, v{LANE4}",
                 ("ds", f"ds_read_b32 v{REC}, v{TA} offset:{LISTR}"),
                 f"v_add_u32 v{TA}, s{sPN}, v{LANE}",
                 ("ds", f"ds_read_u8 v{DL4}, v{TA} offset:{LISTL}", "E")],
             5: [f"s_cmp_lg_u32 s{sFFL}, 0", "s_cbranch_scc1 K2_FLUSH", "K2_FLUSH_RET:"],
             6: x_read(1),
             7: [("wait", "R")] + mads(R4)},
        mid={}, post={})
    unit_groups(b, 1,
        pre={0: [("wait", "E"),
                 f"s_sub_u32 s{sTMP}, s{sEND}, s{sPN}",
                 f"v_subrev_u32 v{REL}, s{sWB}, v{DL4}",
                 f"v_cmp_gt_i32 s[{sMR}:{sMR+1}], s{sTMP}, v{LANE}",
                 f"v_cmp_gt_u32 vcc, 32, v{REL}"],
             1: [f"s_and_b64 s[{sVN}:{sVN+1}], vcc, s[{sMR}:{sMR+1}]",
                 f"s_cmp_lg_u64 s[{sVN}:{sVN+1}], s[{sMR}:{sMR+1}]",
                 "s_cbranch_scc1 K2_REBASE", "K2_REBASE_RET:",
                 f"s_bcnt1_i32_b64 s{sNX}, s[{sVN}:{sVN+1}]",
                 f"s_add_u32 s{sPN}, s{sPN}, s{sNX}",
                 f"s_lshl_b32 s{sPN4}, s{sPN}, 2",
                 f"s_mov_b32 s{sMA}, s{sVN}",
                 ("wait", "X")] + dma_ops(),
             2: geo_addr()},
        mid={}, post={})
    unit_groups(b, 2,
        pre={2: [f"s_cmp_lg_u32 s{sFWX}, 0", "s_cbranch_scc1 K2_WXL", "K2_WXL_RET:"] + geo_lut(),
             3: s_build(sMB) + [f"s_mov_b32 s{sMB+1}, s{sVN+1}"],
             4: [("ds", f"ds_read_b128 {vr(R4,4)}, v{A4} offset:{LISTR+128}", "R")] + geo_cvt(),
             6: x_read(0) + [("wait", "L")] + geo_fin(),
             7: [("wait", "R")] + mads(R4)},
        mid={},
        post={2: [("wait", "P")] + geo_diff(),
              4: geo_d2()})
    unit_groups(b, 3,
        pre={0: [("wait", "S")],
             1: [("wait", "X")] + dma_ops()},
        mid={}, post={})
    a(".p2align 6")
    a.label("K2_LOOP")
    b.emit(a)
    if OPT.abl:
        a("s_sub_u32 s70, s70, 1\ns_cmp_lg_u32 s70, 0\ns_cbranch_scc1 K2_LOOP")
    else:
        a(f"""
        s_cmp_lg_u32 s{sNX}, 0
        s_cbranch_scc1 K2_LOOP
        """)

def gen_k2(a):
    a.label("gather_scatter__cheap_equivariant_egnn__graph_kernel")
    tmp = D[0]
    a(f"""
    s_cmp_ge_u32 s2, 256
    s_cbranch_scc1 K2_END
    s_load_dwordx4 s[4:7], s[0:1], 0
    s_lshr_b32 s54, s2, 3
    s_and_b32 s2, s2, 7
    s_lshl_b32 s2, s2, 5
    s_add_u32 s2, s2, s54
    s_load_dwordx2 s[56:57], s[0:1], 48
    s_load_dwordx2 s[58:59], s[0:1], 64
    s_load_dwordx2 s[60:61], s[0:1], 80
    v_lshrrev_b32 v1, 6, v0
    v_and_b32 v{LANE}, 63, v0
    v_readfirstlane_b32 s3, v1
    v_lshrrev_b32 v{tmp}, 1, v0
    s_movk_i32 s{sTMP+6}, {PSTR}
    v_mul_u32_u24 v{tmp}, s{sTMP+6}, v{tmp}
    s_lshl_b32 s{sTMP+7}, s2, 2
    s_add_u32 s{sTMP+7}, s{sTMP+7}, {OFF_OFF}
    v_add_u32 v{tmp+1}, s{sTMP+7}, v{tmp}
    s_mul_i32 s{sNB}, s2, {NPB}
    s_sub_u32 s{sNN}, {N}, s{sNB}
    s_min_u32 s{sNN}, s{sNN}, {NPB}
    s_movk_i32 s{sC128}, 128
    s_mov_b32 s{sPOSB}, {POSB}
    s_mov_b32 s{sM10}, 0x0000bf80
    s_mov_b32 s{s0M1}, 0xbf800000
    s_mov_b32 s{sQ}, 32
    s_mov_b32 s{sFIRST}, 1
    v_lshlrev_b32 v{LANE4}, 2, v{LANE}
    v_lshlrev_b32 v{tmp+2}, 4, v{LANE}
    s_waitcnt lgkmcnt(0)
    {srd(sWS, 60, WS_SRD)}
    buffer_load_dword v{tmp+3}, v{tmp+1}, s[{sWS}:{sWS+3}], 0 offen
    {srd(sH, 4, N*128 + 3072, sub=3072)}
    {srd(sPOS, 6, N*6)}
    {srd(sOUT, 58, N*134)}
    {srd(sWXD, 56, 128)}
    """)
    if OPT.stamps:
        a(f"s_lshl_b32 s66, s2, 4\ns_add_u32 s66, s66, s3\ns_lshl_b32 s66, s66, 6\ns_add_u32 s66, s66, {DBG_WS + 256*16*64}")
    stamp(a, 2, 0, 64)
    stamp(a, 2, 14, 64, True)
    nvm = 0 + (2 if OPT.stamps else 0)
    WT = STG; HT = STG + 18*1024
    a(f"""
    s_lshl_b32 s{sTMP}, s3, 10
    s_add_u32 m0, s{sTMP}, {WT}
    s_add_u32 s{sTMP+1}, s{sTMP}, {WF}
    buffer_load_dwordx4 v{tmp+2}, s[{sWS}:{sWS+3}], s{sTMP+1} offen lds
    s_add_u32 m0, s{sTMP}, {WT + 8192}
    s_add_u32 s{sTMP+1}, s{sTMP}, {WF + 8192}
    buffer_load_dwordx4 v{tmp+2}, s[{sWS}:{sWS+3}], s{sTMP+1} offen lds
    v_lshrrev_b32 v{tmp+5}, 3, v{LANE}
    v_lshrrev_b32 v{tmp+6}, 4, v{LANE}
    s_and_b32 s{sTMP+2}, s3, 1
    s_lshl_b32 s{sTMP+2}, s{sTMP+2}, 2
    v_or_b32 v{tmp+6}, s{sTMP+2}, v{tmp+6}
    v_and_b32 v{tmp+7}, 7, v{LANE}
    v_xor_b32 v{tmp+6}, v{tmp+6}, v{tmp+7}
    v_lshlrev_b32 v{tmp+6}, 4, v{tmp+6}
    v_lshl_add_u32 v{tmp+6}, v{tmp+5}, 7, v{tmp+6}
    s_lshl_b32 s{sTMP+1}, s{sNB}, 7
    s_add_u32 s{sTMP+1}, s{sTMP+1}, s{sTMP}
    s_add_u32 s{sTMP+1}, s{sTMP+1}, 3072
    s_add_u32 m0, s{sTMP}, {HT}
    v_and_b32 v{tmp+7}, 31, v{LANE}
    buffer_load_dwordx4 v{tmp+6}, s[{sH}:{sH+3}], s{sTMP+1} offen lds
    v_lshlrev_b32 v{tmp+7}, 1, v{tmp+7}
    buffer_load_ushort v{WXS[0]}, v{tmp+7}, s[{sWXD}:{sWXD+3}], 0 offen
    buffer_load_ushort v{WXS[1]}, v{tmp+7}, s[{sWXD}:{sWXD+3}], 0 offen offset:64
    s_cmp_ge_u32 s3, 2
    s_cbranch_scc1 K2_NOEX
    s_add_u32 m0, s{sTMP}, {WT + 16384}
    s_add_u32 s{sTMP+1}, s{sTMP}, {WF + 32*1024}
    buffer_load_dwordx4 v{tmp+2}, s[{sWS}:{sWS+3}], s{sTMP+1} offen lds
    K2_NOEX:
    s_cmp_lg_u32 s3, 4
    s_cbranch_scc1 K2_A1DONE
    v_mov_b32 v{ACC[0]}, 0
    v_mov_b32 v{ACC[0]+1}, 0
    v_mov_b32 v{ACC[0]+2}, 0
    v_mov_b32 v{ACC[0]+3}, 0
    v_add_u32 v{tmp+5}, s{sNB}, v{LANE}
    v_mul_u32_u24 v{tmp+5}, 6, v{tmp+5}
    buffer_load_short_d16_hi v{ACC[0]}, v{tmp+5}, s[{sPOS}:{sPOS+3}], 0 offen
    buffer_load_short_d16_hi v{ACC[0]+1}, v{tmp+5}, s[{sPOS}:{sPOS+3}], 0 offen offset:2
    buffer_load_short_d16_hi v{ACC[0]+2}, v{tmp+5}, s[{sPOS}:{sPOS+3}], 0 offen offset:4
    K2_A1DONE:
    """); nvm += 5
    z = tmp + 8
    a(f"""
    v_mov_b32 v{z}, 0
    v_mov_b32 v{z+1}, 0
    v_mov_b32 v{z+2}, 0
    v_mov_b32 v{z+3}, 0
    v_mov_b32 v{ZERO}, 0
    v_mov_b32 v{ZERO+1}, 0
    v_lshlrev_b32 v{z+4}, 4, v0
    """)
    nz = (STG - ACCM + 8191) // 8192
    for i in range(nz):
        lim = (STG - ACCM - 8192*i) // 16
        if lim < 512:
            a(f"v_cmp_gt_u32 vcc, {lim}, v0\ns_and_saveexec_b64 s[{sTMP}:{sTMP+1}], vcc")
        a(f"ds_write_b128 v{z+4}, {vr(z,4)} offset:{ACCM + 8192*i}")
        if lim < 512:
            a("s_mov_b64 exec, -1")
    a(f"""
    v_cmp_gt_u32 vcc, {LISTL//16}, v0
    s_and_saveexec_b64 s[{sTMP}:{sTMP+1}], vcc
    ds_write_b128 v{z+4}, {vr(z,4)}
    s_mov_b64 exec, -1
    """)
    a(f"""
    v_lshrrev_b32 v{tmp+14}, 3, v{LANE}
    v_lshlrev_b32 v{G4}, 4, v{tmp+14}
    v_lshrrev_b32 v{tmp+14}, 5, v{LANE}
    v_lshlrev_b32 v{tmp+15}, 2, v{tmp+14}
    v_and_b32 v{tmp+16}, 7, v{LANE}
    v_xor_b32 v{tmp+16}, v{tmp+16}, v{tmp+15}
    """)
    for i in range(4):
        a(f"""
        v_xor_b32 v{CDMA+i}, {i}, v{tmp+16}
        v_lshlrev_b32 v{CDMA+i}, 4, v{CDMA+i}
        v_add_u32 v{CDMA+i}, {3072 - 1024*i}, v{CDMA+i}
        """)
    a(f"""
    s_lshl_b32 s{sTMP}, s3, 12
    s_add_u32 s{sTMP}, s{sTMP}, {STG}
    v_and_b32 v{tmp+15}, 3, v{LANE}
    v_bfe_u32 v{tmp+16}, v{LANE}, 2, 3
    v_lshl_add_u32 v{tmp+16}, v{tmp+15}, 3, v{tmp+16}
    v_lshlrev_b32 v{tmp+16}, 7, v{tmp+16}
    v_add_u32 v{tmp+16}, s{sTMP}, v{tmp+16}
    v_bfe_u32 v{tmp+17}, v{LANE}, 4, 1
    v_lshl_or_b32 v{tmp+15}, v{tmp+17}, 2, v{tmp+15}
    v_xor_b32 v{tmp+15}, v{tmp+15}, v{tmp+14}
    """)
    for s in range(4):
        a(f"""
        v_xor_b32 v{AX+s}, {2*s}, v{tmp+15}
        v_lshl_add_u32 v{AX+s}, v{AX+s}, 4, v{tmp+16}
        """)
    a(f"""
    s_lshl_b32 s{sTMP}, s3, 11
    s_add_u32 s{sTMP}, s{sTMP}, {SB}
    v_and_b32 v{tmp+15}, 31, v{LANE}
    v_lshlrev_b32 v{SROW}, 6, v{tmp+15}
    v_add_u32 v{SROW}, s{sTMP}, v{SROW}
    v_bfe_u32 v{tmp+16}, v{LANE}, 1, 3
    v_lshl_add_u32 v{SROW}, v{tmp+16}, 3, v{SROW}
    v_bfe_u32 v{tmp+16}, v{LANE}, 2, 2
    v_lshl_add_u32 v{tmp+16}, v{tmp+14}, 2, v{tmp+16}
    v_and_b32 v{tmp+18}, 3, v{LANE}
    v_lshl_add_u32 v{tmp+18}, v{tmp+17}, 2, v{tmp+18}
    v_lshrrev_b32 v{tmp+20}, 1, v{tmp+16}
    v_xor_b32 v{tmp+20}, v{tmp+20}, v{tmp+18}
    v_lshlrev_b32 v{AS}, 6, v{tmp+16}
    v_add_u32 v{AS}, s{sTMP}, v{AS}
    v_xor_b32 v{tmp+21}, 4, v{tmp+20}
    v_lshl_add_u32 v{AS1}, v{tmp+21}, 3, v{AS}
    v_add_u32 v{AS1}, 512, v{AS1}
    v_lshl_add_u32 v{AS}, v{tmp+20}, 3, v{AS}
    v_lshlrev_b32 v{AWT}, 7, v{tmp+16}
    v_lshl_add_u32 v{AWT}, v{tmp+18}, 3, v{AWT}
    v_add_u32 v{AWT}, {AT}, v{AWT}
    v_mul_u32_u24 v{MADDR}, {RS}, v{tmp+14}
    v_lshl_add_u32 v{MADDR}, v{tmp+15}, 2, v{MADDR}
    v_add_u32 v{MADDR}, {ACCM}, v{MADDR}
    v_bfe_u32 v{tmp+16}, v{LANE}, 3, 2
    v_lshl_add_u32 v{tmp+16}, v{tmp+16}, 1, v{tmp+14}
    v_lshlrev_b32 v{POFF}, 4, v{tmp+16}
    v_and_b32 v{tmp+16}, 4, v{LANE}
    v_add_u32 v{POFF}, v{POFF}, v{tmp+16}
    v_and_b32 v{tmp+16}, 1, v{LANE}
    v_lshl_add_u32 v{POFF}, v{tmp+16}, 3, v{POFF}
    v_mov_b32 v{PS}, 0
    v_mov_b32 v{PS+1}, 0
    v_mov_b32 v{PS+2}, 0
    s_mov_b32 s{sPM}, 0x13131313
    s_mov_b32 s{sPM+1}, 0x13131313
    s_mov_b32 s{sCM}, 0x02020202
    s_mov_b32 s{sCM+1}, 0x02020202
    """)
    a(f"s_lshl_b32 s{sTMP}, s3, 10\nv_add_u32 v{tmp+19}, s{sTMP}, v{tmp+2}")
    if OPT.np1:
        a(f"""
        s_mul_i32 s{sTMP+1}, s54, 19*128
        v_lshlrev_b32 v{tmp+20}, 7, v{LANE}
        v_add_u32 v{tmp+20}, s{sTMP+1}, v{tmp+20}
        s_cmp_lg_u32 s3, 7
        s_cbranch_scc1 K2_NOTOUCH
        s_mov_b64 exec, 0x7ffff
        buffer_load_dword v{tmp+21}, v{tmp+20}, s[{sPOS}:{sPOS+3}], 0 offen
        s_mov_b64 exec, -1
        K2_NOTOUCH:
        """)
    a(f"""
    s_waitcnt vmcnt({nvm})
    v_and_b32 v{START}, 0xffff, v{tmp+3}
    v_lshrrev_b32 v{ENDV}, 16, v{tmp+3}
    v_and_b32 v{tmp+1}, 1, v0
    v_lshlrev_b32 v{tmp+1}, 2, v{tmp+1}
    v_add_u32 v{START}, v{START}, v{tmp+1}
    v_mov_b32 v1, v{tmp}
    """)
    stamp(a, 2, 1, 64)
    RECS = tmp
    LW = tmp + 16
    DLS = tmp + 20
    RK = tmp + 36
    BS = tmp + 52
    REM = tmp + 68; AR = tmp + 69; AL = tmp + 70; ONE = tmp + 71; PV = tmp + 72; AP = tmp + 73
    a.label("K2_ROUND")
    a(f"""
    v_mov_b32 v{AP}, v{tmp+19}
    v_and_b32 v{REM}, 1, v0
    v_lshlrev_b32 v{REM}, 2, v{REM}
    v_sub_u32 v{REM}, s{sQ}, v{REM}
    v_sub_u32 v{AR}, v{ENDV}, v{START}
    v_min_i32 v{REM}, v{REM}, v{AR}
    v_lshl_add_u32 v{AR}, v{START}, 2, v1
    v_add_u32 v{AL}, v{START}, v1
    v_add_u32 v{AL}, {L_OFF}, v{AL}
    v_mov_b32 v{ONE}, 1
    """)
    for i in range(4):
        if i >= 2:
            a(f"v_cmpx_lt_i32 vcc, {8*i}, v{REM}\ns_cbranch_execz K2_LD_DONE")
        a(f"""
        buffer_load_dwordx4 {vr(RECS+4*i,4)}, v{AR}, s[{sWS}:{sWS+3}], 0 offen offset:{32*i}
        buffer_load_dword v{LW+i}, v{AL}, s[{sWS}:{sWS+3}], 0 offen offset:{8*i}
        """)
    a(f"""
    K2_LD_DONE:
    s_mov_b64 exec, -1
    s_cmp_eq_u32 s{sFIRST}, 0
    s_cbranch_scc1 K2_NOTFIRST
    s_lshl_b32 s{sTMP}, s3, 10
    s_add_u32 s{sTMP+1}, s{sTMP}, {POSB}
    """)
    nlater = 9
    a(f"""
    s_mul_i32 s{sTMP+3}, s54, 57
    s_lshr_b32 s{sTMP+3}, s{sTMP+3}, 9
    s_mul_i32 s{sTMP+3}, s{sTMP+3}, 9
    s_sub_u32 s{sTMP+3}, s54, s{sTMP+3}
    s_lshl_b32 s{sTMP+2}, s{sTMP+3}, 13
    """)
    for k in range(9):
        a(f"""
        s_add_u32 m0, s{sTMP+1}, s{sTMP+2}
        s_nop 0
        buffer_load_dwordx4 v{AP}, s[{sPOS}:{sPOS+3}], s{sTMP+2} offen lds
        """)
        if k < 8:
            a(f"""
            s_add_u32 s{sTMP+2}, s{sTMP+2}, 8192
            s_cmp_eq_u32 s{sTMP+2}, {9*8192}
            s_cselect_b32 s{sTMP+2}, 0, s{sTMP+2}
            """)
    a(f"""
    s_cmp_ge_u32 s3, 2
    s_cbranch_scc1 K2_POSDONE
    s_cmp_eq_u32 s3, 1
    s_cselect_b64 exec, 0xffff, -1
    s_add_u32 m0, s{sTMP+1}, {8192*9}
    s_mov_b32 s{sTMP+2}, {8192*9}
    buffer_load_dwordx4 v{AP}, s[{sPOS}:{sPOS+3}], s{sTMP+2} offen lds
    s_mov_b64 exec, -1
    K2_POSDONE:
    s_waitcnt vmcnt({nlater + 4})
    s_mov_b32 s{sTMP}, {f32(-LN2)}
    v_lshlrev_b32 v{WXS[0]}, 16, v{WXS[0]}
    v_lshlrev_b32 v{WXS[1]}, 16, v{WXS[1]}
    v_mul_f32 v{WXS[0]}, s{sTMP}, v{WXS[0]}
    v_mul_f32 v{WXS[1]}, s{sTMP}, v{WXS[1]}
    v_lshlrev_b32 v{T1}, 4, v{LANE}
    v_add_u32 v{T1}, {WT}, v{T1}
    s_waitcnt lgkmcnt(0)
    s_barrier
    """)
    stamp(a, 2, 10, 64)
    for i in range(8):
        a(f"ds_read_b128 {vr(W2+4*i,4)}, v{T1} offset:{1024*i}")
    for h in range(2):
        a(f"ds_read_b64 {vr(WX[h],2)}, v{T1} offset:{16384 + 1024*h}")
        a(f"ds_read_b64 {vr(WX[h]+4,2)}, v{T1} offset:{16384 + 1024*h + 8}")
    a(f"""
    s_cmp_ge_u32 s3, 4
    s_cbranch_scc1 K2_NOA2
    s_lshr_b32 s{sTMP}, s3, 1
    s_lshl_b32 s{sTMP}, s{sTMP}, 12
    v_add_u32 v{T1}, s{sTMP}, v{T1}
    s_and_b32 s{sTMP}, s3, 1
    s_lshl_b32 s{sTMP}, s{sTMP}, 12
    s_add_u32 s{sTMP}, s{sTMP}, {HT}
    v_and_b32 v{T2}, 31, v{LANE}
    v_lshlrev_b32 v{T2}, 7, v{T2}
    v_add_u32 v{T2}, s{sTMP}, v{T2}
    v_bfe_u32 v{TA}, v{LANE}, 1, 3
    v_lshrrev_b32 v{REL}, 5, v{LANE}
    v_xor_b32 v{TA}, v{TA}, v{REL}
    """)
    for i in range(4):
        a(f"ds_read_b128 {vr(ACC[0]+4*i,4)}, v{T1} offset:{8192 + 1024*i}")
        a(f"v_xor_b32 v{REL}, {2*i}, v{TA}\nv_lshl_add_u32 v{REL}, v{REL}, 4, v{T2}")
        a(f"ds_read_b128 {vr(ACC[1]+4*i,4)}, v{REL}")
    AD = S
    a("s_waitcnt lgkmcnt(0)")
    a(mfma32(AD, ACC[0], ACC[1], None))
    for s in range(1, 4):
        a(mfma32(AD, ACC[0]+4*s, ACC[1]+4*s, AD))
    a(f"""
    s_and_b32 s{sTMP}, s3, 1
    s_lshl_b32 s{sTMP}, s{sTMP}, 5
    v_and_b32 v{T1}, 31, v{LANE}
    v_add_u32 v{T1}, s{sTMP}, v{T1}
    v_cmp_gt_u32 vcc, {NPB}, v{T1}
    v_lshlrev_b32 v{T1}, 7, v{T1}
    v_lshrrev_b32 v{T2}, 5, v{LANE}
    v_lshl_add_u32 v{T1}, v{T2}, 3, v{T1}
    s_lshr_b32 s{sTMP}, s3, 1
    s_lshl_b32 s{sTMP}, s{sTMP}, 6
    v_add_u32 v{T1}, s{sTMP}, v{T1}
    s_mov_b32 s{sTMP}, {f32(-L2E)}
    s_nop 7
    """)
    for r in range(16):
        a(f"v_mul_f32 v{AD+r}, s{sTMP}, v{AD+r}")
    for r in range(8):
        a(f"v_cvt_pk_bf16_f32 v{AD+r}, v{AD+2*r}, v{AD+2*r+1}")
    a(f"s_and_saveexec_b64 s[{sTMP}:{sTMP+1}], vcc")
    for q in range(4):
        a(f"ds_write_b64 v{T1}, {vr(AD+2*q,2)} offset:{AT + 16*q}")
    a(f"""
    s_mov_b64 exec, -1
    s_branch K2_A2DONE
    K2_NOA2:
    s_cmp_lg_u32 s3, 4
    s_cbranch_scc1 K2_NOPD
    v_lshlrev_b32 v{T1}, 4, v{LANE}
    v_cmp_gt_u32 vcc, {NPB}, v{LANE}
    s_and_saveexec_b64 s[{sTMP}:{sTMP+1}], vcc
    ds_write_b128 v{T1}, {vr(ACC[0],4)} offset:{POSD}
    s_mov_b64 exec, -1
    K2_NOPD:
    s_cmp_lg_u32 s3, 5
    s_cbranch_scc1 K2_A2DONE
    v_and_b32 v{T1}, 1, v{LANE}
    v_lshlrev_b32 v{T1}, 4, v{T1}
    v_mov_b32 v{T2}, 0x3f80
    v_lshlrev_b32 v{T2}, v{T1}, v{T2}
    v_lshrrev_b32 v{T1}, 2, v{LANE}
    v_mul_u32_u24 v{T1}, 72, v{T1}
    v_lshl_add_u32 v{T1}, v{LANE}, 3, v{T1}
    v_and_b32 v{TA}, 2, v{LANE}
    v_lshl_add_u32 v{T1}, v{TA}, 1, v{T1}
    s_mov_b64 exec, 0xff
    ds_write_b32 v{T1}, v{T2} offset:{LUT}
    s_mov_b64 exec, -1
    K2_A2DONE:
    s_waitcnt vmcnt({nlater})
    s_branch K2_COUNT
    K2_NOTFIRST:
    s_waitcnt lgkmcnt(0)
    s_barrier
    s_waitcnt vmcnt(0)
    K2_COUNT:
    """)
    stamp(a, 2, 2, 64)
    a(f"""
    v_and_b32 v{PV}, 1, v0
    v_lshlrev_b32 v{PV}, 2, v{PV}
    v_sub_u32 v{PV}, v{START}, v{PV}
    v_add_u32 v{PV}, s{sQ}, v{PV}
    v_cmp_lt_u32 vcc, v{PV}, v{ENDV}
    s_and_saveexec_b64 s[{sTMP}:{sTMP+1}], vcc
    v_mov_b32 v{PV}, {FLAG}
    ds_write_b32 v{PV}, v{ONE}
    s_mov_b64 exec, -1
    """)
    for i in range(4):
        for k in range(4):
            s = 4*i + k
            a(f"v_cmpx_lt_i32 vcc, {8*i+k}, v{REM}")
            if k == 0:
                a("s_cbranch_execz K2_CNT_DONE")
            a(f"v_bfe_u32 v{DLS+s}, v{LW+i}, {8*k}, 8")
            a(f"ds_add_rtn_u32 v{RK+s}, v{DLS+s}, v{ONE} offset:{CNT2}")
    a(f"""
    K2_CNT_DONE:
    s_mov_b64 exec, -1
    s_waitcnt lgkmcnt(0)
    s_barrier
    """)
    stamp(a, 2, 3, 64)
    a(f"""
    ds_read_b32 v{PV}, v{LANE4} offset:{CNT2}
    v_mov_b32 v{AR}, {FLAG}
    ds_read_b32 v{AL}, v{AR}
    s_waitcnt lgkmcnt(0)
    v_mov_b32 v{AR}, v{PV}
    v_readfirstlane_b32 s{sMORE}, v{AL}
    """)
    wave_scan(a, AR)
    a(f"""
    s_nop 0
    v_readlane_b32 s{sT}, v{AR}, 63
    v_sub_u32 v{AR}, v{AR}, v{PV}
    s_cmp_le_u32 s{sT}, {CAP}
    s_cbranch_scc1 K2_FITS
    s_mov_b32 s{sQ}, 8
    s_mov_b32 s{sMORE}, 0
    s_branch K2_AGAIN
    K2_FITS:
    ds_write_b32 v{LANE4}, v{AR} offset:{PRE2}
    s_cmp_lg_u32 s3, 0
    s_cbranch_scc1 K2_NOPAD
    v_add_u32 v{AL}, s{sT}, v{LANE}
    v_mov_b32 v{PV}, {4*NPB}
    ds_write_b8 v{AL}, v{PV} offset:{LISTL}
    v_lshlrev_b32 v{AL}, 2, v{AL}
    ds_write_b32 v{AL}, v{ZERO} offset:{LISTR}
    K2_NOPAD:
    """)
    for i in range(4):
        a(f"v_cmpx_lt_i32 vcc, {8*i}, v{REM}")
        a("s_cbranch_execz K2_SR_DONE")
        for k in range(4):
            s = 4*i + k
            a(f"ds_read_b32 v{BS+s}, v{DLS+s} offset:{PRE2}")
    a("K2_SR_DONE:\ns_mov_b64 exec, -1\ns_waitcnt lgkmcnt(0)")
    for i in range(4):
        for k in range(4):
            s = 4*i + k
            a(f"v_cmpx_lt_i32 vcc, {8*i+k}, v{REM}")
            if k == 0: a("s_cbranch_execz K2_SC_DONE")
            a(f"v_add_u32 v{BS+s}, v{BS+s}, v{RK+s}")
            a(f"v_lshlrev_b32 v{RK+s}, 2, v{BS+s}")
            a(f"ds_write_b8 v{BS+s}, v{DLS+s} offset:{LISTL}")
            a(f"ds_write_b32 v{RK+s}, v{RECS+s} offset:{LISTR}")
    a(f"""
    K2_SC_DONE:
    s_mov_b64 exec, -1
    s_add_u32 s{sTMP}, s{sT}, 63
    s_lshr_b32 s{sTMP}, s{sTMP}, 6
    s_lshr_b32 s{sTMP+1}, s{sTMP}, 3
    s_and_b32 s{sTMP+2}, s{sTMP}, 7
    s_mul_i32 s{sPN}, s3, s{sTMP+1}
    s_min_u32 s{sTMP+3}, s3, s{sTMP+2}
    s_add_u32 s{sPN}, s{sPN}, s{sTMP+3}
    s_cmp_lt_u32 s3, s{sTMP+2}
    s_addc_u32 s{sTMP+1}, s{sTMP+1}, s{sPN}
    s_lshl_b32 s{sPN}, s{sPN}, 6
    s_lshl_b32 s{sEND}, s{sTMP+1}, 6
    s_min_u32 s{sEND}, s{sEND}, s{sT}
    s_lshl_b32 s{sPN4}, s{sPN}, 2
    s_lshl_b32 s{sTMP}, s3, 12
    s_add_u32 m0, s{sTMP}, {STG}
    s_waitcnt vmcnt(0) lgkmcnt(0)
    s_barrier
    """)
    stamp(a, 2, 4, 64)
    a(f"""
    s_cmp_ge_u32 s{sPN}, s{sEND}
    s_cbranch_scc1 K2_NOWORK
    """)
    if OPT.abl:
        a(f"s_sub_u32 s70, s{sEND}, s{sPN}\ns_add_u32 s70, s70, 63\ns_lshr_b32 s70, s70, 6")
    RB4 = D[1]
    a(f"""
    v_add_u32 v{A4}, s{sPN4}, v{G4}
    ds_read_b128 {vr(R4,4)}, v{A4} offset:{LISTR}
    v_add_u32 v{TA}, s{sPN4}, v{LANE4}
    ds_read_b32 v{REC}, v{TA} offset:{LISTR}
    v_add_u32 v{TA}, s{sPN}, v{LANE}
    ds_read_u8 v{DL4}, v{TA} offset:{LISTL}
    ds_read_b128 {vr(RB4,4)}, v{A4} offset:{LISTR+128}
    s_sub_u32 s{sTMP}, s{sEND}, s{sPN}
    v_cmp_gt_i32 s[{sMR}:{sMR+1}], s{sTMP}, v{LANE}
    s_mov_b32 s{sFWX}, 0
    s_mov_b32 s{sFFL}, 0
    s_mov_b32 s{sMA+1}, 0
    s_mov_b32 s{sMB}, 0
    s_waitcnt lgkmcnt(3)
    """)
    plain(a, mads(R4))
    plain(a, dma_ops())
    a(f"""
    s_waitcnt lgkmcnt(0)
    v_readfirstlane_b32 s{sWB}, v{DL4}
    s_nop 0
    s_min_u32 s{sWB}, s{sWB}, {4*(NPB-8)}
    """)
    window_masks(a)
    wx_load(a)
    plain(a, geo_addr())
    plain(a, geo_lut())
    a(f"""
    s_bcnt1_i32_b64 s{sNX}, s[{sVN}:{sVN+1}]
    s_add_u32 s{sPN}, s{sPN}, s{sNX}
    s_lshl_b32 s{sPN4}, s{sPN}, 2
    s_mov_b32 s{sMA}, s{sVN}
    s_mov_b32 s{sMB+1}, s{sVN+1}
    """)
    plain(a, mads(RB4))
    for h in range(2):
        for r in range(16):
            a(f"v_mov_b32 v{ACC[h]+r}, 0")
    for r in range(8):
        a(f"v_mov_b32 v{S+r}, 0\nv_mov_b32 v{M[1]+r}, 0\nv_mov_b32 v{T+r}, 1.0")
    a(f"v_mov_b32 v{D[1]+14}, 0\nv_mov_b32 v{D[1]+15}, 0")
    a("s_waitcnt lgkmcnt(0)")
    plain(a, geo_diff())
    plain(a, geo_cvt())
    a("s_nop 2")
    plain(a, geo_d2())
    a("s_nop 2")
    plain(a, geo_fin())
    plain(a, x_read(0))
    a("s_nop 0")
    a(mfma32(D[0], XX, WX[0] + 2, None))
    a("s_waitcnt lgkmcnt(0)")
    plain(a, dma_ops())
    for s in range(4):
        a(mfma32(D[0], X[0] + 4*s, W2 + 4*s, D[0]))
    a("s_nop 10")
    stamp(a, 2, 5, 64)
    gen_main_loop(a)
    stamp(a, 2, 6, 64)
    t2 = T + 2 * (7 % 4); y2 = D[1] + 14; t6 = T + 2 * (6 % 4)
    a(f"""
    {mfma32(ACC[1], S, M[1], ACC[1])}
    v_cvt_pk_bf16_f32 v{M[1]+6}, v{t6}, v{t6+1}
    v_rcp_f32 v{t2}, v{t2}
    v_rcp_f32 v{t2+1}, v{t2+1}
    s_nop 0
    v_pk_mul_f32 {vr(t2,2)}, {vr(t2,2)}, {vr(y2,2)}
    v_cvt_pk_bf16_f32 v{M[1]+7}, v{t2}, v{t2+1}
    s_nop 1
    {mfma32(ACC[1], S+4, M[1]+4, ACC[1])}
    s_mov_b32 s{sWBO}, s{sWB}
    """)
    epi_loads(a)
    flush_code(a, False, 'A')
    a("s_branch K2_WDONE")
    a.label("K2_FLUSH")
    flush_code(a, True, 'B')
    a(f"s_mov_b32 s{sFFL}, 0\ns_branch K2_FLUSH_RET")
    a.label("K2_REBASE")
    a(f"""
    s_mov_b32 s{sWBO}, s{sWB}
    v_readfirstlane_b32 s{sWB}, v{DL4}
    s_mov_b32 s{sFWX}, 1
    s_mov_b32 s{sFFL}, 1
    s_min_u32 s{sWB}, s{sWB}, {4*(NPB-8)}
    """)
    window_masks(a)
    a("s_branch K2_REBASE_RET")
    a.label("K2_WXL")
    wx_load(a)
    a(f"s_mov_b32 s{sFWX}, 0\ns_branch K2_WXL_RET")
    a.label("K2_NOWORK")
    epi_loads(a)
    a.label("K2_WDONE")
    stamp(a, 2, 7, 64)
    a(f"""
    s_cmp_eq_u32 s{sMORE}, 0
    s_cbranch_scc1 K2_EPI
    v_add_u32 v{START}, s{sQ}, v{START}
    v_and_b32 v{T1}, 1, v0
    v_lshlrev_b32 v{T1}, 2, v{T1}
    v_add_u32 v{T1}, v{T1}, v{ENDV}
    v_min_u32 v{START}, v{START}, v{T1}
    K2_AGAIN:
    s_waitcnt vmcnt(0) lgkmcnt(0)
    s_barrier
    s_mov_b32 s{sFIRST}, 0
    s_cmp_lg_u32 s3, 0
    s_cbranch_scc1 K2_ROUND
    ds_write_b32 v{LANE4}, v{ZERO} offset:{CNT2}
    v_mov_b32 v{T1}, {FLAG}
    ds_write_b32 v{T1}, v{ZERO}
    s_branch K2_ROUND
    """)
    MF = D[1]
    MB_ = M[0]
    U = ACC[0]
    a(f"""
    K2_EPI:
    s_and_b32 s{sTMP}, s3, 3
    s_lshl_b32 s{sTMP}, s{sTMP}, 4
    v_and_b32 v{T1}, 15, v{LANE}
    v_add_u32 v{T1}, s{sTMP}, v{T1}
    v_mul_u32_u24 v{T2}, {RS}, v{T1}
    v_and_b32 v{TA}, 48, v{LANE}
    v_lshl_add_u32 v{T2}, v{TA}, 1, v{T2}
    s_mov_b32 s{sTMP+2}, {f32(-LN2)}
    s_waitcnt lgkmcnt(0)
    s_barrier
    """)
    stamp(a, 2, 8, 64)
    for s in range(2):
        a(f"ds_read_b128 {vr(MF+8*s,4)}, v{T2} offset:{ACCM + 128*s}")
        a(f"ds_read_b128 {vr(MF+8*s+4,4)}, v{T2} offset:{ACCM + 128*s + 16}")
    a(f"""
    s_movk_i32 s{sTMP+3}, 21846
    v_mul_u32_u24 v{DX}, s{sTMP+3}, v0
    v_lshrrev_b32 v{DX}, 16, v{DX}
    v_add_lshl_u32 v{DX}, v{DX}, v0, 2
    ds_read_b32 v{DX+1}, v{DX} offset:{POSD}
    ds_read_b32 v{DX+2}, v{DX} offset:{ACCP}
    s_waitcnt vmcnt(0)
    v_mfma_f32_16x16x32_bf16 {vr(U,4)}, {vr(X[0],4)}, {vr(D[0],4)}, 0
    v_mfma_f32_16x16x32_bf16 {vr(U+4,4)}, {vr(X[0]+16,4)}, {vr(D[0],4)}, 0
    v_mfma_f32_16x16x32_bf16 {vr(U,4)}, {vr(X[0]+4,4)}, {vr(D[0]+4,4)}, {vr(U,4)}
    v_mfma_f32_16x16x32_bf16 {vr(U+4,4)}, {vr(X[0]+20,4)}, {vr(D[0]+4,4)}, {vr(U+4,4)}
    s_waitcnt lgkmcnt(2)
    """)
    for r in range(16):
        a(f"v_mul_f32 v{MF+r}, s{sTMP+2}, v{MF+r}")
    for r in range(8):
        a(f"v_cvt_pk_bf16_f32 v{MB_+r}, v{MF+2*r}, v{MF+2*r+1}")
    a(f"""
    s_nop 1
    v_mfma_f32_16x16x32_bf16 {vr(U,4)}, {vr(X[0]+8,4)}, {vr(MB_,4)}, {vr(U,4)}
    v_mfma_f32_16x16x32_bf16 {vr(U+4,4)}, {vr(X[0]+24,4)}, {vr(MB_,4)}, {vr(U+4,4)}
    v_mfma_f32_16x16x32_bf16 {vr(U,4)}, {vr(X[0]+12,4)}, {vr(MB_+4,4)}, {vr(U,4)}
    v_mfma_f32_16x16x32_bf16 {vr(U+4,4)}, {vr(X[0]+28,4)}, {vr(MB_+4,4)}, {vr(U+4,4)}
    s_waitcnt lgkmcnt(0)
    v_add_f32 v{DX+1}, v{DX+1}, v{DX+2}
    v_cvt_pk_bf16_f32 v{DX+1}, v{DX+1}, v{DX+1}
    s_mul_i32 s{sTMP+4}, s{sNB}, 6
    s_add_u32 s{sTMP+4}, s{sTMP+4}, {N*128}
    v_lshl_add_u32 v{DX}, v0, 1, s{sTMP+4}
    s_mul_i32 s{sTMP+5}, s{sNN}, 3
    v_cmp_gt_u32 vcc, s{sTMP+5}, v0
    s_and_saveexec_b64 s[{sTMP+6}:{sTMP+7}], vcc
    s_cbranch_execz K2_NOPOS
    buffer_store_short v{DX+1}, v{DX}, s[{sOUT}:{sOUT+3}], 0 offen
    K2_NOPOS:
    s_mov_b64 exec, -1
    s_cmp_lt_u32 s3, 4
    s_cbranch_scc1 K2_HLO
    v_mov_b32 v{D[0]}, v{D[0]+4}
    v_mov_b32 v{D[0]+1}, v{D[0]+5}
    v_mov_b32 v{D[0]+2}, v{D[0]+6}
    v_mov_b32 v{D[0]+3}, v{D[0]+7}
    K2_HLO:
    s_mov_b32 s{sTMP+2}, {f32(-L2E)}
    s_mov_b32 s{sTMP+3}, 0xffff0000
    """)
    HR = MF
    for r in range(4):
        a(f"v_lshlrev_b32 v{HR+2*r}, 16, v{D[0]+r}")
        a(f"v_and_b32 v{HR+2*r+1}, s{sTMP+3}, v{D[0]+r}")
    EX = MF + 8
    for r in range(8):
        a(f"v_mul_f32 v{EX+r}, s{sTMP+2}, v{U+r}")
    for r in range(8):
        a(f"v_exp_f32 v{EX+r}, v{EX+r}")
    for r in range(8):
        a(f"v_add_f32 v{EX+r}, 1.0, v{EX+r}")
    for r in range(8):
        a(f"v_rcp_f32 v{EX+r}, v{EX+r}")
    for r in range(8):
        a(f"v_fmac_f32 v{HR+r}, v{EX+r}, v{U+r}")
    for r in range(4):
        a(f"v_cvt_pk_bf16_f32 v{EX+r}, v{HR+2*r}, v{HR+2*r+1}")
    a(f"""
    s_lshr_b32 s{sTMP+4}, s3, 2
    s_lshl_b32 s{sTMP+4}, s{sTMP+4}, 6
    s_lshl_b32 s{sTMP+5}, s{sNB}, 7
    s_add_u32 s{sTMP+4}, s{sTMP+4}, s{sTMP+5}
    v_lshlrev_b32 v{T2}, 7, v{T1}
    v_add3_u32 v{T2}, v{T2}, v{TA}, s{sTMP+4}
    v_cmp_gt_u32 vcc, s{sNN}, v{T1}
    s_and_saveexec_b64 s[{sTMP+6}:{sTMP+7}], vcc
    s_cbranch_execz K2_END
    buffer_store_dwordx4 {vr(EX,4)}, v{T2}, s[{sOUT}:{sOUT+3}], 0 offen
    """)
    if OPT.stamps:
        a("s_waitcnt vmcnt(0)")
    stamp(a, 2, 9, 64)
    stamp(a, 2, 15, 64, True)
    a("K2_END:\ns_endpgm")

HEADER = """; EGNN layer (gather / edge MLP / scatter) for gfx950, two launches:
; Kernarg: h 0, pos 8, e_attr 16, src 24, dst 32, w_e 40, w_x 48, w_h 56, out 64, debug 72, ws 80
; @launch kernel=egnn_bin_kernel grid=(256,1,1) block=(1024,1,1) lds={l1}
; @launch kernel=gather_scatter__cheap_equivariant_egnn__graph_kernel grid=(256,1,1) block=(512,1,1) lds={l2}
.amdgcn_target "amdgcn-amd-amdhsa--gfx950"
.text
"""
KD = """.amdhsa_kernel {name}
  .amdhsa_next_free_vgpr {nv}
  .amdhsa_next_free_sgpr 96
  .amdhsa_accum_offset {nv}
  .amdhsa_group_segment_fixed_size 0
  .amdhsa_kernarg_size 88
  .amdhsa_user_sgpr_count 2
  .amdhsa_user_sgpr_kernarg_segment_ptr 1
  .amdhsa_system_sgpr_workgroup_id_x 1
.end_amdhsa_kernel
"""

def generate(stamps=False, np1=0, abl=0):
    OPT.stamps = stamps; OPT.np1 = np1; OPT.abl = abl; OPT.stampset = set(range(16)) if stamps == 1 else {0, 3, 9}
    a1 = Asm(); l1 = gen_k1(a1)
    a2 = Asm(); gen_k2(a2)
    k1n = "egnn_bin_kernel"; k2n = "gather_scatter__cheap_equivariant_egnn__graph_kernel"
    s = HEADER.format(l1=l1, l2=LDS2)
    s += f".globl {k1n}\n.p2align 8\n.type {k1n},@function\n" + a1.text()
    s += f".globl {k2n}\n.p2align 8\n.type {k2n},@function\n" + a2.text()
    s += '.section .rodata,"a"\n.p2align 6\n' + KD.format(name=k1n, nv=72)
    s += ".p2align 6\n" + KD.format(name=k2n, nv=NV2)
    return s

if __name__ == "__main__":
    out = sys.argv[1]
    kw = {}
    for x in sys.argv[2:]:
        k, v = x.split("="); kw[k] = int(v)
    open(out, "w").write(generate(**kw))
    print("LDS2", LDS2, "LISTL", LISTL, "LISTR", LISTR, "AT", AT, "ACCM", ACCM, "SB", SB, "STG", STG, "POSB", POSB)
```

```python
import sys, struct

N = 12500; E = 800000
NPB = 49
CH = 3136
PSTR = 15744
L_OFF = CH * 4
RL_END = L_OFF + CH
OFFT = 256 * PSTR
WF = OFFT + 256 * 1024
ATAB = WF + 18 * 1024
BTAB = ATAB + 12560 * 128
WS_USED = BTAB + 12560 * 128
DBG_WS = WS_USED + 4096
WS_SRD = DBG_WS + (1 << 20)
L2E = 1.4426950408889634
LN2 = 0.6931471805599453

def f32(x):
    return "0x%08x" % struct.unpack("<I", struct.pack("<f", x))[0]

class Asm:
    def __init__(self):
        self.L = []
    def __call__(self, s):
        for ln in s.strip("\n").split("\n"):
            ln = ln.strip()
            if ln:
                self.L.append(ln if ln.endswith(":") else "    " + ln)
    def label(self, s):
        self.L.append(s + ":")
    def text(self):
        return "\n".join(self.L) + "\n"

def vr(a, n):
    return f"v[{a}:{a+n-1}]"
def sr(a, n=2):
    return f"s[{a}:{a+n-1}]"

def srd(a, base, nbytes, add=0):
    o = []
    if add:
        o += [f"s_add_u32 s{a}, s{base}, {add}", f"s_addc_u32 s{a+1}, s{base+1}, 0"]
    else:
        o += [f"s_mov_b32 s{a}, s{base}", f"s_mov_b32 s{a+1}, s{base+1}"]
    o += [f"s_mov_b32 s{a+2}, {nbytes}", f"s_mov_b32 s{a+3}, 0x00020000"]
    return "\n".join(o)

def wave_scan(a, v):
    for ctl in ("row_shr:1", "row_shr:2", "row_shr:4", "row_shr:8"):
        a("s_nop 1")
        a(f"v_add_u32_dpp v{v}, v{v}, v{v} {ctl} row_mask:0xf bank_mask:0xf bound_ctrl:0")
    a("s_nop 1")
    a(f"v_add_u32_dpp v{v}, v{v}, v{v} row_bcast:15 row_mask:0xa bank_mask:0xf")
    a("s_nop 1")
    a(f"v_add_u32_dpp v{v}, v{v}, v{v} row_bcast:31 row_mask:0xc bank_mask:0xf")

def mfma32(d, a_, b_, c):
    cc = "0" if c is None else vr(c, 16)
    return f"v_mfma_f32_32x32x16_bf16 {vr(d,16)}, {vr(a_,4)}, {vr(b_,4)}, {cc}"
def mfma16(d, a_, b_, c):
    cc = "0" if c is None else vr(c, 4)
    return f"v_mfma_f32_16x16x32_bf16 {vr(d,4)}, {vr(a_,4)}, {vr(b_,4)}, {cc}"

class Opt:
    pass
OPT = Opt()

def stamp(a, kern, idx, real=False):
    if not OPT.stamps:
        return
    if not real and OPT.stamps == 2 and idx not in (0, 3, 9):
        return
    if not real and OPT.stamps == 3 and idx not in ((0, 3) if kern == 1 else (0, 5, 6, 9)):
        return
    sv = 252 if kern == 2 else 120
    st = 64
    w = 12 if kern == 2 else 20
    a(f"""
    {'s_memrealtime' if real else 's_memtime'} s[{st}:{st+1}]
    s_waitcnt lgkmcnt(0)
    v_mov_b32 v{sv}, s{st}
    v_mov_b32 v{sv+1}, s{st+2}
    s_mov_b64 s[{st}:{st+1}], exec
    s_mov_b64 exec, 1
    buffer_store_dword v{sv}, v{sv+1}, s[{w}:{w+3}], 0 offen offset:{idx*4}
    s_mov_b64 exec, s[{st}:{st+1}]
    """)

def gen_k1(a):
    CNT, PRE, RB = 0, 1024, 2048
    TW = RB + RL_END
    TWS = 8192 + 4096 + 4608
    LDS1 = TW + 4 * TWS
    NT = " nt" if OPT.nt1 else ""
    NE = 768
    a.label("egnn_bin_kernel")
    a(f"""
    s_cmp_ge_u32 s2, 256
    s_cbranch_scc1 K1_END
    s_load_dwordx4 s[36:39], s[0:1], 32
    s_load_dwordx4 s[32:35], s[0:1], 16
    s_load_dwordx2 s[40:41], s[0:1], 56
    s_load_dwordx2 s[42:43], s[0:1], 80
    s_load_dwordx2 s[58:59], s[0:1], 0
    v_lshrrev_b32 v1, 6, v0
    v_and_b32 v6, 63, v0
    v_readfirstlane_b32 s3, v1
    v_lshlrev_b32 v2, 2, v0
    v_mov_b32 v3, 0
    s_mul_i32 s44, s2, {CH}
    s_sub_u32 s45, {E}, s44
    s_lshr_b32 s45, s45, 2
    s_min_u32 s45, s45, {NE}
    s_mul_i32 s49, s2, {PSTR}
    s_lshl_b32 s46, s44, 2
    s_lshl_b32 s47, s44, 1
    v_lshlrev_b32 v4, 4, v0
    v_lshlrev_b32 v5, 3, v0
    v_lshlrev_b32 v7, 4, v6
    s_cmp_ge_u32 s3, 4
    s_cbranch_scc1 K1_NOZERO
    ds_write_b32 v2, v3 offset:{CNT}
    K1_NOZERO:
    v_cmp_gt_u32 vcc, s45, v0
    s_mul_i32 s60, s2, {NPB}
    s_cmp_lt_u32 s2, 255
    s_cselect_b32 s61, 0, 1
    s_or_b32 s61, s61, s3
    s_waitcnt lgkmcnt(0)
    {srd(8, 36, E*4)}
    {srd(20, 42, WS_SRD)}
    """)
    if OPT.stamps:
        a(f"s_lshl_b32 s66, s2, 4\ns_add_u32 s66, s66, s3\ns_lshl_b32 s66, s66, 6\ns_add_u32 s66, s66, {DBG_WS}")
    stamp(a, 1, 0); stamp(a, 1, 14, True)
    a(f"""
    s_cmp_ge_u32 s3, 12
    s_cbranch_scc1 K1_TW
    s_and_saveexec_b64 s[50:51], vcc
    s_mov_b64 s[52:53], exec
    s_cbranch_execz K1_NOLOAD
    buffer_load_dwordx4 v[8:11], v4, s[8:11], s46 offen{NT}
    s_cmp_lg_u32 s61, 0
    s_cbranch_scc1 K1_NOLOAD
    s_add_u32 s62, s46, {NE*16}
    buffer_load_dword v60, v2, s[8:11], s62 offen{NT}
    K1_NOLOAD:
    s_mov_b64 exec, -1
    {srd(12, 34, E*4)}
    {srd(16, 32, E*2)}
    s_barrier
    s_mov_b64 exec, s[52:53]
    s_cbranch_execz K1_NOCNT
    buffer_load_dwordx4 v[12:15], v4, s[12:15], s46 offen{NT}
    buffer_load_dwordx2 v[16:17], v5, s[16:19], s47 offen{NT}
    s_movk_i32 s48, 21400
    v_mov_b32 v36, 1
    s_cmp_lg_u32 s61, 0
    s_cbranch_scc1 K1_NOX1
    buffer_load_dword v61, v2, s[12:15], s62 offen{NT}
    v_lshlrev_b32 v63, 1, v0
    s_add_u32 s63, s47, {NE*8}
    buffer_load_ushort v62, v63, s[16:19], s63 offen{NT}
    s_waitcnt vmcnt(4)
    v_mul_u32_u24 v64, s48, v60
    v_lshrrev_b32 v64, 20, v64
    v_mul_u32_u24 v65, {NPB}, v64
    v_lshlrev_b32 v66, 2, v64
    ds_add_rtn_u32 v67, v66, v36 offset:{CNT}
    v_sub_u32 v65, v60, v65
    v_lshlrev_b32 v65, 2, v65
    s_branch K1_CNT
    K1_NOX1:
    s_waitcnt vmcnt(2)
    K1_CNT:
    """)
    for j in range(4):
        a(f"""
        v_mul_u32_u24 v{20+j}, s48, v{8+j}
        v_lshrrev_b32 v{20+j}, 20, v{20+j}
        v_mul_u32_u24 v{24+j}, {NPB}, v{20+j}
        v_lshlrev_b32 v{28+j}, 2, v{20+j}
        ds_add_rtn_u32 v{32+j}, v{28+j}, v36 offset:{CNT}
        v_sub_u32 v{24+j}, v{8+j}, v{24+j}
        v_lshlrev_b32 v{24+j}, 2, v{24+j}
        """)
    a(f"""
    K1_NOCNT:
    s_mov_b64 exec, -1
    s_waitcnt lgkmcnt(0)
    s_barrier
    """)
    stamp(a, 1, 1)
    a(f"""
    s_cmp_eq_u64 s[52:53], 0
    s_cbranch_scc1 K1_NOSCAT
    ds_read_b128 v[40:43], v7 offset:{CNT}
    s_waitcnt lgkmcnt(0)
    v_add_u32 v41, v40, v41
    v_add_u32 v42, v41, v42
    v_add_u32 v43, v42, v43
    v_mov_b32 v44, v43
    """)
    wave_scan(a, 44)
    a(f"""
    v_sub_u32 v46, v44, v43
    v_add_u32 v47, v46, v40
    v_add_u32 v48, v46, v41
    v_add_u32 v49, v46, v42
    ds_write_b128 v7, v[46:49] offset:{PRE}
    s_mov_b64 exec, s[52:53]
    s_mov_b32 s55, 0xffff0000
    s_cmp_lg_u32 s61, 0
    s_cbranch_scc1 K1_NOX2
    ds_read_b32 v68, v66 offset:{PRE}
    s_waitcnt vmcnt(0) lgkmcnt(0)
    v_lshl_or_b32 v61, v62, 16, v61
    v_add_u32 v68, v68, v67
    v_lshlrev_b32 v69, 2, v68
    ds_write_b8 v68, v65 offset:{RB + L_OFF}
    ds_write_b32 v69, v61 offset:{RB}
    K1_NOX2:
    """)
    for j in range(4):
        a(f"ds_read_b32 v{40+j}, v{28+j} offset:{PRE}")
    a(f"""
    s_waitcnt vmcnt(0)
    v_lshl_or_b32 v12, v16, 16, v12
    v_and_or_b32 v13, v16, s55, v13
    v_lshl_or_b32 v14, v17, 16, v14
    v_and_or_b32 v15, v17, s55, v15
    """)
    for j in range(4):
        a(f"""
        s_waitcnt lgkmcnt({3-j + (2*j)})
        v_add_u32 v{40+j}, v{40+j}, v{32+j}
        v_lshlrev_b32 v{50+j}, 2, v{40+j}
        ds_write_b8 v{40+j}, v{24+j} offset:{RB + L_OFF}
        ds_write_b32 v{50+j}, v{12+j} offset:{RB}
        """)
    a(f"""
    s_mov_b64 exec, -1
    s_cmp_lg_u32 s3, 1
    s_cbranch_scc1 K1_NOSCAT
    v_lshl_or_b32 v56, v47, 16, v46
    v_lshl_or_b32 v57, v48, 16, v47
    v_lshl_or_b32 v58, v49, 16, v48
    v_lshl_or_b32 v59, v44, 16, v49
    s_lshl_b32 s54, s2, 2
    s_add_u32 s54, s54, {OFFT}
    v_lshlrev_b32 v60, 12, v6
    buffer_store_dword v56, v60, s[20:23], s54 offen
    buffer_store_dword v57, v60, s[20:23], s54 offen offset:1024
    buffer_store_dword v58, v60, s[20:23], s54 offen offset:2048
    buffer_store_dword v59, v60, s[20:23], s54 offen offset:3072
    K1_NOSCAT:
    s_waitcnt lgkmcnt(0)
    s_barrier
    """)
    stamp(a, 1, 2)
    a(f"""
    K1_COPY:
    v_cmp_gt_u32 vcc, {RL_END//16}, v0
    s_and_saveexec_b64 s[50:51], vcc
    s_cbranch_execz K1_END
    ds_read_b128 v[8:11], v4 offset:{RB}
    s_waitcnt lgkmcnt(0)
    buffer_store_dwordx4 v[8:11], v4, s[20:23], s49 offen
    """)
    if OPT.stamps:
        a("s_waitcnt vmcnt(0)")
    stamp(a, 1, 3); stamp(a, 1, 15, True)
    a("K1_END:\ns_endpgm")
    HF = 16; WFR = 32; DD_ = [64, 80]
    a(f"""
    K1_TW:
    {'s_setprio 3' if OPT.twprio else ''}
    {srd(24, 38, 130*128)}
    {srd(28, 58, N*128)}
    s_and_b32 s63, s3, 1
    s_bfe_u32 s62, s3, 0x10001
    s_and_b32 s61, s3, 3
    s_mul_i32 s57, s61, {TWS}
    s_add_u32 s57, s57, {TW}
    v_lshrrev_b32 v8, 3, v6
    v_lshrrev_b32 v9, 4, v6
    v_and_b32 v10, 7, v6
    v_xor_b32 v9, v9, v10
    v_lshlrev_b32 v9, 4, v9
    v_lshl_add_u32 v9, v8, 7, v9
    v_xor_b32 v10, 64, v9
    s_lshl_b32 s56, s62, 5
    s_add_u32 s56, s56, s60
    s_lshl_b32 s56, s56, 7
    """)
    def tw_loads():
        a("s_add_u32 m0, s57, 8192\ns_lshl_b32 s54, s63, 13")
        for i in range(4):
            a(f"buffer_load_dwordx4 v{9 + (i & 1)}, s[28:31], s56 offen offset:{1024*i}{NT} lds")
        a("s_mov_b32 m0, s57\ns_add_u32 s55, s54, 4096")
        for i in range(4):
            a(f"buffer_load_dwordx4 v7, s[24:27], s54 offen offset:{1024*i} lds")
        a("s_add_u32 m0, s57, 4096\ns_nop 0")
        for i in range(4):
            a(f"buffer_load_dwordx4 v7, s[24:27], s55 offen offset:{1024*i} lds")
    if OPT.twearly: tw_loads()
    a("s_barrier")
    if not OPT.twearly: tw_loads()
    a(f"""
    s_cmp_lg_u32 s61, 2
    s_cbranch_scc1 K1_NOW
    s_cmp_ge_u32 s2, 18
    s_cbranch_scc1 K1_NOW
    s_lshl_b32 s54, s2, 10
    s_add_u32 s54, s54, {WF}
    s_cmp_ge_u32 s2, 16
    s_cbranch_scc1 K1_WEXTRA
    {srd(12, 40, 128*128)}
    s_and_b32 s55, s2, 3
    s_lshl_b32 s55, s55, 12
    s_lshr_b32 s48, s2, 3
    s_lshl_b32 s48, s48, 6
    s_add_u32 s55, s55, s48
    s_lshr_b32 s48, s2, 2
    s_and_b32 s48, s48, 1
    s_lshl_b32 s48, s48, 3
    s_add_u32 s55, s55, s48
    v_lshrrev_b32 v51, 4, v6
    v_lshlrev_b32 v51, 10, v51
    v_bfe_u32 v52, v6, 2, 2
    v_lshl_add_u32 v51, v52, 4, v51
    v_and_b32 v52, 3, v6
    v_lshl_add_u32 v51, v52, 1, v51
    """)
    for j in range(8):
        a(f"buffer_load_ushort v{54+j}, v51, s[12:15], s55 offen offset:{128*j}")
    a("s_barrier\ns_waitcnt vmcnt(0)")
    for j in range(4):
        a(f"v_lshl_or_b32 v{64+j}, v{55+2*j}, 16, v{54+2*j}")
    a(f"""
    buffer_store_dwordx4 v[64:67], v7, s[20:23], s54 offen
    s_branch K1_TJOB
    K1_WEXTRA:
    s_and_b32 s55, s2, 1
    s_lshl_b32 s55, s55, 6
    s_add_u32 s55, s55, {128*128}
    v_and_b32 v52, 31, v6
    v_lshlrev_b32 v51, 1, v52
    buffer_load_ushort v54, v51, s[24:27], s55 offen
    buffer_load_ushort v55, v51, s[24:27], s55 offen offset:128
    s_mov_b32 s48, {f32(-L2E)}
    s_barrier
    s_waitcnt vmcnt(0)
    v_lshlrev_b32 v54, 16, v54
    v_lshlrev_b32 v55, 16, v55
    v_mul_f32 v54, s48, v54
    v_mul_f32 v55, s48, v55
    v_cvt_pk_bf16_f32 v56, v54, v54
    v_lshlrev_b32 v56, 16, v56
    v_sub_f32 v57, v54, v56
    v_cvt_pk_bf16_f32 v58, v56, v57
    v_cvt_pk_bf16_f32 v59, 0, v55
    v_cmp_gt_u32 vcc, 32, v6
    s_nop 1
    v_cndmask_b32 v64, v58, 0, vcc
    v_cndmask_b32 v65, v59, 0, vcc
    v_cndmask_b32 v66, 0, v58, vcc
    v_cndmask_b32 v67, 0, v59, vcc
    buffer_store_dwordx4 v[64:67], v7, s[20:23], s54 offen
    s_branch K1_TJOB
    K1_NOW:
    s_barrier
    s_waitcnt vmcnt(0)
    K1_TJOB:
    """)
    stamp(a, 1, 5)
    a(f"""
    v_lshrrev_b32 v8, 5, v6
    v_and_b32 v9, 31, v6
    v_bfe_u32 v12, v6, 2, 2
    v_lshl_add_u32 v12, v8, 3, v12
    v_lshlrev_b32 v12, 7, v12
    v_bfe_u32 v13, v6, 4, 1
    v_lshl_add_u32 v12, v13, 5, v12
    v_and_b32 v13, 3, v6
    v_lshl_add_u32 v12, v13, 3, v12
    v_add_u32 v12, s57, v12
    v_bfe_u32 v10, v6, 1, 3
    v_xor_b32 v10, v10, v8
    s_add_u32 s54, s57, 8192
    v_lshlrev_b32 v11, 7, v9
    v_add_u32 v11, s54, v11
    """)
    for s in range(4):
        a(f"v_xor_b32 v96, {2*s}, v10\nv_lshl_add_u32 v96, v96, 4, v11\nds_read_b128 {vr(HF+4*s,4)}, v96")
        for jj in range(2):
            a(f"ds_read_b64_tr_b16 {vr(WFR+4*s+2*jj,2)}, v12 offset:{(16*s+4*jj)*128}")
    for s in range(4):
        for jj in range(2):
            a(f"ds_read_b64_tr_b16 {vr(WFR+16+4*s+2*jj,2)}, v12 offset:{(16*s+4*jj)*128 + 64}")
    a(f"""
    s_add_u32 s55, s57, 12288
    v_mul_u32_u24 v13, 144, v9
    v_lshl_add_u32 v13, v8, 3, v13
    v_add_u32 v13, s55, v13
    v_lshrrev_b32 v14, 3, v6
    v_mul_u32_u24 v15, 144, v14
    v_and_b32 v96, 7, v6
    v_lshl_add_u32 v15, v96, 4, v15
    v_add_u32 v15, s55, v15
    s_mov_b32 s48, {f32(-L2E)}
    s_mul_i32 s54, s63, {BTAB - ATAB}
    s_add_u32 s54, s54, {ATAB}
    s_add_u32 s54, s54, s56
    """)
    for h in range(2):
        a(f"s_waitcnt lgkmcnt({8 if h == 0 else 0})")
        for s in range(4):
            a(mfma32(DD_[h], WFR+16*h+4*s, HF+4*s, None if s == 0 else DD_[h]))
    a("s_nop 7")
    stamp(a, 1, 6)
    for h in range(2):
        for r in range(16):
            a(f"v_mul_f32 v{DD_[h]+r}, s48, v{DD_[h]+r}")
        for r in range(8):
            a(f"v_cvt_pk_bf16_f32 v{DD_[h]+r}, v{DD_[h]+2*r}, v{DD_[h]+2*r+1}")
        for q in range(4):
            a(f"ds_write_b64 v13, {vr(DD_[h]+2*q,2)} offset:{64*h + 16*q}")
    for i in range(4):
        a(f"ds_read_b128 {vr(WFR+4*i,4)}, v15 offset:{8*144*i}")
    for i in range(3):
        a(f"s_waitcnt lgkmcnt({3-i})\nbuffer_store_dwordx4 {vr(WFR+4*i,4)}, v7, s[20:23], s54 offen offset:{1024*i}")
    a(f"""
    s_cmp_lg_u32 s62, 0
    s_cbranch_scc1 K1_TDONE
    s_waitcnt lgkmcnt(0)
    buffer_store_dwordx4 {vr(WFR+12,4)}, v7, s[20:23], s54 offen offset:3072
    K1_TDONE:
    """)
    stamp(a, 1, 4)
    a("s_waitcnt lgkmcnt(0)\ns_barrier\ns_branch K1_COPY")
    return LDS1

CAP = 3456
RS = 272
CNT2 = 0; PRE2 = 256; FLAG = 512; LUT = 528; POSD = 672; ACCP = POSD + 800
LISTL = (ACCP + 784 + 15) // 16 * 16
LISTR = LISTL + CAP + 64
AT = LISTR + (CAP + 64) * 4
ACCM = AT + NPB * 128
SB = (ACCM + NPB * RS + 63) // 64 * 64
STG = SB + 8 * 2048
POSB = STG + 8 * 4096
LDS2 = POSB + 75008
assert LDS2 <= 163840, LDS2
assert LISTR % 16 == 0 and AT % 16 == 0 and ACCM % 16 == 0 and STG % 16 == 0

ACC = [2, 18]; D = [34, 50]; M = [66, 74]; X = [82, 98]
ID = 114; WX = [122, 128]; XX = 134; S = 140; T = 148
AS = [159, 160]; LANE = 161; LANE4 = 162; G4 = 163; SROW = 164; DUMMY = 165
R4 = 166; REC = 170; DL4 = 171; REL = 172; TA = 173; PD = 174; DX = 178; DD = 181; DXY = 182
SAD = [184, 185]; A4 = 186; ALUT = 187; ZERO = 188; WXS = [190, 192]; PS = 194
MADDR = 197; POFF = 198; AWT = 199; T1 = 200; T2 = 201; START = [202, 203]; ENDV = [204, 205]
FL = 206
EW = 224
CDMA = 232; AX = 236; TCH = 156
NV2 = 256
sB, sWS, sPOS, sOUT, sH = 8, 12, 16, 20, 24
sNB, sNN, sC128, sPOSB = 28, 29, 30, 31
sFIN = 32; sPP = 33
sEND, sWB, sWBO, sFWX, sFFL = 35, 36, 37, 38, 39
sMA, sMB, sVN, sMR = 40, 42, 44, 46
sNX, sQ, sFIRST, sT, sPN4, sMORE, sROT, sPN = 48, 49, 50, 51, 52, 53, 54, 55
sTMP = 56
sWXD = 68
sPM, sCM, sF0 = 72, 74, 76

def flush_code(a, rezero, tag):
    OLD = FL; NEW = FL + 9
    items = [(T1, 2*q*RS + 128*h, ACC[h]+4*q+3) for q in range(4) for h in range(2)]
    a(f"""
    s_mul_i32 s{sTMP}, s{sWBO}, {RS//4}
    s_lshl_b32 s{sTMP+1}, s{sWBO}, 2
    v_add_u32 v{T1}, s{sTMP}, v{MADDR}
    v_add_u32 v{T2}, s{sTMP+1}, v{POFF}
    """)
    for i, (ad, off, x) in enumerate(items):
        a(f"ds_read_b32 v{OLD+i}, v{ad} offset:{off}")
    a(f"ds_read_b32 v{OLD+8}, v{T2} offset:{ACCP}")
    for q in range(4):
        r0 = ACC[0] + 4*q; r1 = ACC[1] + 4*q
        a(f"v_pk_mul_f32 {vr(r0,2)}, {vr(r0,2)}, {vr(WXS[0],2)} op_sel_hi:[1,0]")
        a(f"v_mul_f32 v{r0+2}, v{r0+2}, v{WXS[0]}")
        a(f"v_pk_fma_f32 {vr(r0,2)}, {vr(r1,2)}, {vr(WXS[1],2)}, {vr(r0,2)} op_sel_hi:[1,0,1]")
        a(f"v_fmac_f32 v{r0+2}, v{r1+2}, v{WXS[1]}")
    a("s_waitcnt lgkmcnt(0)")
    for i, (ad, off, x) in enumerate(items):
        a(f"v_add_f32 v{NEW+i}, v{OLD+i}, v{x}")
    for i, (ad, off, x) in enumerate(items):
        a(f"ds_cmpst_rtn_b32 v{NEW+i}, v{ad}, v{OLD+i}, v{NEW+i} offset:{off}")
    for q in range(2):
        for c in range(3):
            a(f"v_permlane16_swap_b32 v{ACC[0]+4*q+c}, v{ACC[0]+4*(q+2)+c}")
    a("s_nop 1")
    for q in range(2):
        for c in range(3):
            a(f"v_add_f32 v{ACC[0]+4*q+c}, v{ACC[0]+4*q+c}, v{ACC[0]+4*(q+2)+c}")
    c0 = ACC[0]
    a("s_nop 1")
    for c in range(3):
        a(f"v_add_f32_dpp v{c0+c}, v{c0+c}, v{c0+c} row_ror:8 row_mask:0xf bank_mask:0x3")
    for c in range(3):
        a(f"v_add_f32_dpp v{c0+c}, v{c0+4+c}, v{c0+4+c} row_ror:8 row_mask:0xf bank_mask:0xc")
    a(f"""
    s_nop 0
    v_add_f32_dpp v{c0}, v{c0}, v{c0} row_half_mirror row_mask:0xf bank_mask:0x5
    v_add_f32_dpp v{c0+2}, v{c0+2}, v{c0+2} row_half_mirror row_mask:0xf bank_mask:0xf
    v_add_f32_dpp v{c0}, v{c0+1}, v{c0+1} row_half_mirror row_mask:0xf bank_mask:0xa
    s_nop 0
    v_add_f32_dpp v{c0+2}, v{c0+2}, v{c0+2} quad_perm:[1,0,3,2] row_mask:0xf bank_mask:0xf
    v_add_f32_dpp v{c0}, v{c0}, v{c0} quad_perm:[1,0,3,2] row_mask:0xf bank_mask:0xf
    s_nop 0
    v_add_f32_dpp v{c0+2}, v{c0+2}, v{c0+2} quad_perm:[2,3,0,1] row_mask:0xf bank_mask:0xf
    v_add_f32_dpp v{c0}, v{c0}, v{c0} quad_perm:[2,3,0,1] row_mask:0xf bank_mask:0xf
    v_cndmask_b32 v{c0}, v{c0}, v{c0+2}, {sr(sCM)}
    v_add_f32 v{NEW+8}, v{OLD+8}, v{c0}
    s_mov_b64 exec, {sr(sPM)}
    ds_cmpst_rtn_b32 v{NEW+8}, v{T2}, v{OLD+8}, v{NEW+8} offset:{ACCP}
    s_mov_b64 exec, -1
    s_waitcnt lgkmcnt(1)
    """)
    for i in range(8):
        a(f"v_cmp_ne_u32 {sr(sF0+2*i)}, v{NEW+i}, v{OLD+i}")
    a(f"""
    s_waitcnt lgkmcnt(0)
    v_cmp_ne_u32 vcc, v{NEW+8}, v{OLD+8}
    s_and_b64 {sr(sF0+16)}, vcc, {sr(sPM)}
    s_or_b64 {sr(sTMP)}, {sr(sF0+16)}, {sr(sF0)}
    """)
    for i in range(1, 8):
        a(f"s_or_b64 {sr(sTMP)}, {sr(sTMP)}, {sr(sF0+2*i)}")
    a(f"s_cbranch_scc0 K2_FOK_{tag}")
    for i, (ad, off, x) in enumerate(items + [(T2, ACCP, c0)]):
        a(f"""
        v_cmp_neq_f32 vcc, 0, v{x}
        s_and_b64 exec, vcc, {sr(sF0+2*i)}
        ds_add_f32 v{ad}, v{x} offset:{off}
        s_mov_b64 exec, -1
        """)
    a("s_waitcnt lgkmcnt(0)")
    a.label(f"K2_FOK_{tag}")
    if rezero:
        for h in range(2):
            for r in range(16):
                a(f"v_mov_b32 v{ACC[h]+r}, 0")

def window_masks(a):
    a(f"""
    v_subrev_u32 v{REL}, s{sWB}, v{DL4}
    v_cmp_gt_u32 vcc, 32, v{REL}
    s_and_b64 {sr(sVN)}, vcc, {sr(sMR)}
    """)

def wx_load(a):
    a(f"""
    s_lshl_b32 s{sTMP}, s{sWB}, 5
    v_add_u32 v{T1}, s{sTMP}, v{AWT}
    ds_read_b64_tr_b16 {vr(WX[0]+2,2)}, v{T1}
    ds_read_b64_tr_b16 {vr(WX[1]+2,2)}, v{T1} offset:64
    """)

def epi_loads(a):
    a(f"""
    s_lshr_b32 s{sTMP}, s3, 2
    s_lshl_b32 s{sTMP}, s{sTMP}, 13
    s_add_u32 s{sTMP}, s{sTMP}, {WF}
    s_add_u32 s{sTMP+1}, s{sTMP}, 4096
    v_lshlrev_b32 v{TA}, 4, v{LANE}
    s_and_b32 s{sTMP+2}, s3, 3
    s_lshl_b32 s{sTMP+2}, s{sTMP+2}, 4
    s_add_u32 s{sTMP+2}, s{sTMP+2}, s{sNB}
    s_lshl_b32 s{sTMP+2}, s{sTMP+2}, 7
    v_and_b32 v{REL}, 15, v{LANE}
    v_lshlrev_b32 v{REL}, 7, v{REL}
    v_and_or_b32 v{REL}, v{LANE}, 48, v{REL}
    buffer_load_dwordx4 {vr(EW,4)}, v{REL}, {sr(sH,4)}, s{sTMP+2} offen
    buffer_load_dwordx4 {vr(EW+4,4)}, v{REL}, {sr(sH,4)}, s{sTMP+2} offen offset:64
    """)
    for i in range(8):
        a(f"buffer_load_dwordx4 {vr(X[0]+4*i,4)}, v{TA}, {sr(sWS,4)}, s{sTMP + (i >> 2)} offen offset:{1024*(i & 3)}")

def mads(src):
    return [f"v_mad_u32_u16 v{R4+i}, v{src+i}, s{sC128}, v{CDMA+i}" for i in range(4)]
def dma_ops():
    return [f"buffer_load_dwordx4 v{R4+i}, {sr(sB,4)}, 0 offen offset:{1024*i} lds" for i in range(4)]

class Body:
    def __init__(self):
        self.it = []
    def op(self, s): self.it.append(("op", s))
    def ds(self, s, tag=None): self.it.append(("ds", s, tag))
    def wait(self, tag): self.it.append(("wait", tag))
    def emit(self, a):
        if OPT.abl:
            import re
            rx = re.compile(OPT.abl)
            drop = lambda x: bool(rx.search(x[1] if x[0] != "wait" else "WAIT"))
            tags = {x[2] for x in self.it if x[0] == "ds" and drop(x)}
            self.it = [x for x in self.it if not drop(x) and not (x[0] == "wait" and x[1] in tags)]
        n = len(self.it)
        for i, x in enumerate(self.it):
            if x[0] == "wait":
                cnt = 0; j = i - 1; found = False
                for _ in range(n):
                    y = self.it[j % n]
                    if y[0] == "ds":
                        if y[2] == x[1]:
                            found = True; break
                        cnt += 1
                    j -= 1
                assert found, x
                a(f"s_waitcnt lgkmcnt({min(cnt,15)})")
            else:
                a(x[1])

def unit_groups(b, u, pre, post):
    h = u % 2; ph = 1 - h
    ntile = (u + 1) // 2 % 2
    xx = XX if ntile == 0 else XX + 2
    wx = WX[ph] + 2 if ntile == 0 else WX[ph]
    mf = {0: mfma32(ACC[ph], S, M[ph], ACC[ph]),
          1: mfma32(D[ph], xx, wx, None),
          2: mfma32(ACC[ph], S + 4, M[ph] + 4, ACC[ph]),
          OPT.g0: mfma32(D[ph], X[ntile] + 8*ph, ID, D[ph]),
          OPT.g1: mfma32(D[ph], X[ntile] + 8*ph + 4, ID + 4, D[ph])}
    def put(lst):
        for x in lst:
            if isinstance(x, str): b.op(x)
            elif x[0] == "ds": b.ds(x[1], x[2] if len(x) > 2 else None)
            elif x[0] == "wait": b.wait(x[1])
    for g in range(8):
        put(pre.get(g, []))
        if g in mf: b.op(mf[g])
        p = g - 2; hh = h
        if p < 0: p += 8; hh = ph
        t = T + 2 * (p % 4)
        b.op(f"v_cvt_pk_bf16_f32 v{M[hh]+p}, v{t}, v{t+1}")
        t = T + 2 * (g % 4); y = D[h] + 2 * g
        b.op(f"v_exp_f32 v{t}, v{y}")
        b.op(f"v_exp_f32 v{t+1}, v{y+1}")
        p = g - 1; hh = h
        if p < 0: p += 8; hh = ph
        t2 = T + 2 * (p % 4); y2 = D[hh] + 2 * p
        b.op(f"v_rcp_f32 v{t2}, v{t2}")
        b.op(f"v_rcp_f32 v{t2+1}, v{t2+1}")
        b.op(f"v_pk_add_f32 {vr(t,2)}, {vr(t,2)}, 1.0 op_sel_hi:[1,0]")
        b.op(f"v_pk_mul_f32 {vr(t2,2)}, {vr(t2,2)}, {vr(y2,2)}")
        put(post.get(g, []))

def s_build(ad):
    o = [("ds", f"ds_write_b64 v{ad}, {vr(DXY,2)}")]
    for k in range(4):
        o.append(("ds", f"ds_read_b64_tr_b16 {vr(S+2*k,2)}, v{AS[k & 1]} offset:{1024*(k>>1)}", "S" if k == 3 else None))
    o += [("ds", f"ds_write_b64 v{ad}, {vr(ZERO,2)}")]
    return o
def x_read(t):
    o = ["s_waitcnt vmcnt(0)"]
    for k in range(4):
        o.append(("ds", f"ds_read_b128 {vr(X[t]+4*k,4)}, v{AX+k}", "X" if k == 3 else None))
    return o
def geo_addr():
    return [f"v_mad_u32_u16 v{TA}, v{REC}, 6, s{sPOSB}",
            ("ds", f"ds_read_u16_d16_hi v{PS}, v{TA}"),
            ("ds", f"ds_read_u16_d16_hi v{PS+1}, v{TA} offset:2"),
            ("ds", f"ds_read_u16_d16_hi v{PS+2}, v{TA} offset:4"),
            f"v_lshlrev_b32 v{TA}, 2, v{DL4}",
            ("ds", f"ds_read_b128 {vr(PD,4)}, v{TA} offset:{POSD}", "P"),
            f"v_min_u32 v{REL}, 32, v{REL}",
            f"v_lshlrev_b32 v{ALUT}, 1, v{REL}"]
def geo_lut():
    return [("ds", f"ds_read_b64 {vr(XX,2)}, v{ALUT} offset:{LUT}"),
            ("ds", f"ds_read_b64 {vr(XX+4,2)}, v{ALUT} offset:{LUT+72}", "L"),
            f"v_mov_b32 v{XX+3}, v{REC}"]
def geo_diff():
    return [f"v_sub_f32 v{DX+c}, v{PD+c}, v{PS+c}" for c in range(3)]
def geo_cvt():
    return [f"v_cvt_pk_bf16_f32 v{DXY}, v{DX}, v{DX+1}",
            f"v_cvt_pk_bf16_f32 v{DXY+1}, v{DX+2}, 1.0",
            f"v_xor_b32 v{TA}, v{ALUT}, v{SROW}",
            f"v_cndmask_b32 v{SAD[0]}, v{DUMMY}, v{TA}, {sr(sMA)}",
            f"v_cndmask_b32 v{SAD[1]}, v{DUMMY}, v{TA}, {sr(sMB)}"]
def geo_d2():
    return [f"v_dot2_f32_bf16 v{DD}, v{DXY+1}, v{DXY+1}, -1.0",
            f"v_dot2_f32_bf16 v{DD}, v{DXY}, v{DXY}, v{DD}"]
def geo_fin():
    return [f"v_cvt_pk_bf16_f32 v{XX+2}, v{DD}, v{DD}",
            f"v_permlane32_swap_b32 v{XX}, v{XX+4}",
            f"v_permlane32_swap_b32 v{XX+1}, v{XX+5}"]
def list_reads():
    return [f"v_add_u32 v{A4}, s{sPN4}, v{G4}",
            ("ds", f"ds_read_b128 {vr(R4,4)}, v{A4} offset:{LISTR}", "R"),
            f"v_add_u32 v{TA}, s{sPN4}, v{LANE4}",
            ("ds", f"ds_read_b32 v{REC}, v{TA} offset:{LISTR}"),
            f"v_add_u32 v{TA}, s{sPN}, v{LANE}",
            ("ds", f"ds_read_u8 v{DL4}, v{TA} offset:{LISTL}", "E")]
def advance():
    return [f"s_bcnt1_i32_b64 s{sNX}, {sr(sVN)}",
            f"s_add_u32 s{sPN}, s{sPN}, s{sNX}",
            f"s_lshl_b32 s{sPN4}, s{sPN}, 2",
            f"s_mov_b32 s{sMA}, s{sVN}",
            f"s_mov_b32 s{sMB+1}, s{sVN+1}"]
def plain(a, lst):
    for x in lst:
        a(x if isinstance(x, str) else x[1])

def gen_main_loop(a):
    b = Body()
    unit_groups(b, 0,
        pre={3: s_build(SAD[0]),
             4: list_reads(),
             5: [f"s_cmp_lg_u32 s{sFFL}, 0", "s_cbranch_scc1 K2_FLUSH", "K2_FLUSH_RET:"],
             6: x_read(1),
             7: [("wait", "R")] + mads(R4)},
        post={})
    unit_groups(b, 1,
        pre={0: [("wait", "E"),
                 f"s_sub_u32 s{sTMP}, s{sEND}, s{sPN}",
                 f"v_subrev_u32 v{REL}, s{sWB}, v{DL4}",
                 f"v_cmp_gt_i32 {sr(sMR)}, s{sTMP}, v{LANE}",
                 f"v_cmp_gt_u32 vcc, 32, v{REL}"],
             1: [f"s_and_b64 {sr(sVN)}, vcc, {sr(sMR)}",
                 f"s_cmp_lg_u64 {sr(sVN)}, {sr(sMR)}",
                 "s_cbranch_scc1 K2_REBASE", "K2_REBASE_RET:"] + advance() + [("wait", "X")] + dma_ops(),
             2: geo_addr()},
        post={})
    unit_groups(b, 2,
        pre={0: ([f"s_cmp_lg_u32 s{sNX}, 0", "s_cbranch_scc1 K2_PRIO2_OK", "s_setprio 0", "K2_PRIO2_OK:"] if OPT.prio else []),
             2: [f"s_cmp_lg_u32 s{sFWX}, 0", "s_cbranch_scc1 K2_WXL", "K2_WXL_RET:"] + geo_lut(),
             3: s_build(SAD[1]),
             4: [("ds", f"ds_read_b128 {vr(R4,4)}, v{A4} offset:{LISTR+128}", "R")] + geo_cvt(),
             6: x_read(0) + [("wait", "L")] + geo_fin(),
             7: [("wait", "R")] + mads(R4)},
        post={2: [("wait", "P")] + geo_diff(),
              4: geo_d2()})
    unit_groups(b, 3,
        pre={1: [("wait", "X")] + dma_ops()},
        post={})
    a(".p2align 6")
    a.label("K2_LOOP")
    if OPT.prio:
        a(f"""
        s_sub_u32 s{sTMP}, s{sEND}, s{sPN}
        s_cmp_gt_u32 s{sTMP}, {64*OPT.prio}
        s_cbranch_scc1 K2_PRIO_OK
        s_setprio 2
        s_cmp_gt_u32 s{sTMP}, 0
        s_cbranch_scc1 K2_PRIO_OK
        s_setprio 1
        K2_PRIO_OK:
        """)
    b.emit(a)
    if OPT.abl:
        a("s_sub_u32 s67, s67, 1\ns_cmp_lg_u32 s67, 0\ns_cbranch_scc1 K2_LOOP")
    else:
        a(f"s_cmp_lg_u32 s{sNX}, 0\ns_cbranch_scc1 K2_LOOP")

def b_touch(a, lo, n, dst):
    a(f"""
    s_mul_i32 s{sTMP+1}, s{sROT}, {391*128}
    s_mul_i32 s{sTMP+2}, s3, {49*128}
    s_add_u32 s{sTMP+1}, s{sTMP+1}, s{sTMP+2}
    s_add_u32 s{sTMP+1}, s{sTMP+1}, {3072 + 128*lo}
    v_lshlrev_b32 v{dst}, 7, v{LANE}
    s_mov_b64 exec, {hex((1 << n) - 1) if n <= 32 else '-1'}
    """)
    if n > 32:
        a(f"s_mov_b32 exec_hi, {hex((1 << (n - 32)) - 1)}")
    a(f"buffer_load_dword v{dst}, v{dst}, {sr(sB,4)}, s{sTMP+1} offen\ns_mov_b64 exec, -1")

def gen_k2(a):
    a.label("gather_scatter__cheap_equivariant_egnn__graph_kernel")
    tmp = D[0]
    OFFV = tmp + 70; L16 = tmp + 78
    a(f"""
    s_cmp_ge_u32 s2, 256
    s_cbranch_scc1 K2_END
    s_load_dwordx2 s[60:61], s[0:1], 80
    s_load_dwordx4 s[4:7], s[0:1], 0
    s_load_dwordx2 s[56:57], s[0:1], 48
    s_load_dwordx2 s[58:59], s[0:1], 64
    s_lshr_b32 s{sROT}, s2, 3
    s_and_b32 s2, s2, 7
    s_lshl_b32 s2, s2, 5
    s_add_u32 s2, s2, s{sROT}
    v_lshrrev_b32 v1, 6, v0
    v_and_b32 v{LANE}, 63, v0
    v_readfirstlane_b32 s3, v1
    v_lshrrev_b32 v{tmp}, 2, v0
    s_movk_i32 s62, {PSTR}
    v_and_b32 v{tmp+1}, 0x1fc, v0
    v_mul_u32_u24 v1, s62, v{tmp}
    s_lshl_b32 s63, s2, 10
    s_add_u32 s63, s63, {OFFT}
    s_mul_i32 s{sNB}, s2, {NPB}
    s_sub_u32 s{sNN}, {N}, s{sNB}
    s_min_u32 s{sNN}, s{sNN}, {NPB}
    v_lshlrev_b32 v{LANE4}, 2, v{LANE}
    v_lshlrev_b32 v{L16}, 4, v{LANE}
    s_waitcnt lgkmcnt(0)
    {srd(sWS, 60, WS_SRD)}
    buffer_load_dword v{OFFV}, v{tmp+1}, {sr(sWS,4)}, s63 offen
    buffer_load_dword v{OFFV+1}, v{tmp+1}, {sr(sWS,4)}, s63 offen offset:512
    {srd(sB, 60, N*128 + 3072, add=BTAB - 3072)}
    {srd(sPOS, 6, N*6)}
    {srd(sOUT, 58, N*134)}
    {srd(sH, 4, N*128)}
    {srd(sWXD, 56, 128)}
    {srd(sF0, 60, N*128, add=ATAB)}
    """)
    if OPT.stamps:
        a(f"s_lshl_b32 s66, s2, 4\ns_add_u32 s66, s66, s3\ns_lshl_b32 s66, s66, 6\ns_add_u32 s66, s66, {DBG_WS + 256*16*64}")
    stamp(a, 2, 0); stamp(a, 2, 14, True)
    nvm = 2 if OPT.stamps else 0
    a(f"s_mov_b32 s{sTMP}, {WF + 16*1024}")
    for h in range(2):
        a(f"buffer_load_dwordx2 {vr(WX[h],2)}, v{L16}, {sr(sWS,4)}, s{sTMP} offen offset:{1024*h}")
        a(f"buffer_load_dwordx2 {vr(WX[h]+4,2)}, v{L16}, {sr(sWS,4)}, s{sTMP} offen offset:{1024*h+8}")
    nvm += 4
    a(f"""
    s_cmp_ge_u32 s3, 7
    s_cbranch_scc1 K2_NOAT
    s_lshl_b32 s{sTMP}, s3, 10
    s_add_u32 m0, s{sTMP}, {AT}
    s_lshl_b32 s{sTMP+1}, s{sNB}, 7
    s_add_u32 s{sTMP+1}, s{sTMP+1}, s{sTMP}
    s_cmp_eq_u32 s3, 6
    s_cselect_b64 exec, 0xff, -1
    buffer_load_dwordx4 v{L16}, {sr(sF0,4)}, s{sTMP+1} offen lds
    s_mov_b64 exec, -1
    K2_NOAT:
    """)
    if OPT.early:
        a(f"""
        s_cmp_lg_u32 s3, 7
        s_cbranch_scc1 K2_NOPT
        s_mul_i32 s{sTMP+1}, s{sROT}, {19*128}
        v_lshlrev_b32 v{TCH}, 7, v{LANE}
        s_mov_b64 exec, 0x7ffff
        buffer_load_dword v{TCH}, v{TCH}, {sr(sPOS,4)}, s{sTMP+1} offen
        s_mov_b64 exec, -1
        K2_NOPT:
        """)
    z = tmp + 8
    a(f"""
    v_mov_b32 v{z}, 0
    v_mov_b32 v{z+1}, 0
    v_mov_b32 v{z+2}, 0
    v_mov_b32 v{z+3}, 0
    v_mov_b32 v{ZERO}, 0
    v_mov_b32 v{ZERO+1}, 0
    v_lshlrev_b32 v{z+4}, 4, v0
    """)
    nz = (STG - ACCM + 8191) // 8192
    for i in range(nz):
        lim = (STG - ACCM - 8192*i) // 16
        if lim < 512:
            a(f"v_cmp_gt_u32 vcc, {lim}, v0\ns_and_saveexec_b64 {sr(sTMP)}, vcc")
        a(f"ds_write_b128 v{z+4}, {vr(z,4)} offset:{ACCM + 8192*i}")
        if lim < 512:
            a("s_mov_b64 exec, -1")
    a(f"""
    v_cmp_gt_u32 vcc, {LISTL//16}, v0
    s_and_saveexec_b64 {sr(sTMP)}, vcc
    ds_write_b128 v{z+4}, {vr(z,4)}
    s_mov_b64 exec, -1
    """)
    HH, A31, R2, C2, GP, U1, U2 = [tmp + 14 + i for i in range(7)]
    a(f"""
    s_movk_i32 s{sC128}, 128
    s_mov_b32 s{sPOSB}, {POSB}
    s_mov_b32 s{sQ}, 32
    s_mov_b32 s{sFIRST}, 1
    s_mov_b32 s{sFIN}, 1
    s_mov_b32 s{sPM}, 0x13131313
    s_mov_b32 s{sPM+1}, 0x13131313
    s_mov_b32 s{sCM}, 0x02020202
    s_mov_b32 s{sCM+1}, 0x02020202
    v_lshrrev_b32 v{HH}, 5, v{LANE}
    v_and_b32 v{A31}, 31, v{LANE}
    v_bfe_u32 v{R2}, v{LANE}, 2, 2
    v_and_b32 v{C2}, 3, v{LANE}
    v_bfe_u32 v{GP}, v{LANE}, 4, 1
    v_lshrrev_b32 v{U1}, 3, v{LANE}
    v_lshlrev_b32 v{G4}, 4, v{U1}
    v_and_b32 v{U1}, 7, v{LANE}
    v_lshlrev_b32 v{U2}, 2, v{HH}
    v_xor_b32 v{U1}, v{U1}, v{U2}
    """)
    for i in range(4):
        a(f"""
        v_xor_b32 v{CDMA+i}, {i}, v{U1}
        v_lshlrev_b32 v{CDMA+i}, 4, v{CDMA+i}
        v_add_u32 v{CDMA+i}, {3072 - 1024*i}, v{CDMA+i}
        """)
    a(f"""
    s_lshl_b32 s{sTMP}, s3, 12
    s_add_u32 s{sTMP}, s{sTMP}, {STG}
    v_bfe_u32 v{U1}, v{LANE}, 2, 3
    v_lshl_add_u32 v{U1}, v{C2}, 3, v{U1}
    v_lshlrev_b32 v{U1}, 7, v{U1}
    v_add_u32 v{U1}, s{sTMP}, v{U1}
    v_lshl_or_b32 v{U2}, v{GP}, 2, v{C2}
    v_xor_b32 v{U2}, v{U2}, v{HH}
    """)
    for k in range(4):
        a(f"v_xor_b32 v{AX+k}, {2*k}, v{U2}\nv_lshl_add_u32 v{AX+k}, v{AX+k}, 4, v{U1}")
    a(f"""
    s_lshl_b32 s{sTMP}, s3, 11
    s_add_u32 s{sTMP}, s{sTMP}, {SB}
    v_lshlrev_b32 v{SROW}, 6, v{A31}
    v_add_u32 v{SROW}, s{sTMP}, v{SROW}
    v_bfe_u32 v{U1}, v{LANE}, 1, 3
    v_lshl_add_u32 v{SROW}, v{U1}, 3, v{SROW}
    v_lshl_add_u32 v{R2}, v{HH}, 2, v{R2}
    v_lshl_add_u32 v{C2}, v{GP}, 2, v{C2}
    v_lshrrev_b32 v{U1}, 1, v{R2}
    v_xor_b32 v{U1}, v{U1}, v{C2}
    v_lshlrev_b32 v{AS[0]}, 6, v{R2}
    v_add_u32 v{AS[0]}, s{sTMP}, v{AS[0]}
    v_xor_b32 v{U2}, 4, v{U1}
    v_lshl_add_u32 v{AS[1]}, v{U2}, 3, v{AS[0]}
    v_add_u32 v{AS[1]}, 512, v{AS[1]}
    v_lshl_add_u32 v{AS[0]}, v{U1}, 3, v{AS[0]}
    v_lshlrev_b32 v{AWT}, 7, v{R2}
    v_lshl_add_u32 v{AWT}, v{C2}, 3, v{AWT}
    v_add_u32 v{AWT}, {AT}, v{AWT}
    v_mul_u32_u24 v{MADDR}, {RS}, v{HH}
    v_lshl_add_u32 v{MADDR}, v{A31}, 2, v{MADDR}
    v_add_u32 v{MADDR}, {ACCM}, v{MADDR}
    v_bfe_u32 v{U1}, v{LANE}, 3, 2
    v_lshl_add_u32 v{U1}, v{U1}, 1, v{HH}
    v_lshlrev_b32 v{POFF}, 4, v{U1}
    v_and_b32 v{U1}, 4, v{LANE}
    v_add_u32 v{POFF}, v{POFF}, v{U1}
    v_and_b32 v{U1}, 1, v{LANE}
    v_lshl_add_u32 v{POFF}, v{U1}, 3, v{POFF}
    v_lshlrev_b32 v{DUMMY}, 3, v{LANE}
    v_mov_b32 v{PS}, 0
    v_mov_b32 v{PS+1}, 0
    v_mov_b32 v{PS+2}, 0
    """)
    a(f"""
    s_waitcnt vmcnt({nvm})
    v_and_b32 v{U1}, 3, v0
    v_lshlrev_b32 v{U1}, 2, v{U1}
    v_and_b32 v{START[0]}, 0xffff, v{OFFV}
    v_and_b32 v{START[1]}, 0xffff, v{OFFV+1}
    v_lshrrev_b32 v{ENDV[0]}, 16, v{OFFV}
    v_lshrrev_b32 v{ENDV[1]}, 16, v{OFFV+1}
    v_add_u32 v{START[0]}, v{START[0]}, v{U1}
    v_add_u32 v{START[1]}, v{START[1]}, v{U1}
    """)
    stamp(a, 2, 1)
    RECS = tmp; LW = tmp + 16; DLS = tmp + 24; RK = tmp + 40; BS = tmp + 56
    REM = [tmp + 72, tmp + 73]; AR = tmp + 74; AL = tmp + 75; ONE = tmp + 76; PV = tmp + 77
    AR2 = [AR, FL]; AL2 = [AL, FL + 1]
    a.label("K2_ROUND")
    a(f"""
    v_and_b32 v{PV}, 3, v0
    v_lshlrev_b32 v{PV}, 2, v{PV}
    v_sub_u32 v{PV}, s{sQ}, v{PV}
    s_mov_b32 s{sTMP}, {128*PSTR}
    s_mov_b32 s{sTMP+1}, {L_OFF}
    s_mov_b32 s{sTMP+2}, {128*PSTR + L_OFF}
    """)
    for x in range(2):
        a(f"""
        v_lshl_add_u32 v{AR2[x]}, v{START[x]}, 2, v1
        v_add_u32 v{AL2[x]}, v{START[x]}, v1
        v_and_b32 v{AL2[x]}, -4, v{AL2[x]}
        buffer_load_dwordx4 {vr(RECS+8*x,4)}, v{AR2[x]}, {sr(sWS,4)}, {'s%d' % sTMP if x else 0} offen
        buffer_load_dwordx2 {vr(LW+4*x,2)}, v{AL2[x]}, {sr(sWS,4)}, s{sTMP+1+x} offen
        """)
    for x in range(2):
        a(f"""
        v_sub_u32 v{FL+2}, v{ENDV[x]}, v{START[x]}
        v_min_i32 v{FL+3+x}, v{FL+2}, v{PV}
        v_cmpx_lt_i32 vcc, 16, v{FL+3+x}
        s_cbranch_execz K2_LD_{x}
        buffer_load_dwordx4 {vr(RECS+8*x+4,4)}, v{AR2[x]}, {sr(sWS,4)}, {'s%d' % sTMP if x else 0} offen offset:64
        buffer_load_dwordx2 {vr(LW+4*x+2,2)}, v{AL2[x]}, {sr(sWS,4)}, s{sTMP+1+x} offen offset:16
        K2_LD_{x}:
        s_mov_b64 exec, -1
        """)
    REM = [FL + 3, FL + 4]
    a(f"""
    v_mov_b32 v{ONE}, 1
    s_cmp_eq_u32 s{sFIRST}, 0
    s_cbranch_scc1 K2_NOTFIRST
    v_and_b32 v{T1}, 31, v{LANE}
    v_lshlrev_b32 v{T1}, 1, v{T1}
    buffer_load_ushort v{WXS[0]}, v{T1}, {sr(sWXD,4)}, 0 offen
    buffer_load_ushort v{WXS[1]}, v{T1}, {sr(sWXD,4)}, 0 offen offset:64
    v_mov_b32 v{ACC[0]}, 0
    v_mov_b32 v{ACC[0]+1}, 0
    v_mov_b32 v{ACC[0]+2}, 0
    v_mov_b32 v{ACC[0]+3}, 0
    s_cmp_lg_u32 s3, 4
    s_cbranch_scc1 K2_NOPD1
    v_add_u32 v{T1}, s{sNB}, v{LANE}
    v_mul_u32_u24 v{T1}, 6, v{T1}
    buffer_load_short_d16_hi v{ACC[0]}, v{T1}, {sr(sPOS,4)}, 0 offen
    buffer_load_short_d16_hi v{ACC[0]+1}, v{T1}, {sr(sPOS,4)}, 0 offen offset:2
    buffer_load_short_d16_hi v{ACC[0]+2}, v{T1}, {sr(sPOS,4)}, 0 offen offset:4
    K2_NOPD1:
    """)
    a(f"""
    v_and_b32 v{T1}, 31, v{LANE}
    v_and_b32 v{T2}, 1, v{T1}
    v_lshlrev_b32 v{T2}, 4, v{T2}
    v_mov_b32 v{TA}, 0x3f80
    v_lshlrev_b32 v{T2}, v{T2}, v{TA}
    v_lshrrev_b32 v{T1}, 1, v{T1}
    v_lshrrev_b32 v{TA}, 5, v{LANE}
    v_lshlrev_b32 v{TA}, 2, v{TA}
    v_sub_u32 v{T1}, v{T1}, v{TA}
    """)
    for t in range(2):
        for r in range(4):
            a(f"v_cmp_eq_u32 {sr(sF0 + 4 + 2*r)}, {8*t + r}, v{T1}")
        for r in range(4):
            a(f"v_cndmask_b32 v{ID+4*t+r}, 0, v{T2}, {sr(sF0 + 4 + 2*r)}")
    a(f"""
    s_waitcnt lgkmcnt(0)
    s_barrier
    s_cmp_lg_u32 s3, 5
    s_cbranch_scc1 K2_NOLUT
    v_and_b32 v{T1}, 1, v{LANE}
    v_lshlrev_b32 v{T1}, 4, v{T1}
    v_mov_b32 v{T2}, 0x3f80
    v_lshlrev_b32 v{T2}, v{T1}, v{T2}
    v_lshrrev_b32 v{T1}, 2, v{LANE}
    v_mul_u32_u24 v{T1}, 72, v{T1}
    v_lshl_add_u32 v{T1}, v{LANE}, 3, v{T1}
    v_and_b32 v{TA}, 2, v{LANE}
    v_lshl_add_u32 v{T1}, v{TA}, 1, v{T1}
    s_mov_b64 exec, 0xff
    ds_write_b32 v{T1}, v{T2} offset:{LUT}
    s_mov_b64 exec, -1
    K2_NOLUT:
    """)
    a(f"""
    s_lshl_b32 s{sPP}, s3, 10
    v_add_u32 v{L16}, s{sPP}, v{L16}
    s_add_u32 s{sPP}, s{sPP}, {POSB}
    s_mul_i32 s{sTMP+3}, s{sROT}, 57
    s_lshr_b32 s{sTMP+3}, s{sTMP+3}, 9
    s_mul_i32 s{sTMP+3}, s{sTMP+3}, 9
    s_sub_u32 s{sTMP+3}, s{sROT}, s{sTMP+3}
    s_lshl_b32 s{sPP+1}, s{sTMP+3}, 13
    """)
    ntouch = 1 if OPT.touch else 0
    a(f"""
    s_waitcnt vmcnt(2)
    s_branch K2_COUNT
    K2_NOTFIRST:
    s_waitcnt lgkmcnt(0)
    s_barrier
    s_waitcnt vmcnt(0)
    K2_COUNT:
    """)
    stamp(a, 2, 2)
    a(f"""
    v_add_u32 v{AR}, v{PV}, v{START[0]}
    v_add_u32 v{AL}, v{PV}, v{START[1]}
    v_cmp_lt_u32 vcc, v{AR}, v{ENDV[0]}
    v_cmp_lt_u32 {sr(sTMP)}, v{AL}, v{ENDV[1]}
    s_or_b64 vcc, vcc, {sr(sTMP)}
    s_cbranch_vccz K2_NOFLAG
    v_mov_b32 v{PV}, {FLAG}
    ds_write_b32 v{PV}, v{ONE}
    K2_NOFLAG:
    """)
    def pos_piece():
        if OPT.nopos: return
        a(f"""
        s_add_u32 m0, s{sPP}, s{sPP+1}
        s_add_u32 s{sTMP+3}, s{sPP+1}, 8192
        buffer_load_dwordx4 v{L16}, {sr(sPOS,4)}, s{sPP+1} offen lds
        s_cmp_eq_u32 s{sTMP+3}, {9*8192}
        s_cselect_b32 s{sPP+1}, 0, s{sTMP+3}
        """)
    def pieces(n, tag):
        a(f"s_cmp_eq_u32 s{sFIN if tag == 'd' else sFIRST}, 0\ns_cbranch_scc1 K2_NP_{tag}")
        for _ in range(n): pos_piece()
        a.label(f"K2_NP_{tag}")
    NPC = OPT.npc
    if NPC[0]: pieces(NPC[0], "a")
    for x in range(2):
        for i in range(2):
            g = 2*x + i
            for k in range(4):
                s = 4*g + k
                a(f"v_cmpx_lt_i32 vcc, {16*i+k}, v{REM[x]}")
                if k == 0 or i == 1:
                    a(f"s_cbranch_execz K2_CNT_{x}")
                if k == 0:
                    a(f"v_alignbyte_b32 v{LW+2*g}, v{LW+2*g+1}, v{LW+2*g}, v{START[x]}")
                a(f"v_bfe_u32 v{DLS+s}, v{LW+2*g}, {8*k}, 8")
                a(f"ds_add_rtn_u32 v{RK+s}, v{DLS+s}, v{ONE} offset:{CNT2}")
        a(f"K2_CNT_{x}:\ns_mov_b64 exec, -1")
        if NPC[1+x]: pieces(NPC[1+x], "bc"[x])
    a(f"""
    s_waitcnt lgkmcnt(0)
    s_barrier
    """)
    stamp(a, 2, 3)
    a(f"""
    ds_read_b32 v{PV}, v{LANE4} offset:{CNT2}
    v_mov_b32 v{AR}, {FLAG}
    ds_read_b32 v{AL}, v{AR}
    s_waitcnt lgkmcnt(0)
    v_mov_b32 v{AR}, v{PV}
    v_readfirstlane_b32 s{sMORE}, v{AL}
    """)
    wave_scan(a, AR)
    a(f"""
    s_nop 0
    v_readlane_b32 s{sT}, v{AR}, 63
    v_sub_u32 v{AR}, v{AR}, v{PV}
    s_cmp_le_u32 s{sT}, {CAP}
    s_cbranch_scc1 K2_FITS
    s_mov_b32 s{sQ}, 8
    s_mov_b32 s{sMORE}, 0
    s_branch K2_AGAIN
    K2_FITS:
    ds_write_b32 v{LANE4}, v{AR} offset:{PRE2}
    s_cmp_lg_u32 s3, 0
    s_cbranch_scc1 K2_NOPAD
    v_add_u32 v{AL}, s{sT}, v{LANE}
    v_mov_b32 v{PV}, {4*NPB}
    ds_write_b8 v{AL}, v{PV} offset:{LISTL}
    v_lshlrev_b32 v{AL}, 2, v{AL}
    ds_write_b32 v{AL}, v{ZERO} offset:{LISTR}
    K2_NOPAD:
    """)
    for x in range(2):
        for i in range(2):
            a(f"v_cmpx_lt_i32 vcc, {16*i}, v{REM[x]}")
            a(f"s_cbranch_execz K2_SR_{x}")
            for k in range(4):
                s = 8*x + 4*i + k
                a(f"ds_read_b32 v{BS+s}, v{DLS+s} offset:{PRE2}")
        a(f"K2_SR_{x}:\ns_mov_b64 exec, -1")
    if NPC[3]: pieces(NPC[3], "d")
    a("s_waitcnt lgkmcnt(0)")
    stamp(a, 2, 11)
    for x in range(2):
        for i in range(2):
            for k in range(4):
                s = 8*x + 4*i + k
                a(f"v_cmpx_lt_i32 vcc, {16*i+k}, v{REM[x]}")
                if k == 0 or i == 1: a(f"s_cbranch_execz K2_SC_{x}")
                a(f"v_add_u32 v{BS+s}, v{BS+s}, v{RK+s}")
                a(f"v_lshlrev_b32 v{RK+s}, 2, v{BS+s}")
                a(f"ds_write_b8 v{BS+s}, v{DLS+s} offset:{LISTL}")
                a(f"ds_write_b32 v{RK+s}, v{RECS+s} offset:{LISTR}")
        a(f"K2_SC_{x}:\ns_mov_b64 exec, -1")
        if x == 0:
            a(f"s_cmp_eq_u32 s{sFIN}, 0\ns_cbranch_scc1 K2_NP_e")
            for _ in range(9 - sum(NPC)): pos_piece()
            a(f"""
            s_cmp_ge_u32 s3, 2
            s_cbranch_scc1 K2_POSDONE
            s_cmp_eq_u32 s3, 1
            s_cselect_b64 exec, 0xffff, -1
            s_add_u32 m0, s{sPP}, {8192*9}
            s_mov_b32 s{sTMP+2}, {8192*9}
            buffer_load_dwordx4 v{L16}, {sr(sPOS,4)}, s{sTMP+2} offen lds
            s_mov_b64 exec, -1
            K2_POSDONE:
            """)
            if OPT.touch: b_touch(a, 0, 49, TCH)
            a.label("K2_NP_e")
    a(f"""
    s_add_u32 s{sTMP}, s{sT}, 63
    s_lshr_b32 s{sTMP}, s{sTMP}, 6
    s_lshr_b32 s{sTMP+1}, s{sTMP}, 3
    s_and_b32 s{sTMP+2}, s{sTMP}, 7
    s_mul_i32 s{sPN}, s3, s{sTMP+1}
    s_min_u32 s{sTMP+3}, s3, s{sTMP+2}
    s_add_u32 s{sPN}, s{sPN}, s{sTMP+3}
    s_cmp_lt_u32 s3, s{sTMP+2}
    s_addc_u32 s{sTMP+1}, s{sTMP+1}, s{sPN}
    s_lshl_b32 s{sPN}, s{sPN}, 6
    s_lshl_b32 s{sEND}, s{sTMP+1}, 6
    s_min_u32 s{sEND}, s{sEND}, s{sT}
    s_lshl_b32 s{sPN4}, s{sPN}, 2
    s_lshl_b32 s{sTMP}, s3, 12
    s_add_u32 m0, s{sTMP}, {STG}
    s_mov_b32 s{sFWX}, 0
    s_mov_b32 s{sFFL}, 0
    s_mov_b32 s{sMA+1}, 0
    s_mov_b32 s{sMB}, 0
    """)
    for r in range(16):
        a(f"v_mov_b32 v{ACC[1]+r}, 0")
    for r in range(8):
        a(f"v_mov_b32 v{S+r}, 0\nv_mov_b32 v{T+r}, 1.0")
    stamp(a, 2, 10)
    a(f"""
    s_waitcnt vmcnt({ntouch})
    s_cmp_eq_u32 s{sFIN}, 0
    s_cbranch_scc1 K2_NOPOS1
    s_mov_b32 s{sFIN}, 0
    s_mov_b32 s{sTMP}, {f32(-LN2)}
    v_lshlrev_b32 v{WXS[0]}, 16, v{WXS[0]}
    v_lshlrev_b32 v{WXS[1]}, 16, v{WXS[1]}
    v_mul_f32 v{WXS[0]}, s{sTMP}, v{WXS[0]}
    v_mul_f32 v{WXS[1]}, s{sTMP}, v{WXS[1]}
    s_cmp_lg_u32 s3, 4
    s_cbranch_scc1 K2_NOPOS1
    v_lshlrev_b32 v{T1}, 4, v{LANE}
    v_cmp_gt_u32 vcc, {NPB}, v{LANE}
    s_and_saveexec_b64 {sr(sTMP)}, vcc
    ds_write_b128 v{T1}, {vr(ACC[0],4)} offset:{POSD}
    s_mov_b64 exec, -1
    K2_NOPOS1:
    s_waitcnt lgkmcnt(0)
    s_barrier
    """)
    stamp(a, 2, 4)
    a(f"""
    s_cmp_ge_u32 s{sPN}, s{sEND}
    s_cbranch_scc1 K2_NOWORK
    """)
    RB4 = D[1]
    if OPT.abl:
        a(f"s_sub_u32 s67, s{sEND}, s{sPN}\ns_add_u32 s67, s67, 63\ns_lshr_b32 s67, s67, 6")
    plain(a, list_reads())
    a(f"""
    ds_read_b128 {vr(RB4,4)}, v{A4} offset:{LISTR+128}
    s_sub_u32 s{sTMP}, s{sEND}, s{sPN}
    v_cmp_gt_i32 {sr(sMR)}, s{sTMP}, v{LANE}
    s_waitcnt lgkmcnt(3)
    """)
    plain(a, mads(R4))
    plain(a, dma_ops())
    a(f"""
    s_waitcnt lgkmcnt(0)
    v_readfirstlane_b32 s{sWB}, v{DL4}
    s_nop 0
    s_min_u32 s{sWB}, s{sWB}, {4*(NPB-8)}
    """)
    window_masks(a)
    wx_load(a)
    plain(a, geo_addr())
    plain(a, geo_lut())
    plain(a, advance())
    plain(a, mads(RB4))
    for r in range(8):
        a(f"v_mov_b32 v{M[1]+r}, 0")
    for r in range(16):
        a(f"v_mov_b32 v{ACC[0]+r}, 0")
    a(f"v_mov_b32 v{D[1]+14}, 0\nv_mov_b32 v{D[1]+15}, 0")
    a("s_waitcnt lgkmcnt(0)")
    plain(a, geo_diff())
    plain(a, geo_cvt())
    plain(a, geo_d2())
    a("s_nop 2")
    plain(a, geo_fin())
    plain(a, x_read(0))
    a(mfma32(D[0], XX, WX[0] + 2, None))
    a("s_waitcnt lgkmcnt(2)")
    a(mfma32(D[0], X[0], ID, D[0]))
    a(mfma32(D[0], X[0] + 4, ID + 4, D[0]))
    a("s_waitcnt lgkmcnt(0)")
    plain(a, dma_ops())
    a("s_nop 6")
    if OPT.prio: a("s_setprio 3")
    stamp(a, 2, 5)
    gen_main_loop(a)
    stamp(a, 2, 6)
    t2 = T + 2 * (7 % 4); y2 = D[1] + 14; t6 = T + 2 * (6 % 4)
    a(f"""
    {mfma32(ACC[1], S, M[1], ACC[1])}
    v_cvt_pk_bf16_f32 v{M[1]+6}, v{t6}, v{t6+1}
    v_rcp_f32 v{t2}, v{t2}
    v_rcp_f32 v{t2+1}, v{t2+1}
    s_nop 0
    v_mul_f32 v{t2}, v{t2}, v{y2}
    v_mul_f32 v{t2+1}, v{t2+1}, v{y2+1}
    v_cvt_pk_bf16_f32 v{M[1]+7}, v{t2}, v{t2+1}
    s_nop 1
    {mfma32(ACC[1], S+4, M[1]+4, ACC[1])}
    s_mov_b32 s{sWBO}, s{sWB}
    """)
    epi_loads(a)
    flush_code(a, False, 'A')
    a("s_branch K2_WDONE")
    a.label("K2_FLUSH")
    flush_code(a, True, 'B')
    a(f"s_mov_b32 s{sFFL}, 0\ns_branch K2_FLUSH_RET")
    a.label("K2_REBASE")
    a(f"""
    s_mov_b32 s{sWBO}, s{sWB}
    v_readfirstlane_b32 s{sWB}, v{DL4}
    s_mov_b32 s{sFWX}, 1
    s_mov_b32 s{sFFL}, 1
    s_min_u32 s{sWB}, s{sWB}, {4*(NPB-8)}
    """)
    window_masks(a)
    a("s_branch K2_REBASE_RET")
    a.label("K2_WXL")
    wx_load(a)
    a(f"s_mov_b32 s{sFWX}, 0\ns_branch K2_WXL_RET")
    a.label("K2_NOWORK")
    epi_loads(a)
    a.label("K2_WDONE")
    stamp(a, 2, 7)
    a(f"""
    s_cmp_eq_u32 s{sMORE}, 0
    s_cbranch_scc1 K2_EPI
    v_and_b32 v{T1}, 3, v0
    v_lshlrev_b32 v{T1}, 2, v{T1}
    v_add_u32 v{T2}, v{T1}, v{ENDV[1]}
    v_add_u32 v{T1}, v{T1}, v{ENDV[0]}
    v_add_u32 v{START[0]}, s{sQ}, v{START[0]}
    v_add_u32 v{START[1]}, s{sQ}, v{START[1]}
    v_min_u32 v{START[0]}, v{START[0]}, v{T1}
    v_min_u32 v{START[1]}, v{START[1]}, v{T2}
    K2_AGAIN:
    s_waitcnt vmcnt(0) lgkmcnt(0)
    s_barrier
    s_mov_b32 s{sFIRST}, 0
    s_cmp_lg_u32 s3, 0
    s_cbranch_scc1 K2_ROUND
    ds_write_b32 v{LANE4}, v{ZERO} offset:{CNT2}
    v_mov_b32 v{T1}, {FLAG}
    ds_write_b32 v{T1}, v{ZERO}
    s_branch K2_ROUND
    """)
    MF = D[1]; MB_ = M[0]; U = ACC[0]; HR = D[0]; EX = D[0] + 8
    a(f"""
    K2_EPI:
    s_and_b32 s{sTMP}, s3, 3
    s_lshl_b32 s{sTMP}, s{sTMP}, 4
    v_and_b32 v{T1}, 15, v{LANE}
    v_add_u32 v{T1}, s{sTMP}, v{T1}
    v_mul_u32_u24 v{T2}, {RS}, v{T1}
    v_and_b32 v{TA}, 48, v{LANE}
    v_lshl_add_u32 v{T2}, v{TA}, 1, v{T2}
    s_movk_i32 s{sTMP+3}, 21846
    v_mul_u32_u24 v{DX}, s{sTMP+3}, v0
    v_lshrrev_b32 v{DX}, 16, v{DX}
    v_add_lshl_u32 v{DX}, v{DX}, v0, 2
    s_mul_i32 s{sTMP+4}, s{sNB}, 6
    s_add_u32 s{sTMP+4}, s{sTMP+4}, {N*128}
    v_lshl_add_u32 v{PD}, v0, 1, s{sTMP+4}
    s_lshr_b32 s{sTMP+4}, s3, 2
    s_lshl_b32 s{sTMP+4}, s{sTMP+4}, 6
    s_lshl_b32 s{sTMP+5}, s{sNB}, 7
    s_add_u32 s{sTMP+4}, s{sTMP+4}, s{sTMP+5}
    v_lshlrev_b32 v{PD+1}, 7, v{T1}
    v_add3_u32 v{PD+1}, v{PD+1}, v{TA}, s{sTMP+4}
    v_cmp_gt_u32 {sr(sF0)}, s{sNN}, v{T1}
    s_mul_i32 s{sTMP+5}, s{sNN}, 3
    v_cmp_gt_u32 {sr(sF0+2)}, s{sTMP+5}, v0
    s_mov_b32 s{sTMP+2}, {f32(-LN2)}
    s_waitcnt vmcnt(0)
    {mfma16(U, X[0], EW, None)}
    {mfma16(U+4, X[0]+16, EW, None)}
    {mfma16(U, X[0]+4, EW+4, U)}
    {mfma16(U+4, X[0]+20, EW+4, U+4)}
    s_mov_b32 s{sTMP+3}, 0xffff0000
    s_cmp_lt_u32 s3, 4
    s_cbranch_scc1 K2_HLO
    v_mov_b32 v{EW}, v{EW+4}
    v_mov_b32 v{EW+1}, v{EW+5}
    v_mov_b32 v{EW+2}, v{EW+6}
    v_mov_b32 v{EW+3}, v{EW+7}
    K2_HLO:
    """)
    for r in range(4):
        a(f"v_lshlrev_b32 v{HR+2*r}, 16, v{EW+r}")
        a(f"v_and_b32 v{HR+2*r+1}, s{sTMP+3}, v{EW+r}")
    a("s_waitcnt lgkmcnt(0)\ns_barrier")
    stamp(a, 2, 8)
    for s in range(2):
        a(f"ds_read_b128 {vr(MF+8*s,4)}, v{T2} offset:{ACCM + 128*s}")
        a(f"ds_read_b128 {vr(MF+8*s+4,4)}, v{T2} offset:{ACCM + 128*s + 16}")
    a(f"""
    ds_read_b32 v{DX+1}, v{DX} offset:{POSD}
    ds_read_b32 v{DX+2}, v{DX} offset:{ACCP}
    """)
    for s in range(2):
        a(f"s_waitcnt lgkmcnt({4 - 2*s})")
        for r in range(8):
            a(f"v_mul_f32 v{MF+8*s+r}, s{sTMP+2}, v{MF+8*s+r}")
        for r in range(4):
            a(f"v_cvt_pk_bf16_f32 v{MB_+4*s+r}, v{MF+8*s+2*r}, v{MF+8*s+2*r+1}")
        a("s_nop 1")
        a(mfma16(U, X[0]+8+4*s, MB_+4*s, U))
        a(mfma16(U+4, X[0]+24+4*s, MB_+4*s, U+4))
    a(f"""
    s_waitcnt lgkmcnt(0)
    v_add_f32 v{DX+1}, v{DX+1}, v{DX+2}
    v_cvt_pk_bf16_f32 v{DX+1}, v{DX+1}, v{DX+1}
    s_mov_b32 s{sTMP+2}, {f32(-L2E)}
    s_mov_b64 exec, {sr(sF0+2)}
    s_cbranch_execz K2_NOPOS
    buffer_store_short v{DX+1}, v{PD}, {sr(sOUT,4)}, 0 offen
    K2_NOPOS:
    s_mov_b64 exec, -1
    s_nop 1
    """)
    for r in range(8):
        a(f"v_mul_f32 v{EX+r}, s{sTMP+2}, v{U+r}")
    for r in range(8):
        a(f"v_exp_f32 v{EX+r}, v{EX+r}")
    for r in range(8):
        a(f"v_add_f32 v{EX+r}, 1.0, v{EX+r}")
    for r in range(8):
        a(f"v_rcp_f32 v{EX+r}, v{EX+r}")
    for r in range(8):
        a(f"v_fmac_f32 v{HR+r}, v{EX+r}, v{U+r}")
    for r in range(4):
        a(f"v_cvt_pk_bf16_f32 v{EX+r}, v{HR+2*r}, v{HR+2*r+1}")
    a(f"""
    s_mov_b64 exec, {sr(sF0)}
    s_cbranch_execz K2_END
    buffer_store_dwordx4 {vr(EX,4)}, v{PD+1}, {sr(sOUT,4)}, 0 offen
    """)
    if OPT.stamps:
        a("s_waitcnt vmcnt(0)")
    stamp(a, 2, 9); stamp(a, 2, 15, True)
    a("K2_END:\ns_endpgm")

HEADER = """; EGNN layer (gather / edge MLP / scatter) for gfx950, two launches:
;   egnn_bin_kernel : counting sort of edge chunks by destination bucket, per-node tables -> d_ws
; Kernarg: h 0, pos 8, e_attr 16, src 24, dst 32, w_e 40, w_x 48, w_h 56, out 64, debug 72, ws 80
; @launch kernel=egnn_bin_kernel grid=(256,1,1) block=(1024,1,1) lds={l1}
; @launch kernel=gather_scatter__cheap_equivariant_egnn__graph_kernel grid=(256,1,1) block=(512,1,1) lds={l2}
.amdgcn_target "amdgcn-amd-amdhsa--gfx950"
.text
"""
KD = """.amdhsa_kernel {name}
  .amdhsa_next_free_vgpr {nv}
  .amdhsa_next_free_sgpr 96
  .amdhsa_accum_offset {nv}
  .amdhsa_group_segment_fixed_size 0
  .amdhsa_kernarg_size 88
  .amdhsa_user_sgpr_count 2
  .amdhsa_user_sgpr_kernarg_segment_ptr 1
  .amdhsa_system_sgpr_workgroup_id_x 1
.end_amdhsa_kernel
"""

def generate(stamps=0, nt1=1, prio=2, touch=0, early=1, g0=3, g1=5, abl='', twearly=1, npc=333, nopos=0, twprio=1):
    OPT.stamps = stamps; OPT.nt1 = nt1; OPT.prio = prio; OPT.touch = touch; OPT.early = early
    OPT.abl = abl; OPT.twearly = twearly; OPT.nopos = nopos; OPT.twprio = twprio; OPT.npc = [int(c) for c in '%04d' % npc]; OPT.g0 = g0; OPT.g1 = g1
    a1 = Asm(); l1 = gen_k1(a1)
    a2 = Asm(); gen_k2(a2)
    k1n = "egnn_bin_kernel"; k2n = "gather_scatter__cheap_equivariant_egnn__graph_kernel"
    s = HEADER.format(l1=l1, l2=LDS2)
    s += f".globl {k1n}\n.p2align 8\n.type {k1n},@function\n" + a1.text()
    s += f".globl {k2n}\n.p2align 8\n.type {k2n},@function\n" + a2.text()
    s += '.section .rodata,"a"\n.p2align 6\n' + KD.format(name=k1n, nv=128 if stamps else 104)
    s += ".p2align 6\n" + KD.format(name=k2n, nv=NV2 if stamps else 240)
    return s

if __name__ == "__main__":
    out = sys.argv[1]
    kw = {}
    for x in sys.argv[2:]:
        k, v = x.split("=", 1); kw[k] = v if k == 'abl' else int(v)
    open(out, "w").write(generate(**kw))
```

```python
import sys, struct

N = 12500; E = 800000
NPB = 49
CH = 3136
PSTR = 15744
L_OFF = CH * 4
RL_END = L_OFF + CH
OFFT = 256 * PSTR
WF = OFFT + 256 * 1024
ATAB = WF + 18 * 1024
BTAB = ATAB + 12560 * 128
WS_USED = BTAB + 12560 * 128
DBG_WS = WS_USED + 4096
WS_SRD = DBG_WS + (1 << 20)
L2E = 1.4426950408889634
LN2 = 0.6931471805599453

def f32(x):
    return "0x%08x" % struct.unpack("<I", struct.pack("<f", x))[0]

class Asm:
    def __init__(self):
        self.L = []
    def __call__(self, s):
        for ln in s.strip("\n").split("\n"):
            ln = ln.strip()
            if ln:
                self.L.append(ln if ln.endswith(":") else "    " + ln)
    def label(self, s):
        self.L.append(s + ":")
    def text(self):
        return "\n".join(self.L) + "\n"

def vr(a, n):
    return f"v[{a}:{a+n-1}]"
def sr(a, n=2):
    return f"s[{a}:{a+n-1}]"

def srd(a, base, nbytes, add=0):
    o = []
    if add:
        o += [f"s_add_u32 s{a}, s{base}, {add}", f"s_addc_u32 s{a+1}, s{base+1}, 0"]
    else:
        o += [f"s_mov_b32 s{a}, s{base}", f"s_mov_b32 s{a+1}, s{base+1}"]
    o += [f"s_mov_b32 s{a+2}, {nbytes}", f"s_mov_b32 s{a+3}, 0x00020000"]
    return "\n".join(o)

def wave_scan(a, v):
    for ctl in ("row_shr:1", "row_shr:2", "row_shr:4", "row_shr:8"):
        a("s_nop 1")
        a(f"v_add_u32_dpp v{v}, v{v}, v{v} {ctl} row_mask:0xf bank_mask:0xf bound_ctrl:0")
    a("s_nop 1")
    a(f"v_add_u32_dpp v{v}, v{v}, v{v} row_bcast:15 row_mask:0xa bank_mask:0xf")
    a("s_nop 1")
    a(f"v_add_u32_dpp v{v}, v{v}, v{v} row_bcast:31 row_mask:0xc bank_mask:0xf")

def mfma32(d, a_, b_, c):
    cc = "0" if c is None else vr(c, 16)
    return f"v_mfma_f32_32x32x16_bf16 {vr(d,16)}, {vr(a_,4)}, {vr(b_,4)}, {cc}"
def mfma16(d, a_, b_, c):
    cc = "0" if c is None else vr(c, 4)
    return f"v_mfma_f32_16x16x32_bf16 {vr(d,4)}, {vr(a_,4)}, {vr(b_,4)}, {cc}"

class Opt:
    pass
OPT = Opt()

def stamp(a, kern, idx, real=False):
    if not OPT.stamps:
        return
    if OPT.stamps == 5 and not real:
        if (kern, idx) in ((2, 5), (2, 6)):
            stamp(a, kern, idx + 7, True)
        if not (kern == 2 and idx in (0, 5, 6)): return
    if OPT.stamps == 4:
        idx = {(2, 5): 12, (2, 6): 13, (2, 2): 11, (2, 4): 10}.get((kern, idx), idx) if not real else idx
        if idx < 10 or (not real and idx in (10, 11) and (kern, idx) == (2, idx) and not getattr(stamp, 'ok', True)): return
        real = True
    if not real and OPT.stamps == 2 and idx not in (0, 3, 9):
        return
    if not real and OPT.stamps == 3 and idx not in ((0, 3) if kern == 1 else (0, 5, 6, 9)):
        return
    sv = 252 if kern == 2 else 120
    st = 64
    w = 12 if kern == 2 else 20
    a(f"""
    {'s_memrealtime' if real else 's_memtime'} s[{st}:{st+1}]
    s_waitcnt lgkmcnt(0)
    v_mov_b32 v{sv}, s{st}
    v_mov_b32 v{sv+1}, s{st+2}
    s_mov_b64 s[{st}:{st+1}], exec
    s_mov_b64 exec, 1
    buffer_store_dword v{sv}, v{sv+1}, s[{w}:{w+3}], 0 offen offset:{idx*4}
    s_mov_b64 exec, s[{st}:{st+1}]
    """)

def gen_k1(a):
    CNT, PRE, RB = 0, 1024, 2048
    TW = RB + RL_END
    TWS = 8192 + 4096 + 4608
    LDS1 = TW + 4 * TWS
    NT = " nt" if OPT.nt1 else ""
    NE = 768
    a.label("egnn_bin_kernel")
    if OPT.stamps == 4: a("s_memrealtime s[70:71]")
    a(f"""
    s_cmp_ge_u32 s2, 256
    s_cbranch_scc1 K1_END
    s_load_dwordx4 s[36:39], s[0:1], 32
    s_load_dwordx4 s[32:35], s[0:1], 16
    s_load_dwordx2 s[40:41], s[0:1], 56
    s_load_dwordx2 s[42:43], s[0:1], 80
    s_load_dwordx2 s[58:59], s[0:1], 0
    v_lshrrev_b32 v1, 6, v0
    v_and_b32 v6, 63, v0
    v_readfirstlane_b32 s3, v1
    v_lshlrev_b32 v2, 2, v0
    v_mov_b32 v3, 0
    s_mul_i32 s44, s2, {CH}
    s_sub_u32 s45, {E}, s44
    s_lshr_b32 s45, s45, 2
    s_min_u32 s45, s45, {NE}
    s_mul_i32 s49, s2, {PSTR}
    s_lshl_b32 s46, s44, 2
    s_lshl_b32 s47, s44, 1
    v_lshlrev_b32 v4, 4, v0
    v_lshlrev_b32 v5, 3, v0
    v_lshlrev_b32 v7, 4, v6
    s_cmp_ge_u32 s3, 4
    s_cbranch_scc1 K1_NOZERO
    ds_write_b32 v2, v3 offset:{CNT}
    K1_NOZERO:
    v_cmp_gt_u32 vcc, s45, v0
    s_mul_i32 s60, s2, {NPB}
    s_cmp_lt_u32 s2, 255
    s_cselect_b32 s61, 0, 1
    s_or_b32 s61, s61, s3
    s_waitcnt lgkmcnt(0)
    {srd(8, 36, E*4)}
    {srd(20, 42, WS_SRD)}
    """)
    if OPT.stamps:
        a(f"s_lshl_b32 s66, s2, 4\ns_add_u32 s66, s66, s3\ns_lshl_b32 s66, s66, 6\ns_add_u32 s66, s66, {DBG_WS}")
    stamp(a, 1, 0); stamp(a, 1, 14, True)
    if OPT.stamps == 4:
        a("v_mov_b32 v120, s70\ns_mov_b64 s[64:65], exec\ns_mov_b64 exec, 1\nbuffer_store_dword v120, v121, s[20:23], 0 offen offset:32\ns_mov_b64 exec, s[64:65]")
    a(f"""
    s_cmp_ge_u32 s3, 12
    s_cbranch_scc1 K1_TW
    s_and_saveexec_b64 s[50:51], vcc
    s_mov_b64 s[52:53], exec
    s_cbranch_execz K1_NOLOAD
    buffer_load_dwordx4 v[8:11], v4, s[8:11], s46 offen{NT}
    s_cmp_lg_u32 s61, 0
    s_cbranch_scc1 K1_NOLOAD
    s_add_u32 s62, s46, {NE*16}
    buffer_load_dword v60, v2, s[8:11], s62 offen{NT}
    K1_NOLOAD:
    s_mov_b64 exec, -1
    {srd(12, 34, E*4)}
    {srd(16, 32, E*2)}
    s_barrier
    s_mov_b64 exec, s[52:53]
    s_cbranch_execz K1_NOCNT
    buffer_load_dwordx4 v[12:15], v4, s[12:15], s46 offen{NT}
    buffer_load_dwordx2 v[16:17], v5, s[16:19], s47 offen{NT}
    s_movk_i32 s48, 21400
    v_mov_b32 v36, 1
    s_cmp_lg_u32 s61, 0
    s_cbranch_scc1 K1_NOX1
    buffer_load_dword v61, v2, s[12:15], s62 offen{NT}
    v_lshlrev_b32 v63, 1, v0
    s_add_u32 s63, s47, {NE*8}
    buffer_load_ushort v62, v63, s[16:19], s63 offen{NT}
    s_waitcnt vmcnt(4)
    v_mul_u32_u24 v64, s48, v60
    v_lshrrev_b32 v64, 20, v64
    v_mul_u32_u24 v65, {NPB}, v64
    v_lshlrev_b32 v66, 2, v64
    ds_add_rtn_u32 v67, v66, v36 offset:{CNT}
    v_sub_u32 v65, v60, v65
    v_lshlrev_b32 v65, 2, v65
    s_branch K1_CNT
    K1_NOX1:
    s_waitcnt vmcnt(2)
    K1_CNT:
    """)
    for j in range(4):
        a(f"""
        v_mul_u32_u24 v{20+j}, s48, v{8+j}
        v_lshrrev_b32 v{20+j}, 20, v{20+j}
        v_mul_u32_u24 v{24+j}, {NPB}, v{20+j}
        v_lshlrev_b32 v{28+j}, 2, v{20+j}
        ds_add_rtn_u32 v{32+j}, v{28+j}, v36 offset:{CNT}
        v_sub_u32 v{24+j}, v{8+j}, v{24+j}
        v_lshlrev_b32 v{24+j}, 2, v{24+j}
        """)
    a(f"""
    K1_NOCNT:
    s_mov_b64 exec, -1
    s_waitcnt lgkmcnt(0)
    s_barrier
    """)
    stamp(a, 1, 1)
    a(f"""
    s_cmp_eq_u64 s[52:53], 0
    s_cbranch_scc1 K1_NOSCAT
    ds_read_b128 v[40:43], v7 offset:{CNT}
    s_waitcnt lgkmcnt(0)
    v_add_u32 v41, v40, v41
    v_add_u32 v42, v41, v42
    v_add_u32 v43, v42, v43
    v_mov_b32 v44, v43
    """)
    wave_scan(a, 44)
    a(f"""
    v_sub_u32 v46, v44, v43
    v_add_u32 v47, v46, v40
    v_add_u32 v48, v46, v41
    v_add_u32 v49, v46, v42
    ds_write_b128 v7, v[46:49] offset:{PRE}
    s_mov_b64 exec, s[52:53]
    s_mov_b32 s55, 0xffff0000
    s_cmp_lg_u32 s61, 0
    s_cbranch_scc1 K1_NOX2
    ds_read_b32 v68, v66 offset:{PRE}
    s_waitcnt vmcnt(0) lgkmcnt(0)
    v_lshl_or_b32 v61, v62, 16, v61
    v_add_u32 v68, v68, v67
    v_lshlrev_b32 v69, 2, v68
    ds_write_b8 v68, v65 offset:{RB + L_OFF}
    ds_write_b32 v69, v61 offset:{RB}
    K1_NOX2:
    """)
    for j in range(4):
        a(f"ds_read_b32 v{40+j}, v{28+j} offset:{PRE}")
    a(f"""
    s_waitcnt vmcnt(0)
    v_lshl_or_b32 v12, v16, 16, v12
    v_and_or_b32 v13, v16, s55, v13
    v_lshl_or_b32 v14, v17, 16, v14
    v_and_or_b32 v15, v17, s55, v15
    """)
    for j in range(4):
        a(f"""
        s_waitcnt lgkmcnt({3-j + (2*j)})
        v_add_u32 v{40+j}, v{40+j}, v{32+j}
        v_lshlrev_b32 v{50+j}, 2, v{40+j}
        ds_write_b8 v{40+j}, v{24+j} offset:{RB + L_OFF}
        ds_write_b32 v{50+j}, v{12+j} offset:{RB}
        """)
    a(f"""
    s_mov_b64 exec, -1
    s_cmp_lg_u32 s3, 1
    s_cbranch_scc1 K1_NOSCAT
    v_lshl_or_b32 v56, v47, 16, v46
    v_lshl_or_b32 v57, v48, 16, v47
    v_lshl_or_b32 v58, v49, 16, v48
    v_lshl_or_b32 v59, v44, 16, v49
    s_lshl_b32 s54, s2, 2
    s_add_u32 s54, s54, {OFFT}
    v_lshlrev_b32 v60, 12, v6
    buffer_store_dword v56, v60, s[20:23], s54 offen
    buffer_store_dword v57, v60, s[20:23], s54 offen offset:1024
    buffer_store_dword v58, v60, s[20:23], s54 offen offset:2048
    buffer_store_dword v59, v60, s[20:23], s54 offen offset:3072
    K1_NOSCAT:
    s_waitcnt lgkmcnt(0)
    s_barrier
    """)
    stamp(a, 1, 2)
    a(f"""
    K1_COPY:
    v_cmp_gt_u32 vcc, {RL_END//16}, v0
    s_and_saveexec_b64 s[50:51], vcc
    s_cbranch_execz K1_END
    ds_read_b128 v[8:11], v4 offset:{RB}
    s_waitcnt lgkmcnt(0)
    buffer_store_dwordx4 v[8:11], v4, s[20:23], s49 offen
    """)
    if OPT.stamps:
        a("s_waitcnt vmcnt(0)")
    stamp(a, 1, 3); stamp(a, 1, 15, True)
    a("K1_END:\ns_endpgm")
    HF = 16; WFR = 32; DD_ = [64, 80]
    a(f"""
    K1_TW:
    {'s_setprio 3' if OPT.twprio else ''}
    {srd(24, 38, 130*128)}
    {srd(28, 58, N*128)}
    s_and_b32 s63, s3, 1
    s_bfe_u32 s62, s3, 0x10001
    s_and_b32 s61, s3, 3
    s_mul_i32 s57, s61, {TWS}
    s_add_u32 s57, s57, {TW}
    v_lshrrev_b32 v8, 3, v6
    v_lshrrev_b32 v9, 4, v6
    v_and_b32 v10, 7, v6
    v_xor_b32 v9, v9, v10
    v_lshlrev_b32 v9, 4, v9
    v_lshl_add_u32 v9, v8, 7, v9
    v_xor_b32 v10, 64, v9
    s_lshl_b32 s56, s62, 5
    s_add_u32 s56, s56, s60
    s_lshl_b32 s56, s56, 7
    """)
    def tw_loads():
        a("s_add_u32 m0, s57, 8192\ns_lshl_b32 s54, s63, 13")
        for i in range(4):
            a(f"buffer_load_dwordx4 v{9 + (i & 1)}, s[28:31], s56 offen offset:{1024*i}{NT} lds")
        a("s_mov_b32 m0, s57\ns_add_u32 s55, s54, 4096")
        for i in range(4):
            a(f"buffer_load_dwordx4 v7, s[24:27], s54 offen offset:{1024*i} lds")
        a("s_add_u32 m0, s57, 4096\ns_nop 0")
        for i in range(4):
            a(f"buffer_load_dwordx4 v7, s[24:27], s55 offen offset:{1024*i} lds")
    if OPT.twearly: tw_loads()
    a("s_barrier")
    if not OPT.twearly: tw_loads()
    a(f"""
    s_cmp_lg_u32 s61, 2
    s_cbranch_scc1 K1_NOW
    s_cmp_ge_u32 s2, 18
    s_cbranch_scc1 K1_NOW
    s_lshl_b32 s54, s2, 10
    s_add_u32 s54, s54, {WF}
    s_cmp_ge_u32 s2, 16
    s_cbranch_scc1 K1_WEXTRA
    {srd(12, 40, 128*128)}
    s_and_b32 s55, s2, 3
    s_lshl_b32 s55, s55, 12
    s_lshr_b32 s48, s2, 3
    s_lshl_b32 s48, s48, 6
    s_add_u32 s55, s55, s48
    s_lshr_b32 s48, s2, 2
    s_and_b32 s48, s48, 1
    s_lshl_b32 s48, s48, 3
    s_add_u32 s55, s55, s48
    v_lshrrev_b32 v51, 4, v6
    v_lshlrev_b32 v51, 10, v51
    v_bfe_u32 v52, v6, 2, 2
    v_lshl_add_u32 v51, v52, 4, v51
    v_and_b32 v52, 3, v6
    v_lshl_add_u32 v51, v52, 1, v51
    """)
    for j in range(8):
        a(f"buffer_load_ushort v{54+j}, v51, s[12:15], s55 offen offset:{128*j}")
    a("s_barrier\ns_waitcnt vmcnt(0)")
    for j in range(4):
        a(f"v_lshl_or_b32 v{64+j}, v{55+2*j}, 16, v{54+2*j}")
    a(f"""
    buffer_store_dwordx4 v[64:67], v7, s[20:23], s54 offen
    s_branch K1_TJOB
    K1_WEXTRA:
    s_and_b32 s55, s2, 1
    s_lshl_b32 s55, s55, 6
    s_add_u32 s55, s55, {128*128}
    v_and_b32 v52, 31, v6
    v_lshlrev_b32 v51, 1, v52
    buffer_load_ushort v54, v51, s[24:27], s55 offen
    buffer_load_ushort v55, v51, s[24:27], s55 offen offset:128
    s_mov_b32 s48, {f32(-L2E)}
    s_barrier
    s_waitcnt vmcnt(0)
    v_lshlrev_b32 v54, 16, v54
    v_lshlrev_b32 v55, 16, v55
    v_mul_f32 v54, s48, v54
    v_mul_f32 v55, s48, v55
    v_cvt_pk_bf16_f32 v56, v54, v54
    v_lshlrev_b32 v56, 16, v56
    v_sub_f32 v57, v54, v56
    v_cvt_pk_bf16_f32 v58, v56, v57
    v_cvt_pk_bf16_f32 v59, 0, v55
    v_cmp_gt_u32 vcc, 32, v6
    s_nop 1
    v_cndmask_b32 v64, v58, 0, vcc
    v_cndmask_b32 v65, v59, 0, vcc
    v_cndmask_b32 v66, 0, v58, vcc
    v_cndmask_b32 v67, 0, v59, vcc
    buffer_store_dwordx4 v[64:67], v7, s[20:23], s54 offen
    s_branch K1_TJOB
    K1_NOW:
    s_barrier
    s_waitcnt vmcnt(0)
    K1_TJOB:
    """)
    stamp(a, 1, 5)
    a(f"""
    v_lshrrev_b32 v8, 5, v6
    v_and_b32 v9, 31, v6
    v_bfe_u32 v12, v6, 2, 2
    v_lshl_add_u32 v12, v8, 3, v12
    v_lshlrev_b32 v12, 7, v12
    v_bfe_u32 v13, v6, 4, 1
    v_lshl_add_u32 v12, v13, 5, v12
    v_and_b32 v13, 3, v6
    v_lshl_add_u32 v12, v13, 3, v12
    v_add_u32 v12, s57, v12
    v_bfe_u32 v10, v6, 1, 3
    v_xor_b32 v10, v10, v8
    s_add_u32 s54, s57, 8192
    v_lshlrev_b32 v11, 7, v9
    v_add_u32 v11, s54, v11
    """)
    for s in range(4):
        a(f"v_xor_b32 v96, {2*s}, v10\nv_lshl_add_u32 v96, v96, 4, v11\nds_read_b128 {vr(HF+4*s,4)}, v96")
        for jj in range(2):
            a(f"ds_read_b64_tr_b16 {vr(WFR+4*s+2*jj,2)}, v12 offset:{(16*s+4*jj)*128}")
    for s in range(4):
        for jj in range(2):
            a(f"ds_read_b64_tr_b16 {vr(WFR+16+4*s+2*jj,2)}, v12 offset:{(16*s+4*jj)*128 + 64}")
    a(f"""
    s_add_u32 s55, s57, 12288
    v_mul_u32_u24 v13, 144, v9
    v_lshl_add_u32 v13, v8, 3, v13
    v_add_u32 v13, s55, v13
    v_lshrrev_b32 v14, 3, v6
    v_mul_u32_u24 v15, 144, v14
    v_and_b32 v96, 7, v6
    v_lshl_add_u32 v15, v96, 4, v15
    v_add_u32 v15, s55, v15
    s_mov_b32 s48, {f32(-L2E)}
    s_mul_i32 s54, s63, {BTAB - ATAB}
    s_add_u32 s54, s54, {ATAB}
    s_add_u32 s54, s54, s56
    """)
    for h in range(2):
        a(f"s_waitcnt lgkmcnt({8 if h == 0 else 0})")
        for s in range(4):
            a(mfma32(DD_[h], WFR+16*h+4*s, HF+4*s, None if s == 0 else DD_[h]))
    a("s_nop 7")
    stamp(a, 1, 6)
    for h in range(2):
        for r in range(16):
            a(f"v_mul_f32 v{DD_[h]+r}, s48, v{DD_[h]+r}")
        for r in range(8):
            a(f"v_cvt_pk_bf16_f32 v{DD_[h]+r}, v{DD_[h]+2*r}, v{DD_[h]+2*r+1}")
        for q in range(4):
            a(f"ds_write_b64 v13, {vr(DD_[h]+2*q,2)} offset:{64*h + 16*q}")
    for i in range(4):
        a(f"ds_read_b128 {vr(WFR+4*i,4)}, v15 offset:{8*144*i}")
    for i in range(3):
        a(f"s_waitcnt lgkmcnt({3-i})\nbuffer_store_dwordx4 {vr(WFR+4*i,4)}, v7, s[20:23], s54 offen offset:{1024*i}")
    a(f"""
    s_cmp_lg_u32 s62, 0
    s_cbranch_scc1 K1_TDONE
    s_waitcnt lgkmcnt(0)
    buffer_store_dwordx4 {vr(WFR+12,4)}, v7, s[20:23], s54 offen offset:3072
    K1_TDONE:
    """)
    stamp(a, 1, 4)
    a("s_waitcnt lgkmcnt(0)\ns_barrier\ns_branch K1_COPY")
    return LDS1

CAP = 3456
RS = 272
CNT2 = 0; PRE2 = 256; FLAG = 512; LUT = 528; POSD = 672; ACCP = POSD + 800
LISTL = (ACCP + 784 + 15) // 16 * 16
LISTR = LISTL + CAP + 64
AT = LISTR + (CAP + 64) * 4
ACCM = AT + NPB * 128
SB = (ACCM + NPB * RS + 63) // 64 * 64
STG = SB + 8 * 2048
POSB = STG + 8 * 4096
LDS2 = POSB + 75008
assert LDS2 <= 163840, LDS2
assert LISTR % 16 == 0 and AT % 16 == 0 and ACCM % 16 == 0 and STG % 16 == 0

ACC = [2, 18]; D = [34, 50]; M = [66, 74]; X = [82, 98]
ID = 114; WX = [122, 128]; XX = 134; S = 140; T = 148
AS = [159, 160]; LANE = 161; LANE4 = 162; G4 = 163; SROW = 164; DUMMY = 165
R4 = 166; REC = 170; DL4 = 171; REL = 172; TA = 173; PD = 174; DX = 178; DD = 181; DXY = 182
SAD = [184, 185]; A4 = 186; ALUT = 187; ZERO = 188; WXS = [190, 192]; PS = 194
MADDR = 197; POFF = 198; AWT = 199; T1 = 200; T2 = 201; START = [202, 203]; ENDV = [204, 205]
FL = 206
EW = 224
CDMA = 232; AX = 236; TCH = 156
NV2 = 256
sB, sWS, sPOS, sOUT, sH = 8, 12, 16, 20, 24
sNB, sNN, sC128, sPOSB = 28, 29, 30, 31
sFIN = 32; sPP = 33
sEND, sWB, sWBO, sFWX, sFFL = 35, 36, 37, 38, 39
sMA, sMB, sVN, sMR = 40, 42, 44, 46
sNX, sQ, sFIRST, sT, sPN4, sMORE, sROT, sPN = 48, 49, 50, 51, 52, 53, 54, 55
sTMP = 56
sWXD = 68
sPM, sCM, sF0 = 72, 74, 76

def flush_code(a, rezero, tag):
    OLD = FL; NEW = FL + 9
    items = [(T1, 2*q*RS + 128*h, ACC[h]+4*q+3) for q in range(4) for h in range(2)]
    a(f"""
    s_mul_i32 s{sTMP}, s{sWBO}, {RS//4}
    s_lshl_b32 s{sTMP+1}, s{sWBO}, 2
    v_add_u32 v{T1}, s{sTMP}, v{MADDR}
    v_add_u32 v{T2}, s{sTMP+1}, v{POFF}
    """)
    for i, (ad, off, x) in enumerate(items):
        a(f"ds_read_b32 v{OLD+i}, v{ad} offset:{off}")
    a(f"ds_read_b32 v{OLD+8}, v{T2} offset:{ACCP}")
    for q in range(4):
        r0 = ACC[0] + 4*q; r1 = ACC[1] + 4*q
        a(f"v_pk_mul_f32 {vr(r0,2)}, {vr(r0,2)}, {vr(WXS[0],2)} op_sel_hi:[1,0]")
        a(f"v_mul_f32 v{r0+2}, v{r0+2}, v{WXS[0]}")
        a(f"v_pk_fma_f32 {vr(r0,2)}, {vr(r1,2)}, {vr(WXS[1],2)}, {vr(r0,2)} op_sel_hi:[1,0,1]")
        a(f"v_fmac_f32 v{r0+2}, v{r1+2}, v{WXS[1]}")
    a("s_waitcnt lgkmcnt(0)")
    for i, (ad, off, x) in enumerate(items):
        a(f"v_add_f32 v{NEW+i}, v{OLD+i}, v{x}")
    for i, (ad, off, x) in enumerate(items):
        a(f"ds_cmpst_rtn_b32 v{NEW+i}, v{ad}, v{OLD+i}, v{NEW+i} offset:{off}")
    for q in range(2):
        for c in range(3):
            a(f"v_permlane16_swap_b32 v{ACC[0]+4*q+c}, v{ACC[0]+4*(q+2)+c}")
    a("s_nop 1")
    for q in range(2):
        for c in range(3):
            a(f"v_add_f32 v{ACC[0]+4*q+c}, v{ACC[0]+4*q+c}, v{ACC[0]+4*(q+2)+c}")
    c0 = ACC[0]
    a("s_nop 1")
    for c in range(3):
        a(f"v_add_f32_dpp v{c0+c}, v{c0+c}, v{c0+c} row_ror:8 row_mask:0xf bank_mask:0x3")
    for c in range(3):
        a(f"v_add_f32_dpp v{c0+c}, v{c0+4+c}, v{c0+4+c} row_ror:8 row_mask:0xf bank_mask:0xc")
    a(f"""
    s_nop 0
    v_add_f32_dpp v{c0}, v{c0}, v{c0} row_half_mirror row_mask:0xf bank_mask:0x5
    v_add_f32_dpp v{c0+2}, v{c0+2}, v{c0+2} row_half_mirror row_mask:0xf bank_mask:0xf
    v_add_f32_dpp v{c0}, v{c0+1}, v{c0+1} row_half_mirror row_mask:0xf bank_mask:0xa
    s_nop 0
    v_add_f32_dpp v{c0+2}, v{c0+2}, v{c0+2} quad_perm:[1,0,3,2] row_mask:0xf bank_mask:0xf
    v_add_f32_dpp v{c0}, v{c0}, v{c0} quad_perm:[1,0,3,2] row_mask:0xf bank_mask:0xf
    s_nop 0
    v_add_f32_dpp v{c0+2}, v{c0+2}, v{c0+2} quad_perm:[2,3,0,1] row_mask:0xf bank_mask:0xf
    v_add_f32_dpp v{c0}, v{c0}, v{c0} quad_perm:[2,3,0,1] row_mask:0xf bank_mask:0xf
    v_cndmask_b32 v{c0}, v{c0}, v{c0+2}, {sr(sCM)}
    v_add_f32 v{NEW+8}, v{OLD+8}, v{c0}
    s_mov_b64 exec, {sr(sPM)}
    ds_cmpst_rtn_b32 v{NEW+8}, v{T2}, v{OLD+8}, v{NEW+8} offset:{ACCP}
    s_mov_b64 exec, -1
    s_waitcnt lgkmcnt(1)
    """)
    for i in range(8):
        a(f"v_cmp_ne_u32 {sr(sF0+2*i)}, v{NEW+i}, v{OLD+i}")
    a(f"""
    s_waitcnt lgkmcnt(0)
    v_cmp_ne_u32 vcc, v{NEW+8}, v{OLD+8}
    s_and_b64 {sr(sF0+16)}, vcc, {sr(sPM)}
    s_or_b64 {sr(sTMP)}, {sr(sF0+16)}, {sr(sF0)}
    """)
    for i in range(1, 8):
        a(f"s_or_b64 {sr(sTMP)}, {sr(sTMP)}, {sr(sF0+2*i)}")
    a(f"s_cbranch_scc0 K2_FOK_{tag}")
    for i, (ad, off, x) in enumerate(items + [(T2, ACCP, c0)]):
        a(f"""
        v_cmp_neq_f32 vcc, 0, v{x}
        s_and_b64 exec, vcc, {sr(sF0+2*i)}
        ds_add_f32 v{ad}, v{x} offset:{off}
        s_mov_b64 exec, -1
        """)
    a("s_waitcnt lgkmcnt(0)")
    a.label(f"K2_FOK_{tag}")
    if rezero:
        for h in range(2):
            for r in range(16):
                a(f"v_mov_b32 v{ACC[h]+r}, 0")

def window_masks(a):
    a(f"""
    v_subrev_u32 v{REL}, s{sWB}, v{DL4}
    v_cmp_gt_u32 vcc, 32, v{REL}
    s_and_b64 {sr(sVN)}, vcc, {sr(sMR)}
    """)

def wx_load(a):
    a(f"""
    s_lshl_b32 s{sTMP}, s{sWB}, 5
    v_add_u32 v{T1}, s{sTMP}, v{AWT}
    ds_read_b64_tr_b16 {vr(WX[0]+2,2)}, v{T1}
    ds_read_b64_tr_b16 {vr(WX[1]+2,2)}, v{T1} offset:64
    """)

def epi_loads(a):
    a(f"""
    s_lshr_b32 s{sTMP}, s3, 2
    s_lshl_b32 s{sTMP}, s{sTMP}, 13
    s_add_u32 s{sTMP}, s{sTMP}, {WF}
    s_add_u32 s{sTMP+1}, s{sTMP}, 4096
    v_lshlrev_b32 v{TA}, 4, v{LANE}
    s_and_b32 s{sTMP+2}, s3, 3
    s_lshl_b32 s{sTMP+2}, s{sTMP+2}, 4
    s_add_u32 s{sTMP+2}, s{sTMP+2}, s{sNB}
    s_lshl_b32 s{sTMP+2}, s{sTMP+2}, 7
    v_and_b32 v{REL}, 15, v{LANE}
    v_lshlrev_b32 v{REL}, 7, v{REL}
    v_and_or_b32 v{REL}, v{LANE}, 48, v{REL}
    buffer_load_dwordx4 {vr(EW,4)}, v{REL}, {sr(sH,4)}, s{sTMP+2} offen
    buffer_load_dwordx4 {vr(EW+4,4)}, v{REL}, {sr(sH,4)}, s{sTMP+2} offen offset:64
    """)
    for i in range(8):
        a(f"buffer_load_dwordx4 {vr(X[0]+4*i,4)}, v{TA}, {sr(sWS,4)}, s{sTMP + (i >> 2)} offen offset:{1024*(i & 3)}")

def mads(src):
    return [f"v_mad_u32_u16 v{R4+i}, v{src+i}, s{sC128}, v{CDMA+i}" for i in range(4)]
def dma_ops():
    return [f"buffer_load_dwordx4 v{R4+i}, {sr(sB,4)}, 0 offen offset:{1024*i} lds" for i in range(4)]

class Body:
    def __init__(self):
        self.it = []
    def op(self, s): self.it.append(("op", s))
    def ds(self, s, tag=None): self.it.append(("ds", s, tag))
    def wait(self, tag): self.it.append(("wait", tag))
    def emit(self, a):
        if OPT.abl:
            import re
            rx = re.compile(OPT.abl)
            drop = lambda x: bool(rx.search(x[1] if x[0] != "wait" else "WAIT"))
            tags = {x[2] for x in self.it if x[0] == "ds" and drop(x)}
            self.it = [x for x in self.it if not drop(x) and not (x[0] == "wait" and x[1] in tags)]
        n = len(self.it)
        for i, x in enumerate(self.it):
            if x[0] == "wait":
                cnt = 0; j = i - 1; found = False
                for _ in range(n):
                    y = self.it[j % n]
                    if y[0] == "ds":
                        if y[2] == x[1]:
                            found = True; break
                        cnt += 1
                    j -= 1
                assert found, x
                a(f"s_waitcnt lgkmcnt({min(cnt,15)})")
            else:
                a(x[1])

def unit_groups(b, u, pre, post):
    h = u % 2; ph = 1 - h
    ntile = (u + 1) // 2 % 2
    xx = XX if ntile == 0 else XX + 2
    wx = WX[ph] + 2 if ntile == 0 else WX[ph]
    mf = {0: mfma32(ACC[ph], S, M[ph], ACC[ph]),
          1: mfma32(D[ph], xx, wx, None),
          2: mfma32(ACC[ph], S + 4, M[ph] + 4, ACC[ph]),
          OPT.g0: mfma32(D[ph], X[ntile] + 8*ph, ID, D[ph]),
          OPT.g1: mfma32(D[ph], X[ntile] + 8*ph + 4, ID + 4, D[ph])}
    def put(lst):
        for x in lst:
            if isinstance(x, str): b.op(x)
            elif x[0] == "ds": b.ds(x[1], x[2] if len(x) > 2 else None)
            elif x[0] == "wait": b.wait(x[1])
    for g in range(8):
        put(pre.get(g, []))
        if g in mf: b.op(mf[g])
        p = g - 2; hh = h
        if p < 0: p += 8; hh = ph
        t = T + 2 * (p % 4)
        b.op(f"v_cvt_pk_bf16_f32 v{M[hh]+p}, v{t}, v{t+1}")
        t = T + 2 * (g % 4); y = D[h] + 2 * g
        b.op(f"v_exp_f32 v{t}, v{y}")
        b.op(f"v_exp_f32 v{t+1}, v{y+1}")
        p = g - 1; hh = h
        if p < 0: p += 8; hh = ph
        t2 = T + 2 * (p % 4); y2 = D[hh] + 2 * p
        b.op(f"v_rcp_f32 v{t2}, v{t2}")
        b.op(f"v_rcp_f32 v{t2+1}, v{t2+1}")
        b.op(f"v_pk_add_f32 {vr(t,2)}, {vr(t,2)}, 1.0 op_sel_hi:[1,0]")
        b.op(f"v_pk_mul_f32 {vr(t2,2)}, {vr(t2,2)}, {vr(y2,2)}")
        put(post.get(g, []))

def s_build(ad):
    o = [("ds", f"ds_write_b64 v{ad}, {vr(DXY,2)}")]
    for k in range(4):
        o.append(("ds", f"ds_read_b64_tr_b16 {vr(S+2*k,2)}, v{AS[k & 1]} offset:{1024*(k>>1)}", "S" if k == 3 else None))
    o += [("ds", f"ds_write_b64 v{ad}, {vr(ZERO,2)}")]
    return o
def x_read(t):
    o = ["s_waitcnt vmcnt(0)"]
    for k in range(4):
        o.append(("ds", f"ds_read_b128 {vr(X[t]+4*k,4)}, v{AX+k}", "X" if k == 3 else None))
    return o
def geo_addr():
    return [f"v_mad_u32_u16 v{TA}, v{REC}, 6, s{sPOSB}",
            ("ds", f"ds_read_u16_d16_hi v{PS}, v{TA}"),
            ("ds", f"ds_read_u16_d16_hi v{PS+1}, v{TA} offset:2"),
            ("ds", f"ds_read_u16_d16_hi v{PS+2}, v{TA} offset:4"),
            f"v_lshlrev_b32 v{TA}, 2, v{DL4}",
            ("ds", f"ds_read_b128 {vr(PD,4)}, v{TA} offset:{POSD}", "P"),
            f"v_min_u32 v{REL}, 32, v{REL}",
            f"v_lshlrev_b32 v{ALUT}, 1, v{REL}"]
def geo_lut():
    return [("ds", f"ds_read_b64 {vr(XX,2)}, v{ALUT} offset:{LUT}"),
            ("ds", f"ds_read_b64 {vr(XX+4,2)}, v{ALUT} offset:{LUT+72}", "L"),
            f"v_mov_b32 v{XX+3}, v{REC}"]
def geo_diff():
    return [f"v_sub_f32 v{DX+c}, v{PD+c}, v{PS+c}" for c in range(3)]
def geo_cvt():
    return [f"v_cvt_pk_bf16_f32 v{DXY}, v{DX}, v{DX+1}",
            f"v_cvt_pk_bf16_f32 v{DXY+1}, v{DX+2}, 1.0",
            f"v_xor_b32 v{TA}, v{ALUT}, v{SROW}",
            f"v_cndmask_b32 v{SAD[0]}, v{DUMMY}, v{TA}, {sr(sMA)}",
            f"v_cndmask_b32 v{SAD[1]}, v{DUMMY}, v{TA}, {sr(sMB)}"]
def geo_d2():
    return [f"v_dot2_f32_bf16 v{DD}, v{DXY+1}, v{DXY+1}, -1.0",
            f"v_dot2_f32_bf16 v{DD}, v{DXY}, v{DXY}, v{DD}"]
def geo_fin():
    return [f"v_cvt_pk_bf16_f32 v{XX+2}, v{DD}, v{DD}",
            f"v_permlane32_swap_b32 v{XX}, v{XX+4}",
            f"v_permlane32_swap_b32 v{XX+1}, v{XX+5}"]
def list_reads():
    return [f"v_add_u32 v{A4}, s{sPN4}, v{G4}",
            ("ds", f"ds_read_b128 {vr(R4,4)}, v{A4} offset:{LISTR}", "R"),
            f"v_add_u32 v{TA}, s{sPN4}, v{LANE4}",
            ("ds", f"ds_read_b32 v{REC}, v{TA} offset:{LISTR}"),
            f"v_add_u32 v{TA}, s{sPN}, v{LANE}",
            ("ds", f"ds_read_u8 v{DL4}, v{TA} offset:{LISTL}", "E")]
def advance():
    return [f"s_bcnt1_i32_b64 s{sNX}, {sr(sVN)}",
            f"s_add_u32 s{sPN}, s{sPN}, s{sNX}",
            f"s_lshl_b32 s{sPN4}, s{sPN}, 2",
            f"s_mov_b32 s{sMA}, s{sVN}",
            f"s_mov_b32 s{sMB+1}, s{sVN+1}"]
def plain(a, lst):
    for x in lst:
        a(x if isinstance(x, str) else x[1])

def gen_main_loop(a):
    b = Body()
    unit_groups(b, 0,
        pre={3: s_build(SAD[0]),
             4: list_reads(),
             5: [f"s_cmp_lg_u32 s{sFFL}, 0", "s_cbranch_scc1 K2_FLUSH", "K2_FLUSH_RET:"],
             6: x_read(1),
             7: [("wait", "R")] + mads(R4)},
        post={})
    unit_groups(b, 1,
        pre={0: [("wait", "E"),
                 f"s_sub_u32 s{sTMP}, s{sEND}, s{sPN}",
                 f"v_subrev_u32 v{REL}, s{sWB}, v{DL4}",
                 f"v_cmp_gt_i32 {sr(sMR)}, s{sTMP}, v{LANE}",
                 f"v_cmp_gt_u32 vcc, 32, v{REL}"],
             1: [f"s_and_b64 {sr(sVN)}, vcc, {sr(sMR)}",
                 f"s_cmp_lg_u64 {sr(sVN)}, {sr(sMR)}",
                 "s_cbranch_scc1 K2_REBASE", "K2_REBASE_RET:"] + advance() + [("wait", "X")] + dma_ops(),
             2: geo_addr()},
        post={})
    unit_groups(b, 2,
        pre={0: ([f"s_cmp_lg_u32 s{sNX}, 0", "s_cbranch_scc1 K2_PRIO2_OK", "s_setprio 0", "K2_PRIO2_OK:"] if OPT.prio else []),
             2: [f"s_cmp_lg_u32 s{sFWX}, 0", "s_cbranch_scc1 K2_WXL", "K2_WXL_RET:"] + geo_lut(),
             3: s_build(SAD[1]),
             4: [("ds", f"ds_read_b128 {vr(R4,4)}, v{A4} offset:{LISTR+128}", "R")] + geo_cvt(),
             6: x_read(0) + [("wait", "L")] + geo_fin(),
             7: [("wait", "R")] + mads(R4)},
        post={2: [("wait", "P")] + geo_diff(),
              4: geo_d2()})
    unit_groups(b, 3,
        pre={1: [("wait", "X")] + dma_ops()},
        post={})
    a(".p2align 6")
    a.label("K2_LOOP")
    if OPT.prio:
        a(f"""
        s_sub_u32 s{sTMP}, s{sEND}, s{sPN}
        s_cmp_gt_u32 s{sTMP}, {64*OPT.prio}
        s_cbranch_scc1 K2_PRIO_OK
        s_setprio 2
        s_cmp_gt_u32 s{sTMP}, 0
        s_cbranch_scc1 K2_PRIO_OK
        s_setprio 1
        K2_PRIO_OK:
        """)
    b.emit(a)
    if OPT.abl:
        a("s_sub_u32 s67, s67, 1\ns_cmp_lg_u32 s67, 0\ns_cbranch_scc1 K2_LOOP")
    else:
        a(f"s_cmp_lg_u32 s{sNX}, 0\ns_cbranch_scc1 K2_LOOP")

def b_touch(a, lo, n, dst):
    a(f"""
    s_mul_i32 s{sTMP+1}, s{sROT}, {391*128}
    s_mul_i32 s{sTMP+2}, s3, {49*128}
    s_add_u32 s{sTMP+1}, s{sTMP+1}, s{sTMP+2}
    s_add_u32 s{sTMP+1}, s{sTMP+1}, {3072 + 128*lo}
    v_lshlrev_b32 v{dst}, 7, v{LANE}
    s_mov_b64 exec, {hex((1 << n) - 1) if n <= 32 else '-1'}
    """)
    if n > 32:
        a(f"s_mov_b32 exec_hi, {hex((1 << (n - 32)) - 1)}")
    a(f"buffer_load_dword v{dst}, v{dst}, {sr(sB,4)}, s{sTMP+1} offen\ns_mov_b64 exec, -1")

def gen_k2(a):
    a.label("gather_scatter__cheap_equivariant_egnn__graph_kernel")
    if OPT.stamps == 4: a("s_memrealtime s[94:95]")
    tmp = D[0]
    OFFV = tmp + 70; L16 = tmp + 78
    a(f"""
    s_cmp_ge_u32 s2, 256
    s_cbranch_scc1 K2_END
    s_load_dwordx2 s[60:61], s[0:1], 80
    s_load_dwordx4 s[4:7], s[0:1], 0
    s_load_dwordx2 s[56:57], s[0:1], 48
    s_load_dwordx2 s[58:59], s[0:1], 64
    s_lshr_b32 s{sROT}, s2, 3
    s_and_b32 s2, s2, 7
    s_lshl_b32 s2, s2, 5
    s_add_u32 s2, s2, s{sROT}
    v_lshrrev_b32 v1, 6, v0
    v_and_b32 v{LANE}, 63, v0
    v_readfirstlane_b32 s3, v1
    v_lshrrev_b32 v{tmp}, 2, v0
    s_movk_i32 s62, {PSTR}
    v_and_b32 v{tmp+1}, 0x1fc, v0
    v_mul_u32_u24 v1, s62, v{tmp}
    s_lshl_b32 s63, s2, 10
    s_add_u32 s63, s63, {OFFT}
    s_mul_i32 s{sNB}, s2, {NPB}
    s_sub_u32 s{sNN}, {N}, s{sNB}
    s_min_u32 s{sNN}, s{sNN}, {NPB}
    v_lshlrev_b32 v{LANE4}, 2, v{LANE}
    v_lshlrev_b32 v{L16}, 4, v{LANE}
    s_waitcnt lgkmcnt(0)
    {srd(sWS, 60, WS_SRD)}
    buffer_load_dword v{OFFV}, v{tmp+1}, {sr(sWS,4)}, s63 offen
    buffer_load_dword v{OFFV+1}, v{tmp+1}, {sr(sWS,4)}, s63 offen offset:512
    {srd(sB, 60, N*128 + 3072, add=BTAB - 3072)}
    {srd(sPOS, 6, N*6)}
    {srd(sOUT, 58, N*134)}
    {srd(sH, 4, N*128)}
    {srd(sWXD, 56, 128)}
    {srd(sF0, 60, N*128, add=ATAB)}
    """)
    if OPT.stamps:
        a(f"s_lshl_b32 s66, s2, 4\ns_add_u32 s66, s66, s3\ns_lshl_b32 s66, s66, 6\ns_add_u32 s66, s66, {DBG_WS + 256*16*64}")
    stamp(a, 2, 0); stamp(a, 2, 14, True)
    if OPT.stamps == 4:
        a("v_mov_b32 v252, s94\ns_mov_b64 s[64:65], exec\ns_mov_b64 exec, 1\nbuffer_store_dword v252, v253, s[12:15], 0 offen offset:32\ns_mov_b64 exec, s[64:65]")
    nvm = 2 if OPT.stamps else 0
    a(f"s_mov_b32 s{sTMP}, {WF + 16*1024}")
    for h in range(2):
        a(f"buffer_load_dwordx2 {vr(WX[h],2)}, v{L16}, {sr(sWS,4)}, s{sTMP} offen offset:{1024*h}")
        a(f"buffer_load_dwordx2 {vr(WX[h]+4,2)}, v{L16}, {sr(sWS,4)}, s{sTMP} offen offset:{1024*h+8}")
    nvm += 4
    a(f"""
    s_cmp_ge_u32 s3, 7
    s_cbranch_scc1 K2_NOAT
    s_lshl_b32 s{sTMP}, s3, 10
    s_add_u32 m0, s{sTMP}, {AT}
    s_lshl_b32 s{sTMP+1}, s{sNB}, 7
    s_add_u32 s{sTMP+1}, s{sTMP+1}, s{sTMP}
    s_cmp_eq_u32 s3, 6
    s_cselect_b64 exec, 0xff, -1
    buffer_load_dwordx4 v{L16}, {sr(sF0,4)}, s{sTMP+1} offen lds
    s_mov_b64 exec, -1
    K2_NOAT:
    """)
    if OPT.early:
        a(f"""
        s_cmp_lg_u32 s3, 7
        s_cbranch_scc1 K2_NOPT
        s_mul_i32 s{sTMP+1}, s{sROT}, {19*128}
        v_lshlrev_b32 v{TCH}, 7, v{LANE}
        s_mov_b64 exec, 0x7ffff
        buffer_load_dword v{TCH}, v{TCH}, {sr(sPOS,4)}, s{sTMP+1} offen
        s_mov_b64 exec, -1
        K2_NOPT:
        """)
    z = tmp + 8
    a(f"""
    v_mov_b32 v{z}, 0
    v_mov_b32 v{z+1}, 0
    v_mov_b32 v{z+2}, 0
    v_mov_b32 v{z+3}, 0
    v_mov_b32 v{ZERO}, 0
    v_mov_b32 v{ZERO+1}, 0
    v_lshlrev_b32 v{z+4}, 4, v0
    """)
    nz = (STG - ACCM + 8191) // 8192
    for i in range(nz):
        lim = (STG - ACCM - 8192*i) // 16
        if lim < 512:
            a(f"v_cmp_gt_u32 vcc, {lim}, v0\ns_and_saveexec_b64 {sr(sTMP)}, vcc")
        a(f"ds_write_b128 v{z+4}, {vr(z,4)} offset:{ACCM + 8192*i}")
        if lim < 512:
            a("s_mov_b64 exec, -1")
    a(f"""
    v_cmp_gt_u32 vcc, {LISTL//16}, v0
    s_and_saveexec_b64 {sr(sTMP)}, vcc
    ds_write_b128 v{z+4}, {vr(z,4)}
    s_mov_b64 exec, -1
    """)
    HH, A31, R2, C2, GP, U1, U2 = [tmp + 14 + i for i in range(7)]
    a(f"""
    s_movk_i32 s{sC128}, 128
    s_mov_b32 s{sPOSB}, {POSB}
    s_mov_b32 s{sQ}, 32
    s_mov_b32 s{sFIRST}, 1
    s_mov_b32 s{sFIN}, 1
    s_mov_b32 s{sPM}, 0x13131313
    s_mov_b32 s{sPM+1}, 0x13131313
    s_mov_b32 s{sCM}, 0x02020202
    s_mov_b32 s{sCM+1}, 0x02020202
    v_lshrrev_b32 v{HH}, 5, v{LANE}
    v_and_b32 v{A31}, 31, v{LANE}
    v_bfe_u32 v{R2}, v{LANE}, 2, 2
    v_and_b32 v{C2}, 3, v{LANE}
    v_bfe_u32 v{GP}, v{LANE}, 4, 1
    v_lshrrev_b32 v{U1}, 3, v{LANE}
    v_lshlrev_b32 v{G4}, 4, v{U1}
    v_and_b32 v{U1}, 7, v{LANE}
    v_lshlrev_b32 v{U2}, 2, v{HH}
    v_xor_b32 v{U1}, v{U1}, v{U2}
    """)
    for i in range(4):
        a(f"""
        v_xor_b32 v{CDMA+i}, {i}, v{U1}
        v_lshlrev_b32 v{CDMA+i}, 4, v{CDMA+i}
        v_add_u32 v{CDMA+i}, {3072 - 1024*i}, v{CDMA+i}
        """)
    a(f"""
    s_lshl_b32 s{sTMP}, s3, 12
    s_add_u32 s{sTMP}, s{sTMP}, {STG}
    v_bfe_u32 v{U1}, v{LANE}, 2, 3
    v_lshl_add_u32 v{U1}, v{C2}, 3, v{U1}
    v_lshlrev_b32 v{U1}, 7, v{U1}
    v_add_u32 v{U1}, s{sTMP}, v{U1}
    v_lshl_or_b32 v{U2}, v{GP}, 2, v{C2}
    v_xor_b32 v{U2}, v{U2}, v{HH}
    """)
    for k in range(4):
        a(f"v_xor_b32 v{AX+k}, {2*k}, v{U2}\nv_lshl_add_u32 v{AX+k}, v{AX+k}, 4, v{U1}")
    a(f"""
    s_lshl_b32 s{sTMP}, s3, 11
    s_add_u32 s{sTMP}, s{sTMP}, {SB}
    v_lshlrev_b32 v{SROW}, 6, v{A31}
    v_add_u32 v{SROW}, s{sTMP}, v{SROW}
    v_bfe_u32 v{U1}, v{LANE}, 1, 3
    v_lshl_add_u32 v{SROW}, v{U1}, 3, v{SROW}
    v_lshl_add_u32 v{R2}, v{HH}, 2, v{R2}
    v_lshl_add_u32 v{C2}, v{GP}, 2, v{C2}
    v_lshrrev_b32 v{U1}, 1, v{R2}
    v_xor_b32 v{U1}, v{U1}, v{C2}
    v_lshlrev_b32 v{AS[0]}, 6, v{R2}
    v_add_u32 v{AS[0]}, s{sTMP}, v{AS[0]}
    v_xor_b32 v{U2}, 4, v{U1}
    v_lshl_add_u32 v{AS[1]}, v{U2}, 3, v{AS[0]}
    v_add_u32 v{AS[1]}, 512, v{AS[1]}
    v_lshl_add_u32 v{AS[0]}, v{U1}, 3, v{AS[0]}
    v_lshlrev_b32 v{AWT}, 7, v{R2}
    v_lshl_add_u32 v{AWT}, v{C2}, 3, v{AWT}
    v_add_u32 v{AWT}, {AT}, v{AWT}
    v_mul_u32_u24 v{MADDR}, {RS}, v{HH}
    v_lshl_add_u32 v{MADDR}, v{A31}, 2, v{MADDR}
    v_add_u32 v{MADDR}, {ACCM}, v{MADDR}
    v_bfe_u32 v{U1}, v{LANE}, 3, 2
    v_lshl_add_u32 v{U1}, v{U1}, 1, v{HH}
    v_lshlrev_b32 v{POFF}, 4, v{U1}
    v_and_b32 v{U1}, 4, v{LANE}
    v_add_u32 v{POFF}, v{POFF}, v{U1}
    v_and_b32 v{U1}, 1, v{LANE}
    v_lshl_add_u32 v{POFF}, v{U1}, 3, v{POFF}
    v_lshlrev_b32 v{DUMMY}, 3, v{LANE}
    v_mov_b32 v{PS}, 0
    v_mov_b32 v{PS+1}, 0
    v_mov_b32 v{PS+2}, 0
    """)
    a(f"""
    s_waitcnt vmcnt({nvm})
    v_and_b32 v{U1}, 3, v0
    v_lshlrev_b32 v{U1}, 2, v{U1}
    v_and_b32 v{START[0]}, 0xffff, v{OFFV}
    v_and_b32 v{START[1]}, 0xffff, v{OFFV+1}
    v_lshrrev_b32 v{ENDV[0]}, 16, v{OFFV}
    v_lshrrev_b32 v{ENDV[1]}, 16, v{OFFV+1}
    v_add_u32 v{START[0]}, v{START[0]}, v{U1}
    v_add_u32 v{START[1]}, v{START[1]}, v{U1}
    """)
    stamp(a, 2, 1)
    RECS = tmp; LW = tmp + 16; DLS = tmp + 24; RK = tmp + 40; BS = tmp + 56
    REM = [tmp + 72, tmp + 73]; AR = tmp + 74; AL = tmp + 75; ONE = tmp + 76; PV = tmp + 77
    AR2 = [AR, FL]; AL2 = [AL, FL + 1]
    a.label("K2_ROUND")
    a(f"""
    v_and_b32 v{PV}, 3, v0
    v_lshlrev_b32 v{PV}, 2, v{PV}
    v_sub_u32 v{PV}, s{sQ}, v{PV}
    s_mov_b32 s{sTMP}, {128*PSTR}
    s_mov_b32 s{sTMP+1}, {L_OFF}
    s_mov_b32 s{sTMP+2}, {128*PSTR + L_OFF}
    """)
    for x in range(2):
        a(f"""
        v_lshl_add_u32 v{AR2[x]}, v{START[x]}, 2, v1
        v_add_u32 v{AL2[x]}, v{START[x]}, v1
        v_and_b32 v{AL2[x]}, -4, v{AL2[x]}
        buffer_load_dwordx4 {vr(RECS+8*x,4)}, v{AR2[x]}, {sr(sWS,4)}, {'s%d' % sTMP if x else 0} offen
        buffer_load_dwordx2 {vr(LW+4*x,2)}, v{AL2[x]}, {sr(sWS,4)}, s{sTMP+1+x} offen
        """)
    for x in range(2):
        a(f"""
        v_sub_u32 v{FL+2}, v{ENDV[x]}, v{START[x]}
        v_min_i32 v{FL+3+x}, v{FL+2}, v{PV}
        v_cmpx_lt_i32 vcc, 16, v{FL+3+x}
        s_cbranch_execz K2_LD_{x}
        buffer_load_dwordx4 {vr(RECS+8*x+4,4)}, v{AR2[x]}, {sr(sWS,4)}, {'s%d' % sTMP if x else 0} offen offset:64
        buffer_load_dwordx2 {vr(LW+4*x+2,2)}, v{AL2[x]}, {sr(sWS,4)}, s{sTMP+1+x} offen offset:16
        K2_LD_{x}:
        s_mov_b64 exec, -1
        """)
    REM = [FL + 3, FL + 4]
    a(f"""
    v_mov_b32 v{ONE}, 1
    s_cmp_eq_u32 s{sFIRST}, 0
    s_cbranch_scc1 K2_NOTFIRST
    v_and_b32 v{T1}, 31, v{LANE}
    v_lshlrev_b32 v{T1}, 1, v{T1}
    buffer_load_ushort v{WXS[0]}, v{T1}, {sr(sWXD,4)}, 0 offen
    buffer_load_ushort v{WXS[1]}, v{T1}, {sr(sWXD,4)}, 0 offen offset:64
    v_mov_b32 v{ACC[0]}, 0
    v_mov_b32 v{ACC[0]+1}, 0
    v_mov_b32 v{ACC[0]+2}, 0
    v_mov_b32 v{ACC[0]+3}, 0
    s_cmp_lg_u32 s3, 4
    s_cbranch_scc1 K2_NOPD1
    v_add_u32 v{T1}, s{sNB}, v{LANE}
    v_mul_u32_u24 v{T1}, 6, v{T1}
    buffer_load_short_d16_hi v{ACC[0]}, v{T1}, {sr(sPOS,4)}, 0 offen
    buffer_load_short_d16_hi v{ACC[0]+1}, v{T1}, {sr(sPOS,4)}, 0 offen offset:2
    buffer_load_short_d16_hi v{ACC[0]+2}, v{T1}, {sr(sPOS,4)}, 0 offen offset:4
    K2_NOPD1:
    """)
    a(f"""
    v_and_b32 v{T1}, 31, v{LANE}
    v_and_b32 v{T2}, 1, v{T1}
    v_lshlrev_b32 v{T2}, 4, v{T2}
    v_mov_b32 v{TA}, 0x3f80
    v_lshlrev_b32 v{T2}, v{T2}, v{TA}
    v_lshrrev_b32 v{T1}, 1, v{T1}
    v_lshrrev_b32 v{TA}, 5, v{LANE}
    v_lshlrev_b32 v{TA}, 2, v{TA}
    v_sub_u32 v{T1}, v{T1}, v{TA}
    """)
    for t in range(2):
        for r in range(4):
            a(f"v_cmp_eq_u32 {sr(sF0 + 4 + 2*r)}, {8*t + r}, v{T1}")
        for r in range(4):
            a(f"v_cndmask_b32 v{ID+4*t+r}, 0, v{T2}, {sr(sF0 + 4 + 2*r)}")
    a(f"""
    s_waitcnt lgkmcnt(0)
    s_barrier
    s_cmp_lg_u32 s3, 5
    s_cbranch_scc1 K2_NOLUT
    v_and_b32 v{T1}, 1, v{LANE}
    v_lshlrev_b32 v{T1}, 4, v{T1}
    v_mov_b32 v{T2}, 0x3f80
    v_lshlrev_b32 v{T2}, v{T1}, v{T2}
    v_lshrrev_b32 v{T1}, 2, v{LANE}
    v_mul_u32_u24 v{T1}, 72, v{T1}
    v_lshl_add_u32 v{T1}, v{LANE}, 3, v{T1}
    v_and_b32 v{TA}, 2, v{LANE}
    v_lshl_add_u32 v{T1}, v{TA}, 1, v{T1}
    s_mov_b64 exec, 0xff
    ds_write_b32 v{T1}, v{T2} offset:{LUT}
    s_mov_b64 exec, -1
    K2_NOLUT:
    """)
    a(f"""
    s_lshl_b32 s{sPP}, s3, 10
    v_add_u32 v{L16}, s{sPP}, v{L16}
    s_add_u32 s{sPP}, s{sPP}, {POSB}
    s_mul_i32 s{sTMP+3}, s{sROT}, 57
    s_lshr_b32 s{sTMP+3}, s{sTMP+3}, 9
    s_mul_i32 s{sTMP+3}, s{sTMP+3}, 9
    s_sub_u32 s{sTMP+3}, s{sROT}, s{sTMP+3}
    s_lshl_b32 s{sPP+1}, s{sTMP+3}, 13
    """)
    ntouch = 1 if OPT.touch else 0
    a(f"""
    s_waitcnt vmcnt(2)
    s_branch K2_COUNT
    K2_NOTFIRST:
    s_waitcnt lgkmcnt(0)
    s_barrier
    s_waitcnt vmcnt(0)
    K2_COUNT:
    """)
    stamp(a, 2, 2)
    a(f"""
    v_add_u32 v{AR}, v{PV}, v{START[0]}
    v_add_u32 v{AL}, v{PV}, v{START[1]}
    v_cmp_lt_u32 vcc, v{AR}, v{ENDV[0]}
    v_cmp_lt_u32 {sr(sTMP)}, v{AL}, v{ENDV[1]}
    s_or_b64 vcc, vcc, {sr(sTMP)}
    s_cbranch_vccz K2_NOFLAG
    v_mov_b32 v{PV}, {FLAG}
    ds_write_b32 v{PV}, v{ONE}
    K2_NOFLAG:
    """)
    def pos_piece():
        if OPT.nopos: return
        a(f"""
        s_add_u32 m0, s{sPP}, s{sPP+1}
        s_add_u32 s{sTMP+3}, s{sPP+1}, 8192
        buffer_load_dwordx4 v{L16}, {sr(sPOS,4)}, s{sPP+1} offen lds
        s_cmp_eq_u32 s{sTMP+3}, {9*8192}
        s_cselect_b32 s{sPP+1}, 0, s{sTMP+3}
        """)
    def pieces(n, tag):
        a(f"s_cmp_eq_u32 s{sFIN if tag == 'd' else sFIRST}, 0\ns_cbranch_scc1 K2_NP_{tag}")
        for _ in range(n): pos_piece()
        a.label(f"K2_NP_{tag}")
    NPC = OPT.npc
    if NPC[0]: pieces(NPC[0], "a")
    for x in range(2):
        for i in range(2):
            g = 2*x + i
            for k in range(4):
                s = 4*g + k
                a(f"v_cmpx_lt_i32 vcc, {16*i+k}, v{REM[x]}")
                if k == 0 or i == 1:
                    a(f"s_cbranch_execz K2_CNT_{x}")
                if k == 0:
                    a(f"v_alignbyte_b32 v{LW+2*g}, v{LW+2*g+1}, v{LW+2*g}, v{START[x]}")
                a(f"v_bfe_u32 v{DLS+s}, v{LW+2*g}, {8*k}, 8")
                a(f"ds_add_rtn_u32 v{RK+s}, v{DLS+s}, v{ONE} offset:{CNT2}")
        a(f"K2_CNT_{x}:\ns_mov_b64 exec, -1")
        if NPC[1+x]: pieces(NPC[1+x], "bc"[x])
    a(f"""
    s_waitcnt lgkmcnt(0)
    s_barrier
    """)
    stamp(a, 2, 3)
    a(f"""
    ds_read_b32 v{PV}, v{LANE4} offset:{CNT2}
    v_mov_b32 v{AR}, {FLAG}
    ds_read_b32 v{AL}, v{AR}
    s_waitcnt lgkmcnt(0)
    v_mov_b32 v{AR}, v{PV}
    v_readfirstlane_b32 s{sMORE}, v{AL}
    """)
    wave_scan(a, AR)
    a(f"""
    s_nop 0
    v_readlane_b32 s{sT}, v{AR}, 63
    v_sub_u32 v{AR}, v{AR}, v{PV}
    s_cmp_le_u32 s{sT}, {CAP}
    s_cbranch_scc1 K2_FITS
    s_mov_b32 s{sQ}, 8
    s_mov_b32 s{sMORE}, 0
    s_branch K2_AGAIN
    K2_FITS:
    ds_write_b32 v{LANE4}, v{AR} offset:{PRE2}
    s_cmp_lg_u32 s3, 0
    s_cbranch_scc1 K2_NOPAD
    v_add_u32 v{AL}, s{sT}, v{LANE}
    v_mov_b32 v{PV}, {4*NPB}
    ds_write_b8 v{AL}, v{PV} offset:{LISTL}
    v_lshlrev_b32 v{AL}, 2, v{AL}
    ds_write_b32 v{AL}, v{ZERO} offset:{LISTR}
    K2_NOPAD:
    """)
    for x in range(2):
        for i in range(2):
            a(f"v_cmpx_lt_i32 vcc, {16*i}, v{REM[x]}")
            a(f"s_cbranch_execz K2_SR_{x}")
            for k in range(4):
                s = 8*x + 4*i + k
                a(f"ds_read_b32 v{BS+s}, v{DLS+s} offset:{PRE2}")
        a(f"K2_SR_{x}:\ns_mov_b64 exec, -1")
    if NPC[3]: pieces(NPC[3], "d")
    a("s_waitcnt lgkmcnt(0)")
    if OPT.stamps != 4: stamp(a, 2, 11)
    for x in range(2):
        for i in range(2):
            for k in range(4):
                s = 8*x + 4*i + k
                a(f"v_cmpx_lt_i32 vcc, {16*i+k}, v{REM[x]}")
                if k == 0 or i == 1: a(f"s_cbranch_execz K2_SC_{x}")
                a(f"v_add_u32 v{BS+s}, v{BS+s}, v{RK+s}")
                a(f"v_lshlrev_b32 v{RK+s}, 2, v{BS+s}")
                a(f"ds_write_b8 v{BS+s}, v{DLS+s} offset:{LISTL}")
                a(f"ds_write_b32 v{RK+s}, v{RECS+s} offset:{LISTR}")
        a(f"K2_SC_{x}:\ns_mov_b64 exec, -1")
        if x == 0:
            a(f"s_cmp_eq_u32 s{sFIN}, 0\ns_cbranch_scc1 K2_NP_e")
            for _ in range(9 - sum(NPC)): pos_piece()
            a(f"""
            s_cmp_ge_u32 s3, 2
            s_cbranch_scc1 K2_POSDONE
            s_cmp_eq_u32 s3, 1
            s_cselect_b64 exec, 0xffff, -1
            s_add_u32 m0, s{sPP}, {8192*9}
            s_mov_b32 s{sTMP+2}, {8192*9}
            buffer_load_dwordx4 v{L16}, {sr(sPOS,4)}, s{sTMP+2} offen lds
            s_mov_b64 exec, -1
            K2_POSDONE:
            """)
            if OPT.touch: b_touch(a, 0, 49, TCH)
            a.label("K2_NP_e")
    a(f"""
    s_add_u32 s{sTMP}, s{sT}, 63
    s_lshr_b32 s{sTMP}, s{sTMP}, 6
    s_lshr_b32 s{sTMP+1}, s{sTMP}, 3
    s_and_b32 s{sTMP+2}, s{sTMP}, 7
    s_mul_i32 s{sPN}, s3, s{sTMP+1}
    s_min_u32 s{sTMP+3}, s3, s{sTMP+2}
    s_add_u32 s{sPN}, s{sPN}, s{sTMP+3}
    s_cmp_lt_u32 s3, s{sTMP+2}
    s_addc_u32 s{sTMP+1}, s{sTMP+1}, s{sPN}
    s_lshl_b32 s{sPN}, s{sPN}, 6
    s_lshl_b32 s{sEND}, s{sTMP+1}, 6
    s_min_u32 s{sEND}, s{sEND}, s{sT}
    s_lshl_b32 s{sPN4}, s{sPN}, 2
    s_lshl_b32 s{sTMP}, s3, 12
    s_add_u32 m0, s{sTMP}, {STG}
    s_mov_b32 s{sFWX}, 0
    s_mov_b32 s{sFFL}, 0
    s_mov_b32 s{sMA+1}, 0
    s_mov_b32 s{sMB}, 0
    """)
    for r in range(16):
        a(f"v_mov_b32 v{ACC[1]+r}, 0")
    for r in range(8):
        a(f"v_mov_b32 v{S+r}, 0\nv_mov_b32 v{T+r}, 1.0")
    if OPT.stamps != 4: stamp(a, 2, 10)
    a(f"""
    s_waitcnt vmcnt({ntouch})
    s_cmp_eq_u32 s{sFIN}, 0
    s_cbranch_scc1 K2_NOPOS1
    s_mov_b32 s{sFIN}, 0
    s_mov_b32 s{sTMP}, {f32(-LN2)}
    v_lshlrev_b32 v{WXS[0]}, 16, v{WXS[0]}
    v_lshlrev_b32 v{WXS[1]}, 16, v{WXS[1]}
    v_mul_f32 v{WXS[0]}, s{sTMP}, v{WXS[0]}
    v_mul_f32 v{WXS[1]}, s{sTMP}, v{WXS[1]}
    s_cmp_lg_u32 s3, 4
    s_cbranch_scc1 K2_NOPOS1
    v_lshlrev_b32 v{T1}, 4, v{LANE}
    v_cmp_gt_u32 vcc, {NPB}, v{LANE}
    s_and_saveexec_b64 {sr(sTMP)}, vcc
    ds_write_b128 v{T1}, {vr(ACC[0],4)} offset:{POSD}
    s_mov_b64 exec, -1
    K2_NOPOS1:
    s_waitcnt lgkmcnt(0)
    s_barrier
    """)
    stamp(a, 2, 4)
    a(f"""
    s_cmp_ge_u32 s{sPN}, s{sEND}
    s_cbranch_scc1 K2_NOWORK
    """)
    RB4 = D[1]
    if OPT.abl:
        a(f"s_sub_u32 s67, s{sEND}, s{sPN}\ns_add_u32 s67, s67, 63\ns_lshr_b32 s67, s67, 6")
    plain(a, list_reads())
    a(f"""
    ds_read_b128 {vr(RB4,4)}, v{A4} offset:{LISTR+128}
    s_sub_u32 s{sTMP}, s{sEND}, s{sPN}
    v_cmp_gt_i32 {sr(sMR)}, s{sTMP}, v{LANE}
    s_waitcnt lgkmcnt(3)
    """)
    plain(a, mads(R4))
    plain(a, dma_ops())
    a(f"""
    s_waitcnt lgkmcnt(0)
    v_readfirstlane_b32 s{sWB}, v{DL4}
    s_nop 0
    s_min_u32 s{sWB}, s{sWB}, {4*(NPB-8)}
    """)
    window_masks(a)
    wx_load(a)
    plain(a, geo_addr())
    plain(a, geo_lut())
    plain(a, advance())
    plain(a, mads(RB4))
    for r in range(8):
        a(f"v_mov_b32 v{M[1]+r}, 0")
    for r in range(16):
        a(f"v_mov_b32 v{ACC[0]+r}, 0")
    a(f"v_mov_b32 v{D[1]+14}, 0\nv_mov_b32 v{D[1]+15}, 0")
    a("s_waitcnt lgkmcnt(0)")
    plain(a, geo_diff())
    plain(a, geo_cvt())
    plain(a, geo_d2())
    a("s_nop 2")
    plain(a, geo_fin())
    plain(a, x_read(0))
    a(mfma32(D[0], XX, WX[0] + 2, None))
    a("s_waitcnt lgkmcnt(2)")
    a(mfma32(D[0], X[0], ID, D[0]))
    a(mfma32(D[0], X[0] + 4, ID + 4, D[0]))
    a("s_waitcnt lgkmcnt(0)")
    plain(a, dma_ops())
    a("s_nop 6")
    if OPT.prio: a("s_setprio 3")
    stamp(a, 2, 5)
    gen_main_loop(a)
    stamp(a, 2, 6)
    t2 = T + 2 * (7 % 4); y2 = D[1] + 14; t6 = T + 2 * (6 % 4)
    a(f"""
    {mfma32(ACC[1], S, M[1], ACC[1])}
    v_cvt_pk_bf16_f32 v{M[1]+6}, v{t6}, v{t6+1}
    v_rcp_f32 v{t2}, v{t2}
    v_rcp_f32 v{t2+1}, v{t2+1}
    s_nop 0
    v_mul_f32 v{t2}, v{t2}, v{y2}
    v_mul_f32 v{t2+1}, v{t2+1}, v{y2+1}
    v_cvt_pk_bf16_f32 v{M[1]+7}, v{t2}, v{t2+1}
    s_nop 1
    {mfma32(ACC[1], S+4, M[1]+4, ACC[1])}
    s_mov_b32 s{sWBO}, s{sWB}
    """)
    epi_loads(a)
    flush_code(a, False, 'A')
    a("s_branch K2_WDONE")
    a.label("K2_FLUSH")
    flush_code(a, True, 'B')
    a(f"s_mov_b32 s{sFFL}, 0\ns_branch K2_FLUSH_RET")
    a.label("K2_REBASE")
    a(f"""
    s_mov_b32 s{sWBO}, s{sWB}
    v_readfirstlane_b32 s{sWB}, v{DL4}
    s_mov_b32 s{sFWX}, 1
    s_mov_b32 s{sFFL}, 1
    s_min_u32 s{sWB}, s{sWB}, {4*(NPB-8)}
    """)
    window_masks(a)
    a("s_branch K2_REBASE_RET")
    a.label("K2_WXL")
    wx_load(a)
    a(f"s_mov_b32 s{sFWX}, 0\ns_branch K2_WXL_RET")
    a.label("K2_NOWORK")
    epi_loads(a)
    a.label("K2_WDONE")
    stamp(a, 2, 7)
    a(f"""
    s_cmp_eq_u32 s{sMORE}, 0
    s_cbranch_scc1 K2_EPI
    v_and_b32 v{T1}, 3, v0
    v_lshlrev_b32 v{T1}, 2, v{T1}
    v_add_u32 v{T2}, v{T1}, v{ENDV[1]}
    v_add_u32 v{T1}, v{T1}, v{ENDV[0]}
    v_add_u32 v{START[0]}, s{sQ}, v{START[0]}
    v_add_u32 v{START[1]}, s{sQ}, v{START[1]}
    v_min_u32 v{START[0]}, v{START[0]}, v{T1}
    v_min_u32 v{START[1]}, v{START[1]}, v{T2}
    K2_AGAIN:
    s_waitcnt vmcnt(0) lgkmcnt(0)
    s_barrier
    s_mov_b32 s{sFIRST}, 0
    s_cmp_lg_u32 s3, 0
    s_cbranch_scc1 K2_ROUND
    ds_write_b32 v{LANE4}, v{ZERO} offset:{CNT2}
    v_mov_b32 v{T1}, {FLAG}
    ds_write_b32 v{T1}, v{ZERO}
    s_branch K2_ROUND
    """)
    MF = D[1]; MB_ = M[0]; U = ACC[0]; HR = D[0]; EX = D[0] + 8
    a(f"""
    K2_EPI:
    s_and_b32 s{sTMP}, s3, 3
    s_lshl_b32 s{sTMP}, s{sTMP}, 4
    v_and_b32 v{T1}, 15, v{LANE}
    v_add_u32 v{T1}, s{sTMP}, v{T1}
    v_mul_u32_u24 v{T2}, {RS}, v{T1}
    v_and_b32 v{TA}, 48, v{LANE}
    v_lshl_add_u32 v{T2}, v{TA}, 1, v{T2}
    s_movk_i32 s{sTMP+3}, 21846
    v_mul_u32_u24 v{DX}, s{sTMP+3}, v0
    v_lshrrev_b32 v{DX}, 16, v{DX}
    v_add_lshl_u32 v{DX}, v{DX}, v0, 2
    s_mul_i32 s{sTMP+4}, s{sNB}, 6
    s_add_u32 s{sTMP+4}, s{sTMP+4}, {N*128}
    v_lshl_add_u32 v{PD}, v0, 1, s{sTMP+4}
    s_lshr_b32 s{sTMP+4}, s3, 2
    s_lshl_b32 s{sTMP+4}, s{sTMP+4}, 6
    s_lshl_b32 s{sTMP+5}, s{sNB}, 7
    s_add_u32 s{sTMP+4}, s{sTMP+4}, s{sTMP+5}
    v_lshlrev_b32 v{PD+1}, 7, v{T1}
    v_add3_u32 v{PD+1}, v{PD+1}, v{TA}, s{sTMP+4}
    v_cmp_gt_u32 {sr(sF0)}, s{sNN}, v{T1}
    s_mul_i32 s{sTMP+5}, s{sNN}, 3
    v_cmp_gt_u32 {sr(sF0+2)}, s{sTMP+5}, v0
    s_mov_b32 s{sTMP+2}, {f32(-LN2)}
    s_waitcnt vmcnt(0)
    {mfma16(U, X[0], EW, None)}
    {mfma16(U+4, X[0]+16, EW, None)}
    {mfma16(U, X[0]+4, EW+4, U)}
    {mfma16(U+4, X[0]+20, EW+4, U+4)}
    s_mov_b32 s{sTMP+3}, 0xffff0000
    s_cmp_lt_u32 s3, 4
    s_cbranch_scc1 K2_HLO
    v_mov_b32 v{EW}, v{EW+4}
    v_mov_b32 v{EW+1}, v{EW+5}
    v_mov_b32 v{EW+2}, v{EW+6}
    v_mov_b32 v{EW+3}, v{EW+7}
    K2_HLO:
    """)
    for r in range(4):
        a(f"v_lshlrev_b32 v{HR+2*r}, 16, v{EW+r}")
        a(f"v_and_b32 v{HR+2*r+1}, s{sTMP+3}, v{EW+r}")
    a("s_waitcnt lgkmcnt(0)\ns_barrier")
    stamp(a, 2, 8)
    for s in range(2):
        a(f"ds_read_b128 {vr(MF+8*s,4)}, v{T2} offset:{ACCM + 128*s}")
        a(f"ds_read_b128 {vr(MF+8*s+4,4)}, v{T2} offset:{ACCM + 128*s + 16}")
    a(f"""
    ds_read_b32 v{DX+1}, v{DX} offset:{POSD}
    ds_read_b32 v{DX+2}, v{DX} offset:{ACCP}
    """)
    for s in range(2):
        a(f"s_waitcnt lgkmcnt({4 - 2*s})")
        for r in range(8):
            a(f"v_mul_f32 v{MF+8*s+r}, s{sTMP+2}, v{MF+8*s+r}")
        for r in range(4):
            a(f"v_cvt_pk_bf16_f32 v{MB_+4*s+r}, v{MF+8*s+2*r}, v{MF+8*s+2*r+1}")
        a("s_nop 1")
        a(mfma16(U, X[0]+8+4*s, MB_+4*s, U))
        a(mfma16(U+4, X[0]+24+4*s, MB_+4*s, U+4))
    a(f"""
    s_waitcnt lgkmcnt(0)
    v_add_f32 v{DX+1}, v{DX+1}, v{DX+2}
    v_cvt_pk_bf16_f32 v{DX+1}, v{DX+1}, v{DX+1}
    s_mov_b32 s{sTMP+2}, {f32(-L2E)}
    s_mov_b64 exec, {sr(sF0+2)}
    s_cbranch_execz K2_NOPOS
    buffer_store_short v{DX+1}, v{PD}, {sr(sOUT,4)}, 0 offen
    K2_NOPOS:
    s_mov_b64 exec, -1
    s_nop 1
    """)
    for r in range(8):
        a(f"v_mul_f32 v{EX+r}, s{sTMP+2}, v{U+r}")
    for r in range(8):
        a(f"v_exp_f32 v{EX+r}, v{EX+r}")
    for r in range(8):
        a(f"v_add_f32 v{EX+r}, 1.0, v{EX+r}")
    for r in range(8):
        a(f"v_rcp_f32 v{EX+r}, v{EX+r}")
    for r in range(8):
        a(f"v_fmac_f32 v{HR+r}, v{EX+r}, v{U+r}")
    for r in range(4):
        a(f"v_cvt_pk_bf16_f32 v{EX+r}, v{HR+2*r}, v{HR+2*r+1}")
    a(f"""
    s_mov_b64 exec, {sr(sF0)}
    s_cbranch_execz K2_END
    buffer_store_dwordx4 {vr(EX,4)}, v{PD+1}, {sr(sOUT,4)}, 0 offen
    """)
    if OPT.stamps:
        a("s_waitcnt vmcnt(0)")
    stamp(a, 2, 9); stamp(a, 2, 15, True)
    a("K2_END:\ns_endpgm")

HEADER = """; EGNN layer (gather / edge MLP / scatter) for gfx950, two launches:
;   egnn_bin_kernel : counting sort of edge chunks by destination bucket, per-node tables -> d_ws
; Kernarg: h 0, pos 8, e_attr 16, src 24, dst 32, w_e 40, w_x 48, w_h 56, out 64, debug 72, ws 80
; @launch kernel=egnn_bin_kernel grid=(256,1,1) block=(1024,1,1) lds={l1}
; @launch kernel=gather_scatter__cheap_equivariant_egnn__graph_kernel grid=(256,1,1) block=(512,1,1) lds={l2}
.amdgcn_target "amdgcn-amd-amdhsa--gfx950"
.text
"""
KD = """.amdhsa_kernel {name}
  .amdhsa_next_free_vgpr {nv}
  .amdhsa_next_free_sgpr 96
  .amdhsa_accum_offset {nv}
  .amdhsa_group_segment_fixed_size 0
  .amdhsa_kernarg_size 88
  .amdhsa_user_sgpr_count 2
  .amdhsa_user_sgpr_kernarg_segment_ptr 1
  .amdhsa_system_sgpr_workgroup_id_x 1
.end_amdhsa_kernel
"""

def generate(stamps=0, nt1=1, prio=2, touch=0, early=1, g0=3, g1=5, abl='', twearly=1, npc=333, nopos=0, twprio=1):
    OPT.stamps = stamps; OPT.nt1 = nt1; OPT.prio = prio; OPT.touch = touch; OPT.early = early
    OPT.abl = abl; OPT.twearly = twearly; OPT.nopos = nopos; OPT.twprio = twprio; OPT.npc = [int(c) for c in '%04d' % npc]; OPT.g0 = g0; OPT.g1 = g1
    a1 = Asm(); l1 = gen_k1(a1)
    a2 = Asm(); gen_k2(a2)
    k1n = "egnn_bin_kernel"; k2n = "gather_scatter__cheap_equivariant_egnn__graph_kernel"
    s = HEADER.format(l1=l1, l2=LDS2)
    s += f".globl {k1n}\n.p2align 8\n.type {k1n},@function\n" + a1.text()
    s += f".globl {k2n}\n.p2align 8\n.type {k2n},@function\n" + a2.text()
    s += '.section .rodata,"a"\n.p2align 6\n' + KD.format(name=k1n, nv=128 if stamps else 104)
    s += ".p2align 6\n" + KD.format(name=k2n, nv=NV2 if stamps else 240)
    return s

if __name__ == "__main__":
    out = sys.argv[1]
    kw = {}
    for x in sys.argv[2:]:
        k, v = x.split("=", 1); kw[k] = v if k == 'abl' else int(v)
    open(out, "w").write(generate(**kw))
```

```python
import sys, struct

N = 12500; E = 800000
NPB = 49
CH = 3136
PSTR = 15744
L_OFF = CH * 4
RL_END = L_OFF + CH
OFFT = 256 * PSTR
WF = OFFT + 256 * 1152
ATAB = WF + 18 * 1024
BTAB = ATAB + 12560 * 128
WS_USED = BTAB + 12560 * 128
DBG_WS = WS_USED + 4096
WS_SRD = DBG_WS + (1 << 20)
L2E = 1.4426950408889634
LN2 = 0.6931471805599453

def f32(x):
    return "0x%08x" % struct.unpack("<I", struct.pack("<f", x))[0]

class Asm:
    def __init__(self):
        self.L = []
    def __call__(self, s):
        for ln in s.strip("\n").split("\n"):
            ln = ln.strip()
            if ln:
                self.L.append(ln if ln.endswith(":") else "    " + ln)
    def label(self, s):
        self.L.append(s + ":")
    def text(self):
        return "\n".join(self.L) + "\n"

def vr(a, n):
    return f"v[{a}:{a+n-1}]"
def sr(a, n=2):
    return f"s[{a}:{a+n-1}]"

def srd(a, base, nbytes, add=0):
    o = []
    if add:
        o += [f"s_add_u32 s{a}, s{base}, {add}", f"s_addc_u32 s{a+1}, s{base+1}, 0"]
    else:
        o += [f"s_mov_b32 s{a}, s{base}", f"s_mov_b32 s{a+1}, s{base+1}"]
    o += [f"s_mov_b32 s{a+2}, {nbytes}", f"s_mov_b32 s{a+3}, 0x00020000"]
    return "\n".join(o)

def wave_scan(a, v):
    for ctl in ("row_shr:1", "row_shr:2", "row_shr:4", "row_shr:8"):
        a("s_nop 1")
        a(f"v_add_u32_dpp v{v}, v{v}, v{v} {ctl} row_mask:0xf bank_mask:0xf bound_ctrl:0")
    a("s_nop 1")
    a(f"v_add_u32_dpp v{v}, v{v}, v{v} row_bcast:15 row_mask:0xa bank_mask:0xf")
    a("s_nop 1")
    a(f"v_add_u32_dpp v{v}, v{v}, v{v} row_bcast:31 row_mask:0xc bank_mask:0xf")

def mfma32(d, a_, b_, c):
    cc = "0" if c is None else vr(c, 16)
    return f"v_mfma_f32_32x32x16_bf16 {vr(d,16)}, {vr(a_,4)}, {vr(b_,4)}, {cc}"
def mfma16(d, a_, b_, c):
    cc = "0" if c is None else vr(c, 4)
    return f"v_mfma_f32_16x16x32_bf16 {vr(d,4)}, {vr(a_,4)}, {vr(b_,4)}, {cc}"

class Opt:
    pass
OPT = Opt()

def stamp(a, kern, idx, real=False):
    if not OPT.stamps:
        return
    if OPT.stamps == 5 and not real:
        if (kern, idx) in ((2, 5), (2, 6)):
            stamp(a, kern, idx + 7, True)
        if not (kern == 2 and idx in (0, 5, 6)): return
    if OPT.stamps == 4:
        idx = {(2, 5): 12, (2, 6): 13, (2, 2): 11, (2, 4): 10}.get((kern, idx), idx) if not real else idx
        if idx < 10 or (not real and idx in (10, 11) and (kern, idx) == (2, idx) and not getattr(stamp, 'ok', True)): return
        real = True
    if not real and OPT.stamps == 2 and idx not in (0, 3, 9):
        return
    if not real and OPT.stamps == 3 and idx not in ((0, 3) if kern == 1 else (0, 5, 6, 9)):
        return
    sv = 252 if kern == 2 else 120
    st = 64
    w = 12 if kern == 2 else 20
    a(f"""
    {'s_memrealtime' if real else 's_memtime'} s[{st}:{st+1}]
    s_waitcnt lgkmcnt(0)
    v_mov_b32 v{sv}, s{st}
    v_mov_b32 v{sv+1}, s{st+2}
    s_mov_b64 s[{st}:{st+1}], exec
    s_mov_b64 exec, 1
    buffer_store_dword v{sv}, v{sv+1}, s[{w}:{w+3}], 0 offen offset:{idx*4}
    s_mov_b64 exec, s[{st}:{st+1}]
    """)

def gen_k1(a):
    CNT, PRE, RB = 0, 1024, 2048
    TW = RB + RL_END
    TWS = 8192 + 4096 + 4608
    LDS1 = TW + 4 * TWS
    NT = " nt" if OPT.nt1 else ""
    NE = 768
    a.label("egnn_bin_kernel")
    if OPT.stamps == 4: a("s_memrealtime s[70:71]")
    a(f"""
    s_cmp_ge_u32 s2, 256
    s_cbranch_scc1 K1_END
    s_load_dwordx4 s[36:39], s[0:1], 32
    s_load_dwordx4 s[32:35], s[0:1], 16
    s_load_dwordx2 s[40:41], s[0:1], 56
    s_load_dwordx2 s[42:43], s[0:1], 80
    s_load_dwordx2 s[58:59], s[0:1], 0
    v_lshrrev_b32 v1, 6, v0
    v_and_b32 v6, 63, v0
    v_readfirstlane_b32 s3, v1
    v_lshlrev_b32 v2, 2, v0
    v_mov_b32 v3, 0
    s_mul_i32 s44, s2, {CH}
    s_sub_u32 s45, {E}, s44
    s_lshr_b32 s45, s45, 2
    s_min_u32 s45, s45, {NE}
    s_mul_i32 s49, s2, {PSTR}
    s_lshl_b32 s46, s44, 2
    s_lshl_b32 s47, s44, 1
    v_lshlrev_b32 v4, 4, v0
    v_lshlrev_b32 v5, 3, v0
    v_lshlrev_b32 v7, 4, v6
    s_cmp_ge_u32 s3, 4
    s_cbranch_scc1 K1_NOZERO
    ds_write_b32 v2, v3 offset:{CNT}
    K1_NOZERO:
    v_cmp_gt_u32 vcc, s45, v0
    s_mul_i32 s60, s2, {NPB}
    s_cmp_lt_u32 s2, 255
    s_cselect_b32 s61, 0, 1
    s_or_b32 s61, s61, s3
    s_waitcnt lgkmcnt(0)
    {srd(8, 36, E*4)}
    {srd(20, 42, WS_SRD)}
    """)
    if OPT.stamps:
        a(f"s_lshl_b32 s66, s2, 4\ns_add_u32 s66, s66, s3\ns_lshl_b32 s66, s66, 6\ns_add_u32 s66, s66, {DBG_WS}")
    stamp(a, 1, 0); stamp(a, 1, 14, True)
    if OPT.stamps == 4:
        a("v_mov_b32 v120, s70\ns_mov_b64 s[64:65], exec\ns_mov_b64 exec, 1\nbuffer_store_dword v120, v121, s[20:23], 0 offen offset:32\ns_mov_b64 exec, s[64:65]")
    a(f"""
    s_cmp_ge_u32 s3, 12
    s_cbranch_scc1 K1_TW
    s_and_saveexec_b64 s[50:51], vcc
    s_mov_b64 s[52:53], exec
    s_cbranch_execz K1_NOLOAD
    buffer_load_dwordx4 v[8:11], v4, s[8:11], s46 offen{NT}
    s_cmp_lg_u32 s61, 0
    s_cbranch_scc1 K1_NOLOAD
    s_add_u32 s62, s46, {NE*16}
    buffer_load_dword v60, v2, s[8:11], s62 offen{NT}
    K1_NOLOAD:
    s_mov_b64 exec, -1
    {srd(12, 34, E*4)}
    {srd(16, 32, E*2)}
    s_barrier
    s_mov_b64 exec, s[52:53]
    s_cbranch_execz K1_NOCNT
    buffer_load_dwordx4 v[12:15], v4, s[12:15], s46 offen{NT}
    buffer_load_dwordx2 v[16:17], v5, s[16:19], s47 offen{NT}
    s_movk_i32 s48, 21400
    v_mov_b32 v36, 1
    s_cmp_lg_u32 s61, 0
    s_cbranch_scc1 K1_NOX1
    buffer_load_dword v61, v2, s[12:15], s62 offen{NT}
    v_lshlrev_b32 v63, 1, v0
    s_add_u32 s63, s47, {NE*8}
    buffer_load_ushort v62, v63, s[16:19], s63 offen{NT}
    s_waitcnt vmcnt(4)
    v_mul_u32_u24 v64, s48, v60
    v_lshrrev_b32 v64, 20, v64
    v_mul_u32_u24 v65, {NPB}, v64
    v_lshlrev_b32 v66, 2, v64
    ds_add_rtn_u32 v67, v66, v36 offset:{CNT}
    v_sub_u32 v65, v60, v65
    v_lshlrev_b32 v65, 2, v65
    s_branch K1_CNT
    K1_NOX1:
    s_waitcnt vmcnt(2)
    K1_CNT:
    """)
    for j in range(4):
        a(f"""
        v_mul_u32_u24 v{20+j}, s48, v{8+j}
        v_lshrrev_b32 v{20+j}, 20, v{20+j}
        v_mul_u32_u24 v{24+j}, {NPB}, v{20+j}
        v_lshlrev_b32 v{28+j}, 2, v{20+j}
        ds_add_rtn_u32 v{32+j}, v{28+j}, v36 offset:{CNT}
        v_sub_u32 v{24+j}, v{8+j}, v{24+j}
        v_lshlrev_b32 v{24+j}, 2, v{24+j}
        """)
    a(f"""
    K1_NOCNT:
    s_mov_b64 exec, -1
    s_waitcnt lgkmcnt(0)
    s_barrier
    """)
    stamp(a, 1, 1)
    a(f"""
    s_cmp_eq_u64 s[52:53], 0
    s_cbranch_scc1 K1_NOSCAT
    ds_read_b128 v[40:43], v7 offset:{CNT}
    s_waitcnt lgkmcnt(0)
    v_add_u32 v41, v40, v41
    v_add_u32 v42, v41, v42
    v_add_u32 v43, v42, v43
    v_mov_b32 v44, v43
    """)
    wave_scan(a, 44)
    a(f"""
    v_sub_u32 v46, v44, v43
    v_add_u32 v47, v46, v40
    v_add_u32 v48, v46, v41
    v_add_u32 v49, v46, v42
    ds_write_b128 v7, v[46:49] offset:{PRE}
    s_mov_b64 exec, s[52:53]
    s_mov_b32 s55, 0xffff0000
    s_cmp_lg_u32 s61, 0
    s_cbranch_scc1 K1_NOX2
    ds_read_b32 v68, v66 offset:{PRE}
    s_waitcnt vmcnt(0) lgkmcnt(0)
    v_lshl_or_b32 v61, v62, 16, v61
    v_add_u32 v68, v68, v67
    v_lshlrev_b32 v69, 2, v68
    ds_write_b8 v68, v65 offset:{RB + L_OFF}
    ds_write_b32 v69, v61 offset:{RB}
    K1_NOX2:
    """)
    for j in range(4):
        a(f"ds_read_b32 v{40+j}, v{28+j} offset:{PRE}")
    a(f"""
    s_waitcnt vmcnt(0)
    v_lshl_or_b32 v12, v16, 16, v12
    v_and_or_b32 v13, v16, s55, v13
    v_lshl_or_b32 v14, v17, 16, v14
    v_and_or_b32 v15, v17, s55, v15
    """)
    for j in range(4):
        a(f"""
        s_waitcnt lgkmcnt({3-j + (2*j)})
        v_add_u32 v{40+j}, v{40+j}, v{32+j}
        v_lshlrev_b32 v{50+j}, 2, v{40+j}
        ds_write_b8 v{40+j}, v{24+j} offset:{RB + L_OFF}
        ds_write_b32 v{50+j}, v{12+j} offset:{RB}
        """)
    a(f"""
    s_mov_b64 exec, -1
    s_cmp_lg_u32 s3, 1
    s_cbranch_scc1 K1_NOSCAT
    v_lshl_or_b32 v56, v47, 16, v46
    v_lshl_or_b32 v57, v48, 16, v47
    v_lshl_or_b32 v58, v49, 16, v48
    v_lshl_or_b32 v59, v44, 16, v49
    """)
    if OPT.offt:
        a(f"""
        s_lshl_b32 s54, s2, 2
        s_add_u32 s54, s54, {OFFT}
        v_lshlrev_b32 v60, 12, v6
        buffer_store_dword v56, v60, s[20:23], s54 offen{OPT.sto}
        buffer_store_dword v57, v60, s[20:23], s54 offen offset:1024{OPT.sto}
        buffer_store_dword v58, v60, s[20:23], s54 offen offset:2048{OPT.sto}
        buffer_store_dword v59, v60, s[20:23], s54 offen offset:3072{OPT.sto}
        """)
    else:
        a(f"""
        s_mul_i32 s54, s2, 1152
        s_add_u32 s54, s54, {OFFT}
        buffer_store_dwordx4 v[56:59], v7, s[20:23], s54 offen{OPT.sto}
        """)
    a(f"""
    K1_NOSCAT:
    s_waitcnt lgkmcnt(0)
    s_barrier
    """)
    stamp(a, 1, 2)
    a(f"""
    K1_COPY:
    v_cmp_gt_u32 vcc, {RL_END//16}, v0
    s_and_saveexec_b64 s[50:51], vcc
    s_cbranch_execz K1_END
    ds_read_b128 v[8:11], v4 offset:{RB}
    s_waitcnt lgkmcnt(0)
    buffer_store_dwordx4 v[8:11], v4, s[20:23], s49 offen{OPT.str_}
    """)
    if OPT.stamps:
        a("s_waitcnt vmcnt(0)")
    stamp(a, 1, 3); stamp(a, 1, 15, True)
    a("K1_END:\ns_endpgm")
    HF = 16; WFR = 32; DD_ = [64, 80]
    a(f"""
    K1_TW:
    {'s_setprio 3' if OPT.twprio else ''}
    {srd(24, 38, 130*128)}
    {srd(28, 58, N*128)}
    s_and_b32 s63, s3, 1
    s_bfe_u32 s62, s3, 0x10001
    s_and_b32 s61, s3, 3
    s_mul_i32 s57, s61, {TWS}
    s_add_u32 s57, s57, {TW}
    v_lshrrev_b32 v8, 3, v6
    v_lshrrev_b32 v9, 4, v6
    v_and_b32 v10, 7, v6
    v_xor_b32 v9, v9, v10
    v_lshlrev_b32 v9, 4, v9
    v_lshl_add_u32 v9, v8, 7, v9
    v_xor_b32 v10, 64, v9
    s_lshl_b32 s56, s62, 5
    s_add_u32 s56, s56, s60
    s_lshl_b32 s56, s56, 7
    """)
    def tw_loads():
        a("s_add_u32 m0, s57, 8192\ns_lshl_b32 s54, s63, 13")
        for i in range(4):
            a(f"buffer_load_dwordx4 v{9 + (i & 1)}, s[28:31], s56 offen offset:{1024*i}{NT} lds")
        a("s_mov_b32 m0, s57\ns_add_u32 s55, s54, 4096")
        for i in range(4):
            a(f"buffer_load_dwordx4 v7, s[24:27], s54 offen offset:{1024*i} lds")
        a("s_add_u32 m0, s57, 4096\ns_nop 0")
        for i in range(4):
            a(f"buffer_load_dwordx4 v7, s[24:27], s55 offen offset:{1024*i} lds")
    if OPT.twearly: tw_loads()
    a("s_barrier")
    if not OPT.twearly: tw_loads()
    a(f"""
    s_cmp_lg_u32 s61, 2
    s_cbranch_scc1 K1_NOW
    s_cmp_ge_u32 s2, 18
    s_cbranch_scc1 K1_NOW
    s_lshl_b32 s54, s2, 10
    s_add_u32 s54, s54, {WF}
    s_cmp_ge_u32 s2, 16
    s_cbranch_scc1 K1_WEXTRA
    {srd(12, 40, 128*128)}
    s_and_b32 s55, s2, 3
    s_lshl_b32 s55, s55, 12
    s_lshr_b32 s48, s2, 3
    s_lshl_b32 s48, s48, 6
    s_add_u32 s55, s55, s48
    s_lshr_b32 s48, s2, 2
    s_and_b32 s48, s48, 1
    s_lshl_b32 s48, s48, 3
    s_add_u32 s55, s55, s48
    v_lshrrev_b32 v51, 4, v6
    v_lshlrev_b32 v51, 10, v51
    v_bfe_u32 v52, v6, 2, 2
    v_lshl_add_u32 v51, v52, 4, v51
    v_and_b32 v52, 3, v6
    v_lshl_add_u32 v51, v52, 1, v51
    """)
    for j in range(8):
        a(f"buffer_load_ushort v{54+j}, v51, s[12:15], s55 offen offset:{128*j}")
    a("s_barrier\ns_waitcnt vmcnt(0)")
    for j in range(4):
        a(f"v_lshl_or_b32 v{64+j}, v{55+2*j}, 16, v{54+2*j}")
    a(f"""
    buffer_store_dwordx4 v[64:67], v7, s[20:23], s54 offen
    s_branch K1_TJOB
    K1_WEXTRA:
    s_and_b32 s55, s2, 1
    s_lshl_b32 s55, s55, 6
    s_add_u32 s55, s55, {128*128}
    v_and_b32 v52, 31, v6
    v_lshlrev_b32 v51, 1, v52
    buffer_load_ushort v54, v51, s[24:27], s55 offen
    buffer_load_ushort v55, v51, s[24:27], s55 offen offset:128
    s_mov_b32 s48, {f32(-L2E)}
    s_barrier
    s_waitcnt vmcnt(0)
    v_lshlrev_b32 v54, 16, v54
    v_lshlrev_b32 v55, 16, v55
    v_mul_f32 v54, s48, v54
    v_mul_f32 v55, s48, v55
    v_cvt_pk_bf16_f32 v56, v54, v54
    v_lshlrev_b32 v56, 16, v56
    v_sub_f32 v57, v54, v56
    v_cvt_pk_bf16_f32 v58, v56, v57
    v_cvt_pk_bf16_f32 v59, 0, v55
    v_cmp_gt_u32 vcc, 32, v6
    s_nop 1
    v_cndmask_b32 v64, v58, 0, vcc
    v_cndmask_b32 v65, v59, 0, vcc
    v_cndmask_b32 v66, 0, v58, vcc
    v_cndmask_b32 v67, 0, v59, vcc
    buffer_store_dwordx4 v[64:67], v7, s[20:23], s54 offen
    s_branch K1_TJOB
    K1_NOW:
    s_barrier
    s_waitcnt vmcnt(0)
    K1_TJOB:
    """)
    stamp(a, 1, 5)
    a(f"""
    v_lshrrev_b32 v8, 5, v6
    v_and_b32 v9, 31, v6
    v_bfe_u32 v12, v6, 2, 2
    v_lshl_add_u32 v12, v8, 3, v12
    v_lshlrev_b32 v12, 7, v12
    v_bfe_u32 v13, v6, 4, 1
    v_lshl_add_u32 v12, v13, 5, v12
    v_and_b32 v13, 3, v6
    v_lshl_add_u32 v12, v13, 3, v12
    v_add_u32 v12, s57, v12
    v_bfe_u32 v10, v6, 1, 3
    v_xor_b32 v10, v10, v8
    s_add_u32 s54, s57, 8192
    v_lshlrev_b32 v11, 7, v9
    v_add_u32 v11, s54, v11
    """)
    for s in range(4):
        a(f"v_xor_b32 v96, {2*s}, v10\nv_lshl_add_u32 v96, v96, 4, v11\nds_read_b128 {vr(HF+4*s,4)}, v96")
        for jj in range(2):
            a(f"ds_read_b64_tr_b16 {vr(WFR+4*s+2*jj,2)}, v12 offset:{(16*s+4*jj)*128}")
    for s in range(4):
        for jj in range(2):
            a(f"ds_read_b64_tr_b16 {vr(WFR+16+4*s+2*jj,2)}, v12 offset:{(16*s+4*jj)*128 + 64}")
    a(f"""
    s_add_u32 s55, s57, 12288
    v_mul_u32_u24 v13, 144, v9
    v_lshl_add_u32 v13, v8, 3, v13
    v_add_u32 v13, s55, v13
    v_lshrrev_b32 v14, 3, v6
    v_mul_u32_u24 v15, 144, v14
    v_and_b32 v96, 7, v6
    v_lshl_add_u32 v15, v96, 4, v15
    v_add_u32 v15, s55, v15
    s_mov_b32 s48, {f32(-L2E)}
    s_mul_i32 s54, s63, {BTAB - ATAB}
    s_add_u32 s54, s54, {ATAB}
    s_add_u32 s54, s54, s56
    """)
    for h in range(2):
        a(f"s_waitcnt lgkmcnt({8 if h == 0 else 0})")
        for s in range(4):
            a(mfma32(DD_[h], WFR+16*h+4*s, HF+4*s, None if s == 0 else DD_[h]))
    a("s_nop 7")
    stamp(a, 1, 6)
    for h in range(2):
        for r in range(16):
            a(f"v_mul_f32 v{DD_[h]+r}, s48, v{DD_[h]+r}")
        for r in range(8):
            a(f"v_cvt_pk_bf16_f32 v{DD_[h]+r}, v{DD_[h]+2*r}, v{DD_[h]+2*r+1}")
        for q in range(4):
            a(f"ds_write_b64 v13, {vr(DD_[h]+2*q,2)} offset:{64*h + 16*q}")
    for i in range(4):
        a(f"ds_read_b128 {vr(WFR+4*i,4)}, v15 offset:{8*144*i}")
    for i in range(3):
        a(f"s_waitcnt lgkmcnt({3-i})\nbuffer_store_dwordx4 {vr(WFR+4*i,4)}, v7, s[20:23], s54 offen offset:{1024*i}{OPT.stt}")
    a(f"""
    s_cmp_lg_u32 s62, 0
    s_cbranch_scc1 K1_TDONE
    s_waitcnt lgkmcnt(0)
    buffer_store_dwordx4 {vr(WFR+12,4)}, v7, s[20:23], s54 offen offset:3072{OPT.stt}
    K1_TDONE:
    """)
    stamp(a, 1, 4)
    a("s_waitcnt lgkmcnt(0)\ns_barrier\ns_branch K1_COPY")
    return LDS1

CAP = 3456
RS = 272
CNT2 = 0; PRE2 = 256; FLAG = 512; LUT = 528; POSD = 672; ACCP = POSD + 800
LISTL = (ACCP + 784 + 15) // 16 * 16
LISTR = LISTL + CAP + 64
AT = LISTR + (CAP + 64) * 4
ACCM = AT + NPB * 128
SB = (ACCM + NPB * RS + 63) // 64 * 64
STG = SB + 8 * 2048
POSB = STG + 8 * 4096
LDS2 = POSB + 75008
assert LDS2 <= 163840, LDS2
assert LISTR % 16 == 0 and AT % 16 == 0 and ACCM % 16 == 0 and STG % 16 == 0

ACC = [2, 18]; D = [34, 50]; M = [66, 74]; X = [82, 98]
ID = 114; WX = [122, 128]; XX = 134; S = 140; T = 148
AS = [159, 160]; LANE = 161; LANE4 = 162; G4 = 163; SROW = 164; DUMMY = 165
R4 = 166; REC = 170; DL4 = 171; REL = 172; TA = 173; PD = 174; DX = 178; DD = 181; DXY = 182
SAD = [184, 185]; A4 = 186; ALUT = 187; ZERO = 188; WXS = [190, 192]; PS = 194
MADDR = 197; POFF = 198; AWT = 199; T1 = 200; T2 = 201; START = [202, 203]; ENDV = [204, 205]
FL = 206
EW = 224
CDMA = 232; AX = 236; TCH = 156
NV2 = 256
sB, sWS, sPOS, sOUT, sH = 8, 12, 16, 20, 24
sNB, sNN, sC128, sPOSB = 28, 29, 30, 31
sFIN = 32; sPP = 33
sEND, sWB, sWBO, sFWX, sFFL = 35, 36, 37, 38, 39
sMA, sMB, sVN, sMR = 40, 42, 44, 46
sNX, sQ, sFIRST, sT, sPN4, sMORE, sROT, sPN = 48, 49, 50, 51, 52, 53, 54, 55
sTMP = 56
sWXD = 68
sPM, sCM, sF0 = 72, 74, 76

def flush_code(a, rezero, tag):
    OLD = FL; NEW = FL + 9
    items = [(T1, 2*q*RS + 128*h, ACC[h]+4*q+3) for q in range(4) for h in range(2)]
    a(f"""
    s_mul_i32 s{sTMP}, s{sWBO}, {RS//4}
    s_lshl_b32 s{sTMP+1}, s{sWBO}, 2
    v_add_u32 v{T1}, s{sTMP}, v{MADDR}
    v_add_u32 v{T2}, s{sTMP+1}, v{POFF}
    """)
    for i, (ad, off, x) in enumerate(items):
        a(f"ds_read_b32 v{OLD+i}, v{ad} offset:{off}")
    a(f"ds_read_b32 v{OLD+8}, v{T2} offset:{ACCP}")
    for q in range(4):
        r0 = ACC[0] + 4*q; r1 = ACC[1] + 4*q
        a(f"v_pk_mul_f32 {vr(r0,2)}, {vr(r0,2)}, {vr(WXS[0],2)} op_sel_hi:[1,0]")
        a(f"v_mul_f32 v{r0+2}, v{r0+2}, v{WXS[0]}")
        a(f"v_pk_fma_f32 {vr(r0,2)}, {vr(r1,2)}, {vr(WXS[1],2)}, {vr(r0,2)} op_sel_hi:[1,0,1]")
        a(f"v_fmac_f32 v{r0+2}, v{r1+2}, v{WXS[1]}")
    a("s_waitcnt lgkmcnt(0)")
    for i, (ad, off, x) in enumerate(items):
        a(f"v_add_f32 v{NEW+i}, v{OLD+i}, v{x}")
    for i, (ad, off, x) in enumerate(items):
        a(f"ds_cmpst_rtn_b32 v{NEW+i}, v{ad}, v{OLD+i}, v{NEW+i} offset:{off}")
    for q in range(2):
        for c in range(3):
            a(f"v_permlane16_swap_b32 v{ACC[0]+4*q+c}, v{ACC[0]+4*(q+2)+c}")
    a("s_nop 1")
    for q in range(2):
        for c in range(3):
            a(f"v_add_f32 v{ACC[0]+4*q+c}, v{ACC[0]+4*q+c}, v{ACC[0]+4*(q+2)+c}")
    c0 = ACC[0]
    a("s_nop 1")
    for c in range(3):
        a(f"v_add_f32_dpp v{c0+c}, v{c0+c}, v{c0+c} row_ror:8 row_mask:0xf bank_mask:0x3")
    for c in range(3):
        a(f"v_add_f32_dpp v{c0+c}, v{c0+4+c}, v{c0+4+c} row_ror:8 row_mask:0xf bank_mask:0xc")
    a(f"""
    s_nop 0
    v_add_f32_dpp v{c0}, v{c0}, v{c0} row_half_mirror row_mask:0xf bank_mask:0x5
    v_add_f32_dpp v{c0+2}, v{c0+2}, v{c0+2} row_half_mirror row_mask:0xf bank_mask:0xf
    v_add_f32_dpp v{c0}, v{c0+1}, v{c0+1} row_half_mirror row_mask:0xf bank_mask:0xa
    s_nop 0
    v_add_f32_dpp v{c0+2}, v{c0+2}, v{c0+2} quad_perm:[1,0,3,2] row_mask:0xf bank_mask:0xf
    v_add_f32_dpp v{c0}, v{c0}, v{c0} quad_perm:[1,0,3,2] row_mask:0xf bank_mask:0xf
    s_nop 0
    v_add_f32_dpp v{c0+2}, v{c0+2}, v{c0+2} quad_perm:[2,3,0,1] row_mask:0xf bank_mask:0xf
    v_add_f32_dpp v{c0}, v{c0}, v{c0} quad_perm:[2,3,0,1] row_mask:0xf bank_mask:0xf
    v_cndmask_b32 v{c0}, v{c0}, v{c0+2}, {sr(sCM)}
    v_add_f32 v{NEW+8}, v{OLD+8}, v{c0}
    s_mov_b64 exec, {sr(sPM)}
    ds_cmpst_rtn_b32 v{NEW+8}, v{T2}, v{OLD+8}, v{NEW+8} offset:{ACCP}
    s_mov_b64 exec, -1
    s_waitcnt lgkmcnt(1)
    """)
    for i in range(8):
        a(f"v_cmp_ne_u32 {sr(sF0+2*i)}, v{NEW+i}, v{OLD+i}")
    a(f"""
    s_waitcnt lgkmcnt(0)
    v_cmp_ne_u32 vcc, v{NEW+8}, v{OLD+8}
    s_and_b64 {sr(sF0+16)}, vcc, {sr(sPM)}
    s_or_b64 {sr(sTMP)}, {sr(sF0+16)}, {sr(sF0)}
    """)
    for i in range(1, 8):
        a(f"s_or_b64 {sr(sTMP)}, {sr(sTMP)}, {sr(sF0+2*i)}")
    a(f"s_cbranch_scc0 K2_FOK_{tag}")
    for i, (ad, off, x) in enumerate(items + [(T2, ACCP, c0)]):
        a(f"""
        v_cmp_neq_f32 vcc, 0, v{x}
        s_and_b64 exec, vcc, {sr(sF0+2*i)}
        ds_add_f32 v{ad}, v{x} offset:{off}
        s_mov_b64 exec, -1
        """)
    a("s_waitcnt lgkmcnt(0)")
    a.label(f"K2_FOK_{tag}")
    if rezero:
        for h in range(2):
            for r in range(16):
                a(f"v_mov_b32 v{ACC[h]+r}, 0")

def window_masks(a):
    a(f"""
    v_subrev_u32 v{REL}, s{sWB}, v{DL4}
    v_cmp_gt_u32 vcc, 32, v{REL}
    s_and_b64 {sr(sVN)}, vcc, {sr(sMR)}
    """)

def wx_load(a):
    a(f"""
    s_lshl_b32 s{sTMP}, s{sWB}, 5
    v_add_u32 v{T1}, s{sTMP}, v{AWT}
    ds_read_b64_tr_b16 {vr(WX[0]+2,2)}, v{T1}
    ds_read_b64_tr_b16 {vr(WX[1]+2,2)}, v{T1} offset:64
    """)

def epi_loads(a):
    a(f"""
    s_lshr_b32 s{sTMP}, s3, 2
    s_lshl_b32 s{sTMP}, s{sTMP}, 13
    s_add_u32 s{sTMP}, s{sTMP}, {WF}
    s_add_u32 s{sTMP+1}, s{sTMP}, 4096
    v_lshlrev_b32 v{TA}, 4, v{LANE}
    s_and_b32 s{sTMP+2}, s3, 3
    s_lshl_b32 s{sTMP+2}, s{sTMP+2}, 4
    s_add_u32 s{sTMP+2}, s{sTMP+2}, s{sNB}
    s_lshl_b32 s{sTMP+2}, s{sTMP+2}, 7
    v_and_b32 v{REL}, 15, v{LANE}
    v_lshlrev_b32 v{REL}, 7, v{REL}
    v_and_or_b32 v{REL}, v{LANE}, 48, v{REL}
    buffer_load_dwordx4 {vr(EW,4)}, v{REL}, {sr(sH,4)}, s{sTMP+2} offen
    buffer_load_dwordx4 {vr(EW+4,4)}, v{REL}, {sr(sH,4)}, s{sTMP+2} offen offset:64
    """)
    for i in range(8):
        a(f"buffer_load_dwordx4 {vr(X[0]+4*i,4)}, v{TA}, {sr(sWS,4)}, s{sTMP + (i >> 2)} offen offset:{1024*(i & 3)}")

def mads(src):
    return [f"v_mad_u32_u16 v{R4+i}, v{src+i}, s{sC128}, v{CDMA+i}" for i in range(4)]
def dma_ops():
    return [f"buffer_load_dwordx4 v{R4+i}, {sr(sB,4)}, 0 offen offset:{1024*i} lds" for i in range(4)]

class Body:
    def __init__(self):
        self.it = []
    def op(self, s): self.it.append(("op", s))
    def ds(self, s, tag=None): self.it.append(("ds", s, tag))
    def wait(self, tag): self.it.append(("wait", tag))
    def emit(self, a):
        if OPT.abl:
            import re
            rx = re.compile(OPT.abl)
            drop = lambda x: bool(rx.search(x[1] if x[0] != "wait" else "WAIT"))
            tags = {x[2] for x in self.it if x[0] == "ds" and drop(x)}
            self.it = [x for x in self.it if not drop(x) and not (x[0] == "wait" and x[1] in tags)]
        n = len(self.it)
        for i, x in enumerate(self.it):
            if x[0] == "wait":
                cnt = 0; j = i - 1; found = False
                for _ in range(n):
                    y = self.it[j % n]
                    if y[0] == "ds":
                        if y[2] == x[1]:
                            found = True; break
                        cnt += 1
                    j -= 1
                assert found, x
                a(f"s_waitcnt lgkmcnt({min(cnt,15)})")
            else:
                a(x[1])

def unit_groups(b, u, pre, post):
    h = u % 2; ph = 1 - h
    ntile = (u + 1) // 2 % 2
    xx = XX if ntile == 0 else XX + 2
    wx = WX[ph] + 2 if ntile == 0 else WX[ph]
    mf = {0: mfma32(ACC[ph], S, M[ph], ACC[ph]),
          1: mfma32(D[ph], xx, wx, None),
          2: mfma32(ACC[ph], S + 4, M[ph] + 4, ACC[ph]),
          OPT.g0: mfma32(D[ph], X[ntile] + 8*ph, ID, D[ph]),
          OPT.g1: mfma32(D[ph], X[ntile] + 8*ph + 4, ID + 4, D[ph])}
    def put(lst):
        for x in lst:
            if isinstance(x, str): b.op(x)
            elif x[0] == "ds": b.ds(x[1], x[2] if len(x) > 2 else None)
            elif x[0] == "wait": b.wait(x[1])
    for g in range(8):
        put(pre.get(g, []))
        if g in mf: b.op(mf[g])
        p = g - 2; hh = h
        if p < 0: p += 8; hh = ph
        t = T + 2 * (p % 4)
        b.op(f"v_cvt_pk_bf16_f32 v{M[hh]+p}, v{t}, v{t+1}")
        t = T + 2 * (g % 4); y = D[h] + 2 * g
        b.op(f"v_exp_f32 v{t}, v{y}")
        b.op(f"v_exp_f32 v{t+1}, v{y+1}")
        p = g - 1; hh = h
        if p < 0: p += 8; hh = ph
        t2 = T + 2 * (p % 4); y2 = D[hh] + 2 * p
        b.op(f"v_rcp_f32 v{t2}, v{t2}")
        b.op(f"v_rcp_f32 v{t2+1}, v{t2+1}")
        b.op(f"v_pk_add_f32 {vr(t,2)}, {vr(t,2)}, 1.0 op_sel_hi:[1,0]")
        b.op(f"v_pk_mul_f32 {vr(t2,2)}, {vr(t2,2)}, {vr(y2,2)}")
        put(post.get(g, []))

def s_build(ad):
    o = [("ds", f"ds_write_b64 v{ad}, {vr(DXY,2)}")]
    for k in range(4):
        o.append(("ds", f"ds_read_b64_tr_b16 {vr(S+2*k,2)}, v{AS[k & 1]} offset:{1024*(k>>1)}", "S" if k == 3 else None))
    o += [("ds", f"ds_write_b64 v{ad}, {vr(ZERO,2)}")]
    return o
def x_read(t):
    o = ["s_waitcnt vmcnt(0)"]
    for k in range(4):
        o.append(("ds", f"ds_read_b128 {vr(X[t]+4*k,4)}, v{AX+k}", "X" if k == 3 else None))
    return o
def geo_addr():
    return [f"v_mad_u32_u16 v{TA}, v{REC}, 6, s{sPOSB}",
            ("ds", f"ds_read_u16_d16_hi v{PS}, v{TA}"),
            ("ds", f"ds_read_u16_d16_hi v{PS+1}, v{TA} offset:2"),
            ("ds", f"ds_read_u16_d16_hi v{PS+2}, v{TA} offset:4"),
            f"v_lshlrev_b32 v{TA}, 2, v{DL4}",
            ("ds", f"ds_read_b128 {vr(PD,4)}, v{TA} offset:{POSD}", "P"),
            f"v_min_u32 v{REL}, 32, v{REL}",
            f"v_lshlrev_b32 v{ALUT}, 1, v{REL}"]
def geo_lut():
    return [("ds", f"ds_read_b64 {vr(XX,2)}, v{ALUT} offset:{LUT}"),
            ("ds", f"ds_read_b64 {vr(XX+4,2)}, v{ALUT} offset:{LUT+72}", "L"),
            f"v_mov_b32 v{XX+3}, v{REC}"]
def geo_diff():
    return [f"v_sub_f32 v{DX+c}, v{PD+c}, v{PS+c}" for c in range(3)]
def geo_cvt():
    return [f"v_cvt_pk_bf16_f32 v{DXY}, v{DX}, v{DX+1}",
            f"v_cvt_pk_bf16_f32 v{DXY+1}, v{DX+2}, 1.0",
            f"v_xor_b32 v{TA}, v{ALUT}, v{SROW}",
            f"v_cndmask_b32 v{SAD[0]}, v{DUMMY}, v{TA}, {sr(sMA)}",
            f"v_cndmask_b32 v{SAD[1]}, v{DUMMY}, v{TA}, {sr(sMB)}"]
def geo_d2():
    return [f"v_dot2_f32_bf16 v{DD}, v{DXY+1}, v{DXY+1}, -1.0",
            f"v_dot2_f32_bf16 v{DD}, v{DXY}, v{DXY}, v{DD}"]
def geo_fin():
    return [f"v_cvt_pk_bf16_f32 v{XX+2}, v{DD}, v{DD}",
            f"v_permlane32_swap_b32 v{XX}, v{XX+4}",
            f"v_permlane32_swap_b32 v{XX+1}, v{XX+5}"]
def list_reads():
    return [f"v_add_u32 v{A4}, s{sPN4}, v{G4}",
            ("ds", f"ds_read_b128 {vr(R4,4)}, v{A4} offset:{LISTR}", "R"),
            f"v_add_u32 v{TA}, s{sPN4}, v{LANE4}",
            ("ds", f"ds_read_b32 v{REC}, v{TA} offset:{LISTR}"),
            f"v_add_u32 v{TA}, s{sPN}, v{LANE}",
            ("ds", f"ds_read_u8 v{DL4}, v{TA} offset:{LISTL}", "E")]
def advance():
    return [f"s_bcnt1_i32_b64 s{sNX}, {sr(sVN)}",
            f"s_add_u32 s{sPN}, s{sPN}, s{sNX}",
            f"s_lshl_b32 s{sPN4}, s{sPN}, 2",
            f"s_mov_b32 s{sMA}, s{sVN}",
            f"s_mov_b32 s{sMB+1}, s{sVN+1}"]
def plain(a, lst):
    for x in lst:
        a(x if isinstance(x, str) else x[1])

def gen_main_loop(a):
    b = Body()
    unit_groups(b, 0,
        pre={3: s_build(SAD[0]),
             4: list_reads(),
             5: [f"s_cmp_lg_u32 s{sFFL}, 0", "s_cbranch_scc1 K2_FLUSH", "K2_FLUSH_RET:"],
             6: x_read(1),
             7: [("wait", "R")] + mads(R4)},
        post={})
    unit_groups(b, 1,
        pre={0: [("wait", "E"),
                 f"s_sub_u32 s{sTMP}, s{sEND}, s{sPN}",
                 f"v_subrev_u32 v{REL}, s{sWB}, v{DL4}",
                 f"v_cmp_gt_i32 {sr(sMR)}, s{sTMP}, v{LANE}",
                 f"v_cmp_gt_u32 vcc, 32, v{REL}"],
             1: [f"s_and_b64 {sr(sVN)}, vcc, {sr(sMR)}",
                 f"s_cmp_lg_u64 {sr(sVN)}, {sr(sMR)}",
                 "s_cbranch_scc1 K2_REBASE", "K2_REBASE_RET:"] + advance() + [("wait", "X")] + dma_ops(),
             2: geo_addr()},
        post={})
    unit_groups(b, 2,
        pre={0: ([f"s_cmp_lg_u32 s{sNX}, 0", "s_cbranch_scc1 K2_PRIO2_OK", "s_setprio 0", "K2_PRIO2_OK:"] if OPT.prio else []),
             2: [f"s_cmp_lg_u32 s{sFWX}, 0", "s_cbranch_scc1 K2_WXL", "K2_WXL_RET:"] + geo_lut(),
             3: s_build(SAD[1]),
             4: [("ds", f"ds_read_b128 {vr(R4,4)}, v{A4} offset:{LISTR+128}", "R")] + geo_cvt(),
             6: x_read(0) + [("wait", "L")] + geo_fin(),
             7: [("wait", "R")] + mads(R4)},
        post={2: [("wait", "P")] + geo_diff(),
              4: geo_d2()})
    unit_groups(b, 3,
        pre={1: [("wait", "X")] + dma_ops()},
        post={})
    a(".p2align 6")
    a.label("K2_LOOP")
    if OPT.prio:
        a(f"""
        s_sub_u32 s{sTMP}, s{sEND}, s{sPN}
        s_cmp_gt_u32 s{sTMP}, {64*OPT.prio}
        s_cbranch_scc1 K2_PRIO_OK
        s_setprio 2
        s_cmp_gt_u32 s{sTMP}, 0
        s_cbranch_scc1 K2_PRIO_OK
        s_setprio 1
        K2_PRIO_OK:
        """)
    b.emit(a)
    if OPT.abl:
        a("s_sub_u32 s67, s67, 1\ns_cmp_lg_u32 s67, 0\ns_cbranch_scc1 K2_LOOP")
    else:
        a(f"s_cmp_lg_u32 s{sNX}, 0\ns_cbranch_scc1 K2_LOOP")

def b_touch(a, lo, n, dst):
    a(f"""
    s_mul_i32 s{sTMP+1}, s{sROT}, {391*128}
    s_mul_i32 s{sTMP+2}, s3, {49*128}
    s_add_u32 s{sTMP+1}, s{sTMP+1}, s{sTMP+2}
    s_add_u32 s{sTMP+1}, s{sTMP+1}, {3072 + 128*lo}
    v_lshlrev_b32 v{dst}, 7, v{LANE}
    s_mov_b64 exec, {hex((1 << n) - 1) if n <= 32 else '-1'}
    """)
    if n > 32:
        a(f"s_mov_b32 exec_hi, {hex((1 << (n - 32)) - 1)}")
    a(f"buffer_load_dword v{dst}, v{dst}, {sr(sB,4)}, s{sTMP+1} offen\ns_mov_b64 exec, -1")

def gen_k2(a):
    a.label("gather_scatter__cheap_equivariant_egnn__graph_kernel")
    if OPT.stamps == 4: a("s_memrealtime s[94:95]")
    tmp = D[0]
    OFFV = tmp + 70; L16 = tmp + 78
    a(f"""
    s_cmp_ge_u32 s2, 256
    s_cbranch_scc1 K2_END
    s_load_dwordx2 s[60:61], s[0:1], 80
    s_load_dwordx4 s[4:7], s[0:1], 0
    s_load_dwordx2 s[56:57], s[0:1], 48
    s_load_dwordx2 s[58:59], s[0:1], 64
    s_lshr_b32 s{sROT}, s2, 3
    s_and_b32 s2, s2, 7
    s_lshl_b32 s2, s2, 5
    s_add_u32 s2, s2, s{sROT}
    v_lshrrev_b32 v1, 6, v0
    v_and_b32 v{LANE}, 63, v0
    v_readfirstlane_b32 s3, v1
    v_lshrrev_b32 v{tmp}, 2, v0
    s_movk_i32 s62, {PSTR}
    {f"v_and_b32 v{tmp+1}, 0x1fc, v0" if OPT.offt else f"v_mul_u32_u24 v{tmp+1}, 1152, v{tmp}"}
    v_mul_u32_u24 v1, s62, v{tmp}
    s_lshl_b32 s63, s2, {10 if OPT.offt else 2}
    s_add_u32 s63, s63, {OFFT}
    s_add_u32 s{sROT-1}, s63, {512 if OPT.offt else 128*1152}
    s_mul_i32 s{sNB}, s2, {NPB}
    s_sub_u32 s{sNN}, {N}, s{sNB}
    s_min_u32 s{sNN}, s{sNN}, {NPB}
    v_lshlrev_b32 v{LANE4}, 2, v{LANE}
    v_lshlrev_b32 v{L16}, 4, v{LANE}
    s_waitcnt lgkmcnt(0)
    {srd(sWS, 60, WS_SRD)}
    buffer_load_dword v{OFFV}, v{tmp+1}, {sr(sWS,4)}, s63 offen
    buffer_load_dword v{OFFV+1}, v{tmp+1}, {sr(sWS,4)}, s{sROT-1} offen
    {srd(sB, 60, N*128 + 3072, add=BTAB - 3072)}
    {srd(sPOS, 6, N*6)}
    {srd(sOUT, 58, N*134)}
    {srd(sH, 4, N*128)}
    {srd(sWXD, 56, 128)}
    {srd(sF0, 60, N*128, add=ATAB)}
    """)
    if OPT.stamps:
        a(f"s_lshl_b32 s66, s2, 4\ns_add_u32 s66, s66, s3\ns_lshl_b32 s66, s66, 6\ns_add_u32 s66, s66, {DBG_WS + 256*16*64}")
    stamp(a, 2, 0); stamp(a, 2, 14, True)
    if OPT.stamps == 4:
        a("v_mov_b32 v252, s94\ns_mov_b64 s[64:65], exec\ns_mov_b64 exec, 1\nbuffer_store_dword v252, v253, s[12:15], 0 offen offset:32\ns_mov_b64 exec, s[64:65]")
    nvm = 2 if OPT.stamps else 0
    a(f"s_mov_b32 s{sTMP}, {WF + 16*1024}")
    for h in range(2):
        a(f"buffer_load_dwordx2 {vr(WX[h],2)}, v{L16}, {sr(sWS,4)}, s{sTMP} offen offset:{1024*h}")
        a(f"buffer_load_dwordx2 {vr(WX[h]+4,2)}, v{L16}, {sr(sWS,4)}, s{sTMP} offen offset:{1024*h+8}")
    nvm += 4
    a(f"""
    s_cmp_ge_u32 s3, 7
    s_cbranch_scc1 K2_NOAT
    s_lshl_b32 s{sTMP}, s3, 10
    s_add_u32 m0, s{sTMP}, {AT}
    s_lshl_b32 s{sTMP+1}, s{sNB}, 7
    s_add_u32 s{sTMP+1}, s{sTMP+1}, s{sTMP}
    s_cmp_eq_u32 s3, 6
    s_cselect_b64 exec, 0xff, -1
    buffer_load_dwordx4 v{L16}, {sr(sF0,4)}, s{sTMP+1} offen lds
    s_mov_b64 exec, -1
    K2_NOAT:
    """)
    if OPT.early:
        a(f"""
        s_cmp_lg_u32 s3, 7
        s_cbranch_scc1 K2_NOPT
        s_mul_i32 s{sTMP+1}, s{sROT}, {19*128}
        v_lshlrev_b32 v{TCH}, 7, v{LANE}
        s_mov_b64 exec, 0x7ffff
        buffer_load_dword v{TCH}, v{TCH}, {sr(sPOS,4)}, s{sTMP+1} offen
        s_mov_b64 exec, -1
        K2_NOPT:
        """)
    z = tmp + 8
    a(f"""
    v_mov_b32 v{z}, 0
    v_mov_b32 v{z+1}, 0
    v_mov_b32 v{z+2}, 0
    v_mov_b32 v{z+3}, 0
    v_mov_b32 v{ZERO}, 0
    v_mov_b32 v{ZERO+1}, 0
    v_lshlrev_b32 v{z+4}, 4, v0
    """)
    nz = (STG - ACCM + 8191) // 8192
    for i in range(nz):
        lim = (STG - ACCM - 8192*i) // 16
        if lim < 512:
            a(f"v_cmp_gt_u32 vcc, {lim}, v0\ns_and_saveexec_b64 {sr(sTMP)}, vcc")
        a(f"ds_write_b128 v{z+4}, {vr(z,4)} offset:{ACCM + 8192*i}")
        if lim < 512:
            a("s_mov_b64 exec, -1")
    a(f"""
    v_cmp_gt_u32 vcc, {LISTL//16}, v0
    s_and_saveexec_b64 {sr(sTMP)}, vcc
    ds_write_b128 v{z+4}, {vr(z,4)}
    s_mov_b64 exec, -1
    """)
    HH, A31, R2, C2, GP, U1, U2 = [tmp + 14 + i for i in range(7)]
    a(f"""
    s_movk_i32 s{sC128}, 128
    s_mov_b32 s{sPOSB}, {POSB}
    s_mov_b32 s{sQ}, 32
    s_mov_b32 s{sFIRST}, 1
    s_mov_b32 s{sFIN}, 1
    s_mov_b32 s{sPM}, 0x13131313
    s_mov_b32 s{sPM+1}, 0x13131313
    s_mov_b32 s{sCM}, 0x02020202
    s_mov_b32 s{sCM+1}, 0x02020202
    v_lshrrev_b32 v{HH}, 5, v{LANE}
    v_and_b32 v{A31}, 31, v{LANE}
    v_bfe_u32 v{R2}, v{LANE}, 2, 2
    v_and_b32 v{C2}, 3, v{LANE}
    v_bfe_u32 v{GP}, v{LANE}, 4, 1
    v_lshrrev_b32 v{U1}, 3, v{LANE}
    v_lshlrev_b32 v{G4}, 4, v{U1}
    v_and_b32 v{U1}, 7, v{LANE}
    v_lshlrev_b32 v{U2}, 2, v{HH}
    v_xor_b32 v{U1}, v{U1}, v{U2}
    """)
    for i in range(4):
        a(f"""
        v_xor_b32 v{CDMA+i}, {i}, v{U1}
        v_lshlrev_b32 v{CDMA+i}, 4, v{CDMA+i}
        v_add_u32 v{CDMA+i}, {3072 - 1024*i}, v{CDMA+i}
        """)
    a(f"""
    s_lshl_b32 s{sTMP}, s3, 12
    s_add_u32 s{sTMP}, s{sTMP}, {STG}
    v_bfe_u32 v{U1}, v{LANE}, 2, 3
    v_lshl_add_u32 v{U1}, v{C2}, 3, v{U1}
    v_lshlrev_b32 v{U1}, 7, v{U1}
    v_add_u32 v{U1}, s{sTMP}, v{U1}
    v_lshl_or_b32 v{U2}, v{GP}, 2, v{C2}
    v_xor_b32 v{U2}, v{U2}, v{HH}
    """)
    for k in range(4):
        a(f"v_xor_b32 v{AX+k}, {2*k}, v{U2}\nv_lshl_add_u32 v{AX+k}, v{AX+k}, 4, v{U1}")
    a(f"""
    s_lshl_b32 s{sTMP}, s3, 11
    s_add_u32 s{sTMP}, s{sTMP}, {SB}
    v_lshlrev_b32 v{SROW}, 6, v{A31}
    v_add_u32 v{SROW}, s{sTMP}, v{SROW}
    v_bfe_u32 v{U1}, v{LANE}, 1, 3
    v_lshl_add_u32 v{SROW}, v{U1}, 3, v{SROW}
    v_lshl_add_u32 v{R2}, v{HH}, 2, v{R2}
    v_lshl_add_u32 v{C2}, v{GP}, 2, v{C2}
    v_lshrrev_b32 v{U1}, 1, v{R2}
    v_xor_b32 v{U1}, v{U1}, v{C2}
    v_lshlrev_b32 v{AS[0]}, 6, v{R2}
    v_add_u32 v{AS[0]}, s{sTMP}, v{AS[0]}
    v_xor_b32 v{U2}, 4, v{U1}
    v_lshl_add_u32 v{AS[1]}, v{U2}, 3, v{AS[0]}
    v_add_u32 v{AS[1]}, 512, v{AS[1]}
    v_lshl_add_u32 v{AS[0]}, v{U1}, 3, v{AS[0]}
    v_lshlrev_b32 v{AWT}, 7, v{R2}
    v_lshl_add_u32 v{AWT}, v{C2}, 3, v{AWT}
    v_add_u32 v{AWT}, {AT}, v{AWT}
    v_mul_u32_u24 v{MADDR}, {RS}, v{HH}
    v_lshl_add_u32 v{MADDR}, v{A31}, 2, v{MADDR}
    v_add_u32 v{MADDR}, {ACCM}, v{MADDR}
    v_bfe_u32 v{U1}, v{LANE}, 3, 2
    v_lshl_add_u32 v{U1}, v{U1}, 1, v{HH}
    v_lshlrev_b32 v{POFF}, 4, v{U1}
    v_and_b32 v{U1}, 4, v{LANE}
    v_add_u32 v{POFF}, v{POFF}, v{U1}
    v_and_b32 v{U1}, 1, v{LANE}
    v_lshl_add_u32 v{POFF}, v{U1}, 3, v{POFF}
    v_lshlrev_b32 v{DUMMY}, 3, v{LANE}
    v_mov_b32 v{PS}, 0
    v_mov_b32 v{PS+1}, 0
    v_mov_b32 v{PS+2}, 0
    """)
    a(f"""
    s_waitcnt vmcnt({nvm})
    v_and_b32 v{U1}, 3, v0
    v_lshlrev_b32 v{U1}, 2, v{U1}
    v_and_b32 v{START[0]}, 0xffff, v{OFFV}
    v_and_b32 v{START[1]}, 0xffff, v{OFFV+1}
    v_lshrrev_b32 v{ENDV[0]}, 16, v{OFFV}
    v_lshrrev_b32 v{ENDV[1]}, 16, v{OFFV+1}
    v_add_u32 v{START[0]}, v{START[0]}, v{U1}
    v_add_u32 v{START[1]}, v{START[1]}, v{U1}
    """)
    stamp(a, 2, 1)
    RECS = tmp; LW = tmp + 16; DLS = tmp + 24; RK = tmp + 40; BS = tmp + 56
    REM = [tmp + 72, tmp + 73]; AR = tmp + 74; AL = tmp + 75; ONE = tmp + 76; PV = tmp + 77
    AR2 = [AR, FL]; AL2 = [AL, FL + 1]
    a.label("K2_ROUND")
    a(f"""
    v_and_b32 v{PV}, 3, v0
    v_lshlrev_b32 v{PV}, 2, v{PV}
    v_sub_u32 v{PV}, s{sQ}, v{PV}
    s_mov_b32 s{sTMP}, {128*PSTR}
    s_mov_b32 s{sTMP+1}, {L_OFF}
    s_mov_b32 s{sTMP+2}, {128*PSTR + L_OFF}
    """)
    for x in range(2):
        a(f"""
        v_lshl_add_u32 v{AR2[x]}, v{START[x]}, 2, v1
        v_add_u32 v{AL2[x]}, v{START[x]}, v1
        v_and_b32 v{AL2[x]}, -4, v{AL2[x]}
        buffer_load_dwordx4 {vr(RECS+8*x,4)}, v{AR2[x]}, {sr(sWS,4)}, {'s%d' % sTMP if x else 0} offen
        buffer_load_dwordx2 {vr(LW+4*x,2)}, v{AL2[x]}, {sr(sWS,4)}, s{sTMP+1+x} offen
        """)
    for x in range(2):
        a(f"""
        v_sub_u32 v{FL+2}, v{ENDV[x]}, v{START[x]}
        v_min_i32 v{FL+3+x}, v{FL+2}, v{PV}
        v_cmpx_lt_i32 vcc, 16, v{FL+3+x}
        s_cbranch_execz K2_LD_{x}
        buffer_load_dwordx4 {vr(RECS+8*x+4,4)}, v{AR2[x]}, {sr(sWS,4)}, {'s%d' % sTMP if x else 0} offen offset:64
        buffer_load_dwordx2 {vr(LW+4*x+2,2)}, v{AL2[x]}, {sr(sWS,4)}, s{sTMP+1+x} offen offset:16
        K2_LD_{x}:
        s_mov_b64 exec, -1
        """)
    REM = [FL + 3, FL + 4]
    a(f"""
    v_mov_b32 v{ONE}, 1
    s_cmp_eq_u32 s{sFIRST}, 0
    s_cbranch_scc1 K2_NOTFIRST
    v_and_b32 v{T1}, 31, v{LANE}
    v_lshlrev_b32 v{T1}, 1, v{T1}
    buffer_load_ushort v{WXS[0]}, v{T1}, {sr(sWXD,4)}, 0 offen
    buffer_load_ushort v{WXS[1]}, v{T1}, {sr(sWXD,4)}, 0 offen offset:64
    v_mov_b32 v{ACC[0]}, 0
    v_mov_b32 v{ACC[0]+1}, 0
    v_mov_b32 v{ACC[0]+2}, 0
    v_mov_b32 v{ACC[0]+3}, 0
    s_cmp_lg_u32 s3, 4
    s_cbranch_scc1 K2_NOPD1
    v_add_u32 v{T1}, s{sNB}, v{LANE}
    v_mul_u32_u24 v{T1}, 6, v{T1}
    buffer_load_short_d16_hi v{ACC[0]}, v{T1}, {sr(sPOS,4)}, 0 offen
    buffer_load_short_d16_hi v{ACC[0]+1}, v{T1}, {sr(sPOS,4)}, 0 offen offset:2
    buffer_load_short_d16_hi v{ACC[0]+2}, v{T1}, {sr(sPOS,4)}, 0 offen offset:4
    K2_NOPD1:
    """)
    a(f"""
    v_and_b32 v{T1}, 31, v{LANE}
    v_and_b32 v{T2}, 1, v{T1}
    v_lshlrev_b32 v{T2}, 4, v{T2}
    v_mov_b32 v{TA}, 0x3f80
    v_lshlrev_b32 v{T2}, v{T2}, v{TA}
    v_lshrrev_b32 v{T1}, 1, v{T1}
    v_lshrrev_b32 v{TA}, 5, v{LANE}
    v_lshlrev_b32 v{TA}, 2, v{TA}
    v_sub_u32 v{T1}, v{T1}, v{TA}
    """)
    for t in range(2):
        for r in range(4):
            a(f"v_cmp_eq_u32 {sr(sF0 + 4 + 2*r)}, {8*t + r}, v{T1}")
        for r in range(4):
            a(f"v_cndmask_b32 v{ID+4*t+r}, 0, v{T2}, {sr(sF0 + 4 + 2*r)}")
    a(f"""
    s_waitcnt lgkmcnt(0)
    s_barrier
    s_cmp_lg_u32 s3, 5
    s_cbranch_scc1 K2_NOLUT
    v_and_b32 v{T1}, 1, v{LANE}
    v_lshlrev_b32 v{T1}, 4, v{T1}
    v_mov_b32 v{T2}, 0x3f80
    v_lshlrev_b32 v{T2}, v{T1}, v{T2}
    v_lshrrev_b32 v{T1}, 2, v{LANE}
    v_mul_u32_u24 v{T1}, 72, v{T1}
    v_lshl_add_u32 v{T1}, v{LANE}, 3, v{T1}
    v_and_b32 v{TA}, 2, v{LANE}
    v_lshl_add_u32 v{T1}, v{TA}, 1, v{T1}
    s_mov_b64 exec, 0xff
    ds_write_b32 v{T1}, v{T2} offset:{LUT}
    s_mov_b64 exec, -1
    K2_NOLUT:
    """)
    a(f"""
    s_lshl_b32 s{sPP}, s3, 10
    v_add_u32 v{L16}, s{sPP}, v{L16}
    s_add_u32 s{sPP}, s{sPP}, {POSB}
    s_mul_i32 s{sTMP+3}, s{sROT}, 57
    s_lshr_b32 s{sTMP+3}, s{sTMP+3}, 9
    s_mul_i32 s{sTMP+3}, s{sTMP+3}, 9
    s_sub_u32 s{sTMP+3}, s{sROT}, s{sTMP+3}
    s_lshl_b32 s{sPP+1}, s{sTMP+3}, 13
    """)
    ntouch = 1 if OPT.touch else 0
    a(f"""
    s_waitcnt vmcnt(2)
    s_branch K2_COUNT
    K2_NOTFIRST:
    s_waitcnt lgkmcnt(0)
    s_barrier
    s_waitcnt vmcnt(0)
    K2_COUNT:
    """)
    stamp(a, 2, 2)
    a(f"""
    v_add_u32 v{AR}, v{PV}, v{START[0]}
    v_add_u32 v{AL}, v{PV}, v{START[1]}
    v_cmp_lt_u32 vcc, v{AR}, v{ENDV[0]}
    v_cmp_lt_u32 {sr(sTMP)}, v{AL}, v{ENDV[1]}
    s_or_b64 vcc, vcc, {sr(sTMP)}
    s_cbranch_vccz K2_NOFLAG
    v_mov_b32 v{PV}, {FLAG}
    ds_write_b32 v{PV}, v{ONE}
    K2_NOFLAG:
    """)
    def pos_piece():
        if OPT.nopos: return
        a(f"""
        s_add_u32 m0, s{sPP}, s{sPP+1}
        s_add_u32 s{sTMP+3}, s{sPP+1}, 8192
        buffer_load_dwordx4 v{L16}, {sr(sPOS,4)}, s{sPP+1} offen lds
        s_cmp_eq_u32 s{sTMP+3}, {9*8192}
        s_cselect_b32 s{sPP+1}, 0, s{sTMP+3}
        """)
    def pieces(n, tag):
        a(f"s_cmp_eq_u32 s{sFIN if tag == 'd' else sFIRST}, 0\ns_cbranch_scc1 K2_NP_{tag}")
        for _ in range(n): pos_piece()
        a.label(f"K2_NP_{tag}")
    NPC = OPT.npc
    if NPC[0]: pieces(NPC[0], "a")
    for x in range(2):
        for i in range(2):
            g = 2*x + i
            for k in range(4):
                s = 4*g + k
                a(f"v_cmpx_lt_i32 vcc, {16*i+k}, v{REM[x]}")
                if k == 0 or i == 1:
                    a(f"s_cbranch_execz K2_CNT_{x}")
                if k == 0:
                    a(f"v_alignbyte_b32 v{LW+2*g}, v{LW+2*g+1}, v{LW+2*g}, v{START[x]}")
                a(f"v_bfe_u32 v{DLS+s}, v{LW+2*g}, {8*k}, 8")
                a(f"ds_add_rtn_u32 v{RK+s}, v{DLS+s}, v{ONE} offset:{CNT2}")
        a(f"K2_CNT_{x}:\ns_mov_b64 exec, -1")
        if NPC[1+x]: pieces(NPC[1+x], "bc"[x])
    a(f"""
    s_waitcnt lgkmcnt(0)
    s_barrier
    """)
    stamp(a, 2, 3)
    a(f"""
    ds_read_b32 v{PV}, v{LANE4} offset:{CNT2}
    v_mov_b32 v{AR}, {FLAG}
    ds_read_b32 v{AL}, v{AR}
    s_waitcnt lgkmcnt(0)
    v_mov_b32 v{AR}, v{PV}
    v_readfirstlane_b32 s{sMORE}, v{AL}
    """)
    wave_scan(a, AR)
    a(f"""
    s_nop 0
    v_readlane_b32 s{sT}, v{AR}, 63
    v_sub_u32 v{AR}, v{AR}, v{PV}
    s_cmp_le_u32 s{sT}, {CAP}
    s_cbranch_scc1 K2_FITS
    s_mov_b32 s{sQ}, 8
    s_mov_b32 s{sMORE}, 0
    s_branch K2_AGAIN
    K2_FITS:
    ds_write_b32 v{LANE4}, v{AR} offset:{PRE2}
    s_cmp_lg_u32 s3, 0
    s_cbranch_scc1 K2_NOPAD
    v_add_u32 v{AL}, s{sT}, v{LANE}
    v_mov_b32 v{PV}, {4*NPB}
    ds_write_b8 v{AL}, v{PV} offset:{LISTL}
    v_lshlrev_b32 v{AL}, 2, v{AL}
    ds_write_b32 v{AL}, v{ZERO} offset:{LISTR}
    K2_NOPAD:
    """)
    for x in range(2):
        for i in range(2):
            a(f"v_cmpx_lt_i32 vcc, {16*i}, v{REM[x]}")
            a(f"s_cbranch_execz K2_SR_{x}")
            for k in range(4):
                s = 8*x + 4*i + k
                a(f"ds_read_b32 v{BS+s}, v{DLS+s} offset:{PRE2}")
        a(f"K2_SR_{x}:\ns_mov_b64 exec, -1")
    if NPC[3]: pieces(NPC[3], "d")
    a("s_waitcnt lgkmcnt(0)")
    if OPT.stamps != 4: stamp(a, 2, 11)
    for x in range(2):
        for i in range(2):
            for k in range(4):
                s = 8*x + 4*i + k
                a(f"v_cmpx_lt_i32 vcc, {16*i+k}, v{REM[x]}")
                if k == 0 or i == 1: a(f"s_cbranch_execz K2_SC_{x}")
                a(f"v_add_u32 v{BS+s}, v{BS+s}, v{RK+s}")
                a(f"v_lshlrev_b32 v{RK+s}, 2, v{BS+s}")
                a(f"ds_write_b8 v{BS+s}, v{DLS+s} offset:{LISTL}")
                a(f"ds_write_b32 v{RK+s}, v{RECS+s} offset:{LISTR}")
        a(f"K2_SC_{x}:\ns_mov_b64 exec, -1")
        if x == 0:
            a(f"s_cmp_eq_u32 s{sFIN}, 0\ns_cbranch_scc1 K2_NP_e")
            for _ in range(9 - sum(NPC)): pos_piece()
            a(f"""
            s_cmp_ge_u32 s3, 2
            s_cbranch_scc1 K2_POSDONE
            s_cmp_eq_u32 s3, 1
            s_cselect_b64 exec, 0xffff, -1
            s_add_u32 m0, s{sPP}, {8192*9}
            s_mov_b32 s{sTMP+2}, {8192*9}
            buffer_load_dwordx4 v{L16}, {sr(sPOS,4)}, s{sTMP+2} offen lds
            s_mov_b64 exec, -1
            K2_POSDONE:
            """)
            if OPT.touch: b_touch(a, 0, 49, TCH)
            a.label("K2_NP_e")
    a(f"""
    s_add_u32 s{sTMP}, s{sT}, 63
    s_lshr_b32 s{sTMP}, s{sTMP}, 6
    s_lshr_b32 s{sTMP+1}, s{sTMP}, 3
    s_and_b32 s{sTMP+2}, s{sTMP}, 7
    s_mul_i32 s{sPN}, s3, s{sTMP+1}
    s_min_u32 s{sTMP+3}, s3, s{sTMP+2}
    s_add_u32 s{sPN}, s{sPN}, s{sTMP+3}
    s_cmp_lt_u32 s3, s{sTMP+2}
    s_addc_u32 s{sTMP+1}, s{sTMP+1}, s{sPN}
    s_lshl_b32 s{sPN}, s{sPN}, 6
    s_lshl_b32 s{sEND}, s{sTMP+1}, 6
    s_min_u32 s{sEND}, s{sEND}, s{sT}
    s_lshl_b32 s{sPN4}, s{sPN}, 2
    s_lshl_b32 s{sTMP}, s3, 12
    s_add_u32 m0, s{sTMP}, {STG}
    s_mov_b32 s{sFWX}, 0
    s_mov_b32 s{sFFL}, 0
    s_mov_b32 s{sMA+1}, 0
    s_mov_b32 s{sMB}, 0
    """)
    for r in range(16):
        a(f"v_mov_b32 v{ACC[1]+r}, 0")
    for r in range(8):
        a(f"v_mov_b32 v{S+r}, 0\nv_mov_b32 v{T+r}, 1.0")
    if OPT.stamps != 4: stamp(a, 2, 10)
    a(f"""
    s_waitcnt vmcnt({ntouch})
    s_cmp_eq_u32 s{sFIN}, 0
    s_cbranch_scc1 K2_NOPOS1
    s_mov_b32 s{sFIN}, 0
    s_mov_b32 s{sTMP}, {f32(-LN2)}
    v_lshlrev_b32 v{WXS[0]}, 16, v{WXS[0]}
    v_lshlrev_b32 v{WXS[1]}, 16, v{WXS[1]}
    v_mul_f32 v{WXS[0]}, s{sTMP}, v{WXS[0]}
    v_mul_f32 v{WXS[1]}, s{sTMP}, v{WXS[1]}
    s_cmp_lg_u32 s3, 4
    s_cbranch_scc1 K2_NOPOS1
    v_lshlrev_b32 v{T1}, 4, v{LANE}
    v_cmp_gt_u32 vcc, {NPB}, v{LANE}
    s_and_saveexec_b64 {sr(sTMP)}, vcc
    ds_write_b128 v{T1}, {vr(ACC[0],4)} offset:{POSD}
    s_mov_b64 exec, -1
    K2_NOPOS1:
    s_waitcnt lgkmcnt(0)
    s_barrier
    """)
    stamp(a, 2, 4)
    a(f"""
    s_cmp_ge_u32 s{sPN}, s{sEND}
    s_cbranch_scc1 K2_NOWORK
    """)
    RB4 = D[1]
    if OPT.abl:
        a(f"s_sub_u32 s67, s{sEND}, s{sPN}\ns_add_u32 s67, s67, 63\ns_lshr_b32 s67, s67, 6")
    plain(a, list_reads())
    a(f"""
    ds_read_b128 {vr(RB4,4)}, v{A4} offset:{LISTR+128}
    s_sub_u32 s{sTMP}, s{sEND}, s{sPN}
    v_cmp_gt_i32 {sr(sMR)}, s{sTMP}, v{LANE}
    s_waitcnt lgkmcnt(3)
    """)
    plain(a, mads(R4))
    plain(a, dma_ops())
    a(f"""
    s_waitcnt lgkmcnt(0)
    v_readfirstlane_b32 s{sWB}, v{DL4}
    s_nop 0
    s_min_u32 s{sWB}, s{sWB}, {4*(NPB-8)}
    """)
    window_masks(a)
    wx_load(a)
    plain(a, geo_addr())
    plain(a, geo_lut())
    plain(a, advance())
    plain(a, mads(RB4))
    for r in range(8):
        a(f"v_mov_b32 v{M[1]+r}, 0")
    for r in range(16):
        a(f"v_mov_b32 v{ACC[0]+r}, 0")
    a(f"v_mov_b32 v{D[1]+14}, 0\nv_mov_b32 v{D[1]+15}, 0")
    a("s_waitcnt lgkmcnt(0)")
    plain(a, geo_diff())
    plain(a, geo_cvt())
    plain(a, geo_d2())
    a("s_nop 2")
    plain(a, geo_fin())
    plain(a, x_read(0))
    a(mfma32(D[0], XX, WX[0] + 2, None))
    a("s_waitcnt lgkmcnt(2)")
    a(mfma32(D[0], X[0], ID, D[0]))
    a(mfma32(D[0], X[0] + 4, ID + 4, D[0]))
    a("s_waitcnt lgkmcnt(0)")
    plain(a, dma_ops())
    a("s_nop 6")
    if OPT.prio: a("s_setprio 3")
    stamp(a, 2, 5)
    gen_main_loop(a)
    stamp(a, 2, 6)
    t2 = T + 2 * (7 % 4); y2 = D[1] + 14; t6 = T + 2 * (6 % 4)
    a(f"""
    {mfma32(ACC[1], S, M[1], ACC[1])}
    v_cvt_pk_bf16_f32 v{M[1]+6}, v{t6}, v{t6+1}
    v_rcp_f32 v{t2}, v{t2}
    v_rcp_f32 v{t2+1}, v{t2+1}
    s_nop 0
    v_mul_f32 v{t2}, v{t2}, v{y2}
    v_mul_f32 v{t2+1}, v{t2+1}, v{y2+1}
    v_cvt_pk_bf16_f32 v{M[1]+7}, v{t2}, v{t2+1}
    s_nop 1
    {mfma32(ACC[1], S+4, M[1]+4, ACC[1])}
    s_mov_b32 s{sWBO}, s{sWB}
    """)
    epi_loads(a)
    flush_code(a, False, 'A')
    a("s_branch K2_WDONE")
    a.label("K2_FLUSH")
    flush_code(a, True, 'B')
    a(f"s_mov_b32 s{sFFL}, 0\ns_branch K2_FLUSH_RET")
    a.label("K2_REBASE")
    a(f"""
    s_mov_b32 s{sWBO}, s{sWB}
    v_readfirstlane_b32 s{sWB}, v{DL4}
    s_mov_b32 s{sFWX}, 1
    s_mov_b32 s{sFFL}, 1
    s_min_u32 s{sWB}, s{sWB}, {4*(NPB-8)}
    """)
    window_masks(a)
    a("s_branch K2_REBASE_RET")
    a.label("K2_WXL")
    wx_load(a)
    a(f"s_mov_b32 s{sFWX}, 0\ns_branch K2_WXL_RET")
    a.label("K2_NOWORK")
    epi_loads(a)
    a.label("K2_WDONE")
    stamp(a, 2, 7)
    a(f"""
    s_cmp_eq_u32 s{sMORE}, 0
    s_cbranch_scc1 K2_EPI
    v_and_b32 v{T1}, 3, v0
    v_lshlrev_b32 v{T1}, 2, v{T1}
    v_add_u32 v{T2}, v{T1}, v{ENDV[1]}
    v_add_u32 v{T1}, v{T1}, v{ENDV[0]}
    v_add_u32 v{START[0]}, s{sQ}, v{START[0]}
    v_add_u32 v{START[1]}, s{sQ}, v{START[1]}
    v_min_u32 v{START[0]}, v{START[0]}, v{T1}
    v_min_u32 v{START[1]}, v{START[1]}, v{T2}
    K2_AGAIN:
    s_waitcnt vmcnt(0) lgkmcnt(0)
    s_barrier
    s_mov_b32 s{sFIRST}, 0
    s_cmp_lg_u32 s3, 0
    s_cbranch_scc1 K2_ROUND
    ds_write_b32 v{LANE4}, v{ZERO} offset:{CNT2}
    v_mov_b32 v{T1}, {FLAG}
    ds_write_b32 v{T1}, v{ZERO}
    s_branch K2_ROUND
    """)
    MF = D[1]; MB_ = M[0]; U = ACC[0]; HR = D[0]; EX = D[0] + 8
    a(f"""
    K2_EPI:
    s_and_b32 s{sTMP}, s3, 3
    s_lshl_b32 s{sTMP}, s{sTMP}, 4
    v_and_b32 v{T1}, 15, v{LANE}
    v_add_u32 v{T1}, s{sTMP}, v{T1}
    v_mul_u32_u24 v{T2}, {RS}, v{T1}
    v_and_b32 v{TA}, 48, v{LANE}
    v_lshl_add_u32 v{T2}, v{TA}, 1, v{T2}
    s_movk_i32 s{sTMP+3}, 21846
    v_mul_u32_u24 v{DX}, s{sTMP+3}, v0
    v_lshrrev_b32 v{DX}, 16, v{DX}
    v_add_lshl_u32 v{DX}, v{DX}, v0, 2
    s_mul_i32 s{sTMP+4}, s{sNB}, 6
    s_add_u32 s{sTMP+4}, s{sTMP+4}, {N*128}
    v_lshl_add_u32 v{PD}, v0, 1, s{sTMP+4}
    s_lshr_b32 s{sTMP+4}, s3, 2
    s_lshl_b32 s{sTMP+4}, s{sTMP+4}, 6
    s_lshl_b32 s{sTMP+5}, s{sNB}, 7
    s_add_u32 s{sTMP+4}, s{sTMP+4}, s{sTMP+5}
    v_lshlrev_b32 v{PD+1}, 7, v{T1}
    v_add3_u32 v{PD+1}, v{PD+1}, v{TA}, s{sTMP+4}
    v_cmp_gt_u32 {sr(sF0)}, s{sNN}, v{T1}
    s_mul_i32 s{sTMP+5}, s{sNN}, 3
    v_cmp_gt_u32 {sr(sF0+2)}, s{sTMP+5}, v0
    s_mov_b32 s{sTMP+2}, {f32(-LN2)}
    s_waitcnt vmcnt(0)
    {mfma16(U, X[0], EW, None)}
    {mfma16(U+4, X[0]+16, EW, None)}
    {mfma16(U, X[0]+4, EW+4, U)}
    {mfma16(U+4, X[0]+20, EW+4, U+4)}
    s_mov_b32 s{sTMP+3}, 0xffff0000
    s_cmp_lt_u32 s3, 4
    s_cbranch_scc1 K2_HLO
    v_mov_b32 v{EW}, v{EW+4}
    v_mov_b32 v{EW+1}, v{EW+5}
    v_mov_b32 v{EW+2}, v{EW+6}
    v_mov_b32 v{EW+3}, v{EW+7}
    K2_HLO:
    """)
    for r in range(4):
        a(f"v_lshlrev_b32 v{HR+2*r}, 16, v{EW+r}")
        a(f"v_and_b32 v{HR+2*r+1}, s{sTMP+3}, v{EW+r}")
    a("s_waitcnt lgkmcnt(0)\ns_barrier")
    stamp(a, 2, 8)
    for s in range(2):
        a(f"ds_read_b128 {vr(MF+8*s,4)}, v{T2} offset:{ACCM + 128*s}")
        a(f"ds_read_b128 {vr(MF+8*s+4,4)}, v{T2} offset:{ACCM + 128*s + 16}")
    a(f"""
    ds_read_b32 v{DX+1}, v{DX} offset:{POSD}
    ds_read_b32 v{DX+2}, v{DX} offset:{ACCP}
    """)
    for s in range(2):
        a(f"s_waitcnt lgkmcnt({4 - 2*s})")
        for r in range(8):
            a(f"v_mul_f32 v{MF+8*s+r}, s{sTMP+2}, v{MF+8*s+r}")
        for r in range(4):
            a(f"v_cvt_pk_bf16_f32 v{MB_+4*s+r}, v{MF+8*s+2*r}, v{MF+8*s+2*r+1}")
        a("s_nop 1")
        a(mfma16(U, X[0]+8+4*s, MB_+4*s, U))
        a(mfma16(U+4, X[0]+24+4*s, MB_+4*s, U+4))
    a(f"""
    s_waitcnt lgkmcnt(0)
    v_add_f32 v{DX+1}, v{DX+1}, v{DX+2}
    v_cvt_pk_bf16_f32 v{DX+1}, v{DX+1}, v{DX+1}
    s_mov_b32 s{sTMP+2}, {f32(-L2E)}
    s_mov_b64 exec, {sr(sF0+2)}
    s_cbranch_execz K2_NOPOS
    buffer_store_short v{DX+1}, v{PD}, {sr(sOUT,4)}, 0 offen
    K2_NOPOS:
    s_mov_b64 exec, -1
    s_nop 1
    """)
    for r in range(8):
        a(f"v_mul_f32 v{EX+r}, s{sTMP+2}, v{U+r}")
    for r in range(8):
        a(f"v_exp_f32 v{EX+r}, v{EX+r}")
    for r in range(8):
        a(f"v_add_f32 v{EX+r}, 1.0, v{EX+r}")
    for r in range(8):
        a(f"v_rcp_f32 v{EX+r}, v{EX+r}")
    for r in range(8):
        a(f"v_fmac_f32 v{HR+r}, v{EX+r}, v{U+r}")
    for r in range(4):
        a(f"v_cvt_pk_bf16_f32 v{EX+r}, v{HR+2*r}, v{HR+2*r+1}")
    a(f"""
    s_mov_b64 exec, {sr(sF0)}
    s_cbranch_execz K2_END
    buffer_store_dwordx4 {vr(EX,4)}, v{PD+1}, {sr(sOUT,4)}, 0 offen
    """)
    if OPT.stamps:
        a("s_waitcnt vmcnt(0)")
    stamp(a, 2, 9); stamp(a, 2, 15, True)
    a("K2_END:\ns_endpgm")

HEADER = """; EGNN layer (gather / edge MLP / scatter) for gfx950, two launches:
;   egnn_bin_kernel : counting sort of edge chunks by destination bucket, per-node tables -> d_ws
; Kernarg: h 0, pos 8, e_attr 16, src 24, dst 32, w_e 40, w_x 48, w_h 56, out 64, debug 72, ws 80
; @launch kernel=egnn_bin_kernel grid=(256,1,1) block=(1024,1,1) lds={l1}
; @launch kernel=gather_scatter__cheap_equivariant_egnn__graph_kernel grid=(256,1,1) block=(512,1,1) lds={l2}
.amdgcn_target "amdgcn-amd-amdhsa--gfx950"
.text
"""
KD = """.amdhsa_kernel {name}
  .amdhsa_next_free_vgpr {nv}
  .amdhsa_next_free_sgpr 96
  .amdhsa_accum_offset {nv}
  .amdhsa_group_segment_fixed_size 0
  .amdhsa_kernarg_size 88
  .amdhsa_user_sgpr_count 2
  .amdhsa_user_sgpr_kernarg_segment_ptr 1
  .amdhsa_system_sgpr_workgroup_id_x 1
.end_amdhsa_kernel
"""

def generate(stamps=0, nt1=0, prio=2, touch=0, early=0, g0=3, g1=5, abl='', twearly=1, npc=450, nopos=0, twprio=1, offt=1, sto=0, str_=0, stt=0):
    OPT.stamps = stamps; OPT.nt1 = nt1; OPT.prio = prio; OPT.touch = touch; OPT.early = early
    OPT.abl = abl; OPT.twearly = twearly; OPT.offt = offt; FLG = ['', ' nt', ' sc1', ' sc0 sc1']; OPT.sto = FLG[sto]; OPT.str_ = FLG[str_]; OPT.stt = FLG[stt]; OPT.nopos = nopos; OPT.twprio = twprio; OPT.npc = [int(c) for c in '%04d' % npc]; OPT.g0 = g0; OPT.g1 = g1
    a1 = Asm(); l1 = gen_k1(a1)
    a2 = Asm(); gen_k2(a2)
    k1n = "egnn_bin_kernel"; k2n = "gather_scatter__cheap_equivariant_egnn__graph_kernel"
    s = HEADER.format(l1=l1, l2=LDS2)
    s += f".globl {k1n}\n.p2align 8\n.type {k1n},@function\n" + a1.text()
    s += f".globl {k2n}\n.p2align 8\n.type {k2n},@function\n" + a2.text()
    s += '.section .rodata,"a"\n.p2align 6\n' + KD.format(name=k1n, nv=128 if stamps else 104)
    s += ".p2align 6\n" + KD.format(name=k2n, nv=NV2 if stamps else 240)
    return s

if __name__ == "__main__":
    out = sys.argv[1]
    kw = {}
    for x in sys.argv[2:]:
        k, v = x.split("=", 1); kw[k] = v if k == 'abl' else int(v)
    open(out, "w").write(generate(**kw))
```

```python
import sys, struct

N = 12500; E = 800000
NPB = 49
CH = 3136
PSTR = 15744
L_OFF = CH * 4
RL_END = L_OFF + CH
OFFT = 256 * PSTR
WF = OFFT + 256 * 1152
ATAB = WF + 18 * 1024
BTAB = ATAB + 12560 * 128
WS_USED = BTAB + 12560 * 128
DBG_WS = WS_USED + 4096
WS_SRD = DBG_WS + (1 << 20)
L2E = 1.4426950408889634
LN2 = 0.6931471805599453

def f32(x):
    return "0x%08x" % struct.unpack("<I", struct.pack("<f", x))[0]

class Asm:
    def __init__(self):
        self.L = []
    def __call__(self, s):
        for ln in s.strip("\n").split("\n"):
            ln = ln.strip()
            if ln:
                self.L.append(ln if ln.endswith(":") else "    " + ln)
    def label(self, s):
        self.L.append(s + ":")
    def text(self):
        return "\n".join(self.L) + "\n"

def vr(a, n):
    return f"v[{a}:{a+n-1}]"
def sr(a, n=2):
    return f"s[{a}:{a+n-1}]"

def srd(a, base, nbytes, add=0):
    o = []
    if add:
        o += [f"s_add_u32 s{a}, s{base}, {add}", f"s_addc_u32 s{a+1}, s{base+1}, 0"]
    else:
        o += [f"s_mov_b32 s{a}, s{base}", f"s_mov_b32 s{a+1}, s{base+1}"]
    o += [f"s_mov_b32 s{a+2}, {nbytes}", f"s_mov_b32 s{a+3}, 0x00020000"]
    return "\n".join(o)

def wave_scan(a, v):
    for ctl in ("row_shr:1", "row_shr:2", "row_shr:4", "row_shr:8"):
        a("s_nop 1")
        a(f"v_add_u32_dpp v{v}, v{v}, v{v} {ctl} row_mask:0xf bank_mask:0xf bound_ctrl:0")
    a("s_nop 1")
    a(f"v_add_u32_dpp v{v}, v{v}, v{v} row_bcast:15 row_mask:0xa bank_mask:0xf")
    a("s_nop 1")
    a(f"v_add_u32_dpp v{v}, v{v}, v{v} row_bcast:31 row_mask:0xc bank_mask:0xf")

def mfma32(d, a_, b_, c):
    cc = "0" if c is None else vr(c, 16)
    return f"v_mfma_f32_32x32x16_bf16 {vr(d,16)}, {vr(a_,4)}, {vr(b_,4)}, {cc}"
def mfma16(d, a_, b_, c):
    cc = "0" if c is None else vr(c, 4)
    return f"v_mfma_f32_16x16x32_bf16 {vr(d,4)}, {vr(a_,4)}, {vr(b_,4)}, {cc}"

class Opt:
    pass
OPT = Opt()

def stamp(a, kern, idx, real=False):
    if not OPT.stamps:
        return
    if OPT.stamps == 5 and not real:
        if (kern, idx) in ((2, 5), (2, 6)):
            stamp(a, kern, idx + 7, True)
        if not (kern == 2 and idx in (0, 5, 6)): return
    if OPT.stamps == 4:
        idx = {(2, 5): 12, (2, 6): 13, (2, 2): 11, (2, 4): 10}.get((kern, idx), idx) if not real else idx
        if idx < 10 or (not real and idx in (10, 11) and (kern, idx) == (2, idx) and not getattr(stamp, 'ok', True)): return
        real = True
    if not real and OPT.stamps == 2 and idx not in (0, 3, 9):
        return
    if not real and OPT.stamps == 3 and idx not in ((0, 3) if kern == 1 else (0, 5, 6, 9)):
        return
    sv = 252 if kern == 2 else 120
    st = 64
    w = 12 if kern == 2 else 20
    a(f"""
    {'s_memrealtime' if real else 's_memtime'} s[{st}:{st+1}]
    s_waitcnt lgkmcnt(0)
    v_mov_b32 v{sv}, s{st}
    v_mov_b32 v{sv+1}, s{st+2}
    s_mov_b64 s[{st}:{st+1}], exec
    s_mov_b64 exec, 1
    buffer_store_dword v{sv}, v{sv+1}, s[{w}:{w+3}], 0 offen offset:{idx*4}
    s_mov_b64 exec, s[{st}:{st+1}]
    """)

def gen_k1(a):
    CNT, PRE, RB = 0, 1024, 2048
    TW = RB + RL_END
    TWS = 8192 + 4096 + 4608
    LDS1 = TW + 4 * TWS
    NT = " nt" if OPT.nt1 else ""
    NE = 768
    a.label("egnn_bin_kernel")
    if OPT.stamps == 4: a("s_memrealtime s[70:71]")
    a(f"""
    s_cmp_ge_u32 s2, 256
    s_cbranch_scc1 K1_END
    s_load_dwordx4 s[36:39], s[0:1], 32
    s_load_dwordx4 s[32:35], s[0:1], 16
    s_load_dwordx2 s[40:41], s[0:1], 56
    s_load_dwordx2 s[42:43], s[0:1], 80
    s_load_dwordx2 s[58:59], s[0:1], 0
    v_lshrrev_b32 v1, 6, v0
    v_and_b32 v6, 63, v0
    v_readfirstlane_b32 s3, v1
    v_lshlrev_b32 v2, 2, v0
    v_mov_b32 v3, 0
    s_mul_i32 s44, s2, {CH}
    s_sub_u32 s45, {E}, s44
    s_lshr_b32 s45, s45, 2
    s_min_u32 s45, s45, {NE}
    s_mul_i32 s49, s2, {PSTR}
    s_lshl_b32 s46, s44, 2
    s_lshl_b32 s47, s44, 1
    v_lshlrev_b32 v4, 4, v0
    v_lshlrev_b32 v5, 3, v0
    v_lshlrev_b32 v7, 4, v6
    s_cmp_ge_u32 s3, 4
    s_cbranch_scc1 K1_NOZERO
    ds_write_b32 v2, v3 offset:{CNT}
    K1_NOZERO:
    v_cmp_gt_u32 vcc, s45, v0
    s_mul_i32 s60, s2, {NPB}
    s_cmp_lt_u32 s2, 255
    s_cselect_b32 s61, 0, 1
    s_or_b32 s61, s61, s3
    s_waitcnt lgkmcnt(0)
    {srd(8, 36, E*4)}
    {srd(20, 42, WS_SRD, add=OPT.wsoff)}
    """)
    if OPT.stamps:
        a(f"s_lshl_b32 s66, s2, 4\ns_add_u32 s66, s66, s3\ns_lshl_b32 s66, s66, 6\ns_add_u32 s66, s66, {DBG_WS}")
    stamp(a, 1, 0); stamp(a, 1, 14, True)
    if OPT.stamps == 4:
        a("v_mov_b32 v120, s70\ns_mov_b64 s[64:65], exec\ns_mov_b64 exec, 1\nbuffer_store_dword v120, v121, s[20:23], 0 offen offset:32\ns_mov_b64 exec, s[64:65]")
    a(f"""
    s_cmp_ge_u32 s3, 12
    s_cbranch_scc1 K1_TW
    s_and_saveexec_b64 s[50:51], vcc
    s_mov_b64 s[52:53], exec
    s_cbranch_execz K1_NOLOAD
    buffer_load_dwordx4 v[8:11], v4, s[8:11], s46 offen{NT}
    s_cmp_lg_u32 s61, 0
    s_cbranch_scc1 K1_NOLOAD
    s_add_u32 s62, s46, {NE*16}
    buffer_load_dword v60, v2, s[8:11], s62 offen{NT}
    K1_NOLOAD:
    s_mov_b64 exec, -1
    {srd(12, 34, E*4)}
    {srd(16, 32, E*2)}
    s_barrier
    s_mov_b64 exec, s[52:53]
    s_cbranch_execz K1_NOCNT
    buffer_load_dwordx4 v[12:15], v4, s[12:15], s46 offen{NT}
    buffer_load_dwordx2 v[16:17], v5, s[16:19], s47 offen{NT}
    s_movk_i32 s48, 21400
    v_mov_b32 v36, 1
    s_cmp_lg_u32 s61, 0
    s_cbranch_scc1 K1_NOX1
    buffer_load_dword v61, v2, s[12:15], s62 offen{NT}
    v_lshlrev_b32 v63, 1, v0
    s_add_u32 s63, s47, {NE*8}
    buffer_load_ushort v62, v63, s[16:19], s63 offen{NT}
    s_waitcnt vmcnt(4)
    v_mul_u32_u24 v64, s48, v60
    v_lshrrev_b32 v64, 20, v64
    v_mul_u32_u24 v65, {NPB}, v64
    v_lshlrev_b32 v66, 2, v64
    ds_add_rtn_u32 v67, v66, v36 offset:{CNT}
    v_sub_u32 v65, v60, v65
    v_lshlrev_b32 v65, 2, v65
    s_branch K1_CNT
    K1_NOX1:
    s_waitcnt vmcnt(2)
    K1_CNT:
    """)
    for j in range(4):
        a(f"""
        v_mul_u32_u24 v{20+j}, s48, v{8+j}
        v_lshrrev_b32 v{20+j}, 20, v{20+j}
        v_mul_u32_u24 v{24+j}, {NPB}, v{20+j}
        v_lshlrev_b32 v{28+j}, 2, v{20+j}
        ds_add_rtn_u32 v{32+j}, v{28+j}, v36 offset:{CNT}
        v_sub_u32 v{24+j}, v{8+j}, v{24+j}
        v_lshlrev_b32 v{24+j}, 2, v{24+j}
        """)
    a(f"""
    K1_NOCNT:
    s_mov_b64 exec, -1
    s_waitcnt lgkmcnt(0)
    s_barrier
    """)
    stamp(a, 1, 1)
    a(f"""
    s_cmp_eq_u64 s[52:53], 0
    s_cbranch_scc1 K1_NOSCAT
    ds_read_b128 v[40:43], v7 offset:{CNT}
    s_waitcnt lgkmcnt(0)
    v_add_u32 v41, v40, v41
    v_add_u32 v42, v41, v42
    v_add_u32 v43, v42, v43
    v_mov_b32 v44, v43
    """)
    wave_scan(a, 44)
    a(f"""
    v_sub_u32 v46, v44, v43
    v_add_u32 v47, v46, v40
    v_add_u32 v48, v46, v41
    v_add_u32 v49, v46, v42
    ds_write_b128 v7, v[46:49] offset:{PRE}
    s_mov_b64 exec, s[52:53]
    s_mov_b32 s55, 0xffff0000
    s_cmp_lg_u32 s61, 0
    s_cbranch_scc1 K1_NOX2
    ds_read_b32 v68, v66 offset:{PRE}
    s_waitcnt vmcnt(0) lgkmcnt(0)
    v_lshl_or_b32 v61, v62, 16, v61
    v_add_u32 v68, v68, v67
    v_lshlrev_b32 v69, 2, v68
    ds_write_b8 v68, v65 offset:{RB + L_OFF}
    ds_write_b32 v69, v61 offset:{RB}
    K1_NOX2:
    """)
    for j in range(4):
        a(f"ds_read_b32 v{40+j}, v{28+j} offset:{PRE}")
    a(f"""
    s_waitcnt vmcnt(0)
    v_lshl_or_b32 v12, v16, 16, v12
    v_and_or_b32 v13, v16, s55, v13
    v_lshl_or_b32 v14, v17, 16, v14
    v_and_or_b32 v15, v17, s55, v15
    """)
    for j in range(4):
        a(f"""
        s_waitcnt lgkmcnt({3-j + (2*j)})
        v_add_u32 v{40+j}, v{40+j}, v{32+j}
        v_lshlrev_b32 v{50+j}, 2, v{40+j}
        ds_write_b8 v{40+j}, v{24+j} offset:{RB + L_OFF}
        ds_write_b32 v{50+j}, v{12+j} offset:{RB}
        """)
    a(f"""
    s_mov_b64 exec, -1
    s_cmp_lg_u32 s3, 1
    s_cbranch_scc1 K1_NOSCAT
    v_lshl_or_b32 v56, v47, 16, v46
    v_lshl_or_b32 v57, v48, 16, v47
    v_lshl_or_b32 v58, v49, 16, v48
    v_lshl_or_b32 v59, v44, 16, v49
    """)
    if OPT.offt:
        a(f"""
        s_lshl_b32 s54, s2, 2
        s_add_u32 s54, s54, {OFFT}
        v_lshlrev_b32 v60, 12, v6
        buffer_store_dword v56, v60, s[20:23], s54 offen{OPT.sto}
        buffer_store_dword v57, v60, s[20:23], s54 offen offset:1024{OPT.sto}
        buffer_store_dword v58, v60, s[20:23], s54 offen offset:2048{OPT.sto}
        buffer_store_dword v59, v60, s[20:23], s54 offen offset:3072{OPT.sto}
        """)
    else:
        a(f"""
        s_mul_i32 s54, s2, 1152
        s_add_u32 s54, s54, {OFFT}
        buffer_store_dwordx4 v[56:59], v7, s[20:23], s54 offen{OPT.sto}
        """)
    a(f"""
    K1_NOSCAT:
    s_waitcnt lgkmcnt(0)
    s_barrier
    """)
    stamp(a, 1, 2)
    a(f"""
    K1_COPY:
    v_cmp_gt_u32 vcc, {RL_END//16}, v0
    s_and_saveexec_b64 s[50:51], vcc
    s_cbranch_execz K1_END
    ds_read_b128 v[8:11], v4 offset:{RB}
    s_waitcnt lgkmcnt(0)
    buffer_store_dwordx4 v[8:11], v4, s[20:23], s49 offen{OPT.str_}
    """)
    if OPT.stamps:
        a("s_waitcnt vmcnt(0)")
    stamp(a, 1, 3); stamp(a, 1, 15, True)
    a("K1_END:\ns_endpgm")
    HF = 16; WFR = 32; DD_ = [64, 80]
    a(f"""
    K1_TW:
    {'s_setprio 3' if OPT.twprio else ''}
    {srd(24, 38, 130*128)}
    {srd(28, 58, N*128)}
    s_and_b32 s63, s3, 1
    s_bfe_u32 s62, s3, 0x10001
    s_and_b32 s61, s3, 3
    s_mul_i32 s57, s61, {TWS}
    s_add_u32 s57, s57, {TW}
    v_lshrrev_b32 v8, 3, v6
    v_lshrrev_b32 v9, 4, v6
    v_and_b32 v10, 7, v6
    v_xor_b32 v9, v9, v10
    v_lshlrev_b32 v9, 4, v9
    v_lshl_add_u32 v9, v8, 7, v9
    v_xor_b32 v10, 64, v9
    s_lshl_b32 s56, s62, 5
    s_add_u32 s56, s56, s60
    s_lshl_b32 s56, s56, 7
    """)
    def tw_loads():
        a("s_add_u32 m0, s57, 8192\ns_lshl_b32 s54, s63, 13")
        for i in range(4):
            a(f"buffer_load_dwordx4 v{9 + (i & 1)}, s[28:31], s56 offen offset:{1024*i}{NT} lds")
        a("s_mov_b32 m0, s57\ns_add_u32 s55, s54, 4096")
        for i in range(4):
            a(f"buffer_load_dwordx4 v7, s[24:27], s54 offen offset:{1024*i} lds")
        a("s_add_u32 m0, s57, 4096\ns_nop 0")
        for i in range(4):
            a(f"buffer_load_dwordx4 v7, s[24:27], s55 offen offset:{1024*i} lds")
    if OPT.twearly: tw_loads()
    a("s_barrier")
    if not OPT.twearly: tw_loads()
    a(f"""
    s_cmp_lg_u32 s61, 2
    s_cbranch_scc1 K1_NOW
    s_cmp_ge_u32 s2, 18
    s_cbranch_scc1 K1_NOW
    s_lshl_b32 s54, s2, 10
    s_add_u32 s54, s54, {WF}
    s_cmp_ge_u32 s2, 16
    s_cbranch_scc1 K1_WEXTRA
    {srd(12, 40, 128*128)}
    s_and_b32 s55, s2, 3
    s_lshl_b32 s55, s55, 12
    s_lshr_b32 s48, s2, 3
    s_lshl_b32 s48, s48, 6
    s_add_u32 s55, s55, s48
    s_lshr_b32 s48, s2, 2
    s_and_b32 s48, s48, 1
    s_lshl_b32 s48, s48, 3
    s_add_u32 s55, s55, s48
    v_lshrrev_b32 v51, 4, v6
    v_lshlrev_b32 v51, 10, v51
    v_bfe_u32 v52, v6, 2, 2
    v_lshl_add_u32 v51, v52, 4, v51
    v_and_b32 v52, 3, v6
    v_lshl_add_u32 v51, v52, 1, v51
    """)
    for j in range(8):
        a(f"buffer_load_ushort v{54+j}, v51, s[12:15], s55 offen offset:{128*j}")
    a("s_barrier\ns_waitcnt vmcnt(0)")
    for j in range(4):
        a(f"v_lshl_or_b32 v{64+j}, v{55+2*j}, 16, v{54+2*j}")
    a(f"""
    buffer_store_dwordx4 v[64:67], v7, s[20:23], s54 offen
    s_branch K1_TJOB
    K1_WEXTRA:
    s_and_b32 s55, s2, 1
    s_lshl_b32 s55, s55, 6
    s_add_u32 s55, s55, {128*128}
    v_and_b32 v52, 31, v6
    v_lshlrev_b32 v51, 1, v52
    buffer_load_ushort v54, v51, s[24:27], s55 offen
    buffer_load_ushort v55, v51, s[24:27], s55 offen offset:128
    s_mov_b32 s48, {f32(-L2E)}
    s_barrier
    s_waitcnt vmcnt(0)
    v_lshlrev_b32 v54, 16, v54
    v_lshlrev_b32 v55, 16, v55
    v_mul_f32 v54, s48, v54
    v_mul_f32 v55, s48, v55
    v_cvt_pk_bf16_f32 v56, v54, v54
    v_lshlrev_b32 v56, 16, v56
    v_sub_f32 v57, v54, v56
    v_cvt_pk_bf16_f32 v58, v56, v57
    v_cvt_pk_bf16_f32 v59, 0, v55
    v_cmp_gt_u32 vcc, 32, v6
    s_nop 1
    v_cndmask_b32 v64, v58, 0, vcc
    v_cndmask_b32 v65, v59, 0, vcc
    v_cndmask_b32 v66, 0, v58, vcc
    v_cndmask_b32 v67, 0, v59, vcc
    buffer_store_dwordx4 v[64:67], v7, s[20:23], s54 offen
    s_branch K1_TJOB
    K1_NOW:
    s_barrier
    s_waitcnt vmcnt(0)
    K1_TJOB:
    """)
    stamp(a, 1, 5)
    a(f"""
    v_lshrrev_b32 v8, 5, v6
    v_and_b32 v9, 31, v6
    v_bfe_u32 v12, v6, 2, 2
    v_lshl_add_u32 v12, v8, 3, v12
    v_lshlrev_b32 v12, 7, v12
    v_bfe_u32 v13, v6, 4, 1
    v_lshl_add_u32 v12, v13, 5, v12
    v_and_b32 v13, 3, v6
    v_lshl_add_u32 v12, v13, 3, v12
    v_add_u32 v12, s57, v12
    v_bfe_u32 v10, v6, 1, 3
    v_xor_b32 v10, v10, v8
    s_add_u32 s54, s57, 8192
    v_lshlrev_b32 v11, 7, v9
    v_add_u32 v11, s54, v11
    """)
    for s in range(4):
        a(f"v_xor_b32 v96, {2*s}, v10\nv_lshl_add_u32 v96, v96, 4, v11\nds_read_b128 {vr(HF+4*s,4)}, v96")
        for jj in range(2):
            a(f"ds_read_b64_tr_b16 {vr(WFR+4*s+2*jj,2)}, v12 offset:{(16*s+4*jj)*128}")
    for s in range(4):
        for jj in range(2):
            a(f"ds_read_b64_tr_b16 {vr(WFR+16+4*s+2*jj,2)}, v12 offset:{(16*s+4*jj)*128 + 64}")
    a(f"""
    s_add_u32 s55, s57, 12288
    v_mul_u32_u24 v13, 144, v9
    v_lshl_add_u32 v13, v8, 3, v13
    v_add_u32 v13, s55, v13
    v_lshrrev_b32 v14, 3, v6
    v_mul_u32_u24 v15, 144, v14
    v_and_b32 v96, 7, v6
    v_lshl_add_u32 v15, v96, 4, v15
    v_add_u32 v15, s55, v15
    s_mov_b32 s48, {f32(-L2E)}
    s_mul_i32 s54, s63, {BTAB - ATAB}
    s_add_u32 s54, s54, {ATAB}
    s_add_u32 s54, s54, s56
    """)
    for h in range(2):
        a(f"s_waitcnt lgkmcnt({8 if h == 0 else 0})")
        for s in range(4):
            a(mfma32(DD_[h], WFR+16*h+4*s, HF+4*s, None if s == 0 else DD_[h]))
    a("s_nop 7")
    stamp(a, 1, 6)
    for h in range(2):
        for r in range(16):
            a(f"v_mul_f32 v{DD_[h]+r}, s48, v{DD_[h]+r}")
        for r in range(8):
            a(f"v_cvt_pk_bf16_f32 v{DD_[h]+r}, v{DD_[h]+2*r}, v{DD_[h]+2*r+1}")
        for q in range(4):
            a(f"ds_write_b64 v13, {vr(DD_[h]+2*q,2)} offset:{64*h + 16*q}")
    for i in range(4):
        a(f"ds_read_b128 {vr(WFR+4*i,4)}, v15 offset:{8*144*i}")
    for i in range(3):
        a(f"s_waitcnt lgkmcnt({3-i})\nbuffer_store_dwordx4 {vr(WFR+4*i,4)}, v7, s[20:23], s54 offen offset:{1024*i}{OPT.stt}")
    a(f"""
    s_cmp_lg_u32 s62, 0
    s_cbranch_scc1 K1_TDONE
    s_waitcnt lgkmcnt(0)
    buffer_store_dwordx4 {vr(WFR+12,4)}, v7, s[20:23], s54 offen offset:3072{OPT.stt}
    K1_TDONE:
    """)
    stamp(a, 1, 4)
    a("s_waitcnt lgkmcnt(0)\ns_barrier\ns_branch K1_COPY")
    return LDS1

CAP = 3456
RS = 272
CNT2 = 0; PRE2 = 256; FLAG = 512; LUT = 528; POSD = 672; ACCP = POSD + 800
LISTL = (ACCP + 784 + 15) // 16 * 16
LISTR = LISTL + CAP + 64
AT = LISTR + (CAP + 64) * 4
ACCM = AT + NPB * 128
SB = (ACCM + NPB * RS + 63) // 64 * 64
STG = SB + 8 * 2048
POSB = STG + 8 * 4096
LDS2 = POSB + 75008
assert LDS2 <= 163840, LDS2
assert LISTR % 16 == 0 and AT % 16 == 0 and ACCM % 16 == 0 and STG % 16 == 0

ACC = [2, 18]; D = [34, 50]; M = [66, 74]; X = [82, 98]
ID = 114; WX = [122, 128]; XX = 134; S = 140; T = 148
AS = [159, 160]; LANE = 161; LANE4 = 162; G4 = 163; SROW = 164; DUMMY = 165
R4 = 166; REC = 170; DL4 = 171; REL = 172; TA = 173; PD = 174; DX = 178; DD = 181; DXY = 182
SAD = [184, 185]; A4 = 186; ALUT = 187; ZERO = 188; WXS = [190, 192]; PS = 194
MADDR = 197; POFF = 198; AWT = 199; T1 = 200; T2 = 201; START = [202, 203]; ENDV = [204, 205]
FL = 206
EW = 224
CDMA = 232; AX = 236; TCH = 156
NV2 = 256
sB, sWS, sPOS, sOUT, sH = 8, 12, 16, 20, 24
sNB, sNN, sC128, sPOSB = 28, 29, 30, 31
sFIN = 32; sPP = 33
sEND, sWB, sWBO, sFWX, sFFL = 35, 36, 37, 38, 39
sMA, sMB, sVN, sMR = 40, 42, 44, 46
sNX, sQ, sFIRST, sT, sPN4, sMORE, sROT, sPN = 48, 49, 50, 51, 52, 53, 54, 55
sTMP = 56
sWXD = 68
sPM, sCM, sF0 = 72, 74, 76

def flush_code(a, rezero, tag):
    OLD = FL; NEW = FL + 9
    items = [(T1, 2*q*RS + 128*h, ACC[h]+4*q+3) for q in range(4) for h in range(2)]
    a(f"""
    s_mul_i32 s{sTMP}, s{sWBO}, {RS//4}
    s_lshl_b32 s{sTMP+1}, s{sWBO}, 2
    v_add_u32 v{T1}, s{sTMP}, v{MADDR}
    v_add_u32 v{T2}, s{sTMP+1}, v{POFF}
    """)
    for i, (ad, off, x) in enumerate(items):
        a(f"ds_read_b32 v{OLD+i}, v{ad} offset:{off}")
    a(f"ds_read_b32 v{OLD+8}, v{T2} offset:{ACCP}")
    for q in range(4):
        r0 = ACC[0] + 4*q; r1 = ACC[1] + 4*q
        a(f"v_pk_mul_f32 {vr(r0,2)}, {vr(r0,2)}, {vr(WXS[0],2)} op_sel_hi:[1,0]")
        a(f"v_mul_f32 v{r0+2}, v{r0+2}, v{WXS[0]}")
        a(f"v_pk_fma_f32 {vr(r0,2)}, {vr(r1,2)}, {vr(WXS[1],2)}, {vr(r0,2)} op_sel_hi:[1,0,1]")
        a(f"v_fmac_f32 v{r0+2}, v{r1+2}, v{WXS[1]}")
    a("s_waitcnt lgkmcnt(0)")
    for i, (ad, off, x) in enumerate(items):
        a(f"v_add_f32 v{NEW+i}, v{OLD+i}, v{x}")
    for i, (ad, off, x) in enumerate(items):
        a(f"ds_cmpst_rtn_b32 v{NEW+i}, v{ad}, v{OLD+i}, v{NEW+i} offset:{off}")
    for q in range(2):
        for c in range(3):
            a(f"v_permlane16_swap_b32 v{ACC[0]+4*q+c}, v{ACC[0]+4*(q+2)+c}")
    a("s_nop 1")
    for q in range(2):
        for c in range(3):
            a(f"v_add_f32 v{ACC[0]+4*q+c}, v{ACC[0]+4*q+c}, v{ACC[0]+4*(q+2)+c}")
    c0 = ACC[0]
    a("s_nop 1")
    for c in range(3):
        a(f"v_add_f32_dpp v{c0+c}, v{c0+c}, v{c0+c} row_ror:8 row_mask:0xf bank_mask:0x3")
    for c in range(3):
        a(f"v_add_f32_dpp v{c0+c}, v{c0+4+c}, v{c0+4+c} row_ror:8 row_mask:0xf bank_mask:0xc")
    a(f"""
    s_nop 0
    v_add_f32_dpp v{c0}, v{c0}, v{c0} row_half_mirror row_mask:0xf bank_mask:0x5
    v_add_f32_dpp v{c0+2}, v{c0+2}, v{c0+2} row_half_mirror row_mask:0xf bank_mask:0xf
    v_add_f32_dpp v{c0}, v{c0+1}, v{c0+1} row_half_mirror row_mask:0xf bank_mask:0xa
    s_nop 0
    v_add_f32_dpp v{c0+2}, v{c0+2}, v{c0+2} quad_perm:[1,0,3,2] row_mask:0xf bank_mask:0xf
    v_add_f32_dpp v{c0}, v{c0}, v{c0} quad_perm:[1,0,3,2] row_mask:0xf bank_mask:0xf
    s_nop 0
    v_add_f32_dpp v{c0+2}, v{c0+2}, v{c0+2} quad_perm:[2,3,0,1] row_mask:0xf bank_mask:0xf
    v_add_f32_dpp v{c0}, v{c0}, v{c0} quad_perm:[2,3,0,1] row_mask:0xf bank_mask:0xf
    v_cndmask_b32 v{c0}, v{c0}, v{c0+2}, {sr(sCM)}
    v_add_f32 v{NEW+8}, v{OLD+8}, v{c0}
    s_mov_b64 exec, {sr(sPM)}
    ds_cmpst_rtn_b32 v{NEW+8}, v{T2}, v{OLD+8}, v{NEW+8} offset:{ACCP}
    s_mov_b64 exec, -1
    s_waitcnt lgkmcnt(1)
    """)
    for i in range(8):
        a(f"v_cmp_ne_u32 {sr(sF0+2*i)}, v{NEW+i}, v{OLD+i}")
    a(f"""
    s_waitcnt lgkmcnt(0)
    v_cmp_ne_u32 vcc, v{NEW+8}, v{OLD+8}
    s_and_b64 {sr(sF0+16)}, vcc, {sr(sPM)}
    s_or_b64 {sr(sTMP)}, {sr(sF0+16)}, {sr(sF0)}
    """)
    for i in range(1, 8):
        a(f"s_or_b64 {sr(sTMP)}, {sr(sTMP)}, {sr(sF0+2*i)}")
    a(f"s_cbranch_scc0 K2_FOK_{tag}")
    for i, (ad, off, x) in enumerate(items + [(T2, ACCP, c0)]):
        a(f"""
        v_cmp_neq_f32 vcc, 0, v{x}
        s_and_b64 exec, vcc, {sr(sF0+2*i)}
        ds_add_f32 v{ad}, v{x} offset:{off}
        s_mov_b64 exec, -1
        """)
    a("s_waitcnt lgkmcnt(0)")
    a.label(f"K2_FOK_{tag}")
    if rezero:
        for h in range(2):
            for r in range(16):
                a(f"v_mov_b32 v{ACC[h]+r}, 0")

def window_masks(a):
    a(f"""
    v_subrev_u32 v{REL}, s{sWB}, v{DL4}
    v_cmp_gt_u32 vcc, 32, v{REL}
    s_and_b64 {sr(sVN)}, vcc, {sr(sMR)}
    """)

def wx_load(a):
    a(f"""
    s_lshl_b32 s{sTMP}, s{sWB}, 5
    v_add_u32 v{T1}, s{sTMP}, v{AWT}
    ds_read_b64_tr_b16 {vr(WX[0]+2,2)}, v{T1}
    ds_read_b64_tr_b16 {vr(WX[1]+2,2)}, v{T1} offset:64
    """)

def epi_loads(a):
    a(f"""
    s_lshr_b32 s{sTMP}, s3, 2
    s_lshl_b32 s{sTMP}, s{sTMP}, 13
    s_add_u32 s{sTMP}, s{sTMP}, {WF}
    s_add_u32 s{sTMP+1}, s{sTMP}, 4096
    v_lshlrev_b32 v{TA}, 4, v{LANE}
    s_and_b32 s{sTMP+2}, s3, 3
    s_lshl_b32 s{sTMP+2}, s{sTMP+2}, 4
    s_add_u32 s{sTMP+2}, s{sTMP+2}, s{sNB}
    s_lshl_b32 s{sTMP+2}, s{sTMP+2}, 7
    v_and_b32 v{REL}, 15, v{LANE}
    v_lshlrev_b32 v{REL}, 7, v{REL}
    v_and_or_b32 v{REL}, v{LANE}, 48, v{REL}
    buffer_load_dwordx4 {vr(EW,4)}, v{REL}, {sr(sH,4)}, s{sTMP+2} offen
    buffer_load_dwordx4 {vr(EW+4,4)}, v{REL}, {sr(sH,4)}, s{sTMP+2} offen offset:64
    """)
    for i in range(8):
        a(f"buffer_load_dwordx4 {vr(X[0]+4*i,4)}, v{TA}, {sr(sWS,4)}, s{sTMP + (i >> 2)} offen offset:{1024*(i & 3)}")

def mads(src):
    return [f"v_mad_u32_u16 v{R4+i}, v{src+i}, s{sC128}, v{CDMA+i}" for i in range(4)]
def dma_ops():
    return [f"buffer_load_dwordx4 v{R4+i}, {sr(sB,4)}, 0 offen offset:{1024*i} lds" for i in range(4)]

class Body:
    def __init__(self):
        self.it = []
    def op(self, s): self.it.append(("op", s))
    def ds(self, s, tag=None): self.it.append(("ds", s, tag))
    def wait(self, tag): self.it.append(("wait", tag))
    def emit(self, a):
        if OPT.abl:
            import re
            rx = re.compile(OPT.abl)
            drop = lambda x: bool(rx.search(x[1] if x[0] != "wait" else "WAIT"))
            tags = {x[2] for x in self.it if x[0] == "ds" and drop(x)}
            self.it = [x for x in self.it if not drop(x) and not (x[0] == "wait" and x[1] in tags)]
        n = len(self.it)
        for i, x in enumerate(self.it):
            if x[0] == "wait":
                cnt = 0; j = i - 1; found = False
                for _ in range(n):
                    y = self.it[j % n]
                    if y[0] == "ds":
                        if y[2] == x[1]:
                            found = True; break
                        cnt += 1
                    j -= 1
                assert found, x
                a(f"s_waitcnt lgkmcnt({min(cnt,15)})")
            else:
                a(x[1])

def unit_groups(b, u, pre, post):
    h = u % 2; ph = 1 - h
    ntile = (u + 1) // 2 % 2
    xx = XX if ntile == 0 else XX + 2
    wx = WX[ph] + 2 if ntile == 0 else WX[ph]
    mf = {0: mfma32(ACC[ph], S, M[ph], ACC[ph]),
          1: mfma32(D[ph], xx, wx, None),
          2: mfma32(ACC[ph], S + 4, M[ph] + 4, ACC[ph]),
          OPT.g0: mfma32(D[ph], X[ntile] + 8*ph, ID, D[ph]),
          OPT.g1: mfma32(D[ph], X[ntile] + 8*ph + 4, ID + 4, D[ph])}
    def put(lst):
        for x in lst:
            if isinstance(x, str): b.op(x)
            elif x[0] == "ds": b.ds(x[1], x[2] if len(x) > 2 else None)
            elif x[0] == "wait": b.wait(x[1])
    for g in range(8):
        put(pre.get(g, []))
        if g in mf: b.op(mf[g])
        p = g - 2; hh = h
        if p < 0: p += 8; hh = ph
        t = T + 2 * (p % 4)
        b.op(f"v_cvt_pk_bf16_f32 v{M[hh]+p}, v{t}, v{t+1}")
        t = T + 2 * (g % 4); y = D[h] + 2 * g
        b.op(f"v_exp_f32 v{t}, v{y}")
        b.op(f"v_exp_f32 v{t+1}, v{y+1}")
        p = g - 1; hh = h
        if p < 0: p += 8; hh = ph
        t2 = T + 2 * (p % 4); y2 = D[hh] + 2 * p
        b.op(f"v_rcp_f32 v{t2}, v{t2}")
        b.op(f"v_rcp_f32 v{t2+1}, v{t2+1}")
        b.op(f"v_pk_add_f32 {vr(t,2)}, {vr(t,2)}, 1.0 op_sel_hi:[1,0]")
        b.op(f"v_pk_mul_f32 {vr(t2,2)}, {vr(t2,2)}, {vr(y2,2)}")
        put(post.get(g, []))

def s_build(ad):
    o = [("ds", f"ds_write_b64 v{ad}, {vr(DXY,2)}")]
    for k in range(4):
        o.append(("ds", f"ds_read_b64_tr_b16 {vr(S+2*k,2)}, v{AS[k & 1]} offset:{1024*(k>>1)}", "S" if k == 3 else None))
    o += [("ds", f"ds_write_b64 v{ad}, {vr(ZERO,2)}")]
    return o
def x_read(t):
    o = ["s_waitcnt vmcnt(0)"]
    for k in range(4):
        o.append(("ds", f"ds_read_b128 {vr(X[t]+4*k,4)}, v{AX+k}", "X" if k == 3 else None))
    return o
def geo_addr():
    return [f"v_mad_u32_u16 v{TA}, v{REC}, 6, s{sPOSB}",
            ("ds", f"ds_read_u16_d16_hi v{PS}, v{TA}"),
            ("ds", f"ds_read_u16_d16_hi v{PS+1}, v{TA} offset:2"),
            ("ds", f"ds_read_u16_d16_hi v{PS+2}, v{TA} offset:4"),
            f"v_lshlrev_b32 v{TA}, 2, v{DL4}",
            ("ds", f"ds_read_b128 {vr(PD,4)}, v{TA} offset:{POSD}", "P"),
            f"v_min_u32 v{REL}, 32, v{REL}",
            f"v_lshlrev_b32 v{ALUT}, 1, v{REL}"]
def geo_lut():
    return [("ds", f"ds_read_b64 {vr(XX,2)}, v{ALUT} offset:{LUT}"),
            ("ds", f"ds_read_b64 {vr(XX+4,2)}, v{ALUT} offset:{LUT+72}", "L"),
            f"v_mov_b32 v{XX+3}, v{REC}"]
def geo_diff():
    return [f"v_sub_f32 v{DX+c}, v{PD+c}, v{PS+c}" for c in range(3)]
def geo_cvt():
    return [f"v_cvt_pk_bf16_f32 v{DXY}, v{DX}, v{DX+1}",
            f"v_cvt_pk_bf16_f32 v{DXY+1}, v{DX+2}, 1.0",
            f"v_xor_b32 v{TA}, v{ALUT}, v{SROW}",
            f"v_cndmask_b32 v{SAD[0]}, v{DUMMY}, v{TA}, {sr(sMA)}",
            f"v_cndmask_b32 v{SAD[1]}, v{DUMMY}, v{TA}, {sr(sMB)}"]
def geo_d2():
    return [f"v_dot2_f32_bf16 v{DD}, v{DXY+1}, v{DXY+1}, -1.0",
            f"v_dot2_f32_bf16 v{DD}, v{DXY}, v{DXY}, v{DD}"]
def geo_fin():
    return [f"v_cvt_pk_bf16_f32 v{XX+2}, v{DD}, v{DD}",
            f"v_permlane32_swap_b32 v{XX}, v{XX+4}",
            f"v_permlane32_swap_b32 v{XX+1}, v{XX+5}"]
def list_reads():
    return [f"v_add_u32 v{A4}, s{sPN4}, v{G4}",
            ("ds", f"ds_read_b128 {vr(R4,4)}, v{A4} offset:{LISTR}", "R"),
            f"v_add_u32 v{TA}, s{sPN4}, v{LANE4}",
            ("ds", f"ds_read_b32 v{REC}, v{TA} offset:{LISTR}"),
            f"v_add_u32 v{TA}, s{sPN}, v{LANE}",
            ("ds", f"ds_read_u8 v{DL4}, v{TA} offset:{LISTL}", "E")]
def advance():
    return [f"s_bcnt1_i32_b64 s{sNX}, {sr(sVN)}",
            f"s_add_u32 s{sPN}, s{sPN}, s{sNX}",
            f"s_lshl_b32 s{sPN4}, s{sPN}, 2",
            f"s_mov_b32 s{sMA}, s{sVN}",
            f"s_mov_b32 s{sMB+1}, s{sVN+1}"]
def plain(a, lst):
    for x in lst:
        a(x if isinstance(x, str) else x[1])

def gen_main_loop(a):
    b = Body()
    unit_groups(b, 0,
        pre={3: s_build(SAD[0]),
             4: list_reads(),
             5: [f"s_cmp_lg_u32 s{sFFL}, 0", "s_cbranch_scc1 K2_FLUSH", "K2_FLUSH_RET:"],
             6: x_read(1),
             7: [("wait", "R")] + mads(R4)},
        post={})
    unit_groups(b, 1,
        pre={0: [("wait", "E"),
                 f"s_sub_u32 s{sTMP}, s{sEND}, s{sPN}",
                 f"v_subrev_u32 v{REL}, s{sWB}, v{DL4}",
                 f"v_cmp_gt_i32 {sr(sMR)}, s{sTMP}, v{LANE}",
                 f"v_cmp_gt_u32 vcc, 32, v{REL}"],
             1: [f"s_and_b64 {sr(sVN)}, vcc, {sr(sMR)}",
                 f"s_cmp_lg_u64 {sr(sVN)}, {sr(sMR)}",
                 "s_cbranch_scc1 K2_REBASE", "K2_REBASE_RET:"] + advance() + [("wait", "X")] + dma_ops(),
             2: geo_addr()},
        post={})
    unit_groups(b, 2,
        pre={0: ([f"s_cmp_lg_u32 s{sNX}, 0", "s_cbranch_scc1 K2_PRIO2_OK", "s_setprio 0", "K2_PRIO2_OK:"] if OPT.prio else []),
             2: [f"s_cmp_lg_u32 s{sFWX}, 0", "s_cbranch_scc1 K2_WXL", "K2_WXL_RET:"] + geo_lut(),
             3: s_build(SAD[1]),
             4: [("ds", f"ds_read_b128 {vr(R4,4)}, v{A4} offset:{LISTR+128}", "R")] + geo_cvt(),
             6: x_read(0) + [("wait", "L")] + geo_fin(),
             7: [("wait", "R")] + mads(R4)},
        post={2: [("wait", "P")] + geo_diff(),
              4: geo_d2()})
    unit_groups(b, 3,
        pre={1: [("wait", "X")] + dma_ops()},
        post={})
    a(".p2align 6")
    a.label("K2_LOOP")
    if OPT.prio:
        a(f"""
        s_sub_u32 s{sTMP}, s{sEND}, s{sPN}
        s_cmp_gt_u32 s{sTMP}, {64*OPT.prio}
        s_cbranch_scc1 K2_PRIO_OK
        s_setprio 2
        s_cmp_gt_u32 s{sTMP}, 0
        s_cbranch_scc1 K2_PRIO_OK
        s_setprio 1
        K2_PRIO_OK:
        """)
    b.emit(a)
    if OPT.abl:
        a("s_sub_u32 s67, s67, 1\ns_cmp_lg_u32 s67, 0\ns_cbranch_scc1 K2_LOOP")
    else:
        a(f"s_cmp_lg_u32 s{sNX}, 0\ns_cbranch_scc1 K2_LOOP")

def b_touch(a, lo, n, dst):
    a(f"""
    s_mul_i32 s{sTMP+1}, s{sROT}, {391*128}
    s_mul_i32 s{sTMP+2}, s3, {49*128}
    s_add_u32 s{sTMP+1}, s{sTMP+1}, s{sTMP+2}
    s_add_u32 s{sTMP+1}, s{sTMP+1}, {3072 + 128*lo}
    v_lshlrev_b32 v{dst}, 7, v{LANE}
    s_mov_b64 exec, {hex((1 << n) - 1) if n <= 32 else '-1'}
    """)
    if n > 32:
        a(f"s_mov_b32 exec_hi, {hex((1 << (n - 32)) - 1)}")
    a(f"buffer_load_dword v{dst}, v{dst}, {sr(sB,4)}, s{sTMP+1} offen\ns_mov_b64 exec, -1")

def gen_k2(a):
    a.label("gather_scatter__cheap_equivariant_egnn__graph_kernel")
    if OPT.stamps == 4: a("s_memrealtime s[94:95]")
    tmp = D[0]
    OFFV = tmp + 70; L16 = tmp + 78
    a(f"""
    s_cmp_ge_u32 s2, 256
    s_cbranch_scc1 K2_END
    s_load_dwordx2 s[60:61], s[0:1], 80
    s_load_dwordx4 s[4:7], s[0:1], 0
    s_load_dwordx2 s[56:57], s[0:1], 48
    s_load_dwordx2 s[58:59], s[0:1], 64
    s_lshr_b32 s{sROT}, s2, 3
    s_and_b32 s2, s2, 7
    s_lshl_b32 s2, s2, 5
    s_add_u32 s2, s2, s{sROT}
    v_lshrrev_b32 v1, 6, v0
    v_and_b32 v{LANE}, 63, v0
    v_readfirstlane_b32 s3, v1
    v_lshrrev_b32 v{tmp}, 2, v0
    s_movk_i32 s62, {PSTR}
    {f"v_and_b32 v{tmp+1}, 0x1fc, v0" if OPT.offt else f"v_mul_u32_u24 v{tmp+1}, 1152, v{tmp}"}
    v_mul_u32_u24 v1, s62, v{tmp}
    s_lshl_b32 s63, s2, {10 if OPT.offt else 2}
    s_add_u32 s63, s63, {OFFT}
    s_add_u32 s{sROT-1}, s63, {512 if OPT.offt else 128*1152}
    s_mul_i32 s{sNB}, s2, {NPB}
    s_sub_u32 s{sNN}, {N}, s{sNB}
    s_min_u32 s{sNN}, s{sNN}, {NPB}
    v_lshlrev_b32 v{LANE4}, 2, v{LANE}
    v_lshlrev_b32 v{L16}, 4, v{LANE}
    s_waitcnt lgkmcnt(0)
    {srd(sWS, 60, WS_SRD, add=OPT.wsoff)}
    buffer_load_dword v{OFFV}, v{tmp+1}, {sr(sWS,4)}, s63 offen
    buffer_load_dword v{OFFV+1}, v{tmp+1}, {sr(sWS,4)}, s{sROT-1} offen
    {srd(sB, 60, N*128 + 3072, add=BTAB - 3072 + OPT.wsoff)}
    {srd(sPOS, 6, N*6)}
    {srd(sOUT, 58, N*134)}
    {srd(sH, 4, N*128)}
    {srd(sWXD, 56, 128)}
    {srd(sF0, 60, N*128, add=ATAB + OPT.wsoff)}
    """)
    if OPT.stamps:
        a(f"s_lshl_b32 s66, s2, 4\ns_add_u32 s66, s66, s3\ns_lshl_b32 s66, s66, 6\ns_add_u32 s66, s66, {DBG_WS + 256*16*64}")
    stamp(a, 2, 0); stamp(a, 2, 14, True)
    if OPT.stamps == 4:
        a("v_mov_b32 v252, s94\ns_mov_b64 s[64:65], exec\ns_mov_b64 exec, 1\nbuffer_store_dword v252, v253, s[12:15], 0 offen offset:32\ns_mov_b64 exec, s[64:65]")
    nvm = 2 if OPT.stamps else 0
    a(f"s_mov_b32 s{sTMP}, {WF + 16*1024}")
    for h in range(2):
        a(f"buffer_load_dwordx2 {vr(WX[h],2)}, v{L16}, {sr(sWS,4)}, s{sTMP} offen offset:{1024*h}")
        a(f"buffer_load_dwordx2 {vr(WX[h]+4,2)}, v{L16}, {sr(sWS,4)}, s{sTMP} offen offset:{1024*h+8}")
    nvm += 4
    a(f"""
    s_cmp_ge_u32 s3, 7
    s_cbranch_scc1 K2_NOAT
    s_lshl_b32 s{sTMP}, s3, 10
    s_add_u32 m0, s{sTMP}, {AT}
    s_lshl_b32 s{sTMP+1}, s{sNB}, 7
    s_add_u32 s{sTMP+1}, s{sTMP+1}, s{sTMP}
    s_cmp_eq_u32 s3, 6
    s_cselect_b64 exec, 0xff, -1
    buffer_load_dwordx4 v{L16}, {sr(sF0,4)}, s{sTMP+1} offen lds
    s_mov_b64 exec, -1
    K2_NOAT:
    """)
    if OPT.early:
        a(f"""
        s_cmp_lg_u32 s3, 7
        s_cbranch_scc1 K2_NOPT
        s_mul_i32 s{sTMP+1}, s{sROT}, {19*128}
        v_lshlrev_b32 v{TCH}, 7, v{LANE}
        s_mov_b64 exec, 0x7ffff
        buffer_load_dword v{TCH}, v{TCH}, {sr(sPOS,4)}, s{sTMP+1} offen
        s_mov_b64 exec, -1
        K2_NOPT:
        """)
    z = tmp + 8
    a(f"""
    v_mov_b32 v{z}, 0
    v_mov_b32 v{z+1}, 0
    v_mov_b32 v{z+2}, 0
    v_mov_b32 v{z+3}, 0
    v_mov_b32 v{ZERO}, 0
    v_mov_b32 v{ZERO+1}, 0
    v_lshlrev_b32 v{z+4}, 4, v0
    """)
    nz = (STG - ACCM + 8191) // 8192
    for i in range(nz):
        lim = (STG - ACCM - 8192*i) // 16
        if lim < 512:
            a(f"v_cmp_gt_u32 vcc, {lim}, v0\ns_and_saveexec_b64 {sr(sTMP)}, vcc")
        a(f"ds_write_b128 v{z+4}, {vr(z,4)} offset:{ACCM + 8192*i}")
        if lim < 512:
            a("s_mov_b64 exec, -1")
    a(f"""
    v_cmp_gt_u32 vcc, {LISTL//16}, v0
    s_and_saveexec_b64 {sr(sTMP)}, vcc
    ds_write_b128 v{z+4}, {vr(z,4)}
    s_mov_b64 exec, -1
    """)
    HH, A31, R2, C2, GP, U1, U2 = [tmp + 14 + i for i in range(7)]
    a(f"""
    s_movk_i32 s{sC128}, 128
    s_mov_b32 s{sPOSB}, {POSB}
    s_mov_b32 s{sQ}, 32
    s_mov_b32 s{sFIRST}, 1
    s_mov_b32 s{sFIN}, 1
    s_mov_b32 s{sPM}, 0x13131313
    s_mov_b32 s{sPM+1}, 0x13131313
    s_mov_b32 s{sCM}, 0x02020202
    s_mov_b32 s{sCM+1}, 0x02020202
    v_lshrrev_b32 v{HH}, 5, v{LANE}
    v_and_b32 v{A31}, 31, v{LANE}
    v_bfe_u32 v{R2}, v{LANE}, 2, 2
    v_and_b32 v{C2}, 3, v{LANE}
    v_bfe_u32 v{GP}, v{LANE}, 4, 1
    v_lshrrev_b32 v{U1}, 3, v{LANE}
    v_lshlrev_b32 v{G4}, 4, v{U1}
    v_and_b32 v{U1}, 7, v{LANE}
    v_lshlrev_b32 v{U2}, 2, v{HH}
    v_xor_b32 v{U1}, v{U1}, v{U2}
    """)
    for i in range(4):
        a(f"""
        v_xor_b32 v{CDMA+i}, {i}, v{U1}
        v_lshlrev_b32 v{CDMA+i}, 4, v{CDMA+i}
        v_add_u32 v{CDMA+i}, {3072 - 1024*i}, v{CDMA+i}
        """)
    a(f"""
    s_lshl_b32 s{sTMP}, s3, 12
    s_add_u32 s{sTMP}, s{sTMP}, {STG}
    v_bfe_u32 v{U1}, v{LANE}, 2, 3
    v_lshl_add_u32 v{U1}, v{C2}, 3, v{U1}
    v_lshlrev_b32 v{U1}, 7, v{U1}
    v_add_u32 v{U1}, s{sTMP}, v{U1}
    v_lshl_or_b32 v{U2}, v{GP}, 2, v{C2}
    v_xor_b32 v{U2}, v{U2}, v{HH}
    """)
    for k in range(4):
        a(f"v_xor_b32 v{AX+k}, {2*k}, v{U2}\nv_lshl_add_u32 v{AX+k}, v{AX+k}, 4, v{U1}")
    a(f"""
    s_lshl_b32 s{sTMP}, s3, 11
    s_add_u32 s{sTMP}, s{sTMP}, {SB}
    v_lshlrev_b32 v{SROW}, 6, v{A31}
    v_add_u32 v{SROW}, s{sTMP}, v{SROW}
    v_bfe_u32 v{U1}, v{LANE}, 1, 3
    v_lshl_add_u32 v{SROW}, v{U1}, 3, v{SROW}
    v_lshl_add_u32 v{R2}, v{HH}, 2, v{R2}
    v_lshl_add_u32 v{C2}, v{GP}, 2, v{C2}
    v_lshrrev_b32 v{U1}, 1, v{R2}
    v_xor_b32 v{U1}, v{U1}, v{C2}
    v_lshlrev_b32 v{AS[0]}, 6, v{R2}
    v_add_u32 v{AS[0]}, s{sTMP}, v{AS[0]}
    v_xor_b32 v{U2}, 4, v{U1}
    v_lshl_add_u32 v{AS[1]}, v{U2}, 3, v{AS[0]}
    v_add_u32 v{AS[1]}, 512, v{AS[1]}
    v_lshl_add_u32 v{AS[0]}, v{U1}, 3, v{AS[0]}
    v_lshlrev_b32 v{AWT}, 7, v{R2}
    v_lshl_add_u32 v{AWT}, v{C2}, 3, v{AWT}
    v_add_u32 v{AWT}, {AT}, v{AWT}
    v_mul_u32_u24 v{MADDR}, {RS}, v{HH}
    v_lshl_add_u32 v{MADDR}, v{A31}, 2, v{MADDR}
    v_add_u32 v{MADDR}, {ACCM}, v{MADDR}
    v_bfe_u32 v{U1}, v{LANE}, 3, 2
    v_lshl_add_u32 v{U1}, v{U1}, 1, v{HH}
    v_lshlrev_b32 v{POFF}, 4, v{U1}
    v_and_b32 v{U1}, 4, v{LANE}
    v_add_u32 v{POFF}, v{POFF}, v{U1}
    v_and_b32 v{U1}, 1, v{LANE}
    v_lshl_add_u32 v{POFF}, v{U1}, 3, v{POFF}
    v_lshlrev_b32 v{DUMMY}, 3, v{LANE}
    v_mov_b32 v{PS}, 0
    v_mov_b32 v{PS+1}, 0
    v_mov_b32 v{PS+2}, 0
    """)
    a(f"""
    s_waitcnt vmcnt({nvm})
    v_and_b32 v{U1}, 3, v0
    v_lshlrev_b32 v{U1}, 2, v{U1}
    v_and_b32 v{START[0]}, 0xffff, v{OFFV}
    v_and_b32 v{START[1]}, 0xffff, v{OFFV+1}
    v_lshrrev_b32 v{ENDV[0]}, 16, v{OFFV}
    v_lshrrev_b32 v{ENDV[1]}, 16, v{OFFV+1}
    v_add_u32 v{START[0]}, v{START[0]}, v{U1}
    v_add_u32 v{START[1]}, v{START[1]}, v{U1}
    """)
    stamp(a, 2, 1)
    RECS = tmp; LW = tmp + 16; DLS = tmp + 24; RK = tmp + 40; BS = tmp + 56
    REM = [tmp + 72, tmp + 73]; AR = tmp + 74; AL = tmp + 75; ONE = tmp + 76; PV = tmp + 77
    AR2 = [AR, FL]; AL2 = [AL, FL + 1]
    a.label("K2_ROUND")
    a(f"""
    v_and_b32 v{PV}, 3, v0
    v_lshlrev_b32 v{PV}, 2, v{PV}
    v_sub_u32 v{PV}, s{sQ}, v{PV}
    s_mov_b32 s{sTMP}, {128*PSTR}
    s_mov_b32 s{sTMP+1}, {L_OFF}
    s_mov_b32 s{sTMP+2}, {128*PSTR + L_OFF}
    """)
    for x in range(2):
        a(f"""
        v_lshl_add_u32 v{AR2[x]}, v{START[x]}, 2, v1
        v_add_u32 v{AL2[x]}, v{START[x]}, v1
        v_and_b32 v{AL2[x]}, -4, v{AL2[x]}
        buffer_load_dwordx4 {vr(RECS+8*x,4)}, v{AR2[x]}, {sr(sWS,4)}, {'s%d' % sTMP if x else 0} offen
        buffer_load_dwordx2 {vr(LW+4*x,2)}, v{AL2[x]}, {sr(sWS,4)}, s{sTMP+1+x} offen
        """)
    for x in range(2):
        a(f"""
        v_sub_u32 v{FL+2}, v{ENDV[x]}, v{START[x]}
        v_min_i32 v{FL+3+x}, v{FL+2}, v{PV}
        v_cmpx_lt_i32 vcc, 16, v{FL+3+x}
        s_cbranch_execz K2_LD_{x}
        buffer_load_dwordx4 {vr(RECS+8*x+4,4)}, v{AR2[x]}, {sr(sWS,4)}, {'s%d' % sTMP if x else 0} offen offset:64
        buffer_load_dwordx2 {vr(LW+4*x+2,2)}, v{AL2[x]}, {sr(sWS,4)}, s{sTMP+1+x} offen offset:16
        K2_LD_{x}:
        s_mov_b64 exec, -1
        """)
    REM = [FL + 3, FL + 4]
    a(f"""
    v_mov_b32 v{ONE}, 1
    s_cmp_eq_u32 s{sFIRST}, 0
    s_cbranch_scc1 K2_NOTFIRST
    v_and_b32 v{T1}, 31, v{LANE}
    v_lshlrev_b32 v{T1}, 1, v{T1}
    buffer_load_ushort v{WXS[0]}, v{T1}, {sr(sWXD,4)}, 0 offen
    buffer_load_ushort v{WXS[1]}, v{T1}, {sr(sWXD,4)}, 0 offen offset:64
    v_mov_b32 v{ACC[0]}, 0
    v_mov_b32 v{ACC[0]+1}, 0
    v_mov_b32 v{ACC[0]+2}, 0
    v_mov_b32 v{ACC[0]+3}, 0
    s_cmp_lg_u32 s3, 4
    s_cbranch_scc1 K2_NOPD1
    v_add_u32 v{T1}, s{sNB}, v{LANE}
    v_mul_u32_u24 v{T1}, 6, v{T1}
    buffer_load_short_d16_hi v{ACC[0]}, v{T1}, {sr(sPOS,4)}, 0 offen
    buffer_load_short_d16_hi v{ACC[0]+1}, v{T1}, {sr(sPOS,4)}, 0 offen offset:2
    buffer_load_short_d16_hi v{ACC[0]+2}, v{T1}, {sr(sPOS,4)}, 0 offen offset:4
    K2_NOPD1:
    """)
    a(f"""
    v_and_b32 v{T1}, 31, v{LANE}
    v_and_b32 v{T2}, 1, v{T1}
    v_lshlrev_b32 v{T2}, 4, v{T2}
    v_mov_b32 v{TA}, 0x3f80
    v_lshlrev_b32 v{T2}, v{T2}, v{TA}
    v_lshrrev_b32 v{T1}, 1, v{T1}
    v_lshrrev_b32 v{TA}, 5, v{LANE}
    v_lshlrev_b32 v{TA}, 2, v{TA}
    v_sub_u32 v{T1}, v{T1}, v{TA}
    """)
    for t in range(2):
        for r in range(4):
            a(f"v_cmp_eq_u32 {sr(sF0 + 4 + 2*r)}, {8*t + r}, v{T1}")
        for r in range(4):
            a(f"v_cndmask_b32 v{ID+4*t+r}, 0, v{T2}, {sr(sF0 + 4 + 2*r)}")
    a(f"""
    s_waitcnt lgkmcnt(0)
    s_barrier
    s_cmp_lg_u32 s3, 5
    s_cbranch_scc1 K2_NOLUT
    v_and_b32 v{T1}, 1, v{LANE}
    v_lshlrev_b32 v{T1}, 4, v{T1}
    v_mov_b32 v{T2}, 0x3f80
    v_lshlrev_b32 v{T2}, v{T1}, v{T2}
    v_lshrrev_b32 v{T1}, 2, v{LANE}
    v_mul_u32_u24 v{T1}, 72, v{T1}
    v_lshl_add_u32 v{T1}, v{LANE}, 3, v{T1}
    v_and_b32 v{TA}, 2, v{LANE}
    v_lshl_add_u32 v{T1}, v{TA}, 1, v{T1}
    s_mov_b64 exec, 0xff
    ds_write_b32 v{T1}, v{T2} offset:{LUT}
    s_mov_b64 exec, -1
    K2_NOLUT:
    """)
    a(f"""
    s_lshl_b32 s{sPP}, s3, 10
    v_add_u32 v{L16}, s{sPP}, v{L16}
    s_add_u32 s{sPP}, s{sPP}, {POSB}
    s_mul_i32 s{sTMP+3}, s{sROT}, 57
    s_lshr_b32 s{sTMP+3}, s{sTMP+3}, 9
    s_mul_i32 s{sTMP+3}, s{sTMP+3}, 9
    s_sub_u32 s{sTMP+3}, s{sROT}, s{sTMP+3}
    s_lshl_b32 s{sPP+1}, s{sTMP+3}, 13
    """)
    ntouch = 1 if OPT.touch else 0
    a(f"""
    s_waitcnt vmcnt(2)
    s_branch K2_COUNT
    K2_NOTFIRST:
    s_waitcnt lgkmcnt(0)
    s_barrier
    s_waitcnt vmcnt(0)
    K2_COUNT:
    """)
    stamp(a, 2, 2)
    a(f"""
    v_add_u32 v{AR}, v{PV}, v{START[0]}
    v_add_u32 v{AL}, v{PV}, v{START[1]}
    v_cmp_lt_u32 vcc, v{AR}, v{ENDV[0]}
    v_cmp_lt_u32 {sr(sTMP)}, v{AL}, v{ENDV[1]}
    s_or_b64 vcc, vcc, {sr(sTMP)}
    s_cbranch_vccz K2_NOFLAG
    v_mov_b32 v{PV}, {FLAG}
    ds_write_b32 v{PV}, v{ONE}
    K2_NOFLAG:
    """)
    def pos_piece():
        if OPT.nopos: return
        a(f"""
        s_add_u32 m0, s{sPP}, s{sPP+1}
        s_add_u32 s{sTMP+3}, s{sPP+1}, 8192
        buffer_load_dwordx4 v{L16}, {sr(sPOS,4)}, s{sPP+1} offen lds
        s_cmp_eq_u32 s{sTMP+3}, {9*8192}
        s_cselect_b32 s{sPP+1}, 0, s{sTMP+3}
        """)
    def pieces(n, tag):
        a(f"s_cmp_eq_u32 s{sFIN if tag == 'd' else sFIRST}, 0\ns_cbranch_scc1 K2_NP_{tag}")
        for _ in range(n): pos_piece()
        a.label(f"K2_NP_{tag}")
    NPC = OPT.npc
    if NPC[0]: pieces(NPC[0], "a")
    for x in range(2):
        for i in range(2):
            g = 2*x + i
            for k in range(4):
                s = 4*g + k
                a(f"v_cmpx_lt_i32 vcc, {16*i+k}, v{REM[x]}")
                if k == 0 or i == 1:
                    a(f"s_cbranch_execz K2_CNT_{x}")
                if k == 0:
                    a(f"v_alignbyte_b32 v{LW+2*g}, v{LW+2*g+1}, v{LW+2*g}, v{START[x]}")
                a(f"v_bfe_u32 v{DLS+s}, v{LW+2*g}, {8*k}, 8")
                a(f"ds_add_rtn_u32 v{RK+s}, v{DLS+s}, v{ONE} offset:{CNT2}")
        a(f"K2_CNT_{x}:\ns_mov_b64 exec, -1")
        if NPC[1+x]: pieces(NPC[1+x], "bc"[x])
    a(f"""
    s_waitcnt lgkmcnt(0)
    s_barrier
    """)
    stamp(a, 2, 3)
    a(f"""
    ds_read_b32 v{PV}, v{LANE4} offset:{CNT2}
    v_mov_b32 v{AR}, {FLAG}
    ds_read_b32 v{AL}, v{AR}
    s_waitcnt lgkmcnt(0)
    v_mov_b32 v{AR}, v{PV}
    v_readfirstlane_b32 s{sMORE}, v{AL}
    """)
    wave_scan(a, AR)
    a(f"""
    s_nop 0
    v_readlane_b32 s{sT}, v{AR}, 63
    v_sub_u32 v{AR}, v{AR}, v{PV}
    s_cmp_le_u32 s{sT}, {CAP}
    s_cbranch_scc1 K2_FITS
    s_mov_b32 s{sQ}, 8
    s_mov_b32 s{sMORE}, 0
    s_branch K2_AGAIN
    K2_FITS:
    ds_write_b32 v{LANE4}, v{AR} offset:{PRE2}
    s_cmp_lg_u32 s3, 0
    s_cbranch_scc1 K2_NOPAD
    v_add_u32 v{AL}, s{sT}, v{LANE}
    v_mov_b32 v{PV}, {4*NPB}
    ds_write_b8 v{AL}, v{PV} offset:{LISTL}
    v_lshlrev_b32 v{AL}, 2, v{AL}
    ds_write_b32 v{AL}, v{ZERO} offset:{LISTR}
    K2_NOPAD:
    """)
    for x in range(2):
        for i in range(2):
            a(f"v_cmpx_lt_i32 vcc, {16*i}, v{REM[x]}")
            a(f"s_cbranch_execz K2_SR_{x}")
            for k in range(4):
                s = 8*x + 4*i + k
                a(f"ds_read_b32 v{BS+s}, v{DLS+s} offset:{PRE2}")
        a(f"K2_SR_{x}:\ns_mov_b64 exec, -1")
    if NPC[3]: pieces(NPC[3], "d")
    a("s_waitcnt lgkmcnt(0)")
    if OPT.stamps != 4: stamp(a, 2, 11)
    for x in range(2):
        for i in range(2):
            for k in range(4):
                s = 8*x + 4*i + k
                a(f"v_cmpx_lt_i32 vcc, {16*i+k}, v{REM[x]}")
                if k == 0 or i == 1: a(f"s_cbranch_execz K2_SC_{x}")
                a(f"v_add_u32 v{BS+s}, v{BS+s}, v{RK+s}")
                a(f"v_lshlrev_b32 v{RK+s}, 2, v{BS+s}")
                a(f"ds_write_b8 v{BS+s}, v{DLS+s} offset:{LISTL}")
                a(f"ds_write_b32 v{RK+s}, v{RECS+s} offset:{LISTR}")
        a(f"K2_SC_{x}:\ns_mov_b64 exec, -1")
        if x == 0:
            a(f"s_cmp_eq_u32 s{sFIN}, 0\ns_cbranch_scc1 K2_NP_e")
            for _ in range(9 - sum(NPC)): pos_piece()
            a(f"""
            s_cmp_ge_u32 s3, 2
            s_cbranch_scc1 K2_POSDONE
            s_cmp_eq_u32 s3, 1
            s_cselect_b64 exec, 0xffff, -1
            s_add_u32 m0, s{sPP}, {8192*9}
            s_mov_b32 s{sTMP+2}, {8192*9}
            buffer_load_dwordx4 v{L16}, {sr(sPOS,4)}, s{sTMP+2} offen lds
            s_mov_b64 exec, -1
            K2_POSDONE:
            """)
            if OPT.touch: b_touch(a, 0, 49, TCH)
            a.label("K2_NP_e")
    a(f"""
    s_add_u32 s{sTMP}, s{sT}, 63
    s_lshr_b32 s{sTMP}, s{sTMP}, 6
    s_lshr_b32 s{sTMP+1}, s{sTMP}, 3
    s_and_b32 s{sTMP+2}, s{sTMP}, 7
    s_mul_i32 s{sPN}, s3, s{sTMP+1}
    s_min_u32 s{sTMP+3}, s3, s{sTMP+2}
    s_add_u32 s{sPN}, s{sPN}, s{sTMP+3}
    s_cmp_lt_u32 s3, s{sTMP+2}
    s_addc_u32 s{sTMP+1}, s{sTMP+1}, s{sPN}
    s_lshl_b32 s{sPN}, s{sPN}, 6
    s_lshl_b32 s{sEND}, s{sTMP+1}, 6
    s_min_u32 s{sEND}, s{sEND}, s{sT}
    s_lshl_b32 s{sPN4}, s{sPN}, 2
    s_lshl_b32 s{sTMP}, s3, 12
    s_add_u32 m0, s{sTMP}, {STG}
    s_mov_b32 s{sFWX}, 0
    s_mov_b32 s{sFFL}, 0
    s_mov_b32 s{sMA+1}, 0
    s_mov_b32 s{sMB}, 0
    """)
    for r in range(16):
        a(f"v_mov_b32 v{ACC[1]+r}, 0")
    for r in range(8):
        a(f"v_mov_b32 v{S+r}, 0\nv_mov_b32 v{T+r}, 1.0")
    if OPT.stamps != 4: stamp(a, 2, 10)
    a(f"""
    s_waitcnt vmcnt({ntouch})
    s_cmp_eq_u32 s{sFIN}, 0
    s_cbranch_scc1 K2_NOPOS1
    s_mov_b32 s{sFIN}, 0
    s_mov_b32 s{sTMP}, {f32(-LN2)}
    v_lshlrev_b32 v{WXS[0]}, 16, v{WXS[0]}
    v_lshlrev_b32 v{WXS[1]}, 16, v{WXS[1]}
    v_mul_f32 v{WXS[0]}, s{sTMP}, v{WXS[0]}
    v_mul_f32 v{WXS[1]}, s{sTMP}, v{WXS[1]}
    s_cmp_lg_u32 s3, 4
    s_cbranch_scc1 K2_NOPOS1
    v_lshlrev_b32 v{T1}, 4, v{LANE}
    v_cmp_gt_u32 vcc, {NPB}, v{LANE}
    s_and_saveexec_b64 {sr(sTMP)}, vcc
    ds_write_b128 v{T1}, {vr(ACC[0],4)} offset:{POSD}
    s_mov_b64 exec, -1
    K2_NOPOS1:
    s_waitcnt lgkmcnt(0)
    s_barrier
    """)
    stamp(a, 2, 4)
    a(f"""
    s_cmp_ge_u32 s{sPN}, s{sEND}
    s_cbranch_scc1 K2_NOWORK
    """)
    RB4 = D[1]
    if OPT.abl:
        a(f"s_sub_u32 s67, s{sEND}, s{sPN}\ns_add_u32 s67, s67, 63\ns_lshr_b32 s67, s67, 6")
    plain(a, list_reads())
    a(f"""
    ds_read_b128 {vr(RB4,4)}, v{A4} offset:{LISTR+128}
    s_sub_u32 s{sTMP}, s{sEND}, s{sPN}
    v_cmp_gt_i32 {sr(sMR)}, s{sTMP}, v{LANE}
    s_waitcnt lgkmcnt(3)
    """)
    plain(a, mads(R4))
    plain(a, dma_ops())
    a(f"""
    s_waitcnt lgkmcnt(0)
    v_readfirstlane_b32 s{sWB}, v{DL4}
    s_nop 0
    s_min_u32 s{sWB}, s{sWB}, {4*(NPB-8)}
    """)
    window_masks(a)
    wx_load(a)
    plain(a, geo_addr())
    plain(a, geo_lut())
    plain(a, advance())
    plain(a, mads(RB4))
    for r in range(8):
        a(f"v_mov_b32 v{M[1]+r}, 0")
    for r in range(16):
        a(f"v_mov_b32 v{ACC[0]+r}, 0")
    a(f"v_mov_b32 v{D[1]+14}, 0\nv_mov_b32 v{D[1]+15}, 0")
    a("s_waitcnt lgkmcnt(0)")
    plain(a, geo_diff())
    plain(a, geo_cvt())
    plain(a, geo_d2())
    a("s_nop 2")
    plain(a, geo_fin())
    plain(a, x_read(0))
    a(mfma32(D[0], XX, WX[0] + 2, None))
    a("s_waitcnt lgkmcnt(2)")
    a(mfma32(D[0], X[0], ID, D[0]))
    a(mfma32(D[0], X[0] + 4, ID + 4, D[0]))
    a("s_waitcnt lgkmcnt(0)")
    plain(a, dma_ops())
    a("s_nop 6")
    if OPT.prio: a("s_setprio 3")
    stamp(a, 2, 5)
    gen_main_loop(a)
    stamp(a, 2, 6)
    t2 = T + 2 * (7 % 4); y2 = D[1] + 14; t6 = T + 2 * (6 % 4)
    a(f"""
    {mfma32(ACC[1], S, M[1], ACC[1])}
    v_cvt_pk_bf16_f32 v{M[1]+6}, v{t6}, v{t6+1}
    v_rcp_f32 v{t2}, v{t2}
    v_rcp_f32 v{t2+1}, v{t2+1}
    s_nop 0
    v_mul_f32 v{t2}, v{t2}, v{y2}
    v_mul_f32 v{t2+1}, v{t2+1}, v{y2+1}
    v_cvt_pk_bf16_f32 v{M[1]+7}, v{t2}, v{t2+1}
    s_nop 1
    {mfma32(ACC[1], S+4, M[1]+4, ACC[1])}
    s_mov_b32 s{sWBO}, s{sWB}
    """)
    epi_loads(a)
    flush_code(a, False, 'A')
    a("s_branch K2_WDONE")
    a.label("K2_FLUSH")
    flush_code(a, True, 'B')
    a(f"s_mov_b32 s{sFFL}, 0\ns_branch K2_FLUSH_RET")
    a.label("K2_REBASE")
    a(f"""
    s_mov_b32 s{sWBO}, s{sWB}
    v_readfirstlane_b32 s{sWB}, v{DL4}
    s_mov_b32 s{sFWX}, 1
    s_mov_b32 s{sFFL}, 1
    s_min_u32 s{sWB}, s{sWB}, {4*(NPB-8)}
    """)
    window_masks(a)
    a("s_branch K2_REBASE_RET")
    a.label("K2_WXL")
    wx_load(a)
    a(f"s_mov_b32 s{sFWX}, 0\ns_branch K2_WXL_RET")
    a.label("K2_NOWORK")
    epi_loads(a)
    a.label("K2_WDONE")
    stamp(a, 2, 7)
    a(f"""
    s_cmp_eq_u32 s{sMORE}, 0
    s_cbranch_scc1 K2_EPI
    v_and_b32 v{T1}, 3, v0
    v_lshlrev_b32 v{T1}, 2, v{T1}
    v_add_u32 v{T2}, v{T1}, v{ENDV[1]}
    v_add_u32 v{T1}, v{T1}, v{ENDV[0]}
    v_add_u32 v{START[0]}, s{sQ}, v{START[0]}
    v_add_u32 v{START[1]}, s{sQ}, v{START[1]}
    v_min_u32 v{START[0]}, v{START[0]}, v{T1}
    v_min_u32 v{START[1]}, v{START[1]}, v{T2}
    K2_AGAIN:
    s_waitcnt vmcnt(0) lgkmcnt(0)
    s_barrier
    s_mov_b32 s{sFIRST}, 0
    s_cmp_lg_u32 s3, 0
    s_cbranch_scc1 K2_ROUND
    ds_write_b32 v{LANE4}, v{ZERO} offset:{CNT2}
    v_mov_b32 v{T1}, {FLAG}
    ds_write_b32 v{T1}, v{ZERO}
    s_branch K2_ROUND
    """)
    MF = D[1]; MB_ = M[0]; U = ACC[0]; HR = D[0]; EX = D[0] + 8
    a(f"""
    K2_EPI:
    s_and_b32 s{sTMP}, s3, 3
    s_lshl_b32 s{sTMP}, s{sTMP}, 4
    v_and_b32 v{T1}, 15, v{LANE}
    v_add_u32 v{T1}, s{sTMP}, v{T1}
    v_mul_u32_u24 v{T2}, {RS}, v{T1}
    v_and_b32 v{TA}, 48, v{LANE}
    v_lshl_add_u32 v{T2}, v{TA}, 1, v{T2}
    s_movk_i32 s{sTMP+3}, 21846
    v_mul_u32_u24 v{DX}, s{sTMP+3}, v0
    v_lshrrev_b32 v{DX}, 16, v{DX}
    v_add_lshl_u32 v{DX}, v{DX}, v0, 2
    s_mul_i32 s{sTMP+4}, s{sNB}, 6
    s_add_u32 s{sTMP+4}, s{sTMP+4}, {N*128}
    v_lshl_add_u32 v{PD}, v0, 1, s{sTMP+4}
    s_lshr_b32 s{sTMP+4}, s3, 2
    s_lshl_b32 s{sTMP+4}, s{sTMP+4}, 6
    s_lshl_b32 s{sTMP+5}, s{sNB}, 7
    s_add_u32 s{sTMP+4}, s{sTMP+4}, s{sTMP+5}
    v_lshlrev_b32 v{PD+1}, 7, v{T1}
    v_add3_u32 v{PD+1}, v{PD+1}, v{TA}, s{sTMP+4}
    v_cmp_gt_u32 {sr(sF0)}, s{sNN}, v{T1}
    s_mul_i32 s{sTMP+5}, s{sNN}, 3
    v_cmp_gt_u32 {sr(sF0+2)}, s{sTMP+5}, v0
    s_mov_b32 s{sTMP+2}, {f32(-LN2)}
    s_waitcnt vmcnt(0)
    {mfma16(U, X[0], EW, None)}
    {mfma16(U+4, X[0]+16, EW, None)}
    {mfma16(U, X[0]+4, EW+4, U)}
    {mfma16(U+4, X[0]+20, EW+4, U+4)}
    s_mov_b32 s{sTMP+3}, 0xffff0000
    s_cmp_lt_u32 s3, 4
    s_cbranch_scc1 K2_HLO
    v_mov_b32 v{EW}, v{EW+4}
    v_mov_b32 v{EW+1}, v{EW+5}
    v_mov_b32 v{EW+2}, v{EW+6}
    v_mov_b32 v{EW+3}, v{EW+7}
    K2_HLO:
    """)
    for r in range(4):
        a(f"v_lshlrev_b32 v{HR+2*r}, 16, v{EW+r}")
        a(f"v_and_b32 v{HR+2*r+1}, s{sTMP+3}, v{EW+r}")
    a("s_waitcnt lgkmcnt(0)\ns_barrier")
    stamp(a, 2, 8)
    for s in range(2):
        a(f"ds_read_b128 {vr(MF+8*s,4)}, v{T2} offset:{ACCM + 128*s}")
        a(f"ds_read_b128 {vr(MF+8*s+4,4)}, v{T2} offset:{ACCM + 128*s + 16}")
    a(f"""
    ds_read_b32 v{DX+1}, v{DX} offset:{POSD}
    ds_read_b32 v{DX+2}, v{DX} offset:{ACCP}
    """)
    for s in range(2):
        a(f"s_waitcnt lgkmcnt({4 - 2*s})")
        for r in range(8):
            a(f"v_mul_f32 v{MF+8*s+r}, s{sTMP+2}, v{MF+8*s+r}")
        for r in range(4):
            a(f"v_cvt_pk_bf16_f32 v{MB_+4*s+r}, v{MF+8*s+2*r}, v{MF+8*s+2*r+1}")
        a("s_nop 1")
        a(mfma16(U, X[0]+8+4*s, MB_+4*s, U))
        a(mfma16(U+4, X[0]+24+4*s, MB_+4*s, U+4))
    a(f"""
    s_waitcnt lgkmcnt(0)
    v_add_f32 v{DX+1}, v{DX+1}, v{DX+2}
    v_cvt_pk_bf16_f32 v{DX+1}, v{DX+1}, v{DX+1}
    s_mov_b32 s{sTMP+2}, {f32(-L2E)}
    s_mov_b64 exec, {sr(sF0+2)}
    s_cbranch_execz K2_NOPOS
    buffer_store_short v{DX+1}, v{PD}, {sr(sOUT,4)}, 0 offen
    K2_NOPOS:
    s_mov_b64 exec, -1
    s_nop 1
    """)
    for r in range(8):
        a(f"v_mul_f32 v{EX+r}, s{sTMP+2}, v{U+r}")
    for r in range(8):
        a(f"v_exp_f32 v{EX+r}, v{EX+r}")
    for r in range(8):
        a(f"v_add_f32 v{EX+r}, 1.0, v{EX+r}")
    for r in range(8):
        a(f"v_rcp_f32 v{EX+r}, v{EX+r}")
    for r in range(8):
        a(f"v_fmac_f32 v{HR+r}, v{EX+r}, v{U+r}")
    for r in range(4):
        a(f"v_cvt_pk_bf16_f32 v{EX+r}, v{HR+2*r}, v{HR+2*r+1}")
    a(f"""
    s_mov_b64 exec, {sr(sF0)}
    s_cbranch_execz K2_END
    buffer_store_dwordx4 {vr(EX,4)}, v{PD+1}, {sr(sOUT,4)}, 0 offen
    """)
    if OPT.stamps:
        a("s_waitcnt vmcnt(0)")
    stamp(a, 2, 9); stamp(a, 2, 15, True)
    a("K2_END:\ns_endpgm")

HEADER = """; EGNN layer (gather / edge MLP / scatter) for gfx950, two launches:
;   egnn_bin_kernel : counting sort of edge chunks by destination bucket, per-node tables -> d_ws
; Kernarg: h 0, pos 8, e_attr 16, src 24, dst 32, w_e 40, w_x 48, w_h 56, out 64, debug 72, ws 80
; @launch kernel=egnn_bin_kernel grid=(256,1,1) block=(1024,1,1) lds={l1}
; @launch kernel=gather_scatter__cheap_equivariant_egnn__graph_kernel grid=(256,1,1) block=(512,1,1) lds={l2}
.amdgcn_target "amdgcn-amd-amdhsa--gfx950"
.text
"""
KD = """.amdhsa_kernel {name}
  .amdhsa_next_free_vgpr {nv}
  .amdhsa_next_free_sgpr 96
  .amdhsa_accum_offset {nv}
  .amdhsa_group_segment_fixed_size 0
  .amdhsa_kernarg_size 88
  .amdhsa_user_sgpr_count 2
  .amdhsa_user_sgpr_kernarg_segment_ptr 1
  .amdhsa_system_sgpr_workgroup_id_x 1
.end_amdhsa_kernel
"""

def generate(stamps=0, nt1=0, prio=2, touch=0, early=0, g0=3, g1=5, abl='', twearly=1, npc=450, nopos=0, twprio=1, offt=1, sto=0, str_=0, stt=0, wsoff=0):
    OPT.stamps = stamps; OPT.nt1 = nt1; OPT.prio = prio; OPT.touch = touch; OPT.early = early
    OPT.abl = abl; OPT.twearly = twearly; OPT.offt = offt; OPT.wsoff = wsoff << 20; FLG = ['', ' nt', ' sc1', ' sc0 sc1']; OPT.sto = FLG[sto]; OPT.str_ = FLG[str_]; OPT.stt = FLG[stt]; OPT.nopos = nopos; OPT.twprio = twprio; OPT.npc = [int(c) for c in '%04d' % npc]; OPT.g0 = g0; OPT.g1 = g1
    a1 = Asm(); l1 = gen_k1(a1)
    a2 = Asm(); gen_k2(a2)
    k1n = "egnn_bin_kernel"; k2n = "gather_scatter__cheap_equivariant_egnn__graph_kernel"
    s = HEADER.format(l1=l1, l2=LDS2)
    s += f".globl {k1n}\n.p2align 8\n.type {k1n},@function\n" + a1.text()
    s += f".globl {k2n}\n.p2align 8\n.type {k2n},@function\n" + a2.text()
    s += '.section .rodata,"a"\n.p2align 6\n' + KD.format(name=k1n, nv=128 if stamps else 104)
    s += ".p2align 6\n" + KD.format(name=k2n, nv=NV2 if stamps else 240)
    return s

if __name__ == "__main__":
    out = sys.argv[1]
    kw = {}
    for x in sys.argv[2:]:
        k, v = x.split("=", 1); kw[k] = v if k == 'abl' else int(v)
    open(out, "w").write(generate(**kw))
```

```python
import sys, struct

N = 12500; E = 800000
NPB = 49
CH = 3136
PSTR = 15744
L_OFF = CH * 4
RL_END = L_OFF + CH
OSTR = 1152
OFFT = 256 * PSTR
WF = OFFT + 256 * OSTR
CI = WF + 24 * 1024
P8 = CI + 11 * 1024
BTAB = P8 + 12544 * 8
WS_USED = BTAB + 12560 * 128
DBG_WS = WS_USED + 4096
WS_SRD = 32 << 20
L2E = 1.4426950408889634
LN2 = 0.6931471805599453

def f32(x):
    return "0x%08x" % struct.unpack("<I", struct.pack("<f", x))[0]

class Asm:
    def __init__(self):
        self.L = []
    def __call__(self, s):
        for ln in s.strip("\n").split("\n"):
            ln = ln.strip()
            if ln:
                self.L.append(ln if ln.endswith(":") else "    " + ln)
    def label(self, s):
        self.L.append(s + ":")
    def text(self):
        return "\n".join(self.L) + "\n"

def vr(a, n):
    return f"v[{a}:{a+n-1}]"
def sr(a, n=2):
    return f"s[{a}:{a+n-1}]"

def srd(a, base, nbytes, add=0):
    o = []
    if add:
        o += [f"s_add_u32 s{a}, s{base}, {add}", f"s_addc_u32 s{a+1}, s{base+1}, 0"]
    else:
        o += [f"s_mov_b32 s{a}, s{base}", f"s_mov_b32 s{a+1}, s{base+1}"]
    o += [f"s_mov_b32 s{a+2}, {nbytes}", f"s_mov_b32 s{a+3}, 0x00020000"]
    return "\n".join(o)

def wave_scan(a, v):
    for ctl in ("row_shr:1", "row_shr:2", "row_shr:4", "row_shr:8"):
        a("s_nop 1")
        a(f"v_add_u32_dpp v{v}, v{v}, v{v} {ctl} row_mask:0xf bank_mask:0xf bound_ctrl:0")
    a("s_nop 1")
    a(f"v_add_u32_dpp v{v}, v{v}, v{v} row_bcast:15 row_mask:0xa bank_mask:0xf")
    a("s_nop 1")
    a(f"v_add_u32_dpp v{v}, v{v}, v{v} row_bcast:31 row_mask:0xc bank_mask:0xf")

def mfma32(d, a_, b_, c):
    cc = "0" if c is None else vr(c, 16)
    return f"v_mfma_f32_32x32x16_bf16 {vr(d,16)}, {vr(a_,4)}, {vr(b_,4)}, {cc}"
def mfma16(d, a_, b_, c):
    cc = "0" if c is None else vr(c, 4)
    return f"v_mfma_f32_16x16x32_bf16 {vr(d,4)}, {vr(a_,4)}, {vr(b_,4)}, {cc}"

class Opt:
    pass
OPT = Opt()

def stamp(a, kern, idx, real=False):
    if not OPT.stamps:
        return
    if OPT.stamps == 5 and not real:
        if (kern, idx) in ((2, 5), (2, 6)):
            stamp(a, kern, idx + 7, True)
        if not (kern == 2 and idx in (0, 5, 6)): return
    if OPT.stamps == 4:
        idx = {(2, 5): 12, (2, 6): 13, (2, 2): 11, (2, 4): 10}.get((kern, idx), idx) if not real else idx
        if idx < 10 or (not real and idx in (10, 11) and (kern, idx) == (2, idx) and not getattr(stamp, 'ok', True)): return
        real = True
    if not real and OPT.stamps == 2 and idx not in (0, 3, 9):
        return
    if not real and OPT.stamps == 3 and idx not in ((0, 3) if kern == 1 else (0, 5, 6, 9)):
        return
    sv = 252 if kern == 2 else 120
    st = 64
    w = 12 if kern == 2 else 20
    a(f"""
    {'s_memrealtime' if real else 's_memtime'} s[{st}:{st+1}]
    s_waitcnt lgkmcnt(0)
    v_mov_b32 v{sv}, s{st}
    v_mov_b32 v{sv+1}, s{st+2}
    s_mov_b64 s[{st}:{st+1}], exec
    s_mov_b64 exec, 1
    buffer_store_dword v{sv}, v{sv+1}, s[{w}:{w+3}], 0 offen offset:{idx*4}
    s_mov_b64 exec, s[{st}:{st+1}]
    """)

CAP = 4096
RS = 528
CNT2 = 0; PRE2 = 256; FLAG = 512; LUT = 528; ACCP = LUT + 800; POSD = 3072
assert ACCP + NPB * 32 <= POSD
LIST = 4096
AT = LIST + (CAP + 64) * 8
ARS = 144
HRB = AT + 64 * ARS
WHB = HRB + 8192
ACCM = WHB + 16384
SB = (ACCM + NPB * RS + 127) // 128 * 128
STG = SB + 8 * 4096
LDS2 = STG + 8 * 4096
W1B = STG + 24576
assert LDS2 <= 163840 and STG <= ACCM + 65536 <= STG + 24576 and HRB % 128 == 0

ACC = [2, 18]; D = [34, 50]; M = [66, 74]; X = [82, 98]
WX = [114, 120]; XX = 126; S = 132; T = 140; TCH = 148; J4 = 149
REC = 150; DL = 151; R8 = 152; REL = 160; TA = 161; PD = 162; DX = 166; DD = 169; DXY = 170
SAD = 172; A4 = 173; PS = 174; ZERO = 176; WXS = [180, 182]
T1 = 184; T2 = 185; START = [186, 187]; OFFV = [188, 189]
FL = 190
EW = 208
CB = 216
CDMA = CB; AX = CB + 4; AS = CB + 8; SROW = CB + 12; G8 = CB + 13; MADDR = CB + 14; POFF = CB + 15
ID = CB + 16; AWT = CB + 24; LANE8 = CB + 25; LUA = CB + 26; LUV = CB + 27
EA_ = CB + 28; EH = CB + 29; EO = CB + 31
DUMMY = LANE8
NV2 = 256
sWS, sOUT, sH = 12, 20, 24
sNB, sNN, sC128, sM10, s0M1, sP8, sBT = 28, 29, 30, 31, 32, 33, 34
sEND, sWB, sWBO, sFWX, sFFL = 35, 36, 37, 38, 39
sREM, sTHR, sW10 = 40, 41, 42
sVN, sMR = 44, 46
sNX, sQ, sFIRST, sT, sPN8, sMORE, sROT = 48, 49, 50, 51, 52, 53, 54
sTMP = 56
sPM, sCM, sF0 = 72, 74, 76

def lane_consts(a, o, base):
    L = base; HH, A31, R2, C2, GP, U1, U2 = [base + 1 + i for i in range(7)]
    CD, AXo, ASo = o, o + 4, o + 8
    SROWo, G8o, MADo, POFo = o + 12, o + 13, o + 14, o + 15
    IDo = o + 16; AWo, L8o, LUA, LUV = o + 24, o + 25, o + 26, o + 27
    EAo, EH0, EH1, EOo = o + 28, o + 29, o + 30, o + 31
    a(f"""
    v_lshrrev_b32 v{HH}, 5, v{L}
    v_and_b32 v{A31}, 31, v{L}
    v_bfe_u32 v{R2}, v{L}, 2, 2
    v_and_b32 v{C2}, 3, v{L}
    v_bfe_u32 v{GP}, v{L}, 4, 1
    v_lshrrev_b32 v{U1}, 3, v{L}
    v_lshlrev_b32 v{G8o}, 5, v{U1}
    v_and_b32 v{U1}, 7, v{L}
    v_lshlrev_b32 v{U2}, 2, v{HH}
    v_xor_b32 v{U1}, v{U1}, v{U2}
    """)
    for i in range(4):
        a(f"v_xor_b32 v{CD+i}, {i}, v{U1}\nv_lshlrev_b32 v{CD+i}, 4, v{CD+i}\nv_add_u32 v{CD+i}, {3072 - 1024*i}, v{CD+i}")
    a(f"""
    v_bfe_u32 v{U1}, v{L}, 2, 3
    v_lshl_add_u32 v{U1}, v{C2}, 3, v{U1}
    v_lshlrev_b32 v{U1}, 7, v{U1}
    v_add_u32 v{U1}, {STG}, v{U1}
    v_lshl_or_b32 v{U2}, v{GP}, 2, v{C2}
    v_xor_b32 v{U2}, v{U2}, v{HH}
    """)
    for k in range(4):
        a(f"v_xor_b32 v{AXo+k}, {2*k}, v{U2}\nv_lshl_add_u32 v{AXo+k}, v{AXo+k}, 4, v{U1}")
    a(f"""
    v_lshlrev_b32 v{SROWo}, 7, v{A31}
    v_add_u32 v{SROWo}, {SB}, v{SROWo}
    v_and_b32 v{U1}, 1, v{L}
    v_lshl_or_b32 v{U1}, v{R2}, 1, v{U1}
    v_lshl_add_u32 v{SROWo}, v{U1}, 4, v{SROWo}
    v_bfe_u32 v{U1}, v{L}, 1, 1
    v_xor_b32 v{U1}, v{U1}, v{HH}
    v_lshl_add_u32 v{SROWo}, v{U1}, 3, v{SROWo}
    v_lshl_add_u32 v{C2}, v{GP}, 2, v{C2}
    v_and_b32 v{U1}, 1, v{R2}
    v_lshl_or_b32 v{U1}, v{HH}, 1, v{U1}
    v_xor_b32 v{U1}, v{U1}, v{C2}
    v_lshrrev_b32 v{U2}, 1, v{R2}
    v_lshl_add_u32 v{R2}, v{HH}, 2, v{R2}
    v_lshlrev_b32 v{AWo}, 7, v{R2}
    v_lshl_add_u32 v{ASo}, v{U2}, 3, v{AWo}
    v_add_u32 v{ASo}, {SB}, v{ASo}
    v_xor_b32 v{U2}, 4, v{U1}
    v_lshl_add_u32 v{ASo+1}, v{U2}, 4, v{ASo}
    v_add_u32 v{ASo+1}, 1024, v{ASo+1}
    v_lshl_add_u32 v{ASo}, v{U1}, 4, v{ASo}
    v_xor_b32 v{ASo+2}, 8, v{ASo}
    v_xor_b32 v{ASo+3}, 8, v{ASo+1}
    v_mul_u32_u24 v{AWo}, {ARS}, v{R2}
    v_lshl_add_u32 v{AWo}, v{C2}, 3, v{AWo}
    v_add_u32 v{AWo}, {AT}, v{AWo}
    v_mul_u32_u24 v{MADo}, {RS}, v{HH}
    v_lshl_add_u32 v{MADo}, v{A31}, 3, v{MADo}
    v_add_u32 v{MADo}, {ACCM}, v{MADo}
    v_bfe_u32 v{U1}, v{L}, 3, 2
    v_lshl_add_u32 v{U1}, v{U1}, 1, v{HH}
    v_lshlrev_b32 v{POFo}, 5, v{U1}
    v_and_b32 v{U1}, 4, v{L}
    v_lshl_add_u32 v{POFo}, v{U1}, 1, v{POFo}
    v_and_b32 v{U1}, 1, v{L}
    v_lshl_add_u32 v{POFo}, v{U1}, 4, v{POFo}
    v_lshlrev_b32 v{L8o}, 3, v{L}
    v_lshlrev_b32 v{U1}, 4, v{U1}
    v_mov_b32 v{LUV}, 0x3f80
    v_lshlrev_b32 v{LUV}, v{U1}, v{LUV}
    v_lshrrev_b32 v{U1}, 1, v{L}
    v_lshlrev_b32 v{U1}, 2, v{U1}
    v_lshl_add_u32 v{LUA}, v{L}, 4, v{U1}
    v_lshrrev_b32 v{U1}, 1, v{A31}
    v_lshlrev_b32 v{U2}, 2, v{HH}
    v_sub_u32 v{U1}, v{U1}, v{U2}
    """)
    for t in range(2):
        for r in range(4):
            a(f"v_cmp_eq_u32 {sr(76 + 2*r)}, {8*t + r}, v{U1}")
        for r in range(4):
            a(f"v_cndmask_b32 v{IDo+4*t+r}, 0, v{LUV}, {sr(76 + 2*r)}")
    a(f"""
    v_and_b32 v{U1}, 15, v{L}
    v_lshrrev_b32 v{U2}, 4, v{L}
    v_mul_u32_u24 v{EAo}, {RS}, v{U1}
    v_lshl_add_u32 v{EAo}, v{U2}, 6, v{EAo}
    v_add_u32 v{EAo}, {ACCM}, v{EAo}
    v_lshlrev_b32 v{EOo}, 7, v{U1}
    v_bfe_u32 v{U1}, v{L}, 1, 3
    v_xor_b32 v{U1}, v{U1}, v{U2}
    v_lshl_add_u32 v{EH0}, v{U1}, 4, v{EOo}
    v_add_u32 v{EH0}, {HRB}, v{EH0}
    v_xor_b32 v{EH1}, 64, v{EH0}
    v_lshl_add_u32 v{EOo}, v{U2}, 4, v{EOo}
    """)

def gen_k1(a):
    CNT, PRE, RB = 0, 1024, 2048
    TW = RB + RL_END
    TWS = 8192
    LDS1 = TW + 4 * TWS
    ST = OPT.st
    WE = CH // 4
    DST = 8; SRC = 24; EA = 40; B4 = 48; RK = 64; PB = 80
    MSK = 52
    a.label("egnn_bin_kernel")
    if OPT.stamps == 4: a("s_memrealtime s[72:73]")
    a(f"""
    s_cmp_ge_u32 s2, 256
    s_cbranch_scc1 K1_END
    s_load_dwordx2 s[20:21], s[0:1], 80
    v_readfirstlane_b32 s3, v0
    v_and_b32 v6, 63, v0
    s_mov_b32 s22, {WS_SRD}
    s_mov_b32 s23, 0x00020000
    s_lshr_b32 s3, s3, 6
    v_lshlrev_b32 v7, 4, v6
    s_mul_i32 s49, s2, {PSTR}
    s_cmp_ge_u32 s3, 4
    s_cbranch_scc1 K1_TW
    s_load_dwordx2 s[8:9], s[0:1], 32
    s_load_dwordx2 s[12:13], s[0:1], 24
    s_load_dwordx2 s[16:17], s[0:1], 16
    v_lshlrev_b32 v2, 2, v0
    v_mov_b32 v3, 0
    ds_write_b32 v2, v3 offset:{CNT}
    s_mov_b32 s10, {E*4}
    s_mov_b32 s11, 0x00020000
    s_mov_b64 s[14:15], s[10:11]
    s_mov_b32 s18, {E*2}
    s_mov_b32 s19, 0x00020000
    s_mul_i32 s44, s2, {CH}
    s_mul_i32 s45, s3, {WE}
    s_add_u32 s44, s44, s45
    s_lshl_b32 s46, s44, 2
    s_lshl_b32 s47, s44, 1
    s_sub_i32 s45, {E}, s44
    v_lshlrev_b32 v2, 2, v6
    v_lshlrev_b32 v5, 3, v6
    v_lshlrev_b32 v3, 1, v6
    s_cmp_le_i32 s45, 0
    s_cbranch_scc1 K1_AUX
    s_waitcnt lgkmcnt(0)
    """)
    for j in range(3):
        a(f"buffer_load_dwordx4 {vr(DST+4*j,4)}, v7, s[8:11], s46 offen offset:{1024*j}")
    a(f"buffer_load_dword v{DST+12}, v2, s[8:11], s46 offen offset:3072")
    if OPT.stamps:
        a(f"s_lshl_b32 s66, s2, 4\ns_add_u32 s66, s66, s3\ns_lshl_b32 s66, s66, 6\ns_add_u32 s66, s66, {DBG_WS}")
    stamp(a, 1, 0); stamp(a, 1, 14, True)
    if OPT.stamps == 4:
        a("v_mov_b32 v120, s72\ns_mov_b64 s[64:65], exec\ns_mov_b64 exec, 1\nbuffer_store_dword v120, v121, s[20:23], 0 offen offset:32\ns_mov_b64 exec, s[64:65]")
    nst = {0: 0, 4: 2}.get(OPT.stamps, 2)
    a(f"""
    v_cmp_gt_i32 {sr(MSK)}, s45, v2
    s_sub_i32 s48, s45, 256
    v_cmp_gt_i32 {sr(MSK+2)}, s48, v2
    s_sub_i32 s48, s45, 512
    v_cmp_gt_i32 {sr(MSK+4)}, s48, v2
    s_sub_i32 s48, s45, 768
    s_min_i32 s48, s48, 16
    v_cmp_gt_i32 {sr(MSK+6)}, s48, v6
    s_movk_i32 s50, {-NPB}
    v_mov_b32 v4, 1
    s_barrier
    """)
    for j in range(3):
        a(f"buffer_load_dwordx4 {vr(SRC+4*j,4)}, v7, s[12:15], s46 offen offset:{1024*j}")
        a(f"buffer_load_dwordx2 {vr(EA+2*j,2)}, v5, s[16:19], s47 offen offset:{512*j}")
    a(f"buffer_load_dword v{SRC+12}, v2, s[12:15], s46 offen offset:3072")
    a(f"buffer_load_ushort v{EA+6}, v3, s[16:19], s47 offen offset:1536")
    nst0 = nst; nst = 0
    for j in range(4):
        a(f"s_mov_b64 exec, {sr(MSK+2*j)}\ns_waitcnt vmcnt({11 - j + nst + nst0})")
        if OPT.stamps == 1 and j in (0, 3):
            stamp(a, 1, 7 if j == 0 else 8); nst += 1
        for k in range(4 if j < 3 else 1):
            s = 4*j + k
            a(f"""
            v_mul_u32_u24 v{B4+s}, 21400, v{DST+s}
            v_lshrrev_b32 v{B4+s}, 20, v{B4+s}
            v_mad_i32_i24 v{DST+s}, v{B4+s}, s50, v{DST+s}
            v_lshlrev_b32 v{B4+s}, 2, v{B4+s}
            ds_add_rtn_u32 v{RK+s}, v{B4+s}, v4 offset:{CNT}
            """)
    a(f"""
    s_mov_b64 exec, -1
    s_mov_b32 s51, 0xffff0000
    s_waitcnt lgkmcnt(0)
    s_barrier
    """)
    stamp(a, 1, 1)
    a(f"""
    ds_read_b128 v[96:99], v7 offset:{CNT}
    s_waitcnt lgkmcnt(0)
    v_add_u32 v97, v96, v97
    v_add_u32 v98, v97, v98
    v_add_u32 v99, v98, v99
    v_mov_b32 v100, v99
    """)
    wave_scan(a, 100)
    a(f"""
    v_sub_u32 v102, v100, v99
    v_add_u32 v103, v102, v96
    v_add_u32 v104, v102, v97
    v_add_u32 v105, v102, v98
    ds_write_b128 v7, v[102:105] offset:{PRE}
    """)
    for s in range(13):
        a(f"ds_read_b32 v{PB+s}, v{B4+s} offset:{PRE}")
    a(f"""
    s_cmp_lg_u32 s3, 0
    s_cbranch_scc1 K1_NOOFF
    v_lshl_or_b32 v96, v103, 16, v102
    v_lshl_or_b32 v97, v104, 16, v103
    v_lshl_or_b32 v98, v105, 16, v104
    v_lshl_or_b32 v99, v100, 16, v105
    s_mul_i32 s48, s2, {OSTR}
    s_add_u32 s48, s48, {OFFT}
    buffer_store_dwordx4 v[96:99], v7, s[20:23], s48 offen{ST}
    K1_NOOFF:
    s_waitcnt lgkmcnt(0)
    """)
    stamp(a, 1, 10)
    for j in range(4):
        a(f"s_mov_b64 exec, {sr(MSK+2*j)}")
        for k in range(4 if j < 3 else 1):
            s = 4*j + k
            a(f"""
            v_add_u32 v{PB+s}, v{PB+s}, v{RK+s}
            ds_write_b8 v{PB+s}, v{DST+s} offset:{RB + L_OFF}
            v_lshlrev_b32 v{RK+s}, 2, v{PB+s}
            """)
    stamp(a, 1, 9)
    nl = (5 if OPT.stamps == 1 else 0)
    for j in range(4):
        a(f"s_mov_b64 exec, {sr(MSK+2*j)}\ns_waitcnt vmcnt({6 - 2*j + nl})")
        if j < 3:
            a(f"""
            v_lshl_or_b32 v{SRC+4*j}, v{EA+2*j}, 16, v{SRC+4*j}
            ds_write_b32 v{RK+4*j}, v{SRC+4*j} offset:{RB}
            v_and_or_b32 v{SRC+4*j+1}, v{EA+2*j}, s51, v{SRC+4*j+1}
            ds_write_b32 v{RK+4*j+1}, v{SRC+4*j+1} offset:{RB}
            v_lshl_or_b32 v{SRC+4*j+2}, v{EA+2*j+1}, 16, v{SRC+4*j+2}
            ds_write_b32 v{RK+4*j+2}, v{SRC+4*j+2} offset:{RB}
            v_and_or_b32 v{SRC+4*j+3}, v{EA+2*j+1}, s51, v{SRC+4*j+3}
            ds_write_b32 v{RK+4*j+3}, v{SRC+4*j+3} offset:{RB}
            """)
        else:
            a(f"v_lshl_or_b32 v{SRC+12}, v{EA+6}, 16, v{SRC+12}\nds_write_b32 v{RK+12}, v{SRC+12} offset:{RB}")
    a(f"""
    s_mov_b64 exec, -1
    """)
    stamp(a, 1, 11)
    a(f"""
    K1_B2:
    v_lshlrev_b32 v4, 4, v0
    v_cmp_gt_u32 vcc, {RL_END//16 - 512}, v0
    s_add_u32 s48, s49, 8192
    s_waitcnt lgkmcnt(0)
    s_barrier
    """)
    stamp(a, 1, 2)
    a(f"""
    ds_read_b128 v[8:11], v4 offset:{RB}
    ds_read_b128 v[12:15], v4 offset:{RB + 8192}
    s_waitcnt lgkmcnt(1)
    buffer_store_dwordx4 v[8:11], v4, s[20:23], s49 offen{ST}
    s_and_b64 exec, exec, vcc
    s_waitcnt lgkmcnt(0)
    buffer_store_dwordx4 v[12:15], v4, s[20:23], s48 offen{ST}
    """)
    if OPT.stamps:
        a("s_waitcnt vmcnt(0)")
    stamp(a, 1, 3); stamp(a, 1, 15, True)
    a("K1_END:\ns_endpgm")
    HF = 16; WFR = 32; DD_ = 64
    a(f"""
    K1_TW:
    {'s_setprio 3' if OPT.twprio else ''}
    s_load_dwordx2 s[24:25], s[0:1], 40
    s_load_dwordx2 s[28:29], s[0:1], 0
    s_load_dwordx2 s[32:33], s[0:1], 8
    s_mov_b32 s26, {130*128}
    s_mov_b32 s27, 0x00020000
    s_mov_b32 s30, {N*128}
    s_mov_b32 s31, 0x00020000
    s_mul_i32 s60, s2, {NPB}
    s_and_b32 s63, s3, 1
    s_bfe_u32 s62, s3, 0x10001
    s_lshl_b32 s57, s3, 13
    s_add_u32 s57, s57, {TW - 4*TWS}
    v_and_b32 v9, 48, v6
    v_xor_b32 v9, v9, v7
    v_xor_b32 v10, 64, v9
    v_lshrrev_b32 v11, 2, v6
    v_and_b32 v12, 3, v6
    v_lshlrev_b32 v12, 4, v12
    v_lshl_add_u32 v11, v11, 7, v12
    s_lshl_b32 s56, s62, 5
    s_add_u32 s56, s56, s60
    s_lshl_b32 s56, s56, 7
    s_add_u32 m0, s57, 4096
    s_lshl_b32 s54, s63, 6
    s_add_u32 s54, s54, {64*128}
    s_waitcnt lgkmcnt(0)
    """)
    if OPT.stamps:
        a(f"s_lshl_b32 s66, s2, 4\ns_add_u32 s66, s66, s3\ns_lshl_b32 s66, s66, 6\ns_add_u32 s66, s66, {DBG_WS}")
    stamp(a, 1, 0); stamp(a, 1, 14, True)
    if OPT.stamps == 4:
        a("v_mov_b32 v120, s72\ns_mov_b64 s[64:65], exec\ns_mov_b64 exec, 1\nbuffer_store_dword v120, v121, s[20:23], 0 offen offset:32\ns_mov_b64 exec, s[64:65]")
    if OPT.notab: a("s_barrier\ns_barrier\ns_branch K1_B2")
    if OPT.tb == 0: a("s_barrier")
    for i in range(4):
        a(f"buffer_load_dwordx4 v{9 + (i & 1)}, s[28:31], s56 offen offset:{1024*i} lds")
    a("s_mov_b32 m0, s57\ns_mov_b32 s34, %d" % (N*6))
    for i in range(4):
        a(f"buffer_load_dwordx4 v11, s[24:27], s54 offen offset:{1024*i} lds")
        if i < 3: a("s_add_u32 s54, s54, 1024")
    a(f"""
    s_mov_b32 s35, 0x00020000
    s_cmp_lg_u32 s3, 7
    s_cbranch_scc1 K1_NOP8
    v_add_u32 v100, s60, v6
    v_mul_u32_u24 v101, 6, v100
    buffer_load_ushort v102, v101, s[32:35], 0 offen
    buffer_load_ushort v104, v101, s[32:35], 0 offen offset:2
    buffer_load_ushort v103, v101, s[32:35], 0 offen offset:4
    K1_NOP8:
    """)
    if OPT.tb != 0: a("s_barrier")
    a(f"""
    v_lshrrev_b32 v8, 5, v6
    v_and_b32 v9, 31, v6
    v_bfe_u32 v12, v6, 2, 2
    v_lshl_add_u32 v12, v8, 3, v12
    v_lshlrev_b32 v12, 6, v12
    v_bfe_u32 v13, v6, 4, 1
    v_lshl_add_u32 v12, v13, 5, v12
    v_and_b32 v13, 3, v6
    v_lshl_add_u32 v12, v13, 3, v12
    v_add_u32 v12, s57, v12
    v_bfe_u32 v10, v6, 1, 3
    v_xor_b32 v10, v10, v8
    s_add_u32 s54, s57, 4096
    v_lshlrev_b32 v14, 7, v9
    v_add_u32 v14, s54, v14
    """)
    for s in range(4):
        a(f"v_xor_b32 v{96+s}, {2*s}, v10\nv_lshl_add_u32 v{96+s}, v{96+s}, 4, v14")
    a(f"""
    v_mul_u32_u24 v13, 80, v9
    v_lshl_add_u32 v13, v8, 3, v13
    v_add_u32 v13, s57, v13
    v_lshrrev_b32 v14, 2, v6
    v_mul_u32_u24 v15, 80, v14
    v_and_b32 v14, 3, v6
    v_lshl_add_u32 v15, v14, 4, v15
    v_add_u32 v15, s57, v15
    s_mov_b32 s48, {f32(-L2E)}
    s_lshl_b32 s54, s63, 6
    s_add_u32 s54, s54, {BTAB}
    s_add_u32 s54, s54, s56
    """)
    if OPT.tb2 == 0: a("s_barrier")
    a("s_waitcnt vmcnt(0)")
    stamp(a, 1, 5)
    for s in range(4):
        a(f"ds_read_b128 {vr(HF+4*s,4)}, v{96+s}")
        for jj in range(2):
            a(f"ds_read_b64_tr_b16 {vr(WFR+4*s+2*jj,2)}, v12 offset:{(16*s+4*jj)*64}")
    for s in range(4):
        a(f"s_waitcnt lgkmcnt({9 - 3*s})")
        a(mfma32(DD_, WFR+4*s, HF+4*s, None if s == 0 else DD_))
    if OPT.tb2 == 1: a("s_barrier")
    a(f"""
    s_cmp_lg_u32 s3, 7
    s_cbranch_scc1 K1_NOP8S
    v_lshl_or_b32 v102, v104, 16, v102
    v_lshlrev_b32 v100, 3, v100
    s_mov_b32 s55, {P8}
    v_cmp_gt_u32 vcc, {NPB}, v6
    s_and_b64 exec, exec, vcc
    buffer_store_dwordx2 v[102:103], v100, s[20:23], s55 offen{ST}
    s_mov_b64 exec, -1
    K1_NOP8S:
    s_nop 10
    """)
    stamp(a, 1, 6)
    for q in range(4):
        for r in range(4):
            a(f"v_mul_f32 v{DD_+4*q+r}, s48, v{DD_+4*q+r}")
        a(f"v_cvt_pk_bf16_f32 v{DD_+4*q}, v{DD_+4*q}, v{DD_+4*q+1}\nv_cvt_pk_bf16_f32 v{DD_+4*q+1}, v{DD_+4*q+2}, v{DD_+4*q+3}")
        a(f"ds_write_b64 v13, {vr(DD_+4*q,2)} offset:{16*q}")
    a(f"""
    ds_read_b128 {vr(WFR,4)}, v15
    ds_read_b128 {vr(WFR+4,4)}, v15 offset:{16*80}
    s_cmp_lg_u32 s62, 0
    s_waitcnt lgkmcnt(1)
    buffer_store_dwordx4 {vr(WFR,4)}, v11, s[20:23], s54 offen{ST}
    s_cselect_b64 exec, 15, -1
    s_waitcnt lgkmcnt(0)
    buffer_store_dwordx4 {vr(WFR+4,4)}, v11, s[20:23], s54 offen offset:2048{ST}
    s_mov_b64 exec, -1
    """)
    stamp(a, 1, 4)
    if OPT.tb2 == 2: a("s_barrier")
    a("s_branch K1_B2")
    a(f"""
    K1_AUX:
    s_waitcnt lgkmcnt(0)
    {f"s_mov_b32 s66, {DBG_WS + (255*16+15)*64}" if OPT.stamps else ""}
    s_load_dwordx2 s[24:25], s[0:1], 40
    s_load_dwordx2 s[28:29], s[0:1], 56
    s_load_dwordx2 s[32:33], s[0:1], 48
    s_mov_b32 s26, {130*128}
    s_mov_b32 s27, 0x00020000
    s_mov_b32 s30, {128*128}
    s_mov_b32 s31, 0x00020000
    s_mov_b32 s34, 128
    s_mov_b32 s35, 0x00020000
    s_barrier
    s_waitcnt lgkmcnt(0)
    s_cmp_eq_u32 s3, 3
    s_cbranch_scc1 K1_AUX3
    v_lshrrev_b32 v8, 4, v6
    v_lshlrev_b32 v8, 10, v8
    v_bfe_u32 v9, v6, 2, 2
    v_lshl_add_u32 v8, v9, 4, v8
    v_and_b32 v9, 3, v6
    v_lshl_add_u32 v8, v9, 1, v8
    s_sub_u32 s54, s3, 1
    s_lshl_b32 s55, s54, 6
    s_lshl_b32 s54, s54, 13
    s_add_u32 s54, s54, {WF}
    """)
    for f in range(8):
        c1, s = f >> 2, f & 3
        a(f"s_add_u32 s56, s55, {4096*s + 8*c1}")
        for j in range(8):
            a(f"buffer_load_ushort v{16+8*f+j}, v8, s[28:31], s56 offen offset:{128*j}")
        if f == 6: a("s_waitcnt vmcnt(24)")
    a(f"""
    v_lshrrev_b32 v9, 5, v6
    v_lshlrev_b32 v9, 10, v9
    v_and_b32 v10, 31, v6
    v_lshl_add_u32 v9, v10, 1, v9
    """)
    for f in range(4):
        a(f"s_add_u32 s56, s55, {2048*f}")
        for j in range(8):
            a(f"buffer_load_ushort v{80+8*f+j}, v9, s[24:27], s56 offen offset:{128*j}")
        if f == 1: a("s_waitcnt vmcnt(24)")
    a(f"s_barrier\ns_lshl_b32 s57, s55, 6\ns_add_u32 s57, s57, {WF + 16384}\ns_waitcnt vmcnt(0)\ns_add_u32 s56, s54, 4096")
    for f in range(4):
        for j in range(4):
            a(f"v_lshl_or_b32 v{80+8*f+j}, v{80+8*f+2*j+1}, 16, v{80+8*f+2*j}")
        a(f"buffer_store_dwordx4 {vr(80+8*f,4)}, v7, s[20:23], s57 offen offset:{1024*f}{ST}")
    for f in range(8):
        for j in range(4):
            a(f"v_lshl_or_b32 v{16+8*f+j}, v{16+8*f+2*j+1}, 16, v{16+8*f+2*j}")
        a(f"buffer_store_dwordx4 {vr(16+8*f,4)}, v7, s[20:23], s{54 if f < 4 else 56} offen offset:{1024*(f & 3)}{ST}")
    a(f"""
    s_branch K1_B2
    K1_AUX3:
    v_and_b32 v8, 31, v6
    v_lshlrev_b32 v8, 1, v8
    s_mov_b32 s56, {128*128}
    buffer_load_ushort v10, v8, s[24:27], s56 offen
    buffer_load_ushort v11, v8, s[24:27], s56 offen offset:128
    buffer_load_ushort v12, v8, s[24:27], s56 offen offset:64
    buffer_load_ushort v13, v8, s[24:27], s56 offen offset:192
    buffer_load_ushort v14, v8, s[32:35], 0 offen
    buffer_load_ushort v15, v8, s[32:35], 0 offen offset:64
    v_mov_b32 v80, v6
    """)
    lane_consts(a, 32, 80)
    a(f"s_mov_b32 s54, {CI}\ns_mov_b32 s55, {CI + 4096}")
    for f in range(8):
        a(f"buffer_store_dwordx4 {vr(32+4*f,4)}, v7, s[20:23], s{54 + (f >> 2)} offen offset:{1024*(f & 3)}{ST}")
    a(f"""
    s_barrier
    s_mov_b32 s48, {f32(-L2E)}
    s_mov_b32 s50, {f32(-LN2)}
    s_mov_b32 s54, {CI + 8192}
    v_cmp_gt_u32 vcc, 32, v6
    s_waitcnt vmcnt(8)
    """)
    for h in range(2):
        wd, wa, o = 10 + 2*h, 11 + 2*h, 64 + 4*h
        a(f"""
        v_lshlrev_b32 v{wd}, 16, v{wd}
        v_lshlrev_b32 v{wa}, 16, v{wa}
        v_mul_f32 v{wd}, s48, v{wd}
        v_mul_f32 v{wa}, s48, v{wa}
        v_cvt_pk_bf16_f32 v16, v{wd}, v{wd}
        v_lshlrev_b32 v16, 16, v16
        v_sub_f32 v17, v{wd}, v16
        v_cvt_pk_bf16_f32 v18, v16, v17
        v_cvt_pk_bf16_f32 v19, 0, v{wa}
        v_cndmask_b32 v{o}, v18, 0, vcc
        v_cndmask_b32 v{o+1}, v19, 0, vcc
        v_cndmask_b32 v{o+2}, 0, v18, vcc
        v_cndmask_b32 v{o+3}, 0, v19, vcc
        buffer_store_dwordx4 {vr(o,4)}, v7, s[20:23], s54 offen offset:{1024*h}{ST}
        """)
    a(f"""
    v_lshlrev_b32 v72, 16, v14
    v_lshlrev_b32 v74, 16, v15
    v_mul_f32 v72, s50, v72
    v_mul_f32 v74, s50, v74
    v_mov_b32 v73, 0
    v_mov_b32 v75, 0
    buffer_store_dwordx4 v[72:75], v7, s[20:23], s54 offen offset:2048{ST}
    s_branch K1_B2
    """)
    return LDS1

def flush_code(a, rezero, tag):
    a(f"""
    s_mul_i32 s{sTMP}, s{sWBO}, {RS//16}
    s_lshl_b32 s{sTMP+1}, s{sWBO}, 1
    v_add_u32 v{T1}, s{sTMP}, v{MADDR}
    v_add_u32 v{T2}, s{sTMP+1}, v{POFF}
    """)
    for q in range(4):
        for h in range(2):
            t = FL + 2 * (2*q + h)
            a(f"v_cvt_f64_f32 {vr(t,2)}, v{ACC[h]+4*q+3}")
            a(f"ds_add_f64 v{T1}, {vr(t,2)} offset:{2*q*RS + 256*h}")
    for q in range(4):
        r0 = ACC[0] + 4*q; r1 = ACC[1] + 4*q
        a(f"v_pk_mul_f32 {vr(r0,2)}, {vr(r0,2)}, {vr(WXS[0],2)} op_sel_hi:[1,0]")
        a(f"v_mul_f32 v{r0+2}, v{r0+2}, v{WXS[0]}")
        a(f"v_pk_fma_f32 {vr(r0,2)}, {vr(r1,2)}, {vr(WXS[1],2)}, {vr(r0,2)} op_sel_hi:[1,0,1]")
        a(f"v_fmac_f32 v{r0+2}, v{r1+2}, v{WXS[1]}")
    if rezero:
        a(mfma32(ACC[1], ZERO, ZERO, None))
    else:
        a("s_nop 0")
    for q in range(2):
        for c in range(3):
            a(f"v_permlane16_swap_b32 v{ACC[0]+4*q+c}, v{ACC[0]+4*(q+2)+c}")
    a("s_nop 0")
    for q in range(2):
        for c in range(3):
            a(f"v_add_f32 v{ACC[0]+4*q+c}, v{ACC[0]+4*q+c}, v{ACC[0]+4*(q+2)+c}")
    c0 = ACC[0]
    for c in range(3):
        a(f"v_add_f32_dpp v{c0+c}, v{c0+c}, v{c0+c} row_ror:8 row_mask:0xf bank_mask:0x3")
    for c in range(3):
        a(f"v_add_f32_dpp v{c0+c}, v{c0+4+c}, v{c0+4+c} row_ror:8 row_mask:0xf bank_mask:0xc")
    a(f"""
    v_add_f32_dpp v{c0}, v{c0}, v{c0} row_half_mirror row_mask:0xf bank_mask:0x5
    s_nop 0
    v_add_f32_dpp v{c0+2}, v{c0+2}, v{c0+2} row_half_mirror row_mask:0xf bank_mask:0xf
    v_add_f32_dpp v{c0}, v{c0+1}, v{c0+1} row_half_mirror row_mask:0xf bank_mask:0xa
    s_nop 0
    v_add_f32_dpp v{c0+2}, v{c0+2}, v{c0+2} quad_perm:[1,0,3,2] row_mask:0xf bank_mask:0xf
    v_add_f32_dpp v{c0}, v{c0}, v{c0} quad_perm:[1,0,3,2] row_mask:0xf bank_mask:0xf
    s_nop 0
    v_add_f32_dpp v{c0+2}, v{c0+2}, v{c0+2} quad_perm:[2,3,0,1] row_mask:0xf bank_mask:0xf
    v_add_f32_dpp v{c0}, v{c0}, v{c0} quad_perm:[2,3,0,1] row_mask:0xf bank_mask:0xf
    v_cndmask_b32 v{c0}, v{c0}, v{c0+2}, {sr(sCM)}
    v_cvt_f64_f32 {vr(FL+16,2)}, v{c0}
    s_mov_b64 exec, {sr(sPM)}
    ds_add_f64 v{T2}, {vr(FL+16,2)} offset:{ACCP}
    s_mov_b64 exec, -1
    """)
    if rezero:
        a(mfma32(ACC[0], ZERO, ZERO, None))

def window_masks(a):
    a(f"""
    v_subrev_u32 v{REL}, s{sWB}, v{DL}
    v_cmp_gt_u32 vcc, s{sC128}, v{REL}
    s_and_b64 {sr(sVN)}, vcc, {sr(sMR)}
    """)

def wx_load(a):
    a(f"""
    s_mul_i32 s{sTMP}, s{sWB}, {ARS//16}
    v_add_u32 v{T1}, s{sTMP}, v{AWT}
    ds_read_b64_tr_b16 {vr(WX[0]+2,2)}, v{T1}
    ds_read_b64_tr_b16 {vr(WX[1]+2,2)}, v{T1} offset:64
    """)

def mads(src):
    return [f"v_mad_u32_u16 v{R8+2*i}, v{src+2*i}, s{sC128}, v{CDMA+i}" for i in range(4)]
def dma_ops():
    return [f"buffer_load_dwordx4 v{R8+2*i}, {sr(sWS,4)}, s{sBT} offen offset:{1024*i} lds" for i in range(4)]

class Body:
    def __init__(self):
        self.it = []
    def op(self, s): self.it.append(("op", s))
    def ds(self, s, tag=None): self.it.append(("ds", s, tag))
    def wait(self, tag): self.it.append(("wait", tag))
    def emit(self, a):
        if OPT.abl:
            import re
            rx = re.compile(OPT.abl)
            drop = lambda x: bool(rx.search(x[1] if x[0] != "wait" else "WAIT"))
            tags = {x[2] for x in self.it if x[0] == "ds" and drop(x)}
            self.it = [x for x in self.it if not drop(x) and not (x[0] == "wait" and x[1] in tags)]
        n = len(self.it)
        for i, x in enumerate(self.it):
            if x[0] == "wait":
                cnt = 0; j = i - 1; found = False
                for _ in range(n):
                    y = self.it[j % n]
                    if y[0] == "ds":
                        if y[2] == x[1]:
                            found = True; break
                        cnt += 1
                    j -= 1
                assert found, x
                a(f"s_waitcnt lgkmcnt({min(cnt,15)})")
            else:
                a(x[1])

def unit_groups(b, u, pre, post):
    h = u % 2; ph = 1 - h
    ntile = (u + 1) // 2 % 2
    xx = XX if ntile == 0 else XX + 2
    wx = WX[ph] + 2 if ntile == 0 else WX[ph]
    mf = {0: mfma32(ACC[ph], S, M[ph], ACC[ph]),
          1: mfma32(D[ph], xx, wx, None),
          2: mfma32(ACC[ph], S + 4, M[ph] + 4, ACC[ph]),
          OPT.g0: mfma32(D[ph], X[ntile] + 8*ph, ID, D[ph]),
          OPT.g1: mfma32(D[ph], X[ntile] + 8*ph + 4, ID + 4, D[ph])}
    def put(lst):
        for x in lst:
            if isinstance(x, str): b.op(x)
            elif x[0] == "ds": b.ds(x[1], x[2] if len(x) > 2 else None)
            elif x[0] == "wait": b.wait(x[1])
    for g in range(8):
        put(pre.get(g, []))
        if g in mf: b.op(mf[g])
        p = g - 2; hh = h
        if p < 0: p += 8; hh = ph
        t = T + 2 * (p % 4)
        b.op(f"v_cvt_pk_bf16_f32 v{M[hh]+p}, v{t}, v{t+1}")
        t = T + 2 * (g % 4); y = D[h] + 2 * g
        b.op(f"v_exp_f32 v{t}, v{y}")
        b.op(f"v_exp_f32 v{t+1}, v{y+1}")
        p = g - 1; hh = h
        if p < 0: p += 8; hh = ph
        t2 = T + 2 * (p % 4); y2 = D[hh] + 2 * p
        b.op(f"v_rcp_f32 v{t2}, v{t2}")
        b.op(f"v_rcp_f32 v{t2+1}, v{t2+1}")
        b.op(f"v_pk_add_f32 {vr(t,2)}, {vr(t,2)}, 1.0 op_sel_hi:[1,0]")
        b.op(f"v_pk_mul_f32 {vr(t2,2)}, {vr(t2,2)}, {vr(y2,2)}")
        put(post.get(g, []))

def s_read(t):
    return [("ds", f"ds_read_b64_tr_b16 {vr(S+2*k,2)}, v{AS + 2*t + (k & 1)} offset:{2048*(k>>1)}", "S" if k == 3 else None) for k in range(4)]
def s_write():
    return [("ds", f"ds_write_b64 v{SAD}, {vr(DXY,2)}")]
def s_clear():
    return [("ds", f"ds_write_b64 v{SAD}, {vr(ZERO,2)}")]
def r_read(t, dst=None):
    d = R8 if dst is None else dst
    return [("ds", f"ds_read_b128 {vr(d,4)}, v{A4} offset:{LIST + 256*t}"),
            ("ds", f"ds_read_b128 {vr(d+4,4)}, v{A4} offset:{LIST + 256*t + 16}", "R")]
def x_read(t):
    o = ["s_waitcnt vmcnt(0)"]
    for k in range(4):
        o.append(("ds", f"ds_read_b128 {vr(X[t]+4*k,4)}, v{AX+k}", "X" if k == 3 else None))
    return o
def pos_load():
    return [f"v_mad_u32_u16 v{TA}, v{REC}, 8, 0",
            f"buffer_load_dwordx2 {vr(PS,2)}, v{TA}, {sr(sWS,4)}, s{sP8} offen"]
def geo_addr():
    return [("ds", f"ds_read_b128 {vr(PD,4)}, v{DL} offset:{POSD}", "P")]
def geo_lut():
    return [("ds", f"ds_read_b64 {vr(XX,2)}, v{REL} offset:{LUT}"),
            ("ds", f"ds_read_b64 {vr(XX+4,2)}, v{REL} offset:{LUT+8}", "L"),
            f"v_mov_b32 v{XX+3}, v{REC}"]
def geo_diff():
    return [f"v_dot2_f32_bf16 v{DX}, v{PS}, s{sM10}, v{PD}",
            f"v_dot2_f32_bf16 v{DX+1}, v{PS}, s{s0M1}, v{PD+1}",
            f"v_dot2_f32_bf16 v{DX+2}, v{PS+1}, s{sM10}, v{PD+2}"]
def geo_cvt():
    return [f"v_xor_b32 v{TA}, v{REL}, v{SROW}",
            f"v_cndmask_b32 v{SAD}, v{DUMMY}, v{TA}, {sr(sVN)}",
            f"v_cvt_pk_bf16_f32 v{DXY}, v{DX}, v{DX+1}",
            f"v_cvt_pk_bf16_f32 v{DXY+1}, v{DX+2}, 1.0"]
def geo_d2():
    return [f"v_dot2_f32_bf16 v{DD}, v{DXY+1}, v{DXY+1}, -1.0",
            f"v_dot2_f32_bf16 v{DD}, v{DXY}, v{DXY}, v{DD}"]
def geo_fin():
    return [f"v_cvt_pk_bf16_f32 v{XX+2}, v{DD}, v{DD}",
            f"v_permlane32_swap_b32 v{XX}, v{XX+4}",
            f"v_permlane32_swap_b32 v{XX+1}, v{XX+5}"]
def list_reads():
    return [f"v_add_u32 v{TA}, s{sPN8}, v{LANE8}",
            ("ds", f"ds_read_b64 {vr(REC,2)}, v{TA} offset:{LIST}", "E"),
            f"v_add_u32 v{A4}, s{sPN8}, v{G8}"] + r_read(0)
def advance():
    return [f"s_bcnt1_i32_b64 s{sNX}, {sr(sVN)}",
            f"s_lshl3_add_u32 s{sPN8}, s{sNX}, s{sPN8}"]
def plain(a, lst):
    for x in lst:
        a(x if isinstance(x, str) else x[1])

def gen_main_loop(a):
    b = Body()
    unit_groups(b, 0,
        pre={3: s_read(0),
             4: list_reads(),
             5: [f"s_cmp_lg_u32 s{sFFL}, 0", "s_cbranch_scc1 K2_FLUSH", "K2_FLUSH_RET:"],
             6: [("wait", "E")] + x_read(1) + pos_load(),
             7: [("wait", "R")] + mads(R8)},
        post={})
    unit_groups(b, 1,
        pre={0: [f"v_subrev_u32 v{REL}, s{sWB}, v{DL}",
                 f"v_cmp_gt_i32 {sr(sMR)}, s{sREM}, v{LANE8}",
                 f"v_cmp_gt_u32 vcc, s{sC128}, v{REL}"],
             1: [f"s_and_b64 {sr(sVN)}, vcc, {sr(sMR)}",
                 f"s_cmp_lg_u64 {sr(sVN)}, {sr(sMR)}",
                 "s_cbranch_scc1 K2_REBASE", "K2_REBASE_RET:"] + advance() + [("wait", "X")] + dma_ops(),
             2: geo_addr()},
        post={})
    unit_groups(b, 2,
        pre={0: ([f"s_cmp_eq_u32 s{sNX}, 0", "s_cbranch_scc1 K2_PRIO0", "K2_PRIO0_RET:"] if OPT.prio else []),
             2: [f"s_cmp_lg_u32 s{sFWX}, 0", "s_cbranch_scc1 K2_WXL", "K2_WXL_RET:"] + geo_lut(),
             3: s_read(1) + s_clear(),
             4: r_read(1) + geo_cvt(),
             5: s_write(),
             6: x_read(0) + [("wait", "L")] + geo_fin(),
             7: [("wait", "R")] + mads(R8)},
        post={2: ["s_waitcnt vmcnt(4)", ("wait", "P")] + geo_diff(),
              4: geo_d2()})
    unit_groups(b, 3,
        pre={1: [("wait", "X")] + dma_ops()},
        post={})
    a(".p2align 6")
    a.label("K2_LOOP")
    a(f"s_sub_u32 s{sREM}, s{sEND}, s{sPN8}")
    if OPT.prio:
        a(f"s_cmp_le_i32 s{sREM}, s{sTHR}\ns_cbranch_scc1 K2_PRIO\nK2_PRIO_RET:")
    b.emit(a)
    if OPT.abl:
        a("s_sub_u32 s67, s67, 1\ns_cmp_lg_u32 s67, 0\ns_cbranch_scc1 K2_LOOP")
    else:
        a(f"s_cmp_lg_u32 s{sNX}, 0\ns_cbranch_scc1 K2_LOOP")


def epi_reads(a):
    a(f"""
    s_lshr_b32 s{sTMP}, s3, 2
    s_lshl_b32 s{sTMP}, s{sTMP}, 13
    s_add_u32 s{sTMP}, s{sTMP}, {WHB}
    v_lshl_add_u32 v{TA}, v{LANE8}, 1, s{sTMP}
    """)
    for i in range(8):
        a(f"ds_read_b128 {vr(X[0]+4*i,4)}, v{TA} offset:{1024*i}")
    a(f"ds_read_b128 {vr(EW,4)}, v{EH}\nds_read_b128 {vr(EW+4,4)}, v{EH+1}")

def gen_k2(a):
    a.label("gather_scatter__cheap_equivariant_egnn__graph_kernel")
    if OPT.stamps == 4: a("s_memrealtime s[94:95]")
    tmp = D[0]
    L16 = tmp + 78; L4 = tmp + 79; LANE = tmp + 77; QJ = FL + 5
    a(f"""
    s_cmp_ge_u32 s2, 256
    s_cbranch_scc1 K2_END
    s_load_dwordx2 {sr(sWS)}, s[0:1], 80
    s_load_dwordx2 {sr(sH)}, s[0:1], 0
    s_load_dwordx2 {sr(sOUT)}, s[0:1], 64
    s_lshr_b32 s{sROT}, s2, 3
    s_and_b32 s2, s2, 7
    s_lshl_b32 s2, s2, 5
    s_add_u32 s2, s2, s{sROT}
    v_readfirstlane_b32 s3, v0
    v_lshrrev_b32 v{tmp}, 2, v0
    v_mul_u32_u24 v{tmp+1}, {OSTR}, v{tmp}
    s_mov_b32 s{sWS+2}, {WS_SRD}
    s_mov_b32 s{sWS+3}, 0x00020000
    s_lshl2_add_u32 s63, s2, {OFFT}
    s_add_u32 s62, s63, {128*OSTR}
    s_lshr_b32 s3, s3, 6
    s_mul_i32 s{sNB}, s2, {NPB}
    s_lshl_b32 s{sW10}, s3, 10
    v_and_b32 v{LANE}, 63, v0
    v_lshlrev_b32 v{L16}, 4, v{LANE}
    s_add_u32 m0, s{sW10}, {LIST}
    s_add_u32 s{sTMP}, s{sW10}, {CI}
    s_waitcnt lgkmcnt(0)
    buffer_load_dword v{OFFV[0]}, v{tmp+1}, {sr(sWS,4)}, s63 offen
    buffer_load_dword v{OFFV[1]}, v{tmp+1}, {sr(sWS,4)}, s62 offen
    """)
    if OPT.stamps:
        a(f"s_lshl_b32 s66, s2, 4\ns_add_u32 s66, s66, s3\ns_lshl_b32 s66, s66, 6\ns_add_u32 s66, s66, {DBG_WS + 256*16*64}")
    stamp(a, 2, 0); stamp(a, 2, 14, True)
    if OPT.stamps == 4:
        a("v_mov_b32 v252, s94\ns_mov_b64 s[64:65], exec\ns_mov_b64 exec, 1\nbuffer_store_dword v252, v253, s[12:15], 0 offen offset:32\ns_mov_b64 exec, s[64:65]")
    nvm = 2 if OPT.stamps else 0
    a(f"""
    """)
    a(f"""
    buffer_load_dwordx4 v{L16}, {sr(sWS,4)}, s{sTMP} offen lds
    v_mul_u32_u24 v1, {PSTR}, v{tmp}
    s_mov_b32 s{sH+2}, {N*128}
    s_mov_b32 s{sH+3}, 0x00020000
    s_cmp_eq_u32 s3, 7
    s_cbranch_scc1 K2_PD1
    s_and_b32 s{sTMP}, s3, 1
    s_lshl_b32 s{sTMP}, s{sTMP}, 6
    v_and_b32 v{T2}, 48, v{LANE}
    v_xor_b32 v{T2}, v{T2}, v{L16}
    v_xor_b32 v{T2}, s{sTMP}, v{T2}
    s_lshl_b32 s{sTMP+1}, s{sNB}, 7
    s_add_u32 s{sTMP+1}, s{sTMP+1}, s{sW10}
    s_add_u32 m0, s{sW10}, {HRB}
    s_cmp_ge_u32 s3, 3
    buffer_load_dwordx4 v{T2}, {sr(sH,4)}, s{sTMP+1} offen lds
    s_cbranch_scc1 K2_NOC2
    s_add_u32 m0, s{sW10}, {LIST + 8192}
    s_add_u32 s{sTMP}, s{sW10}, {CI + 8192}
    buffer_load_dwordx4 v{L16}, {sr(sWS,4)}, s{sTMP} offen lds
    s_branch K2_NOC2
    K2_PD1:
    s_lshl3_add_u32 s{sTMP}, s{sNB}, {P8}
    v_lshlrev_b32 v{T2}, 3, v{LANE}
    buffer_load_dwordx2 {vr(PS,2)}, v{T2}, {sr(sWS,4)}, s{sTMP} offen
    K2_NOC2:
    s_add_u32 m0, s{sW10}, {W1B}
    s_add_u32 s{sTMP}, s{sW10}, {WF + 16384}
    buffer_load_dwordx4 v{L16}, {sr(sWS,4)}, s{sTMP} offen lds
    v_and_b32 v{J4}, 3, v0
    """)
    nvm += 3
    a(f"""
    v_mov_b32 v{ZERO}, 0
    v_mov_b32 v{ZERO+1}, 0
    v_mov_b32 v{ZERO+2}, 0
    v_mov_b32 v{ZERO+3}, 0
    v_lshlrev_b32 v{T1}, 4, v0
    s_cmp_ge_u32 s3, 3
    s_cbranch_scc1 K2_NOZL
    ds_write_b128 v{T1}, {vr(ZERO,4)}
    K2_NOZL:
    v_add_u32 v{T1}, {ACCM}, v{T1}
    """)
    if OPT.zearly:
        for i in range(8):
            a(f"ds_write_b128 v{T1}, {vr(ZERO,4)} offset:{8192*i}")
    a(f"""
    v_lshlrev_b32 v{J4}, 2, v{J4}
    v_lshlrev_b32 v{L4}, 2, v{LANE}
    s_sub_u32 s{sNN}, {N}, s{sNB}
    s_min_u32 s{sNN}, s{sNN}, {NPB}
    s_mov_b32 s{sOUT+2}, {N*134}
    s_mov_b32 s{sOUT+3}, 0x00020000
    s_movk_i32 s{sC128}, 128
    s_mov_b32 s{sM10}, 0x0000bf80
    s_mov_b32 s{s0M1}, 0xbf800000
    s_mov_b32 s{sP8}, {P8}
    s_mov_b32 s{sBT}, {BTAB - 3072}
    s_mov_b32 s{sQ}, 32
    s_mov_b32 s{sFIRST}, 1
    s_mov_b32 s{sPM}, 0x13131313
    s_mov_b32 s{sPM+1}, 0x13131313
    s_mov_b32 s{sCM}, 0x02020202
    s_mov_b32 s{sCM+1}, 0x02020202
    s_waitcnt vmcnt({nvm})
    v_add_u32_sdwa v{START[0]}, v{J4}, v{OFFV[0]} dst_sel:DWORD dst_unused:UNUSED_PAD src0_sel:DWORD src1_sel:WORD_0
    v_add_u32_sdwa v{START[1]}, v{J4}, v{OFFV[1]} dst_sel:DWORD dst_unused:UNUSED_PAD src0_sel:DWORD src1_sel:WORD_0
    """)
    stamp(a, 2, 1)
    RECS = tmp; LW = tmp + 16; DLS = tmp + 24; RK = tmp + 40; BS = tmp + 56
    AR = tmp + 72; AL = tmp + 73; ONE = tmp + 74; PV = tmp + 75
    AR2 = [AR, FL]; AL2 = [AL, FL + 1]; REM = [FL + 3, FL + 4]
    a.label("K2_ROUND")
    a(f"""
    s_mov_b32 s{sTMP}, {128*PSTR}
    s_movk_i32 s{sTMP+1}, {L_OFF}
    s_mov_b32 s{sTMP+2}, {128*PSTR + L_OFF}
    """)
    for x in range(2):
        a(f"""
        v_lshl_add_u32 v{AR2[x]}, v{START[x]}, 2, v1
        v_add_u32 v{AL2[x]}, v{START[x]}, v1
        buffer_load_dwordx4 {vr(RECS+8*x,4)}, v{AR2[x]}, {sr(sWS,4)}, {'s%d' % sTMP if x else 0} offen
        v_and_b32 v{AL2[x]}, -4, v{AL2[x]}
        buffer_load_dwordx2 {vr(LW+4*x,2)}, v{AL2[x]}, {sr(sWS,4)}, s{sTMP+1+x} offen
        """)
    a(f"v_sub_u32 v{QJ}, s{sQ}, v{J4}")
    for x in range(2):
        a(f"""
        v_sub_u32_sdwa v{REM[x]}, v{OFFV[x]}, v{START[x]} dst_sel:DWORD dst_unused:UNUSED_PAD src0_sel:WORD_1 src1_sel:DWORD
        s_nop 0
        v_cmp_gt_i32 {sr(sF0+2*x)}, v{REM[x]}, v{QJ}
        v_min_i32 v{REM[x]}, v{REM[x]}, v{QJ}
        v_cmp_lt_i32 vcc, 16, v{REM[x]}
        s_or_b64 exec, vcc, 1
        buffer_load_dwordx4 {vr(RECS+8*x+4,4)}, v{AR2[x]}, {sr(sWS,4)}, {'s%d' % sTMP if x else 0} offen offset:64
        buffer_load_dwordx2 {vr(LW+4*x+2,2)}, v{AL2[x]}, {sr(sWS,4)}, s{sTMP+1+x} offen offset:16
        s_mov_b64 exec, -1
        """)
    ntouch = 1 if OPT.touch else 0
    a(f"""
    v_mov_b32 v{ONE}, 1
    s_cmp_eq_u32 s{sFIRST}, 0
    s_cbranch_scc1 K2_NOTFIRST
    """)
    a(f"""
    s_waitcnt vmcnt({8 + (1 if OPT.stamps == 1 else 0)}) lgkmcnt(0)
    s_barrier
    """)
    if OPT.stamps == 1: stamp(a, 2, 12)
    a("s_cmp_ge_u32 s3, 4\ns_cbranch_scc1 K2_AJOB\nK2_NOA:")
    for f in range(8):
        a(f"ds_read_b128 {vr(CB+4*f,4)}, v{L16} offset:{LIST + 1024*f}")
    for h in range(2):
        a(f"ds_read_b64 {vr(WX[h],2)}, v{L16} offset:{LIST + 8192 + 1024*h}")
        a(f"ds_read_b64 {vr(WX[h]+4,2)}, v{L16} offset:{LIST + 8192 + 1024*h + 8}")
    a(f"""
    ds_read_b128 {vr(WXS[0],4)}, v{L16} offset:{LIST + 10240}
    s_lshl_b32 s{sTMP}, s3, 12
    s_and_b32 s{sTMP+1}, s3, 3
    s_mul_i32 s{sTMP+2}, s{sTMP+1}, {16*RS}
    s_lshl_b32 s{sTMP+1}, s{sTMP+1}, 11
    """)
    if not OPT.zearly:
        for i in range(8):
            a(f"ds_write_b128 v{T1}, {vr(ZERO,4)} offset:{8192*i}")
    a(f"s_waitcnt lgkmcnt({5 if OPT.zearly else 13})")
    for r in list(range(AX, AX + 8)) + [SROW]:
        a(f"v_add_u32 v{r}, s{sTMP}, v{r}")
    a(f"""
    v_add_u32 v{EA_}, s{sTMP+2}, v{EA_}
    v_add_u32 v{EH}, s{sTMP+1}, v{EH}
    v_add_u32 v{EH+1}, s{sTMP+1}, v{EH+1}
    s_cmp_lg_u32 s3, 5
    s_cbranch_scc1 K2_NOLUT
    s_mov_b64 exec, 0xff
    ds_write_b32 v{LUA}, v{LUV} offset:{LUT}
    s_mov_b64 exec, -1
    K2_NOLUT:
    s_waitcnt vmcnt(0)
    s_add_u32 m0, s{sW10}, {WHB}
    s_add_u32 s{sTMP}, s{sW10}, {WF}
    buffer_load_dwordx4 v{L16}, {sr(sWS,4)}, s{sTMP} offen lds
    s_add_u32 m0, s{sW10}, {WHB + 8192}
    s_add_u32 s{sTMP}, s{sW10}, {WF + 8192}
    buffer_load_dwordx4 v{L16}, {sr(sWS,4)}, s{sTMP} offen lds
    """)
    if OPT.touch:
        a(f"""
        s_mul_i32 s{sTMP+1}, s{sROT}, {392*128}
        s_mul_i32 s{sTMP+2}, s3, {49*128}
        s_add_u32 s{sTMP+1}, s{sTMP+1}, s{sTMP+2}
        s_add_u32 s{sTMP+1}, s{sTMP+1}, {BTAB}
        v_lshlrev_b32 v{TCH}, 7, v{LANE}
        v_add_u32 v{TCH}, s{sTMP+1}, v{TCH}
        s_lshl3_add_u32 s{sTMP+1}, s{sROT}, s3
        s_lshl_b32 s{sTMP+1}, s{sTMP+1}, 9
        s_add_u32 s{sTMP+1}, s{sTMP+1}, {P8 - 49*128}
        v_lshl_add_u32 v{T1}, v{LANE}, 7, s{sTMP+1}
        v_cmp_gt_u32 vcc, 49, v{LANE}
        s_mov_b32 exec_lo, {hex((1 << min(32, OPT.touch)) - 1)}
        s_mov_b32 exec_hi, {hex(((1 << max(0, OPT.touch - 32)) - 1) | (15 << 17))}
        v_cndmask_b32 v{TCH}, v{T1}, v{TCH}, vcc
        buffer_load_dword v{TCH}, v{TCH}, {sr(sWS,4)}, 0 offen
        s_mov_b64 exec, -1
        """)
    a(f"""
    s_branch K2_COUNT
    K2_NOTFIRST:
    v_lshrrev_b32 v{L4}, 1, v{LANE8}
    s_waitcnt lgkmcnt(0)
    s_barrier
    s_waitcnt vmcnt(0)
    K2_COUNT:
    """)
    stamp(a, 2, 2)
    a(f"""
    s_or_b64 vcc, {sr(sF0)}, {sr(sF0+2)}
    s_cbranch_scc0 K2_NOFLAG
    v_mov_b32 v{PV}, {FLAG}
    ds_write_b32 v{PV}, v{ONE}
    K2_NOFLAG:
    """)
    for x in range(2):
        for i in range(2):
            g = 2*x + i
            for k in range(4):
                s = 4*g + k
                a(f"v_cmpx_lt_i32 vcc, {16*i+k}, v{REM[x]}")
                if i == 1:
                    a(f"s_cbranch_execz K2_CNT_{x}")
                if k == 0:
                    a(f"v_alignbyte_b32 v{LW+2*g}, v{LW+2*g+1}, v{LW+2*g}, v{START[x]}")
                a(f"v_lshlrev_b32_sdwa v{DLS+s}, 2, v{LW+2*g} dst_sel:DWORD dst_unused:UNUSED_PAD src0_sel:DWORD src1_sel:BYTE_{k}")
                a(f"ds_add_rtn_u32 v{RK+s}, v{DLS+s}, v{ONE} offset:{CNT2}")
        a(f"K2_CNT_{x}:\ns_mov_b64 exec, -1")
    a(f"""
    v_mov_b32 v{AR}, {FLAG}
    s_movk_i32 s{sTMP}, {LIST}
    s_waitcnt lgkmcnt(0)
    s_barrier
    """)
    stamp(a, 2, 3)
    a(f"""
    ds_read_b32 v{PV}, v{L4} offset:{CNT2}
    ds_read_b32 v{AL}, v{AR}
    s_waitcnt lgkmcnt(1)
    v_mov_b32 v{AR}, v{PV}
    """)
    wave_scan(a, AR)
    a(f"""
    v_sub_u32 v{PV}, v{AR}, v{PV}
    v_readlane_b32 s{sT}, v{AR}, 63
    v_lshl_add_u32 v{PV}, v{PV}, 3, s{sTMP}
    ds_write_b32 v{L4}, v{PV} offset:{PRE2}
    """)
    for x in range(2):
        for k in range(4):
            s = 8*x + k
            a(f"ds_read_b32 v{BS+s}, v{DLS+s} offset:{PRE2}")
    for x in range(2):
        a(f"v_cmpx_lt_i32 vcc, 16, v{REM[x]}\ns_cbranch_execz K2_SR_{x}")
        for k in range(4):
            s = 8*x + 4 + k
            a(f"ds_read_b32 v{BS+s}, v{DLS+s} offset:{PRE2}")
        a(f"K2_SR_{x}:\ns_mov_b64 exec, -1")
    a(f"""
    s_cmp_gt_u32 s{sT}, {CAP}
    s_cbranch_scc1 K2_OVER
    s_add_u32 s{sTMP+4}, s{sT}, 63
    s_lshr_b32 s{sTMP+4}, s{sTMP+4}, 6
    s_lshr_b32 s{sTMP+1}, s{sTMP+4}, 3
    s_and_b32 s{sTMP+2}, s{sTMP+4}, 7
    s_mul_i32 s{sPN8}, s3, s{sTMP+1}
    s_min_u32 s{sTMP+3}, s3, s{sTMP+2}
    s_add_u32 s{sPN8}, s{sPN8}, s{sTMP+3}
    s_cmp_lt_u32 s3, s{sTMP+2}
    s_addc_u32 s{sTMP+1}, s{sTMP+1}, s{sPN8}
    s_lshl_b32 s{sPN8}, s{sPN8}, 9
    s_lshl_b32 s{sEND}, s{sTMP+1}, 9
    s_lshl_b32 s{sT}, s{sT}, 3
    s_min_u32 s{sEND}, s{sEND}, s{sT}
    s_lshl2_add_u32 m0, s{sW10}, {STG}
    s_mov_b64 {sr(sFWX)}, 0
    s_movk_i32 s{sTHR}, {512*OPT.prio}
    s_cmp_lg_u32 s3, 0
    s_cbranch_scc1 K2_NOPAD
    v_add_u32 v{AR}, s{sT}, v{LANE8}
    v_mov_b32 v{FL+6}, 0
    v_mov_b32 v{FL+7}, {16*NPB}
    ds_write_b64 v{AR}, {vr(FL+6,2)} offset:{LIST}
    K2_NOPAD:
    s_waitcnt lgkmcnt(0)
    v_readfirstlane_b32 s{sMORE}, v{AL}
    """)
    if OPT.stamps != 4: stamp(a, 2, 11)
    for x in range(2):
        for i in range(2):
            for k in range(4):
                s = 8*x + 4*i + k
                pr = FL + 6 + 2 * (s % 4)
                a(f"v_cmpx_lt_i32 vcc, {16*i+k}, v{REM[x]}")
                if i == 1: a(f"s_cbranch_execz K2_SC_{x}")
                a(f"""
                v_lshl_add_u32 v{BS+s}, v{RK+s}, 3, v{BS+s}
                v_mov_b32 v{pr}, v{RECS+s}
                v_lshlrev_b32 v{pr+1}, 2, v{DLS+s}
                ds_write_b64 v{BS+s}, {vr(pr,2)}
                """)
        a(f"K2_SC_{x}:\ns_mov_b64 exec, -1")
    a(f"""
    v_add_u32 v{TA}, s{sPN8}, v{LANE8}
    v_add_u32 v{A4}, s{sPN8}, v{G8}
    {mfma32(ACC[0], ZERO, ZERO, None)}
    {mfma32(ACC[1], ZERO, ZERO, None)}
    s_sub_u32 s{sREM}, s{sEND}, s{sPN8}
    v_cmp_gt_i32 {sr(sMR)}, s{sREM}, v{LANE8}
    {mfma32(S, ZERO, ZERO, None)}
    """)
    if OPT.stamps != 4: stamp(a, 2, 10)
    a(f"s_waitcnt vmcnt({ntouch + (4 if OPT.stamps == 1 else 0)}) lgkmcnt(0)\ns_barrier")
    stamp(a, 2, 4)
    a(f"""
    s_cmp_ge_u32 s{sPN8}, s{sEND}
    s_cbranch_scc1 K2_NOWORK
    """)
    RB4 = D[1]
    if OPT.abl:
        a(f"s_add_u32 s67, s{sREM}, 511\ns_lshr_b32 s67, s67, 9")
    plain(a, r_read(0))
    plain(a, list_reads()[1:2])
    plain(a, r_read(1, RB4))
    a(mfma32(D[1] + 14, ZERO, ZERO, None))
    a("s_waitcnt lgkmcnt(3)")
    plain(a, mads(R8))
    plain(a, dma_ops())
    a("s_waitcnt lgkmcnt(0)")
    plain(a, pos_load())
    a(f"""
    v_readfirstlane_b32 s{sWB}, v{DL}
    v_mov_b32 v{T+6}, 1.0
    v_mov_b32 v{T+7}, 1.0
    s_min_u32 s{sWB}, s{sWB}, {16*(NPB-8)}
    """)
    window_masks(a)
    wx_load(a)
    plain(a, geo_addr())
    plain(a, geo_lut())
    plain(a, advance())
    plain(a, mads(RB4))
    a("s_waitcnt lgkmcnt(0)")
    plain(a, geo_fin()[1:])
    a("s_waitcnt vmcnt(1)")
    plain(a, x_read(0)[1:])
    a("s_waitcnt vmcnt(0)")
    plain(a, geo_diff())
    a("s_waitcnt lgkmcnt(2)")
    a(mfma32(D[0], X[0], ID, None))
    plain(a, geo_cvt())
    a(mfma32(D[0], X[0] + 4, ID + 4, D[0]))
    plain(a, geo_d2())
    a("s_waitcnt lgkmcnt(0)")
    plain(a, dma_ops()[:2])
    plain(a, geo_fin()[:1])
    plain(a, dma_ops()[2:])
    a(mfma32(D[0], XX, WX[0] + 2, D[0]))
    plain(a, s_write())
    a("s_nop 7")
    if OPT.prio: a("s_setprio 3")
    stamp(a, 2, 5)
    gen_main_loop(a)
    stamp(a, 2, 6)
    t2 = T + 2 * (7 % 4); y2 = D[1] + 14; t6 = T + 2 * (6 % 4)
    a(f"""
    {mfma32(ACC[1], S, M[1], ACC[1])}
    v_rcp_f32 v{t2}, v{t2}
    v_rcp_f32 v{t2+1}, v{t2+1}
    v_cvt_pk_bf16_f32 v{M[1]+6}, v{t6}, v{t6+1}
    v_mul_f32 v{t2}, v{t2}, v{y2}
    v_mul_f32 v{t2+1}, v{t2+1}, v{y2+1}
    v_cvt_pk_bf16_f32 v{M[1]+7}, v{t2}, v{t2+1}
    s_mov_b32 s{sWBO}, s{sWB}
    s_nop 0
    {mfma32(ACC[1], S+4, M[1]+4, ACC[1])}
    """)
    epi_reads(a)
    flush_code(a, False, 'A')
    a.label("K2_WDONE")
    stamp(a, 2, 7)
    a(f"""
    s_cmp_lg_u32 s{sMORE}, 0
    s_cbranch_scc1 K2_MORE
    """)
    MB_ = M[0]; U = ACC[0]; HR = D[0]; EX = D[0] + 8; MFS = [D[1], ACC[1]]
    a(f"""
    s_movk_i32 s{sTMP+3}, 21846
    v_mul_u32_u24 v{DX}, s{sTMP+3}, v0
    s_mul_i32 s{sTMP+4}, s{sNB}, 6
    s_add_u32 s{sTMP+4}, s{sTMP+4}, {N*128}
    v_add_u32_sdwa v{DX}, v{DX}, v0 dst_sel:DWORD dst_unused:UNUSED_PAD src0_sel:WORD_1 src1_sel:DWORD
    v_lshlrev_b32 v{PD}, 1, v0
    s_mul_i32 s{sTMP+5}, s{sNN}, 3
    v_cmp_gt_u32 {sr(sF0+2)}, s{sTMP+5}, v0
    v_lshlrev_b32 v{DX+1}, 2, v{DX}
    v_lshlrev_b32 v{DX}, 3, v{DX}
    s_and_b32 s{sTMP}, s3, 3
    s_lshl_b32 s{sTMP}, s{sTMP}, 4
    s_sub_i32 s{sTMP+5}, s{sNN}, s{sTMP}
    s_lshl_b32 s{sTMP+5}, s{sTMP+5}, 7
    v_cmp_gt_i32 {sr(sF0)}, s{sTMP+5}, v{EO}
    s_add_u32 s{sTMP}, s{sTMP}, s{sNB}
    s_lshl_b32 s{sTMP}, s{sTMP}, 7
    s_lshr_b32 s{sTMP+1}, s3, 2
    s_lshl_b32 s{sTMP+1}, s{sTMP+1}, 6
    s_add_u32 s{sTMP}, s{sTMP}, s{sTMP+1}
    s_mov_b32 s{sTMP+2}, {f32(-LN2)}
    s_mov_b32 s{sTMP+3}, 0xffff0000
    s_waitcnt lgkmcnt(0)
    {mfma16(U, X[0], EW, None)}
    {mfma16(U+4, X[0]+16, EW, None)}
    {mfma16(U, X[0]+4, EW+4, U)}
    {mfma16(U+4, X[0]+20, EW+4, U+4)}
    s_cmp_lt_u32 s3, 4
    s_cbranch_scc1 K2_HLO
    """)
    for r in range(4):
        a(f"v_lshlrev_b32 v{HR+2*r}, 16, v{EW+4+r}\nv_and_b32 v{HR+2*r+1}, s{sTMP+3}, v{EW+4+r}")
    a("s_branch K2_HOK\nK2_HLO:")
    for r in range(4):
        a(f"v_lshlrev_b32 v{HR+2*r}, 16, v{EW+r}\nv_and_b32 v{HR+2*r+1}, s{sTMP+3}, v{EW+r}")
    a("K2_HOK:\ns_barrier")
    stamp(a, 2, 8)
    for s in range(2):
        for k in range(4):
            a(f"ds_read_b128 {vr(MFS[s]+4*k,4)}, v{EA_} offset:{256*s + 16*k}")
    a(f"ds_read_b32 v{DX+1}, v{DX+1} offset:{POSD}\nds_read_b64 {vr(PS,2)}, v{DX} offset:{ACCP}")
    for s in range(2):
        for k in range(4):
            a(f"s_waitcnt lgkmcnt({9 - 4*s - k})")
            a(f"v_cvt_f32_f64 v{MFS[s]+4*k}, {vr(MFS[s]+4*k,2)}")
            a(f"v_cvt_f32_f64 v{MFS[s]+4*k+1}, {vr(MFS[s]+4*k+2,2)}")
            a(f"v_mul_f32 v{MFS[s]+4*k}, s{sTMP+2}, v{MFS[s]+4*k}")
            a(f"v_mul_f32 v{MFS[s]+4*k+1}, s{sTMP+2}, v{MFS[s]+4*k+1}")
            a(f"v_cvt_pk_bf16_f32 v{MB_+4*s+k}, v{MFS[s]+4*k}, v{MFS[s]+4*k+1}")
        a("s_nop 1")
        a(mfma16(U, X[0]+8+4*s, MB_+4*s, U))
        a(mfma16(U+4, X[0]+24+4*s, MB_+4*s, U+4))
    a(f"""
    s_mov_b32 s{sTMP+2}, {f32(-L2E)}
    s_mov_b64 exec, {sr(sF0+2)}
    s_cbranch_execz K2_NOPOS
    s_waitcnt lgkmcnt(0)
    v_cvt_f32_f64 v{DX+2}, {vr(PS,2)}
    v_add_f32 v{DX+1}, v{DX+1}, v{DX+2}
    v_cvt_pk_bf16_f32 v{DX+1}, v{DX+1}, v{DX+1}
    buffer_store_short v{DX+1}, v{PD}, {sr(sOUT,4)}, s{sTMP+4} offen
    K2_NOPOS:
    s_mov_b64 exec, -1
    s_nop 4
    """)
    for r in range(8):
        a(f"v_mul_f32 v{EX+r}, s{sTMP+2}, v{U+r}")
    for r in range(8):
        a(f"v_exp_f32 v{EX+r}, v{EX+r}")
    for r in range(0, 8, 2):
        a(f"v_pk_add_f32 {vr(EX+r,2)}, {vr(EX+r,2)}, 1.0 op_sel_hi:[1,0]")
    for r in range(8):
        a(f"v_rcp_f32 v{EX+r}, v{EX+r}")
    for r in range(0, 8, 2):
        a(f"v_pk_fma_f32 {vr(HR+r,2)}, {vr(EX+r,2)}, {vr(U+r,2)}, {vr(HR+r,2)}")
    for r in range(4):
        a(f"v_cvt_pk_bf16_f32 v{EX+r}, v{HR+2*r}, v{HR+2*r+1}")
    a(f"""
    s_mov_b64 exec, {sr(sF0)}
    s_cbranch_execz K2_END
    buffer_store_dwordx4 {vr(EX,4)}, v{EO}, {sr(sOUT,4)}, s{sTMP} offen
    """)
    if OPT.stamps:
        a("s_waitcnt vmcnt(0)")
    stamp(a, 2, 9); stamp(a, 2, 15, True)
    a("K2_END:\ns_endpgm")
    a.label("K2_NOWORK")
    epi_reads(a)
    a("s_branch K2_WDONE")
    a.label("K2_FLUSH")
    flush_code(a, True, 'B')
    a(f"s_mov_b32 s{sFFL}, 0\ns_branch K2_FLUSH_RET")
    a.label("K2_REBASE")
    a(f"""
    s_mov_b32 s{sWBO}, s{sWB}
    v_readfirstlane_b32 s{sWB}, v{DL}
    s_mov_b32 s{sFWX}, 1
    s_mov_b32 s{sFFL}, 1
    s_min_u32 s{sWB}, s{sWB}, {16*(NPB-8)}
    """)
    window_masks(a)
    a("s_branch K2_REBASE_RET")
    a.label("K2_WXL")
    wx_load(a)
    a(f"s_mov_b32 s{sFWX}, 0\ns_branch K2_WXL_RET")
    if OPT.prio:
        a(f"""
        K2_PRIO:
        s_cmp_gt_i32 s{sREM}, 0
        s_cbranch_scc0 K2_PRIO1
        s_setprio 2
        s_mov_b32 s{sTHR}, 0
        s_branch K2_PRIO_RET
        K2_PRIO1:
        s_setprio 1
        s_branch K2_PRIO_RET
        K2_PRIO0:
        s_setprio 0
        s_branch K2_PRIO0_RET
        """)
    AW = ACC[0]; AH = ACC[1]; AD = S
    a(f"""
    K2_AJOB:
    {'s_setprio 1' if OPT.aprio else ''}
    s_bfe_u32 s{sTMP+1}, s3, 0x10001
    s_lshl_b32 s{sTMP+2}, s{sTMP+1}, 12
    s_add_u32 s{sTMP+2}, s{sTMP+2}, {W1B}
    v_add_u32 v{T1}, s{sTMP+2}, v{L16}
    s_and_b32 s{sTMP+3}, s3, 1
    s_lshl_b32 s{sTMP+3}, s{sTMP+3}, 12
    v_and_b32 v{T2}, 31, v{LANE}
    v_lshlrev_b32 v{T2}, 7, v{T2}
    v_add_u32 v{T2}, s{sTMP+3}, v{T2}
    v_lshrrev_b32 v{TA}, 5, v{LANE}
    v_bfe_u32 v{REL}, v{LANE}, 1, 3
    v_xor_b32 v{REL}, v{REL}, v{TA}
    v_lshl_add_u32 v{REL}, v{REL}, 4, v{T2}
    """)
    for k in range(4):
        a(f"ds_read_b128 {vr(AW+4*k,4)}, v{T1} offset:{1024*k}")
        if k: a(f"v_xor_b32 v{A4}, {32*k}, v{REL}")
        a(f"ds_read_b128 {vr(AH+4*k,4)}, v{A4 if k else REL} offset:{HRB}")
    a(f"""
    v_lshrrev_b32 v{T2}, 3, v{T2}
    v_mul_u32_u24 v{T2}, {ARS//16}, v{T2}
    v_lshl_add_u32 v{T2}, v{TA}, 3, v{T2}
    s_lshl_b32 s{sTMP+1}, s{sTMP+1}, 6
    v_add_u32 v{T2}, s{sTMP+1}, v{T2}
    s_mov_b32 s{sTMP+1}, {f32(-L2E)}
    """)
    for k in range(4):
        a(f"s_waitcnt lgkmcnt({6 - 2*k})")
        a(mfma32(AD, AW+4*k, AH+4*k, None if k == 0 else AD))
    a(f"""
    s_cmp_lg_u32 s3, 7
    s_cbranch_scc1 K2_NOPD2
    v_lshlrev_b32 v{PD}, 16, v{PS}
    v_and_b32 v{PD+1}, 0xffff0000, v{PS}
    v_lshlrev_b32 v{PD+2}, 16, v{PS+1}
    ds_write_b128 v{L16}, {vr(PD,4)} offset:{POSD}
    K2_NOPD2:
    s_nop 9
    """)
    for q in range(4):
        for r in range(4):
            a(f"v_mul_f32 v{AD+4*q+r}, s{sTMP+1}, v{AD+4*q+r}")
        a(f"v_cvt_pk_bf16_f32 v{AD+4*q}, v{AD+4*q}, v{AD+4*q+1}\nv_cvt_pk_bf16_f32 v{AD+4*q+1}, v{AD+4*q+2}, v{AD+4*q+3}")
        a(f"ds_write_b64 v{T2}, {vr(AD+4*q,2)} offset:{AT + 16*q}")
    a(f"""
    {'s_setprio 0' if OPT.aprio else ''}
    s_branch K2_NOA
    K2_OVER:
    s_mov_b32 s{sQ}, 16
    s_branch K2_AGAIN
    K2_MORE:
    """)
    for x in range(2):
        a(f"""
        v_add_u32_sdwa v{T1}, v{J4}, v{OFFV[x]} dst_sel:DWORD dst_unused:UNUSED_PAD src0_sel:DWORD src1_sel:WORD_1
        v_add_u32 v{START[x]}, s{sQ}, v{START[x]}
        v_min_u32 v{START[x]}, v{START[x]}, v{T1}
        """)
    a(f"""
    K2_AGAIN:
    s_waitcnt vmcnt(0) lgkmcnt(0)
    s_barrier
    s_mov_b32 s{sFIRST}, 0
    s_cmp_lg_u32 s3, 0
    s_cbranch_scc1 K2_ROUND
    v_lshrrev_b32 v{T1}, 1, v{LANE8}
    ds_write_b32 v{T1}, v{ZERO} offset:{CNT2}
    v_mov_b32 v{T1}, {FLAG}
    ds_write_b32 v{T1}, v{ZERO}
    s_branch K2_ROUND
    """)

HEADER = """; EGNN layer (gather / edge MLP / scatter) for gfx950, two launches:
;   egnn_bin_kernel : counting sort of edge chunks by destination bucket, per-node tables -> d_ws
; Kernarg: h 0, pos 8, e_attr 16, src 24, dst 32, w_e 40, w_x 48, w_h 56, out 64, debug 72, ws 80
; @launch kernel=egnn_bin_kernel grid=(256,1,1) block=(512,1,1) lds={l1}
; @launch kernel=gather_scatter__cheap_equivariant_egnn__graph_kernel grid=(256,1,1) block=(512,1,1) lds={l2}
.amdgcn_target "amdgcn-amd-amdhsa--gfx950"
.text
"""
KD = """.amdhsa_kernel {name}
  .amdhsa_next_free_vgpr {nv}
  .amdhsa_next_free_sgpr 96
  .amdhsa_accum_offset {nv}
  .amdhsa_group_segment_fixed_size 0
  .amdhsa_kernarg_size 88
  .amdhsa_user_sgpr_count 2
  .amdhsa_user_sgpr_kernarg_segment_ptr 1
  .amdhsa_system_sgpr_workgroup_id_x 1
.end_amdhsa_kernel
"""

def generate(stamps=0, prio=2, touch=49, g0=3, g1=5, abl='', tb=0, tb2=0, st=2, notab=0, twprio=0, zearly=1, aprio=1):
    OPT.stamps = stamps; OPT.prio = prio; OPT.touch = touch; OPT.g0 = g0; OPT.g1 = g1; OPT.abl = abl
    OPT.tb = tb; OPT.aprio = aprio; OPT.zearly = zearly; OPT.twprio = twprio; OPT.notab = notab; OPT.tb2 = tb2; OPT.st = ['', ' nt', ' sc1', ' sc0 sc1'][st]
    a1 = Asm(); l1 = gen_k1(a1)
    a2 = Asm(); gen_k2(a2)
    k1n = "egnn_bin_kernel"; k2n = "gather_scatter__cheap_equivariant_egnn__graph_kernel"
    s = HEADER.format(l1=l1, l2=LDS2)
    s += f".globl {k1n}\n.p2align 8\n.type {k1n},@function\n" + a1.text()
    s += f".globl {k2n}\n.p2align 8\n.type {k2n},@function\n" + a2.text()
    s += '.section .rodata,"a"\n.p2align 6\n' + KD.format(name=k1n, nv=128 if stamps else 120)
    s += ".p2align 6\n" + KD.format(name=k2n, nv=NV2 if stamps else 248)
    return s

if __name__ == "__main__":
    out = sys.argv[1]
    kw = {}
    for x in sys.argv[2:]:
        k, v = x.split("=", 1); kw[k] = v if k == 'abl' else int(v)
    open(out, "w").write(generate(**kw))
```

```python
import sys, struct

N = 12500; E = 800000
NPB = 49
CH = 3136
PSTR = 15744
L_OFF = CH * 4
RL_END = L_OFF + CH
OSTR = 2176; OGS = 8320
OFFT = 256 * PSTR
EPO = OFFT + 256 * OSTR
P8 = EPO + 128
BTAB = P8 + 12544 * 8
WS_USED = BTAB + 12560 * 128
DBG_WS = WS_USED + 4096
WS_SRD = 32 << 20
L2E = 1.4426950408889634
LN2 = 0.6931471805599453

def f32(x):
    return "0x%08x" % struct.unpack("<I", struct.pack("<f", x))[0]

class Asm:
    def __init__(self):
        self.L = []
    def __call__(self, s):
        for ln in s.strip("\n").split("\n"):
            ln = ln.strip()
            if ln:
                self.L.append(ln if ln.endswith(":") else "    " + ln)
    def label(self, s):
        self.L.append(s + ":")
    def text(self):
        return "\n".join(self.L) + "\n"

def vr(a, n):
    return f"v[{a}:{a+n-1}]"
def sr(a, n=2):
    return f"s[{a}:{a+n-1}]"

def srd(a, base, nbytes, add=0):
    o = []
    if add:
        o += [f"s_add_u32 s{a}, s{base}, {add}", f"s_addc_u32 s{a+1}, s{base+1}, 0"]
    else:
        o += [f"s_mov_b32 s{a}, s{base}", f"s_mov_b32 s{a+1}, s{base+1}"]
    o += [f"s_mov_b32 s{a+2}, {nbytes}", f"s_mov_b32 s{a+3}, 0x00020000"]
    return "\n".join(o)

def wave_scan(a, v):
    for ctl in ("row_shr:1", "row_shr:2", "row_shr:4", "row_shr:8"):
        a("s_nop 1")
        a(f"v_add_u32_dpp v{v}, v{v}, v{v} {ctl} row_mask:0xf bank_mask:0xf bound_ctrl:0")
    a("s_nop 1")
    a(f"v_add_u32_dpp v{v}, v{v}, v{v} row_bcast:15 row_mask:0xa bank_mask:0xf")
    a("s_nop 1")
    a(f"v_add_u32_dpp v{v}, v{v}, v{v} row_bcast:31 row_mask:0xc bank_mask:0xf")

def mfma32(d, a_, b_, c):
    cc = "0" if c is None else vr(c, 16)
    return f"v_mfma_f32_32x32x16_bf16 {vr(d,16)}, {vr(a_,4)}, {vr(b_,4)}, {cc}"
def mfma16(d, a_, b_, c):
    cc = "0" if c is None else vr(c, 4)
    return f"v_mfma_f32_16x16x32_bf16 {vr(d,4)}, {vr(a_,4)}, {vr(b_,4)}, {cc}"

class Opt:
    pass
OPT = Opt()

def stamp(a, kern, idx, real=False):
    if not OPT.stamps:
        return
    if OPT.stamps == 5 and not real:
        if (kern, idx) in ((2, 5), (2, 6)):
            stamp(a, kern, idx + 7, True)
        if not (kern == 2 and idx in (0, 5, 6)): return
    if OPT.stamps == 4:
        idx = {(2, 5): 12, (2, 6): 13, (2, 2): 11, (2, 4): 10}.get((kern, idx), idx) if not real else idx
        if idx < 10 or (not real and idx in (10, 11) and (kern, idx) == (2, idx) and not getattr(stamp, 'ok', True)): return
        real = True
    if not real and OPT.stamps == 2 and idx not in (0, 3, 9):
        return
    if not real and OPT.stamps == 3 and idx not in ((0, 3) if kern == 1 else (0, 5, 6, 9)):
        return
    sv = 252
    st = 64
    w = 12
    a(f"""
    {'s_memrealtime' if real else 's_memtime'} s[{st}:{st+1}]
    s_waitcnt lgkmcnt(0)
    v_mov_b32 v{sv}, s{st}
    v_mov_b32 v{sv+1}, s{st+2}
    s_mov_b64 s[{st}:{st+1}], exec
    s_mov_b64 exec, 1
    buffer_store_dword v{sv}, v{sv+1}, s[{w}:{w+3}], 0 offen offset:{idx*4}
    s_mov_b64 exec, s[{st}:{st+1}]
    """)

CAP = 4096
RS = 528
CNT2 = 0; PRE2 = 256; FLAG = 512; LUT = 528; ACCP = LUT + 800; POSD = 3072
assert ACCP + NPB * 32 <= POSD
LIST = 4096
AT = LIST + (CAP + 64) * 8
ARS = 144
HRB = AT + 64 * ARS
WHB = HRB + 8192
ACCM = WHB + 16384
SB = (ACCM + NPB * RS + 127) // 128 * 128
STG = SB + 8 * 4096
LDS2 = STG + 8 * 4096
XTR = LIST + 24576
assert LDS2 <= 163840 and HRB % 128 == 0

ACC = [2, 18]; D = [34, 50]; M = [66, 74]; X = [82, 98]
WX = [114, 120]; XX = 126; S = 132; T = 140; TCH = 148; J4 = 149
REC = 150; DL = 151; R8 = 152; REL = 160; TA = 161; PD = 162; DX = 166; DD = 169; DXY = 170
SAD = 172; A4 = 173; PS = 174; ZERO = 176; WXS = [180, 182]
T1 = 184; T2 = 185; START = [186, 187]; OFFV = [188, 189]
FL = 190
EW = 208
CB = 216
CDMA = CB; AX = CB + 4; AS = CB + 8; SROW = CB + 12; G8 = CB + 13; MADDR = CB + 14; POFF = CB + 15
ID = CB + 16; AWT = CB + 24; LANE8 = CB + 25; LUA = CB + 26; LUV = CB + 27
EA_ = CB + 28; EH = CB + 29; EO = CB + 31
DUMMY = LANE8
NV2 = 256
sWS, sOUT, sH = 12, 20, 24
sNB, sNN, sC128, sM10, s0M1, sP8, sBT = 28, 29, 30, 31, 32, 33, 34
sEND, sWB, sWBO, sFWX, sFFL = 35, 36, 37, 38, 39
sREM, sTHR, sW10 = 40, 41, 42
sVN, sMR = 44, 46
sNX, sQ, sFIRST, sT, sPN8, sMORE, sROT = 48, 49, 50, 51, 52, 53, 54
sTMP = 56
sTOK = 68
sPM, sCM, sF0 = 72, 74, 76

def lane_consts(a, o, base):
    L = base; HH, A31, R2, C2, GP, U1, U2 = [base + 1 + i for i in range(7)]
    CD, AXo, ASo = o, o + 4, o + 8
    SROWo, G8o, MADo, POFo = o + 12, o + 13, o + 14, o + 15
    IDo = o + 16; AWo, L8o, LUA, LUV = o + 24, o + 25, o + 26, o + 27
    EAo, EH0, EH1, EOo = o + 28, o + 29, o + 30, o + 31
    a(f"""
    v_lshrrev_b32 v{HH}, 5, v{L}
    v_and_b32 v{A31}, 31, v{L}
    v_bfe_u32 v{R2}, v{L}, 2, 2
    v_and_b32 v{C2}, 3, v{L}
    v_bfe_u32 v{GP}, v{L}, 4, 1
    v_lshrrev_b32 v{U1}, 3, v{L}
    v_lshlrev_b32 v{G8o}, 5, v{U1}
    v_and_b32 v{U1}, 7, v{L}
    v_lshlrev_b32 v{U2}, 2, v{HH}
    v_xor_b32 v{U1}, v{U1}, v{U2}
    """)
    for i in range(4):
        a(f"v_xor_b32 v{CD+i}, {i}, v{U1}\nv_lshlrev_b32 v{CD+i}, 4, v{CD+i}\nv_add_u32 v{CD+i}, {3072 - 1024*i}, v{CD+i}")
    a(f"""
    v_bfe_u32 v{U1}, v{L}, 2, 3
    v_lshl_add_u32 v{U1}, v{C2}, 3, v{U1}
    v_lshlrev_b32 v{U1}, 7, v{U1}
    v_add_u32 v{U1}, {STG}, v{U1}
    v_lshl_or_b32 v{U2}, v{GP}, 2, v{C2}
    v_xor_b32 v{U2}, v{U2}, v{HH}
    """)
    for k in range(4):
        a(f"v_xor_b32 v{AXo+k}, {2*k}, v{U2}\nv_lshl_add_u32 v{AXo+k}, v{AXo+k}, 4, v{U1}")
    a(f"""
    v_lshlrev_b32 v{SROWo}, 7, v{A31}
    v_add_u32 v{SROWo}, {SB}, v{SROWo}
    v_and_b32 v{U1}, 1, v{L}
    v_lshl_or_b32 v{U1}, v{R2}, 1, v{U1}
    v_lshl_add_u32 v{SROWo}, v{U1}, 4, v{SROWo}
    v_bfe_u32 v{U1}, v{L}, 1, 1
    v_xor_b32 v{U1}, v{U1}, v{HH}
    v_lshl_add_u32 v{SROWo}, v{U1}, 3, v{SROWo}
    v_lshl_add_u32 v{C2}, v{GP}, 2, v{C2}
    v_and_b32 v{U1}, 1, v{R2}
    v_lshl_or_b32 v{U1}, v{HH}, 1, v{U1}
    v_xor_b32 v{U1}, v{U1}, v{C2}
    v_lshrrev_b32 v{U2}, 1, v{R2}
    v_lshl_add_u32 v{R2}, v{HH}, 2, v{R2}
    v_lshlrev_b32 v{AWo}, 7, v{R2}
    v_lshl_add_u32 v{ASo}, v{U2}, 3, v{AWo}
    v_add_u32 v{ASo}, {SB}, v{ASo}
    v_xor_b32 v{U2}, 4, v{U1}
    v_lshl_add_u32 v{ASo+1}, v{U2}, 4, v{ASo}
    v_add_u32 v{ASo+1}, 1024, v{ASo+1}
    v_lshl_add_u32 v{ASo}, v{U1}, 4, v{ASo}
    v_xor_b32 v{ASo+2}, 8, v{ASo}
    v_xor_b32 v{ASo+3}, 8, v{ASo+1}
    v_mul_u32_u24 v{AWo}, {ARS}, v{R2}
    v_lshl_add_u32 v{AWo}, v{C2}, 3, v{AWo}
    v_add_u32 v{AWo}, {AT}, v{AWo}
    v_mul_u32_u24 v{MADo}, {RS}, v{HH}
    v_lshl_add_u32 v{MADo}, v{A31}, 3, v{MADo}
    v_add_u32 v{MADo}, {ACCM}, v{MADo}
    v_bfe_u32 v{U1}, v{L}, 3, 2
    v_lshl_add_u32 v{U1}, v{U1}, 1, v{HH}
    v_lshlrev_b32 v{POFo}, 5, v{U1}
    v_and_b32 v{U1}, 4, v{L}
    v_lshl_add_u32 v{POFo}, v{U1}, 1, v{POFo}
    v_and_b32 v{U1}, 1, v{L}
    v_lshl_add_u32 v{POFo}, v{U1}, 4, v{POFo}
    v_lshlrev_b32 v{L8o}, 3, v{L}
    v_lshlrev_b32 v{U1}, 4, v{U1}
    v_mov_b32 v{LUV}, 0x3f80
    v_lshlrev_b32 v{LUV}, v{U1}, v{LUV}
    v_lshrrev_b32 v{U1}, 1, v{L}
    v_lshlrev_b32 v{U1}, 2, v{U1}
    v_lshl_add_u32 v{LUA}, v{L}, 4, v{U1}
    v_lshrrev_b32 v{U1}, 1, v{A31}
    v_lshlrev_b32 v{U2}, 2, v{HH}
    v_sub_u32 v{U1}, v{U1}, v{U2}
    """)
    for t in range(2):
        for r in range(4):
            a(f"v_cmp_eq_u32 {sr(84 + 2*r)}, {8*t + r}, v{U1}")
        for r in range(4):
            a(f"v_cndmask_b32 v{IDo+4*t+r}, 0, v{LUV}, {sr(84 + 2*r)}")
    a(f"""
    v_and_b32 v{U1}, 15, v{L}
    v_lshrrev_b32 v{U2}, 4, v{L}
    v_mul_u32_u24 v{EAo}, {RS}, v{U1}
    v_lshl_add_u32 v{EAo}, v{U2}, 6, v{EAo}
    v_add_u32 v{EAo}, {ACCM}, v{EAo}
    v_lshlrev_b32 v{EOo}, 7, v{U1}
    v_bfe_u32 v{U1}, v{L}, 1, 3
    v_xor_b32 v{U1}, v{U1}, v{U2}
    v_lshl_add_u32 v{EH0}, v{U1}, 4, v{EOo}
    v_add_u32 v{EH0}, {HRB}, v{EH0}
    v_xor_b32 v{EH1}, 64, v{EH0}
    v_lshl_add_u32 v{EOo}, v{U2}, 4, v{EOo}
    """)
    a(f"""
    s_lshl_b32 s44, s3, 12
    s_and_b32 s45, s3, 3
    s_mul_i32 s46, s45, {16*RS}
    s_lshl_b32 s45, s45, 11
    """)
    for r in list(range(AXo, AXo + 8)) + [SROWo]:
        a(f"v_add_u32 v{r}, s44, v{r}")
    a(f"""
    v_add_u32 v{EAo}, s46, v{EAo}
    v_add_u32 v{EH0}, s45, v{EH0}
    v_add_u32 v{EH1}, s45, v{EH1}
    """)

def flush_code(a, rezero, tag):
    a(f"""
    s_mul_i32 s{sTMP}, s{sWBO}, {RS//16}
    s_lshl_b32 s{sTMP+1}, s{sWBO}, 1
    v_add_u32 v{T1}, s{sTMP}, v{MADDR}
    v_add_u32 v{T2}, s{sTMP+1}, v{POFF}
    """)
    for q in range(4):
        for h in range(2):
            t = FL + 2 * (2*q + h)
            a(f"v_cvt_f64_f32 {vr(t,2)}, v{ACC[h]+4*q+3}")
            a(f"ds_add_f64 v{T1}, {vr(t,2)} offset:{2*q*RS + 256*h}")
    for q in range(4):
        r0 = ACC[0] + 4*q; r1 = ACC[1] + 4*q
        a(f"v_pk_mul_f32 {vr(r0,2)}, {vr(r0,2)}, {vr(WXS[0],2)} op_sel_hi:[1,0]")
        a(f"v_mul_f32 v{r0+2}, v{r0+2}, v{WXS[0]}")
        a(f"v_pk_fma_f32 {vr(r0,2)}, {vr(r1,2)}, {vr(WXS[1],2)}, {vr(r0,2)} op_sel_hi:[1,0,1]")
        a(f"v_fmac_f32 v{r0+2}, v{r1+2}, v{WXS[1]}")
    if rezero:
        a(mfma32(ACC[1], ZERO, ZERO, None))
    else:
        a("s_nop 0")
    for q in range(2):
        for c in range(3):
            a(f"v_permlane16_swap_b32 v{ACC[0]+4*q+c}, v{ACC[0]+4*(q+2)+c}")
    a("s_nop 0")
    for q in range(2):
        for c in range(3):
            a(f"v_add_f32 v{ACC[0]+4*q+c}, v{ACC[0]+4*q+c}, v{ACC[0]+4*(q+2)+c}")
    c0 = ACC[0]
    for c in range(3):
        a(f"v_add_f32_dpp v{c0+c}, v{c0+c}, v{c0+c} row_ror:8 row_mask:0xf bank_mask:0x3")
    for c in range(3):
        a(f"v_add_f32_dpp v{c0+c}, v{c0+4+c}, v{c0+4+c} row_ror:8 row_mask:0xf bank_mask:0xc")
    a(f"""
    v_add_f32_dpp v{c0}, v{c0}, v{c0} row_half_mirror row_mask:0xf bank_mask:0x5
    s_nop 0
    v_add_f32_dpp v{c0+2}, v{c0+2}, v{c0+2} row_half_mirror row_mask:0xf bank_mask:0xf
    v_add_f32_dpp v{c0}, v{c0+1}, v{c0+1} row_half_mirror row_mask:0xf bank_mask:0xa
    s_nop 0
    v_add_f32_dpp v{c0+2}, v{c0+2}, v{c0+2} quad_perm:[1,0,3,2] row_mask:0xf bank_mask:0xf
    v_add_f32_dpp v{c0}, v{c0}, v{c0} quad_perm:[1,0,3,2] row_mask:0xf bank_mask:0xf
    s_nop 0
    v_add_f32_dpp v{c0+2}, v{c0+2}, v{c0+2} quad_perm:[2,3,0,1] row_mask:0xf bank_mask:0xf
    v_add_f32_dpp v{c0}, v{c0}, v{c0} quad_perm:[2,3,0,1] row_mask:0xf bank_mask:0xf
    v_cndmask_b32 v{c0}, v{c0}, v{c0+2}, {sr(sCM)}
    v_cvt_f64_f32 {vr(FL+16,2)}, v{c0}
    s_mov_b64 exec, {sr(sPM)}
    ds_add_f64 v{T2}, {vr(FL+16,2)} offset:{ACCP}
    s_mov_b64 exec, -1
    """)
    if rezero:
        a(mfma32(ACC[0], ZERO, ZERO, None))

def window_masks(a):
    a(f"""
    v_subrev_u32 v{REL}, s{sWB}, v{DL}
    v_cmp_gt_u32 vcc, s{sC128}, v{REL}
    s_and_b64 {sr(sVN)}, vcc, {sr(sMR)}
    """)

def wx_load(a):
    a(f"""
    s_mul_i32 s{sTMP}, s{sWB}, {ARS//16}
    v_add_u32 v{T1}, s{sTMP}, v{AWT}
    ds_read_b64_tr_b16 {vr(WX[0]+2,2)}, v{T1}
    ds_read_b64_tr_b16 {vr(WX[1]+2,2)}, v{T1} offset:64
    """)

def mads(src):
    return [f"v_mad_u32_u16 v{R8+2*i}, v{src+2*i}, s{sC128}, v{CDMA+i}" for i in range(4)]
def dma_ops():
    return [f"buffer_load_dwordx4 v{R8+2*i}, {sr(sWS,4)}, s{sBT} offen offset:{1024*i} lds" for i in range(4)]

class Body:
    def __init__(self):
        self.it = []
    def op(self, s): self.it.append(("op", s))
    def ds(self, s, tag=None): self.it.append(("ds", s, tag))
    def wait(self, tag): self.it.append(("wait", tag))
    def emit(self, a):
        if OPT.abl:
            import re
            rx = re.compile(OPT.abl)
            drop = lambda x: bool(rx.search(x[1] if x[0] != "wait" else "WAIT"))
            tags = {x[2] for x in self.it if x[0] == "ds" and drop(x)}
            self.it = [x for x in self.it if not drop(x) and not (x[0] == "wait" and x[1] in tags)]
        n = len(self.it)
        for i, x in enumerate(self.it):
            if x[0] == "wait":
                cnt = 0; j = i - 1; found = False
                for _ in range(n):
                    y = self.it[j % n]
                    if y[0] == "ds":
                        if y[2] == x[1]:
                            found = True; break
                        cnt += 1
                    j -= 1
                assert found, x
                a(f"s_waitcnt lgkmcnt({min(cnt,15)})")
            else:
                a(x[1])

def unit_groups(b, u, pre, post):
    h = u % 2; ph = 1 - h
    ntile = (u + 1) // 2 % 2
    xx = XX if ntile == 0 else XX + 2
    wx = WX[ph] + 2 if ntile == 0 else WX[ph]
    mf = {0: mfma32(ACC[ph], S, M[ph], ACC[ph]),
          1: mfma32(D[ph], xx, wx, None),
          2: mfma32(ACC[ph], S + 4, M[ph] + 4, ACC[ph]),
          OPT.g0: mfma32(D[ph], X[ntile] + 8*ph, ID, D[ph]),
          OPT.g1: mfma32(D[ph], X[ntile] + 8*ph + 4, ID + 4, D[ph])}
    def put(lst):
        for x in lst:
            if isinstance(x, str): b.op(x)
            elif x[0] == "ds": b.ds(x[1], x[2] if len(x) > 2 else None)
            elif x[0] == "wait": b.wait(x[1])
    for g in range(8):
        put(pre.get(g, []))
        if g in mf: b.op(mf[g])
        p = g - 2; hh = h
        if p < 0: p += 8; hh = ph
        t = T + 2 * (p % 4)
        b.op(f"v_cvt_pk_bf16_f32 v{M[hh]+p}, v{t}, v{t+1}")
        t = T + 2 * (g % 4); y = D[h] + 2 * g
        b.op(f"v_exp_f32 v{t}, v{y}")
        b.op(f"v_exp_f32 v{t+1}, v{y+1}")
        p = g - 1; hh = h
        if p < 0: p += 8; hh = ph
        t2 = T + 2 * (p % 4); y2 = D[hh] + 2 * p
        b.op(f"v_rcp_f32 v{t2}, v{t2}")
        b.op(f"v_rcp_f32 v{t2+1}, v{t2+1}")
        b.op(f"v_pk_add_f32 {vr(t,2)}, {vr(t,2)}, 1.0 op_sel_hi:[1,0]")
        b.op(f"v_pk_mul_f32 {vr(t2,2)}, {vr(t2,2)}, {vr(y2,2)}")
        put(post.get(g, []))

def s_read(t):
    return [("ds", f"ds_read_b64_tr_b16 {vr(S+2*k,2)}, v{AS + 2*t + (k & 1)} offset:{2048*(k>>1)}", "S" if k == 3 else None) for k in range(4)]
def s_write():
    return [("ds", f"ds_write_b64 v{SAD}, {vr(DXY,2)}")]
def s_clear():
    return [("ds", f"ds_write_b64 v{SAD}, {vr(ZERO,2)}")]
def r_read(t, dst=None):
    d = R8 if dst is None else dst
    return [("ds", f"ds_read_b128 {vr(d,4)}, v{A4} offset:{LIST + 256*t}"),
            ("ds", f"ds_read_b128 {vr(d+4,4)}, v{A4} offset:{LIST + 256*t + 16}", "R")]
def x_read(t):
    o = ["s_waitcnt vmcnt(0)"]
    for k in range(4):
        o.append(("ds", f"ds_read_b128 {vr(X[t]+4*k,4)}, v{AX+k}", "X" if k == 3 else None))
    return o
def pos_load():
    return [f"v_mad_u32_u16 v{TA}, v{REC}, 8, 0",
            f"buffer_load_dwordx2 {vr(PS,2)}, v{TA}, {sr(sWS,4)}, s{sP8} offen"]
def geo_addr():
    return [("ds", f"ds_read_b128 {vr(PD,4)}, v{DL} offset:{POSD}", "P")]
def geo_lut():
    return [("ds", f"ds_read_b64 {vr(XX,2)}, v{REL} offset:{LUT}"),
            ("ds", f"ds_read_b64 {vr(XX+4,2)}, v{REL} offset:{LUT+8}", "L"),
            f"v_mov_b32 v{XX+3}, v{REC}"]
def geo_diff():
    return [f"v_dot2_f32_bf16 v{DX}, v{PS}, s{sM10}, v{PD}",
            f"v_dot2_f32_bf16 v{DX+1}, v{PS}, s{s0M1}, v{PD+1}",
            f"v_dot2_f32_bf16 v{DX+2}, v{PS+1}, s{sM10}, v{PD+2}"]
def geo_cvt():
    return [f"v_xor_b32 v{TA}, v{REL}, v{SROW}",
            f"v_cndmask_b32 v{SAD}, v{DUMMY}, v{TA}, {sr(sVN)}",
            f"v_cvt_pk_bf16_f32 v{DXY}, v{DX}, v{DX+1}",
            f"v_cvt_pk_bf16_f32 v{DXY+1}, v{DX+2}, 1.0"]
def geo_d2():
    return [f"v_dot2_f32_bf16 v{DD}, v{DXY+1}, v{DXY+1}, -1.0",
            f"v_dot2_f32_bf16 v{DD}, v{DXY}, v{DXY}, v{DD}"]
def geo_fin():
    return [f"v_cvt_pk_bf16_f32 v{XX+2}, v{DD}, v{DD}",
            f"v_permlane32_swap_b32 v{XX}, v{XX+4}",
            f"v_permlane32_swap_b32 v{XX+1}, v{XX+5}"]
def list_reads():
    return [f"v_add_u32 v{TA}, s{sPN8}, v{LANE8}",
            ("ds", f"ds_read_b64 {vr(REC,2)}, v{TA} offset:{LIST}", "E"),
            f"v_add_u32 v{A4}, s{sPN8}, v{G8}"] + r_read(0)
def advance():
    return [f"s_bcnt1_i32_b64 s{sNX}, {sr(sVN)}",
            f"s_lshl3_add_u32 s{sPN8}, s{sNX}, s{sPN8}"]
def plain(a, lst):
    for x in lst:
        a(x if isinstance(x, str) else x[1])

def gen_main_loop(a):
    b = Body()
    unit_groups(b, 0,
        pre={3: s_read(0),
             4: list_reads(),
             5: [f"s_cmp_lg_u32 s{sFFL}, 0", "s_cbranch_scc1 K2_FLUSH", "K2_FLUSH_RET:"],
             6: [("wait", "E")] + x_read(1) + pos_load(),
             7: [("wait", "R")] + mads(R8)},
        post={})
    unit_groups(b, 1,
        pre={0: [f"v_subrev_u32 v{REL}, s{sWB}, v{DL}",
                 f"v_cmp_gt_i32 {sr(sMR)}, s{sREM}, v{LANE8}",
                 f"v_cmp_gt_u32 vcc, s{sC128}, v{REL}"],
             1: [f"s_and_b64 {sr(sVN)}, vcc, {sr(sMR)}",
                 f"s_cmp_lg_u64 {sr(sVN)}, {sr(sMR)}",
                 "s_cbranch_scc1 K2_REBASE", "K2_REBASE_RET:"] + advance() + [("wait", "X")] + dma_ops(),
             2: geo_addr()},
        post={})
    unit_groups(b, 2,
        pre={0: ([f"s_cmp_eq_u32 s{sNX}, 0", "s_cbranch_scc1 K2_PRIO0", "K2_PRIO0_RET:"] if OPT.prio else []),
             2: [f"s_cmp_lg_u32 s{sFWX}, 0", "s_cbranch_scc1 K2_WXL", "K2_WXL_RET:"] + geo_lut(),
             3: s_read(1) + s_clear(),
             4: r_read(1) + geo_cvt(),
             5: s_write(),
             6: x_read(0) + [("wait", "L")] + geo_fin(),
             7: [("wait", "R")] + mads(R8)},
        post={2: ["s_waitcnt vmcnt(4)", ("wait", "P")] + geo_diff(),
              4: geo_d2()})
    unit_groups(b, 3,
        pre={1: [("wait", "X")] + dma_ops()},
        post={})
    a(".p2align 6")
    a.label("K2_LOOP")
    a(f"s_sub_u32 s{sREM}, s{sEND}, s{sPN8}")
    if OPT.prio:
        a(f"s_cmp_le_i32 s{sREM}, s{sTHR}\ns_cbranch_scc1 K2_PRIO\nK2_PRIO_RET:")
    b.emit(a)
    if OPT.abl:
        a("s_sub_u32 s67, s67, 1\ns_cmp_lg_u32 s67, 0\ns_cbranch_scc1 K2_LOOP")
    else:
        a(f"s_cmp_lg_u32 s{sNX}, 0\ns_cbranch_scc1 K2_LOOP")


def epi_reads(a):
    a(f"""
    s_lshr_b32 s{sTMP}, s3, 2
    s_lshl_b32 s{sTMP}, s{sTMP}, 13
    s_add_u32 s{sTMP}, s{sTMP}, {WHB}
    v_lshl_add_u32 v{TA}, v{LANE8}, 1, s{sTMP}
    """)
    for i in range(8):
        a(f"ds_read_b128 {vr(X[0]+4*i,4)}, v{TA} offset:{1024*i}")
    a(f"ds_read_b128 {vr(EW,4)}, v{EH}\nds_read_b128 {vr(EW+4,4)}, v{EH+1}")

def gen_phase1(a):
    CNT, PRE, RB = LIST, LIST + 1024, LIST + 2048
    ST = OPT.st
    WE = CH // 4
    DST = 8; SRC = 24; EA = 40; B4 = 48; RK = 64; PB = 80
    MSK = 76
    sPID = 43
    ZR = vr(ZERO, 4)
    a.label("gather_scatter__cheap_equivariant_egnn__graph_kernel")
    if OPT.stamps == 4: a("s_memrealtime s[94:95]")
    a(f"""
    s_cmp_ge_u32 s2, 256
    s_cbranch_scc1 K2_END
    s_load_dwordx2 {sr(sWS)}, s[0:1], 80
    v_readfirstlane_b32 s3, v0
    v_and_b32 v6, 63, v0
    s_mov_b32 s{sWS+2}, {WS_SRD}
    s_mov_b32 s{sWS+3}, 0x00020000
    s_lshr_b32 s3, s3, 6
    v_lshlrev_b32 v7, 4, v6
    s_mov_b32 s{sPID}, s2
    s_cmp_ge_u32 s3, 4
    s_cbranch_scc1 K1_TW
    s_load_dwordx2 s[8:9], s[0:1], 32
    s_load_dwordx2 s[16:17], s[0:1], 24
    s_load_dwordx2 s[4:5], s[0:1], 16
    v_lshlrev_b32 v2, 2, v0
    v_mov_b32 v{ZERO}, 0
    ds_write_b32 v2, v{ZERO} offset:{CNT}
    s_mov_b32 s10, {E*4}
    s_mov_b32 s11, 0x00020000
    s_mov_b64 s[18:19], s[10:11]
    s_mov_b32 s6, {E*2}
    s_mov_b32 s7, 0x00020000
    s_mul_i32 s44, s2, {CH}
    s_mul_i32 s45, s3, {WE}
    s_add_u32 s44, s44, s45
    s_lshl_b32 s46, s44, 2
    s_lshl_b32 s47, s44, 1
    s_sub_i32 s45, {E}, s44
    v_lshlrev_b32 v2, 2, v6
    v_lshlrev_b32 v5, 3, v6
    v_lshlrev_b32 v3, 1, v6
    s_waitcnt lgkmcnt(0)
    """)
    for j in range(3):
        a(f"buffer_load_dwordx4 {vr(DST+4*j,4)}, v7, s[8:11], s46 offen offset:{1024*j}")
    a(f"buffer_load_dword v{DST+12}, v2, s[8:11], s46 offen offset:3072")
    def ids():
        a(f"""
        s_lshr_b32 s{sROT}, s2, 3
        s_and_b32 s2, s2, 7
        s_lshl_b32 s2, s2, 5
        s_add_u32 s2, s2, s{sROT}
        s_add_u32 s62, s{sWS}, {EPO}
        s_addc_u32 s63, s{sWS+1}, 0
        s_load_dwordx2 s[70:71], s[62:63], 0
        s_load_dwordx2 {sr(sOUT)}, s[0:1], 64
        """)
        if OPT.stamps:
            a(f"s_lshl_b32 s66, s2, 4\ns_add_u32 s66, s66, s3\ns_lshl_b32 s66, s66, 6\ns_add_u32 s66, s66, {DBG_WS}")
        stamp(a, 1, 0); stamp(a, 1, 14, True)
        if OPT.stamps == 4:
            a("v_mov_b32 v252, s94\ns_mov_b64 s[64:65], exec\ns_mov_b64 exec, 1\nbuffer_store_dword v252, v253, s[12:15], 0 offen offset:32\ns_mov_b64 exec, s[64:65]")
    ids()
    nst0 = 2 if OPT.stamps else 0
    a(f"""
    v_cmp_gt_i32 {sr(MSK)}, s45, v2
    s_sub_i32 s48, s45, 256
    v_cmp_gt_i32 {sr(MSK+2)}, s48, v2
    s_sub_i32 s48, s45, 512
    v_cmp_gt_i32 {sr(MSK+4)}, s48, v2
    s_sub_i32 s48, s45, 768
    s_min_i32 s48, s48, 16
    v_cmp_gt_i32 {sr(MSK+6)}, s48, v6
    s_movk_i32 s50, {-NPB}
    v_mov_b32 v4, 1
    s_barrier
    """)
    for j in range(3):
        a(f"buffer_load_dwordx4 {vr(SRC+4*j,4)}, v7, s[16:19], s46 offen offset:{1024*j}")
        a(f"buffer_load_dwordx2 {vr(EA+2*j,2)}, v5, s[4:7], s47 offen offset:{512*j}")
    a(f"buffer_load_dword v{SRC+12}, v2, s[16:19], s46 offen offset:3072")
    a(f"buffer_load_ushort v{EA+6}, v3, s[4:7], s47 offen offset:1536")
    a(f"""
    v_mov_b32 v{ZERO+1}, 0
    v_mov_b32 v{ZERO+2}, 0
    v_mov_b32 v{ZERO+3}, 0
    s_lshl_b32 s48, s3, 12
    s_add_u32 s48, s48, {SB}
    v_add_u32 v106, s48, v7
    """)
    for i in range(4):
        a(f"ds_write_b128 v106, {ZR} offset:{1024*i}")
    nst = 0
    for j in range(4):
        a(f"s_mov_b64 exec, {sr(MSK+2*j)}\ns_waitcnt vmcnt({11 - j + nst + nst0})")
        if OPT.stamps == 1 and j in (0, 3):
            stamp(a, 1, 7 if j == 0 else 8); nst += 1
        for k in range(4 if j < 3 else 1):
            s = 4*j + k
            a(f"""
            v_mul_u32_u24 v{B4+s}, 21400, v{DST+s}
            v_lshrrev_b32 v{B4+s}, 20, v{B4+s}
            v_mad_i32_i24 v{DST+s}, v{B4+s}, s50, v{DST+s}
            v_lshlrev_b32 v{B4+s}, 2, v{B4+s}
            ds_add_rtn_u32 v{RK+s}, v{B4+s}, v4 offset:{CNT}
            """)
    a(f"""
    s_mov_b64 exec, -1
    s_mov_b32 s51, 0xffff0000
    s_waitcnt lgkmcnt(0)
    s_barrier
    """)
    stamp(a, 1, 1)
    a(f"""
    ds_read_b128 v[96:99], v7 offset:{CNT}
    s_waitcnt lgkmcnt(0)
    v_add_u32 v97, v96, v97
    v_add_u32 v98, v97, v98
    v_add_u32 v99, v98, v99
    v_mov_b32 v100, v99
    """)
    wave_scan(a, 100)
    a(f"""
    v_sub_u32 v102, v100, v99
    v_add_u32 v103, v102, v96
    v_add_u32 v104, v102, v97
    v_add_u32 v105, v102, v98
    ds_write_b128 v7, v[102:105] offset:{PRE}
    """)
    for s in range(13):
        a(f"ds_read_b32 v{PB+s}, v{B4+s} offset:{PRE}")
    a("s_waitcnt lgkmcnt(0)")
    stamp(a, 1, 10)
    for j in range(4):
        a(f"s_mov_b64 exec, {sr(MSK+2*j)}")
        for k in range(4 if j < 3 else 1):
            s = 4*j + k
            a(f"""
            v_add_u32 v{PB+s}, v{PB+s}, v{RK+s}
            ds_write_b8 v{PB+s}, v{DST+s} offset:{RB + L_OFF}
            v_lshlrev_b32 v{RK+s}, 2, v{PB+s}
            """)
    stamp(a, 1, 9)
    nl = (5 if OPT.stamps == 1 else 0)
    for j in range(4):
        a(f"s_mov_b64 exec, {sr(MSK+2*j)}\ns_waitcnt vmcnt({6 - 2*j + nl})")
        if j < 3:
            for k in range(4):
                op = (f"v_lshl_or_b32 v{SRC+4*j+k}, v{EA+2*j+(k>>1)}, 16, v{SRC+4*j+k}" if k % 2 == 0
                      else f"v_and_or_b32 v{SRC+4*j+k}, v{EA+2*j+(k>>1)}, s51, v{SRC+4*j+k}")
                a(op + f"\nds_write_b32 v{RK+4*j+k}, v{SRC+4*j+k} offset:{RB}")
        else:
            a(f"v_lshl_or_b32 v{SRC+12}, v{EA+6}, 16, v{SRC+12}\nds_write_b32 v{RK+12}, v{SRC+12} offset:{RB}")
    a("s_mov_b64 exec, -1")
    stamp(a, 1, 11)
    def copy_out():
        a(f"""
        v_lshlrev_b32 v4, 4, v0
        v_cmp_gt_u32 vcc, {RL_END//16 - 512}, v0
        s_mul_i32 s49, s{sPID}, {PSTR}
        s_add_u32 s48, s49, 8192
        s_waitcnt lgkmcnt(0)
        s_barrier
        """)
        stamp(a, 1, 2)
        a(f"""
        ds_read_b128 v[108:111], v4 offset:{RB}
        ds_read_b128 {vr(FL,4)}, v4 offset:{RB + 8192}
        s_waitcnt lgkmcnt(1)
        buffer_store_dwordx4 v[108:111], v4, {sr(sWS,4)}, s49 offen{ST}
        s_mov_b64 exec, vcc
        s_waitcnt lgkmcnt(0)
        buffer_store_dwordx4 {vr(FL,4)}, v4, {sr(sWS,4)}, s48 offen{ST}
        s_mov_b64 exec, -1
        """)
    copy_out()
    a("v_mov_b32 v8, v6")
    lane_consts(a, CB, 8)
    a("s_branch K1_JOIN")
    HF = 16; WFR = 32; DD_ = 64
    a(f"""
    K1_TW:
    s_load_dwordx2 s[8:9], s[0:1], 40
    s_load_dwordx2 {sr(sH)}, s[0:1], 0
    s_load_dwordx2 s[16:17], s[0:1], 8
    s_load_dwordx2 s[4:5], s[0:1], 56
    s_load_dwordx2 s[76:77], s[0:1], 48
    s_mov_b32 s10, {130*128}
    s_mov_b32 s11, 0x00020000
    s_mov_b32 s{sH+2}, {N*128}
    s_mov_b32 s{sH+3}, 0x00020000
    s_mov_b32 s6, {128*128}
    s_mov_b32 s7, 0x00020000
    s_and_b32 s61, s3, 1
    s_bfe_u32 s60, s3, 0x10001
    s_lshl_b32 s57, s3, 13
    s_add_u32 s57, s57, {STG - 4*8192}
    v_and_b32 v9, 48, v6
    v_xor_b32 v9, v9, v7
    v_xor_b32 v10, 64, v9
    v_lshrrev_b32 v11, 2, v6
    v_and_b32 v12, 3, v6
    v_lshlrev_b32 v12, 4, v12
    v_lshl_add_u32 v11, v11, 7, v12
    v_mov_b32 v{ZERO}, 0
    v_mov_b32 v{ZERO+1}, 0
    v_mov_b32 v{ZERO+2}, 0
    v_mov_b32 v{ZERO+3}, 0
    s_waitcnt lgkmcnt(0)
    """)
    ids()
    a(f"""
    s_mul_i32 s{sNB}, s2, {NPB}
    s_lshl_b32 s56, s60, 5
    s_add_u32 s56, s56, s{sNB}
    s_lshl_b32 s56, s56, 7
    s_lshl_b32 s58, s60, 12
    s_add_u32 m0, s58, {HRB}
    s_lshl_b32 s59, s61, 6
    s_add_u32 s55, s59, {64*128}
    s_barrier
    """)
    for i in range(4):
        a(f"buffer_load_dwordx4 v{9 + (i & 1)}, {sr(sH,4)}, s56 offen offset:{1024*i} lds")
    a(f"s_mov_b32 m0, s57\ns_mov_b32 s18, {N*6}")
    for i in range(4):
        a(f"buffer_load_dwordx4 v11, s[8:11], s55 offen offset:{1024*i} lds")
        if i < 3: a("s_add_u32 s55, s55, 1024")
    a(f"""
    s_mov_b32 s19, 0x00020000
    s_cmp_lg_u32 s3, 7
    s_cbranch_scc1 K1_NOP8
    v_add_u32 v100, s{sNB}, v6
    v_mul_u32_u24 v101, 6, v100
    buffer_load_ushort v102, v101, s[16:19], 0 offen
    buffer_load_ushort v104, v101, s[16:19], 0 offen offset:2
    buffer_load_ushort v103, v101, s[16:19], 0 offen offset:4
    K1_NOP8:
    v_lshlrev_b32 v106, 4, v0
    v_add_u32 v106, {ACCM - 4096}, v106
    """)
    nz = (SB - ACCM) // 4096
    for i in range(nz):
        a(f"ds_write_b128 v106, {ZR} offset:{4096*i}")
    a(f"""
    v_cmp_gt_u32 vcc, {256 + (SB - ACCM - 4096*nz) // 16}, v0
    s_and_saveexec_b64 s[44:45], vcc
    ds_write_b128 v106, {ZR} offset:{4096*nz}
    s_mov_b64 exec, -1
    s_barrier
    s_add_u32 m0, s57, 4096
    s_mov_b32 s55, s59
    """)
    for i in range(4):
        a(f"buffer_load_dwordx4 v11, s[8:11], s55 offen offset:{1024*i} lds")
        if i < 3: a("s_add_u32 s55, s55, 1024")
    a(f"""
    s_lshl_b32 s55, s3, 12
    s_add_u32 m0, s55, {SB}
    s_sub_u32 s55, s55, 16384
    """)
    for i in range(4):
        a(f"buffer_load_dwordx4 v7, s[4:7], s55 offen offset:{1024*i} lds")
    a(f"""
    s_cmp_lg_u32 s3, 6
    s_cbranch_scc1 K1_NOX1
    s_mov_b32 s78, 128
    s_mov_b32 s79, 0x00020000
    v_and_b32 v106, 31, v6
    v_lshlrev_b32 v106, 1, v106
    s_movk_i32 s55, {128*128}
    buffer_load_ushort v100, v106, s[8:11], s55 offen
    buffer_load_ushort v101, v106, s[8:11], s55 offen offset:128
    buffer_load_ushort v102, v106, s[8:11], s55 offen offset:64
    buffer_load_ushort v103, v106, s[8:11], s55 offen offset:192
    buffer_load_ushort v104, v106, s[76:79], 0 offen
    buffer_load_ushort v105, v106, s[76:79], 0 offen offset:64
    K1_NOX1:
    v_mov_b32 v16, v6
    """)
    lane_consts(a, CB, 16)
    a(f"""
    s_cmp_lg_u32 s3, 4
    s_cbranch_scc1 K1_NOLOW
    ds_write_b128 v7, {ZR}
    ds_write_b128 v7, {ZR} offset:1024
    ds_write_b128 v7, {ZR} offset:2048
    s_mov_b64 exec, 0xff
    ds_write_b32 v{LUA}, v{LUV} offset:{LUT}
    s_mov_b64 exec, -1
    K1_NOLOW:
    v_lshrrev_b32 v8, 5, v6
    v_and_b32 v9, 31, v6
    v_bfe_u32 v12, v6, 2, 2
    v_lshl_add_u32 v12, v8, 3, v12
    v_lshlrev_b32 v12, 6, v12
    v_bfe_u32 v13, v6, 4, 1
    v_lshl_add_u32 v12, v13, 5, v12
    v_and_b32 v13, 3, v6
    v_lshl_add_u32 v12, v13, 3, v12
    v_add_u32 v12, s57, v12
    v_bfe_u32 v10, v6, 1, 3
    v_xor_b32 v10, v10, v8
    s_lshl_b32 s58, s60, 12
    s_add_u32 s58, s58, {HRB}
    v_lshlrev_b32 v14, 7, v9
    v_add_u32 v14, s58, v14
    """)
    for s in range(4):
        a(f"v_xor_b32 v{96+s}, {2*s}, v10\nv_lshl_add_u32 v{96+s}, v{96+s}, 4, v14")
    a(f"""
    v_mul_u32_u24 v13, 80, v9
    v_lshl_add_u32 v13, v8, 3, v13
    v_add_u32 v13, s57, v13
    v_lshrrev_b32 v14, 2, v6
    v_mul_u32_u24 v15, 80, v14
    v_and_b32 v14, 3, v6
    v_lshl_add_u32 v15, v14, 4, v15
    v_add_u32 v15, s57, v15
    s_mov_b32 s55, {f32(-L2E)}
    s_lshl_b32 s59, s61, 6
    s_add_u32 s56, s56, {BTAB}
    s_add_u32 s56, s56, s59
    s_waitcnt vmcnt(8)
    {'s_setprio 3' if OPT.twprio else ''}
    """)
    stamp(a, 1, 5)
    for s in range(4):
        a(f"ds_read_b128 {vr(HF+4*s,4)}, v{96+s}")
        for jj in range(2):
            a(f"ds_read_b64_tr_b16 {vr(WFR+4*s+2*jj,2)}, v12 offset:{(16*s+4*jj)*64}")
    for s in range(4):
        a(f"s_waitcnt lgkmcnt({9 - 3*s})")
        a(mfma32(DD_, WFR+4*s, HF+4*s, None if s == 0 else DD_))
    stamp(a, 1, 6)
    if OPT.tb2 == 0: copy_out()
    else: a("s_nop 11")
    def scale_cvt(q, base):
        for r in range(4):
            a(f"v_mul_f32 v{base+4*q+r}, s55, v{base+4*q+r}")
        a(f"v_cvt_pk_bf16_f32 v{base+4*q}, v{base+4*q}, v{base+4*q+1}\nv_cvt_pk_bf16_f32 v{base+4*q+1}, v{base+4*q+2}, v{base+4*q+3}")
    for q in range(4):
        scale_cvt(q, DD_)
        a(f"ds_write_b64 v13, {vr(DD_+4*q,2)} offset:{16*q}")
    a(f"""
    ds_read_b128 {vr(WFR,4)}, v15
    ds_read_b128 {vr(WFR+4,4)}, v15 offset:{16*80}
    s_cmp_lg_u32 s60, 0
    s_waitcnt lgkmcnt(1)
    buffer_store_dwordx4 {vr(WFR,4)}, v11, {sr(sWS,4)}, s56 offen{ST}
    s_cselect_b64 exec, 15, -1
    s_waitcnt lgkmcnt(0)
    buffer_store_dwordx4 {vr(WFR+4,4)}, v11, {sr(sWS,4)}, s56 offen offset:2048{ST}
    s_mov_b64 exec, -1
    s_cmp_lg_u32 s3, 7
    s_cbranch_scc1 K1_NOP8S
    v_lshlrev_b32 v108, 16, v102
    v_lshlrev_b32 v109, 16, v104
    v_lshlrev_b32 v110, 16, v103
    ds_write_b128 v7, v[108:111] offset:{POSD}
    v_lshl_or_b32 v102, v104, 16, v102
    v_lshlrev_b32 v100, 3, v100
    s_mov_b32 s58, {P8}
    v_cmp_gt_u32 vcc, {NPB}, v6
    s_and_b64 exec, exec, vcc
    buffer_store_dwordx2 v[102:103], v100, {sr(sWS,4)}, s58 offen{ST}
    s_mov_b64 exec, -1
    K1_NOP8S:
    """)
    stamp(a, 1, 4)
    if OPT.tb2 != 0: copy_out()
    nst2 = (4 if OPT.stamps == 1 else 0)
    a(f"s_waitcnt vmcnt({4 + nst2})")
    for s in range(4):
        for jj in range(2):
            a(f"ds_read_b64_tr_b16 {vr(WFR+4*s+2*jj,2)}, v12 offset:{4096 + (16*s+4*jj)*64}")
    a(f"""
    v_lshrrev_b32 v14, 4, v6
    v_bfe_u32 v15, v6, 2, 2
    v_lshl_add_u32 v14, v14, 3, v15
    v_and_b32 v15, 3, v6
    v_lshlrev_b32 v15, 4, v15
    v_lshl_add_u32 v14, v14, 7, v15
    s_lshl_b32 s58, s3, 12
    s_add_u32 s58, s58, {SB}
    v_add_u32 v14, s58, v14
    """)
    for c in range(4):
        for jj in range(2):
            a(f"ds_read_b64_tr_b16 {vr(80+4*c+2*jj,2)}, v14 offset:{512*jj + 64*(c >> 1) + 8*(c & 1)}")
    for s in range(4):
        a(f"s_waitcnt lgkmcnt({14 - 2*s})")
        a(mfma32(DD_, WFR+4*s, HF+4*s, None if s == 0 else DD_))
    a(f"""
    s_lshl_b32 s48, s3, 10
    s_add_u32 s48, s48, {WHB - 4096}
    v_add_u32 v15, s48, v7
    v_add_u32 v14, s58, v7
    s_lshl_b32 s48, s60, 5
    v_add_u32 v9, s48, v9
    v_mul_u32_u24 v13, {ARS}, v9
    v_lshl_add_u32 v13, v8, 3, v13
    v_add_u32 v13, s59, v13
    s_waitcnt lgkmcnt(0)
    """)
    for c in range(4):
        a(f"ds_write_b128 v15, {vr(80+4*c,4)} offset:{4096*c}")
    for i in range(4):
        a(f"ds_write_b128 v14, {ZR} offset:{1024*i}")
    for q in range(4):
        scale_cvt(q, DD_)
        a(f"ds_write_b64 v13, {vr(DD_+4*q,2)} offset:{AT + 16*q}")
    a(f"""
    s_cmp_lg_u32 s3, 6
    s_cbranch_scc1 K1_NOX2
    v_cmp_gt_u32 vcc, 32, v6
    s_mov_b32 s48, {f32(-LN2)}
    """)
    for h in range(2):
        wd, wa, o = 100 + 2*h, 101 + 2*h, 32 + 4*h
        a(f"""
        v_lshlrev_b32 v{wd}, 16, v{wd}
        v_lshlrev_b32 v{wa}, 16, v{wa}
        v_mul_f32 v{wd}, s55, v{wd}
        v_mul_f32 v{wa}, s55, v{wa}
        v_cvt_pk_bf16_f32 v16, v{wd}, v{wd}
        v_lshlrev_b32 v16, 16, v16
        v_sub_f32 v17, v{wd}, v16
        v_cvt_pk_bf16_f32 v18, v16, v17
        v_cvt_pk_bf16_f32 v19, 0, v{wa}
        v_cndmask_b32 v{o}, v18, 0, vcc
        v_cndmask_b32 v{o+1}, v19, 0, vcc
        v_cndmask_b32 v{o+2}, 0, v18, vcc
        v_cndmask_b32 v{o+3}, 0, v19, vcc
        ds_write_b128 v7, {vr(o,4)} offset:{XTR + 1024*h}
        """)
    a(f"""
    v_lshlrev_b32 v40, 16, v104
    v_lshlrev_b32 v42, 16, v105
    v_mul_f32 v40, s48, v40
    v_mul_f32 v42, s48, v42
    ds_write_b128 v7, v[40:43] offset:{XTR + 2048}
    K1_NOX2:
    {'s_setprio 0' if OPT.twprio else ''}
    """)
    a(f"""
    K1_JOIN:
    s_mul_i32 s{sNB}, s2, {NPB}
    s_lshl_b32 s{sW10}, s3, 10
    s_sub_u32 s{sNN}, {N}, s{sNB}
    s_min_u32 s{sNN}, s{sNN}, {NPB}
    s_mov_b32 s{sOUT+2}, {N*134}
    s_mov_b32 s{sOUT+3}, 0x00020000
    s_movk_i32 s{sC128}, 128
    s_mov_b32 s{sM10}, 0x0000bf80
    s_mov_b32 s{s0M1}, 0xbf800000
    s_mov_b32 s{sP8}, {P8}
    s_mov_b32 s{sBT}, {BTAB - 3072}
    s_mov_b32 s{sQ}, 32
    s_mov_b32 s{sFIRST}, 1
    s_mov_b32 s{sPM}, 0x13131313
    s_mov_b32 s{sPM+1}, 0x13131313
    s_mov_b32 s{sCM}, 0x02020202
    s_mov_b32 s{sCM+1}, 0x02020202
    s_add_u32 s{sTOK+1}, s70, 1
    s_addc_u32 s{sTOK+2}, s71, 0
    s_and_b32 s{sTMP}, s{sTOK+2}, 15
    s_bfe_u32 s{sTMP+1}, s{sTOK+2}, 0x40004
    s_lshl_b32 s{sTMP}, s{sTMP}, 12
    s_lshl_b32 s{sTMP+1}, s{sTMP+1}, 28
    s_or_b32 s{sTOK}, s{sTMP}, s{sTMP+1}
    v_and_b32 v{J4}, 3, v0
    v_lshlrev_b32 v{J4}, 2, v{J4}
    v_lshrrev_b32 v2, 2, v0
    v_mul_u32_u24 v1, {PSTR}, v2
    """)
    if OPT.og:
        a(f"""
        v_lshlrev_b32 v2, 5, v2
        s_lshr_b32 s62, s2, 2
        s_mul_i32 s62, s62, {OGS}
        s_and_b32 s63, s2, 3
        s_lshl3_add_u32 s62, s63, s62
        s_add_u32 s62, s62, {OFFT}
        s_add_u32 s63, s62, 4096
        """)
    else:
        a(f"""
        v_mul_u32_u24 v2, {OSTR}, v2
        s_lshl3_add_u32 s62, s2, {OFFT}
        s_add_u32 s63, s62, {128*OSTR}
        """)
    a(f"""
    s_cmp_lg_u32 s3, 0
    s_cbranch_scc1 K1_NOOFF
    v_lshl_or_b32 v16, v103, 16, v102
    v_lshl_or_b32 v18, v104, 16, v103
    v_lshl_or_b32 v20, v105, 16, v104
    v_lshl_or_b32 v22, v100, 16, v105
    v_or_b32 v16, s{sTOK}, v16
    v_or_b32 v18, s{sTOK}, v18
    v_or_b32 v20, s{sTOK}, v20
    v_or_b32 v22, s{sTOK}, v22
    v_mov_b32 v17, s{sTOK+1}
    v_mov_b32 v19, s{sTOK+1}
    v_mov_b32 v21, s{sTOK+1}
    v_mov_b32 v23, s{sTOK+1}
    s_mul_i32 s48, s{sPID}, {32 if OPT.og else OSTR}
    s_add_u32 s48, s48, {OFFT}
    {f'v_mul_u32_u24 v4, {OGS}, v6' if OPT.og else 'v_lshlrev_b32 v4, 1, v7'}
    s_waitcnt vmcnt(0) lgkmcnt(0)
    s_barrier
    buffer_store_dwordx4 v[16:19], v4, {sr(sWS,4)}, s48 offen sc1
    buffer_store_dwordx4 v[20:23], v4, {sr(sWS,4)}, s48 offen offset:16 sc1
    s_branch K1_PUB
    K1_NOOFF:
    s_waitcnt vmcnt(0) lgkmcnt(0)
    s_barrier
    K1_PUB:
    """)
    stamp(a, 1, 3); stamp(a, 1, 15, True)
    if OPT.stamps:
        a(f"s_add_u32 s66, s66, {256*16*64}")
    stamp(a, 2, 0); stamp(a, 2, 14, True)
    for h in range(2):
        a(f"ds_read_b64 {vr(WX[h],2)}, v7 offset:{XTR + 1024*h}")
        a(f"ds_read_b64 {vr(WX[h]+4,2)}, v7 offset:{XTR + 1024*h + 8}")
    a(f"""
    ds_read_b128 {vr(WXS[0],4)}, v7 offset:{XTR + 2048}
    s_mov_b32 s{sTMP}, 0xf000f000
    s_mov_b32 s{sTMP+1}, {1 << 20}
    {f's_sleep {OPT.slp0}' if OPT.slp0 else ''}
    K1_POLL:
    buffer_load_dwordx2 v[8:9], v2, {sr(sWS,4)}, s62 offen sc1
    buffer_load_dwordx2 v[12:13], v2, {sr(sWS,4)}, s63 offen sc1
    s_sub_u32 s{sTMP+1}, s{sTMP+1}, 1
    s_cbranch_scc1 K1_GOT
    s_waitcnt vmcnt(0)
    v_and_b32 v10, s{sTMP}, v8
    v_mov_b32 v11, v9
    v_and_b32 v14, s{sTMP}, v12
    v_mov_b32 v15, v13
    v_cmp_ne_u64 vcc, {sr(sTOK)}, v[10:11]
    v_cmp_ne_u64 {sr(sTMP+2)}, {sr(sTOK)}, v[14:15]
    s_or_b64 exec, vcc, {sr(sTMP+2)}
    s_cbranch_execz K1_GOT
    s_sleep {OPT.slp}
    s_branch K1_POLL
    K1_GOT:
    s_mov_b64 exec, -1
    s_not_b32 s{sTMP}, s{sTMP}
    s_waitcnt vmcnt(0)
    v_and_b32 v{OFFV[0]}, s{sTMP}, v8
    v_and_b32 v{OFFV[1]}, s{sTMP}, v12
    v_add_u32_sdwa v{START[0]}, v{J4}, v{OFFV[0]} dst_sel:DWORD dst_unused:UNUSED_PAD src0_sel:DWORD src1_sel:WORD_0
    v_add_u32_sdwa v{START[1]}, v{J4}, v{OFFV[1]} dst_sel:DWORD dst_unused:UNUSED_PAD src0_sel:DWORD src1_sel:WORD_0
    """)

def gen_k2(a):
    tmp = D[0]
    L4 = tmp + 79; QJ = FL + 5
    stamp(a, 2, 1)
    RECS = tmp; LW = tmp + 16; DLS = tmp + 24; RK = tmp + 40; BS = tmp + 56
    AR = tmp + 72; AL = tmp + 73; ONE = tmp + 74; PV = tmp + 75
    AR2 = [AR, FL]; AL2 = [AL, FL + 1]; REM = [FL + 3, FL + 4]
    a.label("K2_ROUND")
    a(f"""
    s_mov_b32 s{sTMP}, {128*PSTR}
    s_movk_i32 s{sTMP+1}, {L_OFF}
    s_mov_b32 s{sTMP+2}, {128*PSTR + L_OFF}
    """)
    for x in range(2):
        a(f"""
        v_lshl_add_u32 v{AR2[x]}, v{START[x]}, 2, v1
        v_add_u32 v{AL2[x]}, v{START[x]}, v1
        buffer_load_dwordx4 {vr(RECS+8*x,4)}, v{AR2[x]}, {sr(sWS,4)}, {'s%d' % sTMP if x else 0} offen
        v_and_b32 v{AL2[x]}, -4, v{AL2[x]}
        buffer_load_dwordx2 {vr(LW+4*x,2)}, v{AL2[x]}, {sr(sWS,4)}, s{sTMP+1+x} offen
        """)
    a(f"v_sub_u32 v{QJ}, s{sQ}, v{J4}")
    for x in range(2):
        a(f"""
        v_sub_u32_sdwa v{REM[x]}, v{OFFV[x]}, v{START[x]} dst_sel:DWORD dst_unused:UNUSED_PAD src0_sel:WORD_1 src1_sel:DWORD
        s_nop 0
        v_cmp_gt_i32 {sr(sF0+2*x)}, v{REM[x]}, v{QJ}
        v_min_i32 v{REM[x]}, v{REM[x]}, v{QJ}
        v_cmp_lt_i32 vcc, 16, v{REM[x]}
        s_or_b64 exec, vcc, 1
        buffer_load_dwordx4 {vr(RECS+8*x+4,4)}, v{AR2[x]}, {sr(sWS,4)}, {'s%d' % sTMP if x else 0} offen offset:64
        buffer_load_dwordx2 {vr(LW+4*x+2,2)}, v{AL2[x]}, {sr(sWS,4)}, s{sTMP+1+x} offen offset:16
        s_mov_b64 exec, -1
        """)
    ntouch = 1 if OPT.touch else 0
    a(f"""
    v_mov_b32 v{ONE}, 1
    v_lshrrev_b32 v{L4}, 1, v{LANE8}
    s_cmp_eq_u32 s{sFIRST}, 0
    s_cbranch_scc1 K2_NOTFIRST
    """)
    a("s_waitcnt vmcnt(0)")
    if OPT.touch:
        a(f"""
        s_mul_i32 s{sTMP+1}, s{sROT}, {392*128}
        s_mul_i32 s{sTMP+2}, s3, {49*128}
        s_add_u32 s{sTMP+1}, s{sTMP+1}, s{sTMP+2}
        s_add_u32 s{sTMP+1}, s{sTMP+1}, {BTAB}
        v_lshlrev_b32 v{TCH}, 4, v{LANE8}
        v_add_u32 v{TCH}, s{sTMP+1}, v{TCH}
        s_lshl3_add_u32 s{sTMP+1}, s{sROT}, s3
        s_lshl_b32 s{sTMP+1}, s{sTMP+1}, 9
        s_add_u32 s{sTMP+1}, s{sTMP+1}, {P8 - 49*128}
        v_lshl_add_u32 v{T1}, v{LANE8}, 4, s{sTMP+1}
        v_cmp_gt_u32 vcc, {49*8}, v{LANE8}
        s_mov_b32 exec_lo, {hex((1 << min(32, OPT.touch)) - 1)}
        s_mov_b32 exec_hi, {hex(((1 << max(0, OPT.touch - 32)) - 1) | (15 << 17))}
        v_cndmask_b32 v{TCH}, v{T1}, v{TCH}, vcc
        buffer_load_dword v{TCH}, v{TCH}, {sr(sWS,4)}, 0 offen
        s_mov_b64 exec, -1
        """)
    a(f"""
    s_branch K2_COUNT
    K2_NOTFIRST:
    s_waitcnt lgkmcnt(0)
    s_barrier
    s_waitcnt vmcnt(0)
    K2_COUNT:
    """)
    stamp(a, 2, 2)
    a(f"""
    s_or_b64 vcc, {sr(sF0)}, {sr(sF0+2)}
    s_cbranch_scc0 K2_NOFLAG
    v_mov_b32 v{PV}, {FLAG}
    ds_write_b32 v{PV}, v{ONE}
    K2_NOFLAG:
    """)
    for x in range(2):
        for i in range(2):
            g = 2*x + i
            for k in range(4):
                s = 4*g + k
                a(f"v_cmpx_lt_i32 vcc, {16*i+k}, v{REM[x]}")
                if i == 1:
                    a(f"s_cbranch_execz K2_CNT_{x}")
                if k == 0:
                    a(f"v_alignbyte_b32 v{LW+2*g}, v{LW+2*g+1}, v{LW+2*g}, v{START[x]}")
                a(f"v_lshlrev_b32_sdwa v{DLS+s}, 2, v{LW+2*g} dst_sel:DWORD dst_unused:UNUSED_PAD src0_sel:DWORD src1_sel:BYTE_{k}")
                a(f"ds_add_rtn_u32 v{RK+s}, v{DLS+s}, v{ONE} offset:{CNT2}")
        a(f"K2_CNT_{x}:\ns_mov_b64 exec, -1")
    a(f"""
    v_mov_b32 v{AR}, {FLAG}
    s_movk_i32 s{sTMP}, {LIST}
    s_waitcnt lgkmcnt(0)
    s_barrier
    """)
    stamp(a, 2, 3)
    a(f"""
    s_or_b32 s{sTMP+1}, s2, s3
    s_cbranch_scc0 K2_EPOCH
    K2_EPOCH_RET:
    """)
    a(f"""
    ds_read_b32 v{PV}, v{L4} offset:{CNT2}
    ds_read_b32 v{AL}, v{AR}
    s_waitcnt lgkmcnt(1)
    v_mov_b32 v{AR}, v{PV}
    """)
    wave_scan(a, AR)
    a(f"""
    v_sub_u32 v{PV}, v{AR}, v{PV}
    v_readlane_b32 s{sT}, v{AR}, 63
    v_lshl_add_u32 v{PV}, v{PV}, 3, s{sTMP}
    ds_write_b32 v{L4}, v{PV} offset:{PRE2}
    """)
    for x in range(2):
        for k in range(4):
            s = 8*x + k
            a(f"ds_read_b32 v{BS+s}, v{DLS+s} offset:{PRE2}")
    for x in range(2):
        a(f"v_cmpx_lt_i32 vcc, 16, v{REM[x]}\ns_cbranch_execz K2_SR_{x}")
        for k in range(4):
            s = 8*x + 4 + k
            a(f"ds_read_b32 v{BS+s}, v{DLS+s} offset:{PRE2}")
        a(f"K2_SR_{x}:\ns_mov_b64 exec, -1")
    a(f"""
    s_cmp_gt_u32 s{sT}, {CAP}
    s_cbranch_scc1 K2_OVER
    s_add_u32 s{sTMP+4}, s{sT}, 63
    s_lshr_b32 s{sTMP+4}, s{sTMP+4}, 6
    s_lshr_b32 s{sTMP+1}, s{sTMP+4}, 3
    s_and_b32 s{sTMP+2}, s{sTMP+4}, 7
    s_mul_i32 s{sPN8}, s3, s{sTMP+1}
    s_min_u32 s{sTMP+3}, s3, s{sTMP+2}
    s_add_u32 s{sPN8}, s{sPN8}, s{sTMP+3}
    s_cmp_lt_u32 s3, s{sTMP+2}
    s_addc_u32 s{sTMP+1}, s{sTMP+1}, s{sPN8}
    s_lshl_b32 s{sPN8}, s{sPN8}, 9
    s_lshl_b32 s{sEND}, s{sTMP+1}, 9
    s_lshl_b32 s{sT}, s{sT}, 3
    s_min_u32 s{sEND}, s{sEND}, s{sT}
    s_lshl2_add_u32 m0, s{sW10}, {STG}
    s_mov_b64 {sr(sFWX)}, 0
    s_movk_i32 s{sTHR}, {512*OPT.prio}
    s_cmp_lg_u32 s3, 0
    s_cbranch_scc1 K2_NOPAD
    v_add_u32 v{AR}, s{sT}, v{LANE8}
    v_mov_b32 v{FL+6}, 0
    v_mov_b32 v{FL+7}, {16*NPB}
    ds_write_b64 v{AR}, {vr(FL+6,2)} offset:{LIST}
    K2_NOPAD:
    s_waitcnt lgkmcnt(0)
    v_readfirstlane_b32 s{sMORE}, v{AL}
    """)
    if OPT.stamps != 4: stamp(a, 2, 11)
    for x in range(2):
        for i in range(2):
            for k in range(4):
                s = 8*x + 4*i + k
                pr = FL + 6 + 2 * (s % 4)
                a(f"v_cmpx_lt_i32 vcc, {16*i+k}, v{REM[x]}")
                if i == 1: a(f"s_cbranch_execz K2_SC_{x}")
                a(f"""
                v_lshl_add_u32 v{BS+s}, v{RK+s}, 3, v{BS+s}
                v_mov_b32 v{pr}, v{RECS+s}
                v_lshlrev_b32 v{pr+1}, 2, v{DLS+s}
                ds_write_b64 v{BS+s}, {vr(pr,2)}
                """)
        a(f"K2_SC_{x}:\ns_mov_b64 exec, -1")
    a(f"""
    v_add_u32 v{TA}, s{sPN8}, v{LANE8}
    v_add_u32 v{A4}, s{sPN8}, v{G8}
    {mfma32(ACC[0], ZERO, ZERO, None)}
    {mfma32(ACC[1], ZERO, ZERO, None)}
    s_sub_u32 s{sREM}, s{sEND}, s{sPN8}
    v_cmp_gt_i32 {sr(sMR)}, s{sREM}, v{LANE8}
    {mfma32(S, ZERO, ZERO, None)}
    """)
    if OPT.stamps != 4: stamp(a, 2, 10)
    a("s_waitcnt lgkmcnt(0)\ns_barrier")
    stamp(a, 2, 4)
    a(f"""
    s_cmp_ge_u32 s{sPN8}, s{sEND}
    s_cbranch_scc1 K2_NOWORK
    """)
    RB4 = D[1]
    if OPT.abl:
        a(f"s_add_u32 s67, s{sREM}, 511\ns_lshr_b32 s67, s67, 9")
    plain(a, r_read(0))
    plain(a, list_reads()[1:2])
    plain(a, r_read(1, RB4))
    a(mfma32(D[1] + 14, ZERO, ZERO, None))
    a("s_waitcnt lgkmcnt(3)")
    plain(a, mads(R8))
    plain(a, dma_ops())
    a("s_waitcnt lgkmcnt(0)")
    plain(a, pos_load())
    a(f"""
    v_readfirstlane_b32 s{sWB}, v{DL}
    v_mov_b32 v{T+6}, 1.0
    v_mov_b32 v{T+7}, 1.0
    s_min_u32 s{sWB}, s{sWB}, {16*(NPB-8)}
    """)
    window_masks(a)
    wx_load(a)
    plain(a, geo_addr())
    plain(a, geo_lut())
    plain(a, advance())
    plain(a, mads(RB4))
    a("s_waitcnt lgkmcnt(0)")
    plain(a, geo_fin()[1:])
    a("s_waitcnt vmcnt(1)")
    plain(a, x_read(0)[1:])
    a("s_waitcnt vmcnt(0)")
    plain(a, geo_diff())
    a("s_waitcnt lgkmcnt(2)")
    a(mfma32(D[0], X[0], ID, None))
    plain(a, geo_cvt())
    a(mfma32(D[0], X[0] + 4, ID + 4, D[0]))
    plain(a, geo_d2())
    a("s_waitcnt lgkmcnt(0)")
    plain(a, dma_ops()[:2])
    plain(a, geo_fin()[:1])
    plain(a, dma_ops()[2:])
    a(mfma32(D[0], XX, WX[0] + 2, D[0]))
    plain(a, s_write())
    a("s_nop 7")
    if OPT.prio: a("s_setprio 3")
    stamp(a, 2, 5)
    gen_main_loop(a)
    stamp(a, 2, 6)
    t2 = T + 2 * (7 % 4); y2 = D[1] + 14; t6 = T + 2 * (6 % 4)
    a(f"""
    {mfma32(ACC[1], S, M[1], ACC[1])}
    v_rcp_f32 v{t2}, v{t2}
    v_rcp_f32 v{t2+1}, v{t2+1}
    v_cvt_pk_bf16_f32 v{M[1]+6}, v{t6}, v{t6+1}
    v_mul_f32 v{t2}, v{t2}, v{y2}
    v_mul_f32 v{t2+1}, v{t2+1}, v{y2+1}
    v_cvt_pk_bf16_f32 v{M[1]+7}, v{t2}, v{t2+1}
    s_mov_b32 s{sWBO}, s{sWB}
    s_nop 0
    {mfma32(ACC[1], S+4, M[1]+4, ACC[1])}
    """)
    epi_reads(a)
    flush_code(a, False, 'A')
    a.label("K2_WDONE")
    stamp(a, 2, 7)
    a(f"""
    s_cmp_lg_u32 s{sMORE}, 0
    s_cbranch_scc1 K2_MORE
    """)
    MB_ = M[0]; U = ACC[0]; HR = D[0]; EX = D[0] + 8; MFS = [D[1], ACC[1]]
    a(f"""
    s_movk_i32 s{sTMP+3}, 21846
    v_mul_u32_u24 v{DX}, s{sTMP+3}, v0
    s_mul_i32 s{sTMP+4}, s{sNB}, 6
    s_add_u32 s{sTMP+4}, s{sTMP+4}, {N*128}
    v_add_u32_sdwa v{DX}, v{DX}, v0 dst_sel:DWORD dst_unused:UNUSED_PAD src0_sel:WORD_1 src1_sel:DWORD
    v_lshlrev_b32 v{PD}, 1, v0
    s_mul_i32 s{sTMP+5}, s{sNN}, 3
    v_cmp_gt_u32 {sr(sF0+2)}, s{sTMP+5}, v0
    v_lshlrev_b32 v{DX+1}, 2, v{DX}
    v_lshlrev_b32 v{DX}, 3, v{DX}
    s_and_b32 s{sTMP}, s3, 3
    s_lshl_b32 s{sTMP}, s{sTMP}, 4
    s_sub_i32 s{sTMP+5}, s{sNN}, s{sTMP}
    s_lshl_b32 s{sTMP+5}, s{sTMP+5}, 7
    v_cmp_gt_i32 {sr(sF0)}, s{sTMP+5}, v{EO}
    s_add_u32 s{sTMP}, s{sTMP}, s{sNB}
    s_lshl_b32 s{sTMP}, s{sTMP}, 7
    s_lshr_b32 s{sTMP+1}, s3, 2
    s_lshl_b32 s{sTMP+1}, s{sTMP+1}, 6
    s_add_u32 s{sTMP}, s{sTMP}, s{sTMP+1}
    s_mov_b32 s{sTMP+2}, {f32(-LN2)}
    s_mov_b32 s{sTMP+3}, 0xffff0000
    s_waitcnt lgkmcnt(0)
    {mfma16(U, X[0], EW, None)}
    {mfma16(U+4, X[0]+16, EW, None)}
    {mfma16(U, X[0]+4, EW+4, U)}
    {mfma16(U+4, X[0]+20, EW+4, U+4)}
    s_cmp_lt_u32 s3, 4
    s_cbranch_scc1 K2_HLO
    """)
    for r in range(4):
        a(f"v_lshlrev_b32 v{HR+2*r}, 16, v{EW+4+r}\nv_and_b32 v{HR+2*r+1}, s{sTMP+3}, v{EW+4+r}")
    a("s_branch K2_HOK\nK2_HLO:")
    for r in range(4):
        a(f"v_lshlrev_b32 v{HR+2*r}, 16, v{EW+r}\nv_and_b32 v{HR+2*r+1}, s{sTMP+3}, v{EW+r}")
    a("K2_HOK:\ns_barrier")
    stamp(a, 2, 8)
    for s in range(2):
        for k in range(4):
            a(f"ds_read_b128 {vr(MFS[s]+4*k,4)}, v{EA_} offset:{256*s + 16*k}")
    a(f"ds_read_b32 v{DX+1}, v{DX+1} offset:{POSD}\nds_read_b64 {vr(PS,2)}, v{DX} offset:{ACCP}")
    for s in range(2):
        for k in range(4):
            a(f"s_waitcnt lgkmcnt({9 - 4*s - k})")
            a(f"v_cvt_f32_f64 v{MFS[s]+4*k}, {vr(MFS[s]+4*k,2)}")
            a(f"v_cvt_f32_f64 v{MFS[s]+4*k+1}, {vr(MFS[s]+4*k+2,2)}")
            a(f"v_mul_f32 v{MFS[s]+4*k}, s{sTMP+2}, v{MFS[s]+4*k}")
            a(f"v_mul_f32 v{MFS[s]+4*k+1}, s{sTMP+2}, v{MFS[s]+4*k+1}")
            a(f"v_cvt_pk_bf16_f32 v{MB_+4*s+k}, v{MFS[s]+4*k}, v{MFS[s]+4*k+1}")
        a("s_nop 1")
        a(mfma16(U, X[0]+8+4*s, MB_+4*s, U))
        a(mfma16(U+4, X[0]+24+4*s, MB_+4*s, U+4))
    a(f"""
    s_mov_b32 s{sTMP+2}, {f32(-L2E)}
    s_mov_b64 exec, {sr(sF0+2)}
    s_cbranch_execz K2_NOPOS
    s_waitcnt lgkmcnt(0)
    v_cvt_f32_f64 v{DX+2}, {vr(PS,2)}
    v_add_f32 v{DX+1}, v{DX+1}, v{DX+2}
    v_cvt_pk_bf16_f32 v{DX+1}, v{DX+1}, v{DX+1}
    buffer_store_short v{DX+1}, v{PD}, {sr(sOUT,4)}, s{sTMP+4} offen{OPT.ost}
    K2_NOPOS:
    s_mov_b64 exec, -1
    s_nop 4
    """)
    for r in range(8):
        a(f"v_mul_f32 v{EX+r}, s{sTMP+2}, v{U+r}")
    for r in range(8):
        a(f"v_exp_f32 v{EX+r}, v{EX+r}")
    for r in range(0, 8, 2):
        a(f"v_pk_add_f32 {vr(EX+r,2)}, {vr(EX+r,2)}, 1.0 op_sel_hi:[1,0]")
    for r in range(8):
        a(f"v_rcp_f32 v{EX+r}, v{EX+r}")
    for r in range(0, 8, 2):
        a(f"v_pk_fma_f32 {vr(HR+r,2)}, {vr(EX+r,2)}, {vr(U+r,2)}, {vr(HR+r,2)}")
    for r in range(4):
        a(f"v_cvt_pk_bf16_f32 v{EX+r}, v{HR+2*r}, v{HR+2*r+1}")
    a(f"""
    s_mov_b64 exec, {sr(sF0)}
    s_cbranch_execz K2_END
    buffer_store_dwordx4 {vr(EX,4)}, v{EO}, {sr(sOUT,4)}, s{sTMP} offen{OPT.ost}
    """)
    if OPT.stamps:
        a("s_waitcnt vmcnt(0)")
    stamp(a, 2, 9); stamp(a, 2, 15, True)
    a("K2_END:\ns_endpgm")
    a.label("K2_NOWORK")
    epi_reads(a)
    a("s_branch K2_WDONE")
    a.label("K2_FLUSH")
    flush_code(a, True, 'B')
    a(f"s_mov_b32 s{sFFL}, 0\ns_branch K2_FLUSH_RET")
    a.label("K2_REBASE")
    a(f"""
    s_mov_b32 s{sWBO}, s{sWB}
    v_readfirstlane_b32 s{sWB}, v{DL}
    s_mov_b32 s{sFWX}, 1
    s_mov_b32 s{sFFL}, 1
    s_min_u32 s{sWB}, s{sWB}, {16*(NPB-8)}
    """)
    window_masks(a)
    a("s_branch K2_REBASE_RET")
    a.label("K2_WXL")
    wx_load(a)
    a(f"s_mov_b32 s{sFWX}, 0\ns_branch K2_WXL_RET")
    if OPT.prio:
        a(f"""
        K2_PRIO:
        s_cmp_gt_i32 s{sREM}, 0
        s_cbranch_scc0 K2_PRIO1
        s_setprio 2
        s_mov_b32 s{sTHR}, 0
        s_branch K2_PRIO_RET
        K2_PRIO1:
        s_setprio 1
        s_branch K2_PRIO_RET
        K2_PRIO0:
        s_setprio 0
        s_branch K2_PRIO0_RET
        """)
    a(f"""
    K2_EPOCH:
    v_mov_b32 v{T1}, s{sTOK+1}
    v_mov_b32 v{T2}, s{sTOK+2}
    v_mov_b32 v{TA}, {EPO}
    s_mov_b64 exec, 1
    buffer_store_dwordx2 {vr(T1,2)}, v{TA}, {sr(sWS,4)}, 0 offen
    s_mov_b64 exec, -1
    s_branch K2_EPOCH_RET
    K2_OVER:
    s_mov_b32 s{sQ}, 16
    s_branch K2_AGAIN
    K2_MORE:
    """)
    for x in range(2):
        a(f"""
        v_add_u32_sdwa v{T1}, v{J4}, v{OFFV[x]} dst_sel:DWORD dst_unused:UNUSED_PAD src0_sel:DWORD src1_sel:WORD_1
        v_add_u32 v{START[x]}, s{sQ}, v{START[x]}
        v_min_u32 v{START[x]}, v{START[x]}, v{T1}
        """)
    a(f"""
    K2_AGAIN:
    s_waitcnt vmcnt(0) lgkmcnt(0)
    s_barrier
    s_mov_b32 s{sFIRST}, 0
    s_cmp_lg_u32 s3, 0
    s_cbranch_scc1 K2_ROUND
    v_lshrrev_b32 v{T1}, 1, v{LANE8}
    ds_write_b32 v{T1}, v{ZERO} offset:{CNT2}
    v_mov_b32 v{T1}, {FLAG}
    ds_write_b32 v{T1}, v{ZERO}
    s_branch K2_ROUND
    """)

HEADER = """; EGNN layer (gather / edge MLP / scatter) for gfx950, one workgroup per CU
; Kernarg: h 0, pos 8, e_attr 16, src 24, dst 32, w_e 40, w_x 48, w_h 56, out 64, debug 72, ws 80
; @launch grid=(256,1,1) block=(512,1,1) lds={l2}
.amdgcn_target "amdgcn-amd-amdhsa--gfx950"
.text
"""
KD = """.amdhsa_kernel {name}
  .amdhsa_next_free_vgpr {nv}
  .amdhsa_next_free_sgpr 96
  .amdhsa_accum_offset {nv}
  .amdhsa_group_segment_fixed_size 0
  .amdhsa_kernarg_size 88
  .amdhsa_user_sgpr_count 2
  .amdhsa_user_sgpr_kernarg_segment_ptr 1
  .amdhsa_system_sgpr_workgroup_id_x 1
.end_amdhsa_kernel
"""

def generate(stamps=0, prio=2, touch=49, g0=3, g1=5, abl='', tb2=1, st=2, twprio=1, slp=2, ost=0, og=1, slp0=0):
    OPT.stamps = stamps; OPT.prio = prio; OPT.touch = touch; OPT.g0 = g0; OPT.g1 = g1; OPT.abl = abl
    OPT.tb2 = tb2; OPT.st = ['', ' nt', ' sc1', ' sc0 sc1'][st]; OPT.twprio = twprio; OPT.slp = slp; OPT.og = og; OPT.slp0 = slp0
    OPT.ost = ['', ' nt', ' sc1', ' sc0 sc1'][ost]
    a = Asm(); gen_phase1(a); gen_k2(a)
    k2n = "gather_scatter__cheap_equivariant_egnn__graph_kernel"
    s = HEADER.format(l2=LDS2)
    s += f".globl {k2n}\n.p2align 8\n.type {k2n},@function\n" + a.text()
    s += '.section .rodata,"a"\n.p2align 6\n' + KD.format(name=k2n, nv=NV2 if stamps else 248)
    return s

if __name__ == "__main__":
    out = sys.argv[1]
    kw = {}
    for x in sys.argv[2:]:
        k, v = x.split("=", 1); kw[k] = v if k == 'abl' else int(v)
    open(out, "w").write(generate(**kw))
```

```python
import sys, struct

N = 12500; E = 800000
NPB = 49
CH = 3136
PSTR = 15744
L_OFF = CH * 4
RL_END = L_OFF + CH
OSTR = 2176; OGS = 8320
OFFT = 256 * PSTR
EPO = OFFT + 256 * OSTR
P8 = EPO + 128
BTAB = P8 + 12544 * 8
WS_USED = BTAB + 12560 * 128
DBG_WS = WS_USED + 4096
WS_SRD = 32 << 20
L2E = 1.4426950408889634
LN2 = 0.6931471805599453

def f32(x):
    return "0x%08x" % struct.unpack("<I", struct.pack("<f", x))[0]

class Asm:
    def __init__(self):
        self.L = []
    def __call__(self, s):
        for ln in s.strip("\n").split("\n"):
            ln = ln.strip()
            if ln:
                self.L.append(ln if ln.endswith(":") else "    " + ln)
    def label(self, s):
        self.L.append(s + ":")
    def text(self):
        return "\n".join(self.L) + "\n"

def vr(a, n):
    return f"v[{a}:{a+n-1}]"
def sr(a, n=2):
    return f"s[{a}:{a+n-1}]"

def srd(a, base, nbytes, add=0):
    o = []
    if add:
        o += [f"s_add_u32 s{a}, s{base}, {add}", f"s_addc_u32 s{a+1}, s{base+1}, 0"]
    else:
        o += [f"s_mov_b32 s{a}, s{base}", f"s_mov_b32 s{a+1}, s{base+1}"]
    o += [f"s_mov_b32 s{a+2}, {nbytes}", f"s_mov_b32 s{a+3}, 0x00020000"]
    return "\n".join(o)

def wave_scan(a, v):
    for ctl in ("row_shr:1", "row_shr:2", "row_shr:4", "row_shr:8"):
        a("s_nop 1")
        a(f"v_add_u32_dpp v{v}, v{v}, v{v} {ctl} row_mask:0xf bank_mask:0xf bound_ctrl:0")
    a("s_nop 1")
    a(f"v_add_u32_dpp v{v}, v{v}, v{v} row_bcast:15 row_mask:0xa bank_mask:0xf")
    a("s_nop 1")
    a(f"v_add_u32_dpp v{v}, v{v}, v{v} row_bcast:31 row_mask:0xc bank_mask:0xf")

def mfma32(d, a_, b_, c):
    cc = "0" if c is None else vr(c, 16)
    return f"v_mfma_f32_32x32x16_bf16 {vr(d,16)}, {vr(a_,4)}, {vr(b_,4)}, {cc}"
def mfma16(d, a_, b_, c):
    cc = "0" if c is None else vr(c, 4)
    return f"v_mfma_f32_16x16x32_bf16 {vr(d,4)}, {vr(a_,4)}, {vr(b_,4)}, {cc}"

class Opt:
    pass
OPT = Opt()

def stamp(a, kern, idx, real=False):
    if not OPT.stamps:
        return
    if OPT.stamps == 5 and not real:
        if (kern, idx) in ((2, 5), (2, 6)):
            stamp(a, kern, idx + 7, True)
        if not (kern == 2 and idx in (0, 5, 6)): return
    if OPT.stamps == 4:
        idx = {(2, 5): 12, (2, 6): 13, (2, 2): 11, (2, 4): 10}.get((kern, idx), idx) if not real else idx
        if idx < 10 or (not real and idx in (10, 11) and (kern, idx) == (2, idx) and not getattr(stamp, 'ok', True)): return
        real = True
    if not real and OPT.stamps == 2 and idx not in (0, 3, 9):
        return
    if not real and OPT.stamps == 3 and idx not in ((0, 3) if kern == 1 else (0, 5, 6, 9)):
        return
    sv = 252
    st = 64
    w = 12
    a(f"""
    {'s_memrealtime' if real else 's_memtime'} s[{st}:{st+1}]
    s_waitcnt lgkmcnt(0)
    v_mov_b32 v{sv}, s{st}
    v_mov_b32 v{sv+1}, s{st+2}
    s_mov_b64 s[{st}:{st+1}], exec
    s_mov_b64 exec, 1
    buffer_store_dword v{sv}, v{sv+1}, s[{w}:{w+3}], 0 offen offset:{idx*4}
    s_mov_b64 exec, s[{st}:{st+1}]
    """)

CAP = 4096
RS = 528
CNT2 = 0; PRE2 = 256; FLAG = 512; LUT = 528; ACCP = LUT + 800; POSD = 3072
assert ACCP + NPB * 32 <= POSD
LIST = 4096
AT = LIST + (CAP + 64) * 8
ARS = 144
HRB = AT + 64 * ARS
WHB = HRB + 8192
ACCM = WHB + 16384
SB = (ACCM + NPB * RS + 127) // 128 * 128
STG = SB + 8 * 4096
LDS2 = STG + 8 * 4096
XTR = LIST + 24576
assert LDS2 <= 163840 and HRB % 128 == 0

ACC = [2, 18]; D = [34, 50]; M = [66, 74]; X = [82, 98]
WX = [114, 120]; XX = 126; S = 132; T = 140; TCH = 148; J4 = 149
REC = 150; DL = 151; R8 = 152; REL = 160; TA = 161; PD = 162; DX = 166; DD = 169; DXY = 170
SAD = 172; A4 = 173; PS = 174; ZERO = 176; WXS = [180, 182]
T1 = 184; T2 = 185; START = [186, 187]; OFFV = [188, 189]
FL = 190
EW = 208
CB = 216
CDMA = CB; AX = CB + 4; AS = CB + 8; SROW = CB + 12; G8 = CB + 13; MADDR = CB + 14; POFF = CB + 15
ID = CB + 16; AWT = CB + 24; LANE8 = CB + 25; LUA = CB + 26; LUV = CB + 27
EA_ = CB + 28; EH = CB + 29; EO = CB + 31
DUMMY = LANE8
NV2 = 256
sWS, sOUT, sH = 12, 20, 24
sNB, sNN, sC128, sM10, s0M1, sP8, sBT = 28, 29, 30, 31, 32, 33, 34
sEND, sWB, sWBO, sFWX, sFFL = 35, 36, 37, 38, 39
sREM, sTHR, sW10 = 40, 41, 42
sVN, sMR = 44, 46
sNX, sQ, sFIRST, sT, sPN8, sMORE, sROT = 48, 49, 50, 51, 52, 53, 54
sTMP = 56
sTOK = 68
sPM, sCM, sF0 = 72, 74, 76

def lane_consts(a, o, base):
    L = base; HH, A31, R2, C2, GP, U1, U2 = [base + 1 + i for i in range(7)]
    CD, AXo, ASo = o, o + 4, o + 8
    SROWo, G8o, MADo, POFo = o + 12, o + 13, o + 14, o + 15
    IDo = o + 16; AWo, L8o, LUA, LUV = o + 24, o + 25, o + 26, o + 27
    EAo, EH0, EH1, EOo = o + 28, o + 29, o + 30, o + 31
    a(f"""
    v_lshrrev_b32 v{HH}, 5, v{L}
    v_and_b32 v{A31}, 31, v{L}
    v_bfe_u32 v{R2}, v{L}, 2, 2
    v_and_b32 v{C2}, 3, v{L}
    v_bfe_u32 v{GP}, v{L}, 4, 1
    v_lshrrev_b32 v{U1}, 3, v{L}
    v_lshlrev_b32 v{G8o}, 5, v{U1}
    v_and_b32 v{U1}, 7, v{L}
    v_lshlrev_b32 v{U2}, 2, v{HH}
    v_xor_b32 v{U1}, v{U1}, v{U2}
    """)
    for i in range(4):
        a(f"v_xor_b32 v{CD+i}, {i}, v{U1}\nv_lshlrev_b32 v{CD+i}, 4, v{CD+i}\nv_add_u32 v{CD+i}, {3072 - 1024*i}, v{CD+i}")
    a(f"""
    v_bfe_u32 v{U1}, v{L}, 2, 3
    v_lshl_add_u32 v{U1}, v{C2}, 3, v{U1}
    v_lshlrev_b32 v{U1}, 7, v{U1}
    v_add_u32 v{U1}, {STG}, v{U1}
    v_lshl_or_b32 v{U2}, v{GP}, 2, v{C2}
    v_xor_b32 v{U2}, v{U2}, v{HH}
    """)
    for k in range(4):
        a(f"v_xor_b32 v{AXo+k}, {2*k}, v{U2}\nv_lshl_add_u32 v{AXo+k}, v{AXo+k}, 4, v{U1}")
    a(f"""
    v_lshlrev_b32 v{SROWo}, 7, v{A31}
    v_add_u32 v{SROWo}, {SB}, v{SROWo}
    v_and_b32 v{U1}, 1, v{L}
    v_lshl_or_b32 v{U1}, v{R2}, 1, v{U1}
    v_lshl_add_u32 v{SROWo}, v{U1}, 4, v{SROWo}
    v_bfe_u32 v{U1}, v{L}, 1, 1
    v_xor_b32 v{U1}, v{U1}, v{HH}
    v_lshl_add_u32 v{SROWo}, v{U1}, 3, v{SROWo}
    v_lshl_add_u32 v{C2}, v{GP}, 2, v{C2}
    v_and_b32 v{U1}, 1, v{R2}
    v_lshl_or_b32 v{U1}, v{HH}, 1, v{U1}
    v_xor_b32 v{U1}, v{U1}, v{C2}
    v_lshrrev_b32 v{U2}, 1, v{R2}
    v_lshl_add_u32 v{R2}, v{HH}, 2, v{R2}
    v_lshlrev_b32 v{AWo}, 7, v{R2}
    v_lshl_add_u32 v{ASo}, v{U2}, 3, v{AWo}
    v_add_u32 v{ASo}, {SB}, v{ASo}
    v_xor_b32 v{U2}, 4, v{U1}
    v_lshl_add_u32 v{ASo+1}, v{U2}, 4, v{ASo}
    v_add_u32 v{ASo+1}, 1024, v{ASo+1}
    v_lshl_add_u32 v{ASo}, v{U1}, 4, v{ASo}
    v_xor_b32 v{ASo+2}, 8, v{ASo}
    v_xor_b32 v{ASo+3}, 8, v{ASo+1}
    v_mul_u32_u24 v{AWo}, {ARS}, v{R2}
    v_lshl_add_u32 v{AWo}, v{C2}, 3, v{AWo}
    v_add_u32 v{AWo}, {AT}, v{AWo}
    v_mul_u32_u24 v{MADo}, {RS}, v{HH}
    v_lshl_add_u32 v{MADo}, v{A31}, 3, v{MADo}
    v_add_u32 v{MADo}, {ACCM}, v{MADo}
    v_bfe_u32 v{U1}, v{L}, 3, 2
    v_lshl_add_u32 v{U1}, v{U1}, 1, v{HH}
    v_lshlrev_b32 v{POFo}, 5, v{U1}
    v_and_b32 v{U1}, 4, v{L}
    v_lshl_add_u32 v{POFo}, v{U1}, 1, v{POFo}
    v_and_b32 v{U1}, 1, v{L}
    v_lshl_add_u32 v{POFo}, v{U1}, 4, v{POFo}
    v_lshlrev_b32 v{L8o}, 3, v{L}
    v_lshlrev_b32 v{U1}, 4, v{U1}
    v_mov_b32 v{LUV}, 0x3f80
    v_lshlrev_b32 v{LUV}, v{U1}, v{LUV}
    v_lshrrev_b32 v{U1}, 1, v{L}
    v_lshlrev_b32 v{U1}, 2, v{U1}
    v_lshl_add_u32 v{LUA}, v{L}, 4, v{U1}
    v_lshrrev_b32 v{U1}, 1, v{A31}
    v_lshlrev_b32 v{U2}, 2, v{HH}
    v_sub_u32 v{U1}, v{U1}, v{U2}
    """)
    for t in range(2):
        for r in range(4):
            a(f"v_cmp_eq_u32 {sr(84 + 2*r)}, {8*t + r}, v{U1}")
        for r in range(4):
            a(f"v_cndmask_b32 v{IDo+4*t+r}, 0, v{LUV}, {sr(84 + 2*r)}")
    a(f"""
    v_and_b32 v{U1}, 15, v{L}
    v_lshrrev_b32 v{U2}, 4, v{L}
    v_mul_u32_u24 v{EAo}, {RS}, v{U1}
    v_lshl_add_u32 v{EAo}, v{U2}, 6, v{EAo}
    v_add_u32 v{EAo}, {ACCM}, v{EAo}
    v_lshlrev_b32 v{EOo}, 7, v{U1}
    v_bfe_u32 v{U1}, v{L}, 1, 3
    v_xor_b32 v{U1}, v{U1}, v{U2}
    v_lshl_add_u32 v{EH0}, v{U1}, 4, v{EOo}
    v_add_u32 v{EH0}, {HRB}, v{EH0}
    v_xor_b32 v{EH1}, 64, v{EH0}
    v_lshl_add_u32 v{EOo}, v{U2}, 4, v{EOo}
    """)
    a(f"""
    s_lshl_b32 s44, s3, 12
    s_and_b32 s45, s3, 3
    s_mul_i32 s46, s45, {16*RS}
    s_lshl_b32 s45, s45, 11
    """)
    for r in list(range(AXo, AXo + 8)) + [SROWo]:
        a(f"v_add_u32 v{r}, s44, v{r}")
    a(f"""
    v_add_u32 v{EAo}, s46, v{EAo}
    v_add_u32 v{EH0}, s45, v{EH0}
    v_add_u32 v{EH1}, s45, v{EH1}
    """)

def flush_code(a, rezero, tag):
    a(f"""
    s_mul_i32 s{sTMP}, s{sWBO}, {RS//16}
    s_lshl_b32 s{sTMP+1}, s{sWBO}, 1
    v_add_u32 v{T1}, s{sTMP}, v{MADDR}
    v_add_u32 v{T2}, s{sTMP+1}, v{POFF}
    """)
    for q in range(4):
        for h in range(2):
            t = FL + 2 * (2*q + h)
            a(f"v_cvt_f64_f32 {vr(t,2)}, v{ACC[h]+4*q+3}")
            a(f"ds_add_f64 v{T1}, {vr(t,2)} offset:{2*q*RS + 256*h}")
    for q in range(4):
        r0 = ACC[0] + 4*q; r1 = ACC[1] + 4*q
        a(f"v_pk_mul_f32 {vr(r0,2)}, {vr(r0,2)}, {vr(WXS[0],2)} op_sel_hi:[1,0]")
        a(f"v_mul_f32 v{r0+2}, v{r0+2}, v{WXS[0]}")
        a(f"v_pk_fma_f32 {vr(r0,2)}, {vr(r1,2)}, {vr(WXS[1],2)}, {vr(r0,2)} op_sel_hi:[1,0,1]")
        a(f"v_fmac_f32 v{r0+2}, v{r1+2}, v{WXS[1]}")
    if rezero:
        a(mfma32(ACC[1], ZERO, ZERO, None))
    else:
        a("s_nop 0")
    for q in range(2):
        for c in range(3):
            a(f"v_permlane16_swap_b32 v{ACC[0]+4*q+c}, v{ACC[0]+4*(q+2)+c}")
    a("s_nop 0")
    for q in range(2):
        for c in range(3):
            a(f"v_add_f32 v{ACC[0]+4*q+c}, v{ACC[0]+4*q+c}, v{ACC[0]+4*(q+2)+c}")
    c0 = ACC[0]
    for c in range(3):
        a(f"v_add_f32_dpp v{c0+c}, v{c0+c}, v{c0+c} row_ror:8 row_mask:0xf bank_mask:0x3")
    for c in range(3):
        a(f"v_add_f32_dpp v{c0+c}, v{c0+4+c}, v{c0+4+c} row_ror:8 row_mask:0xf bank_mask:0xc")
    a(f"""
    v_add_f32_dpp v{c0}, v{c0}, v{c0} row_half_mirror row_mask:0xf bank_mask:0x5
    s_nop 0
    v_add_f32_dpp v{c0+2}, v{c0+2}, v{c0+2} row_half_mirror row_mask:0xf bank_mask:0xf
    v_add_f32_dpp v{c0}, v{c0+1}, v{c0+1} row_half_mirror row_mask:0xf bank_mask:0xa
    s_nop 0
    v_add_f32_dpp v{c0+2}, v{c0+2}, v{c0+2} quad_perm:[1,0,3,2] row_mask:0xf bank_mask:0xf
    v_add_f32_dpp v{c0}, v{c0}, v{c0} quad_perm:[1,0,3,2] row_mask:0xf bank_mask:0xf
    s_nop 0
    v_add_f32_dpp v{c0+2}, v{c0+2}, v{c0+2} quad_perm:[2,3,0,1] row_mask:0xf bank_mask:0xf
    v_add_f32_dpp v{c0}, v{c0}, v{c0} quad_perm:[2,3,0,1] row_mask:0xf bank_mask:0xf
    v_cndmask_b32 v{c0}, v{c0}, v{c0+2}, {sr(sCM)}
    v_cvt_f64_f32 {vr(FL+16,2)}, v{c0}
    s_mov_b64 exec, {sr(sPM)}
    ds_add_f64 v{T2}, {vr(FL+16,2)} offset:{ACCP}
    s_mov_b64 exec, -1
    """)
    if rezero:
        a(mfma32(ACC[0], ZERO, ZERO, None))

def window_masks(a):
    a(f"""
    v_subrev_u32 v{REL}, s{sWB}, v{DL}
    v_cmp_gt_u32 vcc, s{sC128}, v{REL}
    s_and_b64 {sr(sVN)}, vcc, {sr(sMR)}
    """)

def wx_load(a):
    a(f"""
    s_mul_i32 s{sTMP}, s{sWB}, {ARS//16}
    v_add_u32 v{T1}, s{sTMP}, v{AWT}
    ds_read_b64_tr_b16 {vr(WX[0]+2,2)}, v{T1}
    ds_read_b64_tr_b16 {vr(WX[1]+2,2)}, v{T1} offset:64
    """)

def mads(src):
    return [f"v_mad_u32_u16 v{R8+2*i}, v{src+2*i}, s{sC128}, v{CDMA+i}" for i in range(4)]
def dma_ops():
    return [f"buffer_load_dwordx4 v{R8+2*i}, {sr(sWS,4)}, s{sBT} offen offset:{1024*i} lds" for i in range(4)]

class Body:
    def __init__(self):
        self.it = []
    def op(self, s): self.it.append(("op", s))
    def ds(self, s, tag=None): self.it.append(("ds", s, tag))
    def wait(self, tag): self.it.append(("wait", tag))
    def emit(self, a):
        if OPT.abl:
            import re
            rx = re.compile(OPT.abl)
            drop = lambda x: bool(rx.search(x[1] if x[0] != "wait" else "WAIT"))
            tags = {x[2] for x in self.it if x[0] == "ds" and drop(x)}
            self.it = [x for x in self.it if not drop(x) and not (x[0] == "wait" and x[1] in tags)]
        n = len(self.it)
        for i, x in enumerate(self.it):
            if x[0] == "wait":
                cnt = 0; j = i - 1; found = False
                for _ in range(n):
                    y = self.it[j % n]
                    if y[0] == "ds":
                        if y[2] == x[1]:
                            found = True; break
                        cnt += 1
                    j -= 1
                assert found, x
                a(f"s_waitcnt lgkmcnt({min(cnt,15)})")
            else:
                a(x[1])

def unit_groups(b, u, pre, post):
    h = u % 2; ph = 1 - h
    ntile = (u + 1) // 2 % 2
    xx = XX if ntile == 0 else XX + 2
    wx = WX[ph] + 2 if ntile == 0 else WX[ph]
    mf = {0: mfma32(ACC[ph], S, M[ph], ACC[ph]),
          1: mfma32(D[ph], xx, wx, None),
          2: mfma32(ACC[ph], S + 4, M[ph] + 4, ACC[ph]),
          OPT.g0: mfma32(D[ph], X[ntile] + 8*ph, ID, D[ph]),
          OPT.g1: mfma32(D[ph], X[ntile] + 8*ph + 4, ID + 4, D[ph])}
    def put(lst):
        for x in lst:
            if isinstance(x, str): b.op(x)
            elif x[0] == "ds": b.ds(x[1], x[2] if len(x) > 2 else None)
            elif x[0] == "wait": b.wait(x[1])
    for g in range(8):
        put(pre.get(g, []))
        if g in mf: b.op(mf[g])
        p = g - 2; hh = h
        if p < 0: p += 8; hh = ph
        t = T + 2 * (p % 4)
        b.op(f"v_cvt_pk_bf16_f32 v{M[hh]+p}, v{t}, v{t+1}")
        t = T + 2 * (g % 4); y = D[h] + 2 * g
        b.op(f"v_exp_f32 v{t}, v{y}")
        b.op(f"v_exp_f32 v{t+1}, v{y+1}")
        p = g - 1; hh = h
        if p < 0: p += 8; hh = ph
        t2 = T + 2 * (p % 4); y2 = D[hh] + 2 * p
        b.op(f"v_rcp_f32 v{t2}, v{t2}")
        b.op(f"v_rcp_f32 v{t2+1}, v{t2+1}")
        b.op(f"v_pk_add_f32 {vr(t,2)}, {vr(t,2)}, 1.0 op_sel_hi:[1,0]")
        b.op(f"v_pk_mul_f32 {vr(t2,2)}, {vr(t2,2)}, {vr(y2,2)}")
        put(post.get(g, []))

def s_read(t):
    return [("ds", f"ds_read_b64_tr_b16 {vr(S+2*k,2)}, v{AS + 2*t + (k & 1)} offset:{2048*(k>>1)}", "S" if k == 3 else None) for k in range(4)]
def s_write():
    return [("ds", f"ds_write_b64 v{SAD}, {vr(DXY,2)}")]
def s_clear():
    return [("ds", f"ds_write_b64 v{SAD}, {vr(ZERO,2)}")]
def r_read(t, dst=None):
    d = R8 if dst is None else dst
    return [("ds", f"ds_read_b128 {vr(d,4)}, v{A4} offset:{LIST + 256*t}"),
            ("ds", f"ds_read_b128 {vr(d+4,4)}, v{A4} offset:{LIST + 256*t + 16}", "R")]
def x_read(t):
    o = ["s_waitcnt vmcnt(0)"]
    for k in range(4):
        o.append(("ds", f"ds_read_b128 {vr(X[t]+4*k,4)}, v{AX+k}", "X" if k == 3 else None))
    return o
def pos_load():
    return [f"v_mad_u32_u16 v{TA}, v{REC}, 8, 0",
            f"buffer_load_dwordx2 {vr(PS,2)}, v{TA}, {sr(sWS,4)}, s{sP8} offen"]
def geo_addr():
    return [("ds", f"ds_read_b128 {vr(PD,4)}, v{DL} offset:{POSD}", "P")]
def geo_lut():
    return [("ds", f"ds_read_b64 {vr(XX,2)}, v{REL} offset:{LUT}"),
            ("ds", f"ds_read_b64 {vr(XX+4,2)}, v{REL} offset:{LUT+8}", "L"),
            f"v_mov_b32 v{XX+3}, v{REC}"]
def geo_diff():
    return [f"v_dot2_f32_bf16 v{DX}, v{PS}, s{sM10}, v{PD}",
            f"v_dot2_f32_bf16 v{DX+1}, v{PS}, s{s0M1}, v{PD+1}",
            f"v_dot2_f32_bf16 v{DX+2}, v{PS+1}, s{sM10}, v{PD+2}"]
def geo_cvt():
    return [f"v_xor_b32 v{TA}, v{REL}, v{SROW}",
            f"v_cndmask_b32 v{SAD}, v{DUMMY}, v{TA}, {sr(sVN)}",
            f"v_cvt_pk_bf16_f32 v{DXY}, v{DX}, v{DX+1}",
            f"v_cvt_pk_bf16_f32 v{DXY+1}, v{DX+2}, 1.0"]
def geo_d2():
    return [f"v_dot2_f32_bf16 v{DD}, v{DXY+1}, v{DXY+1}, -1.0",
            f"v_dot2_f32_bf16 v{DD}, v{DXY}, v{DXY}, v{DD}"]
def geo_fin():
    return [f"v_cvt_pk_bf16_f32 v{XX+2}, v{DD}, v{DD}",
            f"v_permlane32_swap_b32 v{XX}, v{XX+4}",
            f"v_permlane32_swap_b32 v{XX+1}, v{XX+5}"]
def list_reads():
    return [f"v_add_u32 v{TA}, s{sPN8}, v{LANE8}",
            ("ds", f"ds_read_b64 {vr(REC,2)}, v{TA} offset:{LIST}", "E"),
            f"v_add_u32 v{A4}, s{sPN8}, v{G8}"] + r_read(0)
def advance():
    return [f"s_bcnt1_i32_b64 s{sNX}, {sr(sVN)}",
            f"s_lshl3_add_u32 s{sPN8}, s{sNX}, s{sPN8}"]
def plain(a, lst):
    for x in lst:
        a(x if isinstance(x, str) else x[1])

def gen_main_loop(a):
    b = Body()
    unit_groups(b, 0,
        pre={3: s_read(0),
             4: list_reads(),
             5: [f"s_cmp_lg_u32 s{sFFL}, 0", "s_cbranch_scc1 K2_FLUSH", "K2_FLUSH_RET:"],
             6: [("wait", "E")] + x_read(1) + pos_load(),
             7: [("wait", "R")] + mads(R8)},
        post={})
    unit_groups(b, 1,
        pre={0: [f"v_subrev_u32 v{REL}, s{sWB}, v{DL}",
                 f"v_cmp_gt_i32 {sr(sMR)}, s{sREM}, v{LANE8}",
                 f"v_cmp_gt_u32 vcc, s{sC128}, v{REL}"],
             1: [f"s_and_b64 {sr(sVN)}, vcc, {sr(sMR)}",
                 f"s_cmp_lg_u64 {sr(sVN)}, {sr(sMR)}",
                 "s_cbranch_scc1 K2_REBASE", "K2_REBASE_RET:"] + advance() + [("wait", "X")] + dma_ops(),
             2: geo_addr()},
        post={})
    unit_groups(b, 2,
        pre={0: ([f"s_cmp_eq_u32 s{sNX}, 0", "s_cbranch_scc1 K2_PRIO0", "K2_PRIO0_RET:"] if OPT.prio else []),
             2: [f"s_cmp_lg_u32 s{sFWX}, 0", "s_cbranch_scc1 K2_WXL", "K2_WXL_RET:"] + geo_lut(),
             3: s_read(1) + s_clear(),
             4: r_read(1) + geo_cvt(),
             5: s_write(),
             6: x_read(0) + [("wait", "L")] + geo_fin(),
             7: [("wait", "R")] + mads(R8)},
        post={2: ["s_waitcnt vmcnt(4)", ("wait", "P")] + geo_diff(),
              4: geo_d2()})
    unit_groups(b, 3,
        pre={1: [("wait", "X")] + dma_ops()},
        post={})
    a(".p2align 6")
    a.label("K2_LOOP")
    a(f"s_sub_u32 s{sREM}, s{sEND}, s{sPN8}")
    if OPT.prio:
        a(f"s_cmp_le_i32 s{sREM}, s{sTHR}\ns_cbranch_scc1 K2_PRIO\nK2_PRIO_RET:")
    b.emit(a)
    if OPT.abl:
        a("s_sub_u32 s67, s67, 1\ns_cmp_lg_u32 s67, 0\ns_cbranch_scc1 K2_LOOP")
    else:
        a(f"s_cmp_lg_u32 s{sNX}, 0\ns_cbranch_scc1 K2_LOOP")


def epi_reads(a):
    a(f"""
    s_lshr_b32 s{sTMP}, s3, 2
    s_lshl_b32 s{sTMP}, s{sTMP}, 13
    s_add_u32 s{sTMP}, s{sTMP}, {WHB}
    v_lshl_add_u32 v{TA}, v{LANE8}, 1, s{sTMP}
    """)
    for i in range(8):
        a(f"ds_read_b128 {vr(X[0]+4*i,4)}, v{TA} offset:{1024*i}")
    a(f"ds_read_b128 {vr(EW,4)}, v{EH}\nds_read_b128 {vr(EW+4,4)}, v{EH+1}")

def gen_phase1(a):
    CNT, PRE, RB = LIST, LIST + 1024, LIST + 2048
    ST = OPT.st
    WE = CH // 4
    DST = 8; SRC = 24; EA = 40; B4 = 48; RK = 64; PB = 80
    MSK = 76
    sPID = 43
    ZR = vr(ZERO, 4)
    a.label("gather_scatter__cheap_equivariant_egnn__graph_kernel")
    if OPT.stamps == 4: a("s_memrealtime s[94:95]")
    a(f"""
    s_cmp_ge_u32 s2, 256
    s_cbranch_scc1 K2_END
    s_load_dwordx2 {sr(sWS)}, s[0:1], 80
    v_readfirstlane_b32 s3, v0
    v_and_b32 v6, 63, v0
    s_mov_b32 s{sWS+2}, {WS_SRD}
    s_mov_b32 s{sWS+3}, 0x00020000
    s_lshr_b32 s3, s3, 6
    v_lshlrev_b32 v7, 4, v6
    s_mov_b32 s{sPID}, s2
    s_cmp_ge_u32 s3, 4
    s_cbranch_scc1 K1_TW
    s_load_dwordx2 s[8:9], s[0:1], 32
    s_load_dwordx2 s[16:17], s[0:1], 24
    s_load_dwordx2 s[4:5], s[0:1], 16
    v_lshlrev_b32 v2, 2, v0
    v_mov_b32 v{ZERO}, 0
    ds_write_b32 v2, v{ZERO} offset:{CNT}
    s_mov_b32 s10, {E*4}
    s_mov_b32 s11, 0x00020000
    s_mov_b64 s[18:19], s[10:11]
    s_mov_b32 s6, {E*2}
    s_mov_b32 s7, 0x00020000
    s_mul_i32 s44, s2, {CH}
    s_mul_i32 s45, s3, {WE}
    s_add_u32 s44, s44, s45
    s_lshl_b32 s46, s44, 2
    s_lshl_b32 s47, s44, 1
    s_sub_i32 s45, {E}, s44
    v_lshlrev_b32 v2, 2, v6
    v_lshlrev_b32 v5, 3, v6
    v_lshlrev_b32 v3, 1, v6
    s_waitcnt lgkmcnt(0)
    """)
    for j in range(3):
        a(f"buffer_load_dwordx4 {vr(DST+4*j,4)}, v7, s[8:11], s46 offen offset:{1024*j}")
    a(f"buffer_load_dword v{DST+12}, v2, s[8:11], s46 offen offset:3072")
    def ids():
        a(f"""
        s_lshr_b32 s{sROT}, s2, 3
        s_and_b32 s2, s2, 7
        s_lshl_b32 s2, s2, 5
        s_add_u32 s2, s2, s{sROT}
        s_add_u32 s62, s{sWS}, {EPO}
        s_addc_u32 s63, s{sWS+1}, 0
        s_load_dwordx2 s[70:71], s[62:63], 0
        s_load_dwordx2 {sr(sOUT)}, s[0:1], 64
        """)
        if OPT.warm:
            a(f"""
            v_lshrrev_b32 v112, 2, v0
            v_lshlrev_b32 v112, 5, v112
            s_lshr_b32 s62, s2, 2
            s_mul_i32 s62, s62, {OGS}
            s_add_u32 s62, s62, {OFFT}
            buffer_load_dword v113, v112, {sr(sWS,4)}, s62 offen sc1
            s_add_u32 s62, s62, 4096
            buffer_load_dword v113, v112, {sr(sWS,4)}, s62 offen sc1
            """)
        if OPT.stamps:
            a(f"s_lshl_b32 s66, s2, 4\ns_add_u32 s66, s66, s3\ns_lshl_b32 s66, s66, 6\ns_add_u32 s66, s66, {DBG_WS}")
        stamp(a, 1, 0); stamp(a, 1, 14, True)
        if OPT.stamps == 4:
            a("v_mov_b32 v252, s94\ns_mov_b64 s[64:65], exec\ns_mov_b64 exec, 1\nbuffer_store_dword v252, v253, s[12:15], 0 offen offset:32\ns_mov_b64 exec, s[64:65]")
    ids()
    nst0 = (2 if OPT.stamps else 0) + (2 if OPT.warm else 0)
    a(f"""
    v_cmp_gt_i32 {sr(MSK)}, s45, v2
    s_sub_i32 s48, s45, 256
    v_cmp_gt_i32 {sr(MSK+2)}, s48, v2
    s_sub_i32 s48, s45, 512
    v_cmp_gt_i32 {sr(MSK+4)}, s48, v2
    s_sub_i32 s48, s45, 768
    s_min_i32 s48, s48, 16
    v_cmp_gt_i32 {sr(MSK+6)}, s48, v6
    s_movk_i32 s50, {-NPB}
    v_mov_b32 v4, 1
    s_barrier
    """)
    for j in range(3):
        a(f"buffer_load_dwordx4 {vr(SRC+4*j,4)}, v7, s[16:19], s46 offen offset:{1024*j}")
        a(f"buffer_load_dwordx2 {vr(EA+2*j,2)}, v5, s[4:7], s47 offen offset:{512*j}")
    a(f"buffer_load_dword v{SRC+12}, v2, s[16:19], s46 offen offset:3072")
    a(f"buffer_load_ushort v{EA+6}, v3, s[4:7], s47 offen offset:1536")
    a(f"""
    v_mov_b32 v{ZERO+1}, 0
    v_mov_b32 v{ZERO+2}, 0
    v_mov_b32 v{ZERO+3}, 0
    s_lshl_b32 s48, s3, 12
    s_add_u32 s48, s48, {SB}
    v_add_u32 v106, s48, v7
    """)
    for i in range(4):
        a(f"ds_write_b128 v106, {ZR} offset:{1024*i}")
    nst = 0
    for j in range(4):
        a(f"s_mov_b64 exec, {sr(MSK+2*j)}\ns_waitcnt vmcnt({11 - j + nst + nst0})")
        if OPT.stamps == 1 and j in (0, 3):
            stamp(a, 1, 7 if j == 0 else 8); nst += 1
        for k in range(4 if j < 3 else 1):
            s = 4*j + k
            a(f"""
            v_mul_u32_u24 v{B4+s}, 21400, v{DST+s}
            v_lshrrev_b32 v{B4+s}, 20, v{B4+s}
            v_mad_i32_i24 v{DST+s}, v{B4+s}, s50, v{DST+s}
            v_lshlrev_b32 v{B4+s}, 2, v{B4+s}
            ds_add_rtn_u32 v{RK+s}, v{B4+s}, v4 offset:{CNT}
            """)
    a(f"""
    s_mov_b64 exec, -1
    s_mov_b32 s51, 0xffff0000
    s_waitcnt lgkmcnt(0)
    s_barrier
    """)
    stamp(a, 1, 1)
    a(f"""
    ds_read_b128 v[96:99], v7 offset:{CNT}
    s_waitcnt lgkmcnt(0)
    v_add_u32 v97, v96, v97
    v_add_u32 v98, v97, v98
    v_add_u32 v99, v98, v99
    v_mov_b32 v100, v99
    """)
    wave_scan(a, 100)
    a(f"""
    v_sub_u32 v102, v100, v99
    v_add_u32 v103, v102, v96
    v_add_u32 v104, v102, v97
    v_add_u32 v105, v102, v98
    ds_write_b128 v7, v[102:105] offset:{PRE}
    """)
    for s in range(13):
        a(f"ds_read_b32 v{PB+s}, v{B4+s} offset:{PRE}")
    a("s_waitcnt lgkmcnt(0)")
    stamp(a, 1, 10)
    for j in range(4):
        a(f"s_mov_b64 exec, {sr(MSK+2*j)}")
        for k in range(4 if j < 3 else 1):
            s = 4*j + k
            a(f"""
            v_add_u32 v{PB+s}, v{PB+s}, v{RK+s}
            ds_write_b8 v{PB+s}, v{DST+s} offset:{RB + L_OFF}
            v_lshlrev_b32 v{RK+s}, 2, v{PB+s}
            """)
    stamp(a, 1, 9)
    nl = (5 if OPT.stamps == 1 else 0)
    for j in range(4):
        a(f"s_mov_b64 exec, {sr(MSK+2*j)}\ns_waitcnt vmcnt({6 - 2*j + nl})")
        if j < 3:
            for k in range(4):
                op = (f"v_lshl_or_b32 v{SRC+4*j+k}, v{EA+2*j+(k>>1)}, 16, v{SRC+4*j+k}" if k % 2 == 0
                      else f"v_and_or_b32 v{SRC+4*j+k}, v{EA+2*j+(k>>1)}, s51, v{SRC+4*j+k}")
                a(op + f"\nds_write_b32 v{RK+4*j+k}, v{SRC+4*j+k} offset:{RB}")
        else:
            a(f"v_lshl_or_b32 v{SRC+12}, v{EA+6}, 16, v{SRC+12}\nds_write_b32 v{RK+12}, v{SRC+12} offset:{RB}")
    a("s_mov_b64 exec, -1")
    stamp(a, 1, 11)
    def copy_out():
        a(f"""
        v_lshlrev_b32 v4, 4, v0
        v_cmp_gt_u32 vcc, {RL_END//16 - 512}, v0
        s_mul_i32 s49, s{sPID}, {PSTR}
        s_add_u32 s48, s49, 8192
        s_waitcnt lgkmcnt(0)
        s_barrier
        """)
        stamp(a, 1, 2)
        a(f"""
        ds_read_b128 v[108:111], v4 offset:{RB}
        ds_read_b128 {vr(FL,4)}, v4 offset:{RB + 8192}
        s_waitcnt lgkmcnt(1)
        buffer_store_dwordx4 v[108:111], v4, {sr(sWS,4)}, s49 offen{ST}
        s_mov_b64 exec, vcc
        s_waitcnt lgkmcnt(0)
        buffer_store_dwordx4 {vr(FL,4)}, v4, {sr(sWS,4)}, s48 offen{ST}
        s_mov_b64 exec, -1
        """)
    copy_out()
    a("v_mov_b32 v8, v6")
    lane_consts(a, CB, 8)
    a("s_mov_b32 s92, 0\ns_branch K1_JOIN")
    HF = 16; WFR = 32; DD_ = 64
    a(f"""
    K1_TW:
    s_load_dwordx2 s[8:9], s[0:1], 40
    s_load_dwordx2 {sr(sH)}, s[0:1], 0
    s_load_dwordx2 s[16:17], s[0:1], 8
    s_load_dwordx2 s[4:5], s[0:1], 56
    s_mov_b32 s10, {130*128}
    s_mov_b32 s11, 0x00020000
    s_mov_b32 s{sH+2}, {N*128}
    s_mov_b32 s{sH+3}, 0x00020000
    s_mov_b32 s6, {128*128}
    s_mov_b32 s7, 0x00020000
    s_and_b32 s61, s3, 1
    s_bfe_u32 s60, s3, 0x10001
    s_lshl_b32 s57, s3, 13
    s_add_u32 s57, s57, {STG - 4*8192}
    v_and_b32 v9, 48, v6
    v_xor_b32 v9, v9, v7
    v_xor_b32 v10, 64, v9
    v_lshrrev_b32 v11, 2, v6
    v_and_b32 v12, 3, v6
    v_lshlrev_b32 v12, 4, v12
    v_lshl_add_u32 v11, v11, 7, v12
    v_mov_b32 v{ZERO}, 0
    v_mov_b32 v{ZERO+1}, 0
    v_mov_b32 v{ZERO+2}, 0
    v_mov_b32 v{ZERO+3}, 0
    s_waitcnt lgkmcnt(0)
    """)
    ids()
    a(f"""
    s_mul_i32 s{sNB}, s2, {NPB}
    s_lshl_b32 s56, s60, 5
    s_add_u32 s56, s56, s{sNB}
    s_lshl_b32 s56, s56, 7
    s_lshl_b32 s58, s60, 12
    s_add_u32 m0, s58, {HRB}
    s_lshl_b32 s59, s61, 6
    s_add_u32 s55, s59, {64*128}
    s_barrier
    """)
    for i in range(4):
        a(f"buffer_load_dwordx4 v{9 + (i & 1)}, {sr(sH,4)}, s56 offen offset:{1024*i} lds")
    a(f"s_mov_b32 m0, s57\ns_mov_b32 s18, {N*6}")
    for i in range(4):
        a(f"buffer_load_dwordx4 v11, s[8:11], s55 offen offset:{1024*i} lds")
        if i < 3: a("s_add_u32 s55, s55, 1024")
    a(f"""
    s_mov_b32 s19, 0x00020000
    s_cmp_lg_u32 s3, 7
    s_cbranch_scc1 K1_NOP8
    v_add_u32 v100, s{sNB}, v6
    v_mul_u32_u24 v101, 6, v100
    buffer_load_ushort v102, v101, s[16:19], 0 offen
    buffer_load_ushort v104, v101, s[16:19], 0 offen offset:2
    buffer_load_ushort v103, v101, s[16:19], 0 offen offset:4
    K1_NOP8:
    v_lshlrev_b32 v106, 4, v0
    v_add_u32 v106, {ACCM - 4096}, v106
    """)
    nz = (SB - ACCM) // 4096
    for i in range(nz):
        a(f"ds_write_b128 v106, {ZR} offset:{4096*i}")
    a(f"""
    v_cmp_gt_u32 vcc, {256 + (SB - ACCM - 4096*nz) // 16}, v0
    s_and_saveexec_b64 s[44:45], vcc
    ds_write_b128 v106, {ZR} offset:{4096*nz}
    s_mov_b64 exec, -1
    s_barrier
    v_mov_b32 v16, v6
    """)
    lane_consts(a, CB, 16)
    a(f"""
    s_cmp_lg_u32 s3, 4
    s_cbranch_scc1 K1_NOLOW
    ds_write_b128 v7, {ZR}
    ds_write_b128 v7, {ZR} offset:1024
    ds_write_b128 v7, {ZR} offset:2048
    s_mov_b64 exec, 0xff
    ds_write_b32 v{LUA}, v{LUV} offset:{LUT}
    s_mov_b64 exec, -1
    K1_NOLOW:
    v_lshrrev_b32 v8, 5, v6
    v_and_b32 v9, 31, v6
    v_bfe_u32 v12, v6, 2, 2
    v_lshl_add_u32 v12, v8, 3, v12
    v_lshlrev_b32 v12, 6, v12
    v_bfe_u32 v13, v6, 4, 1
    v_lshl_add_u32 v12, v13, 5, v12
    v_and_b32 v13, 3, v6
    v_lshl_add_u32 v12, v13, 3, v12
    v_add_u32 v12, s57, v12
    v_bfe_u32 v10, v6, 1, 3
    v_xor_b32 v10, v10, v8
    s_lshl_b32 s58, s60, 12
    s_add_u32 s58, s58, {HRB}
    v_lshlrev_b32 v14, 7, v9
    v_add_u32 v14, s58, v14
    """)
    for s in range(4):
        a(f"v_xor_b32 v{96+s}, {2*s}, v10\nv_lshl_add_u32 v{96+s}, v{96+s}, 4, v14")
    a(f"""
    v_mul_u32_u24 v13, 80, v9
    v_lshl_add_u32 v13, v8, 3, v13
    v_add_u32 v13, s57, v13
    v_lshrrev_b32 v14, 2, v6
    v_mul_u32_u24 v15, 80, v14
    v_and_b32 v14, 3, v6
    v_lshl_add_u32 v15, v14, 4, v15
    v_add_u32 v15, s57, v15
    s_mov_b32 s55, {f32(-L2E)}
    s_lshl_b32 s59, s61, 6
    s_add_u32 s56, s56, {BTAB}
    s_add_u32 s56, s56, s59
    s_waitcnt vmcnt(0)
    {'s_setprio 3' if OPT.twprio else ''}
    """)
    stamp(a, 1, 5)
    for s in range(4):
        a(f"ds_read_b128 {vr(HF+4*s,4)}, v{96+s}")
        for jj in range(2):
            a(f"ds_read_b64_tr_b16 {vr(WFR+4*s+2*jj,2)}, v12 offset:{(16*s+4*jj)*64}")
    for s in range(4):
        a(f"s_waitcnt lgkmcnt({9 - 3*s})")
        a(mfma32(DD_, WFR+4*s, HF+4*s, None if s == 0 else DD_))
    stamp(a, 1, 6)
    if OPT.tb2 == 0: copy_out()
    else: a("s_nop 11")
    def scale_cvt(q, base):
        for r in range(4):
            a(f"v_mul_f32 v{base+4*q+r}, s55, v{base+4*q+r}")
        a(f"v_cvt_pk_bf16_f32 v{base+4*q}, v{base+4*q}, v{base+4*q+1}\nv_cvt_pk_bf16_f32 v{base+4*q+1}, v{base+4*q+2}, v{base+4*q+3}")
    for q in range(4):
        scale_cvt(q, DD_)
        a(f"ds_write_b64 v13, {vr(DD_+4*q,2)} offset:{16*q}")
    a(f"""
    ds_read_b128 {vr(WFR,4)}, v15
    ds_read_b128 {vr(WFR+4,4)}, v15 offset:{16*80}
    s_cmp_lg_u32 s60, 0
    s_waitcnt lgkmcnt(1)
    buffer_store_dwordx4 {vr(WFR,4)}, v11, {sr(sWS,4)}, s56 offen{ST}
    s_cselect_b64 exec, 15, -1
    s_waitcnt lgkmcnt(0)
    buffer_store_dwordx4 {vr(WFR+4,4)}, v11, {sr(sWS,4)}, s56 offen offset:2048{ST}
    s_mov_b64 exec, -1
    s_cmp_lg_u32 s3, 7
    s_cbranch_scc1 K1_NOP8S
    v_lshlrev_b32 v108, 16, v102
    v_lshlrev_b32 v109, 16, v104
    v_lshlrev_b32 v110, 16, v103
    ds_write_b128 v7, v[108:111] offset:{POSD}
    v_lshl_or_b32 v102, v104, 16, v102
    v_lshlrev_b32 v100, 3, v100
    s_mov_b32 s58, {P8}
    v_cmp_gt_u32 vcc, {NPB}, v6
    s_and_b64 exec, exec, vcc
    buffer_store_dwordx2 v[102:103], v100, {sr(sWS,4)}, s58 offen{ST}
    s_mov_b64 exec, -1
    K1_NOP8S:
    """)
    stamp(a, 1, 4)
    if OPT.tb2 != 0: copy_out()
    a(f"""
    {'s_setprio 0' if OPT.twprio else ''}
    s_mov_b32 s92, 1
    s_mov_b32 s47, s57
    """)
    a(f"""
    K1_JOIN:
    s_load_dwordx2 s[84:85], s[0:1], 40
    s_load_dwordx2 s[88:89], s[0:1], 48
    s_mov_b32 s86, {130*128}
    s_mov_b32 s87, 0x00020000
    s_mov_b32 s90, 128
    s_mov_b32 s91, 0x00020000
    v_and_b32 v107, 31, v6
    v_lshlrev_b32 v107, 1, v107
    s_movk_i32 s93, {128*128}
    s_mul_i32 s{sNB}, s2, {NPB}
    s_lshl_b32 s{sW10}, s3, 10
    s_sub_u32 s{sNN}, {N}, s{sNB}
    s_min_u32 s{sNN}, s{sNN}, {NPB}
    s_mov_b32 s{sOUT+2}, {N*134}
    s_mov_b32 s{sOUT+3}, 0x00020000
    s_movk_i32 s{sC128}, 128
    s_mov_b32 s{sM10}, 0x0000bf80
    s_mov_b32 s{s0M1}, 0xbf800000
    s_mov_b32 s{sP8}, {P8}
    s_mov_b32 s{sBT}, {BTAB - 3072}
    s_mov_b32 s{sQ}, 32
    s_mov_b32 s{sFIRST}, 1
    s_mov_b32 s{sPM}, 0x13131313
    s_mov_b32 s{sPM+1}, 0x13131313
    s_mov_b32 s{sCM}, 0x02020202
    s_mov_b32 s{sCM+1}, 0x02020202
    s_add_u32 s{sTOK+1}, s70, 1
    s_addc_u32 s{sTOK+2}, s71, 0
    s_and_b32 s{sTMP}, s{sTOK+2}, 15
    s_bfe_u32 s{sTMP+1}, s{sTOK+2}, 0x40004
    s_lshl_b32 s{sTMP}, s{sTMP}, 12
    s_lshl_b32 s{sTMP+1}, s{sTMP+1}, 28
    s_or_b32 s{sTOK}, s{sTMP}, s{sTMP+1}
    v_and_b32 v{J4}, 3, v0
    v_lshlrev_b32 v{J4}, 2, v{J4}
    v_lshrrev_b32 v2, 2, v0
    v_mul_u32_u24 v1, {PSTR}, v2
    """)
    if OPT.og == 2:
        a(f"""
        v_lshlrev_b32 v2, 4, v2
        s_lshr_b32 s62, s2, 1
        s_mul_i32 s62, s62, 4224
        s_and_b32 s63, s2, 1
        s_lshl3_add_u32 s62, s63, s62
        s_add_u32 s62, s62, {OFFT}
        s_add_u32 s63, s62, 2048
        """)
    elif OPT.og:
        a(f"""
        v_lshlrev_b32 v2, 5, v2
        s_lshr_b32 s62, s2, 2
        s_mul_i32 s62, s62, {OGS}
        s_and_b32 s63, s2, 3
        s_lshl3_add_u32 s62, s63, s62
        s_add_u32 s62, s62, {OFFT}
        s_add_u32 s63, s62, 4096
        """)
    else:
        a(f"""
        v_mul_u32_u24 v2, {OSTR}, v2
        s_lshl3_add_u32 s62, s2, {OFFT}
        s_add_u32 s63, s62, {128*OSTR}
        """)
    a(f"""
    s_cmp_lg_u32 s3, 0
    s_cbranch_scc1 K1_NOOFF
    v_lshl_or_b32 v16, v103, 16, v102
    v_lshl_or_b32 v18, v104, 16, v103
    v_lshl_or_b32 v20, v105, 16, v104
    v_lshl_or_b32 v22, v100, 16, v105
    v_or_b32 v16, s{sTOK}, v16
    v_or_b32 v18, s{sTOK}, v18
    v_or_b32 v20, s{sTOK}, v20
    v_or_b32 v22, s{sTOK}, v22
    v_mov_b32 v17, s{sTOK+1}
    v_mov_b32 v19, s{sTOK+1}
    v_mov_b32 v21, s{sTOK+1}
    v_mov_b32 v23, s{sTOK+1}
    s_mul_i32 s48, s{sPID}, {[OSTR, 32, 16][OPT.og]}
    s_add_u32 s48, s48, {OFFT}
    {['v_lshlrev_b32 v4, 1, v7', f'v_mul_u32_u24 v4, {OGS}, v6', 'v_mul_u32_u24 v4, 8448, v6'][OPT.og]}
    s_add_u32 s{sTMP+3}, s48, {4224 if OPT.og == 2 else 16}
    s_waitcnt vmcnt(0) lgkmcnt(0)
    s_barrier
    buffer_store_dwordx4 v[16:19], v4, {sr(sWS,4)}, s48 offen sc1
    buffer_store_dwordx4 v[20:23], v4, {sr(sWS,4)}, s{sTMP+3} offen sc1
    s_branch K1_PUB
    K1_NOOFF:
    s_waitcnt vmcnt(0) lgkmcnt(0)
    s_barrier
    K1_PUB:
    """)
    stamp(a, 1, 3); stamp(a, 1, 15, True)
    if OPT.stamps:
        a(f"s_add_u32 s66, s66, {256*16*64}")
    stamp(a, 2, 0); stamp(a, 2, 14, True)
    a(f"""
    buffer_load_ushort v{XX}, v107, s[84:87], s93 offen
    buffer_load_ushort v{XX+1}, v107, s[84:87], s93 offen offset:128
    buffer_load_ushort v{XX+2}, v107, s[84:87], s93 offen offset:64
    buffer_load_ushort v{XX+3}, v107, s[84:87], s93 offen offset:192
    buffer_load_ushort v{WXS[0]}, v107, s[88:91], 0 offen
    buffer_load_ushort v{WXS[1]}, v107, s[88:91], 0 offen offset:64
    s_cmp_eq_u32 s92, 0
    s_cbranch_scc1 K1_NOAJ
    s_add_u32 m0, s47, 4096
    s_mov_b32 s48, s59
    """)
    for i in range(4):
        a(f"buffer_load_dwordx4 v11, s[8:11], s48 offen offset:{1024*i} lds")
        if i < 3: a("s_add_u32 s48, s48, 1024")
    a(f"""
    s_lshl_b32 s48, s3, 12
    s_add_u32 m0, s48, {SB}
    s_sub_u32 s48, s48, 16384
    """)
    for i in range(4):
        a(f"buffer_load_dwordx4 v7, s[4:7], s48 offen offset:{1024*i} lds")
    a(f"""
    K1_NOAJ:
    """)
    a(f"""
    s_mov_b32 s{sTMP}, 0xf000f000
    s_mov_b32 s{sTMP+1}, {1 << 20}
    {'s_barrier' if OPT.pbar else ''}
    {f's_sleep {OPT.slp0}' if OPT.slp0 else ''}
    """)
    if OPT.gate:
        a(f"""
        s_cmp_lg_u32 s3, 7
        s_cbranch_scc1 K1_GATED
        K1_GATE:
        buffer_load_dwordx2 v[164:165], v2, {sr(sWS,4)}, s63 offen sc1
        s_sub_u32 s{sTMP+1}, s{sTMP+1}, 1
        s_cbranch_scc1 K1_GATED
        s_waitcnt vmcnt(0)
        v_cmp_ne_u32 vcc, s{sTOK+1}, v165
        s_cbranch_vccz K1_GATED
        s_sleep {OPT.gate}
        s_branch K1_GATE
        K1_GATED:
        s_barrier
        """)
    a(f"""
    K1_POLL:
    buffer_load_dwordx2 v[162:163], v2, {sr(sWS,4)}, s62 offen sc1
    buffer_load_dwordx2 v[164:165], v2, {sr(sWS,4)}, s63 offen sc1
    s_sub_u32 s{sTMP+1}, s{sTMP+1}, 1
    s_cbranch_scc1 K1_GOT
    s_waitcnt vmcnt(0)
    v_and_b32 v166, s{sTMP}, v162
    v_mov_b32 v167, v163
    v_and_b32 v168, s{sTMP}, v164
    v_mov_b32 v169, v165
    v_cmp_ne_u64 vcc, {sr(sTOK)}, v[166:167]
    v_cmp_ne_u64 {sr(sTMP+2)}, {sr(sTOK)}, v[168:169]
    s_or_b64 exec, vcc, {sr(sTMP+2)}
    s_cbranch_execz K1_GOT
    s_sleep {OPT.slp}
    s_branch K1_POLL
    K1_GOT:
    s_mov_b64 exec, -1
    s_not_b32 s{sTMP}, s{sTMP}
    s_waitcnt vmcnt(0)
    v_and_b32 v{OFFV[0]}, s{sTMP}, v162
    v_and_b32 v{OFFV[1]}, s{sTMP}, v164
    v_add_u32_sdwa v{START[0]}, v{J4}, v{OFFV[0]} dst_sel:DWORD dst_unused:UNUSED_PAD src0_sel:DWORD src1_sel:WORD_0
    v_add_u32_sdwa v{START[1]}, v{J4}, v{OFFV[1]} dst_sel:DWORD dst_unused:UNUSED_PAD src0_sel:DWORD src1_sel:WORD_0
    """)

def gen_k2(a):
    tmp = D[0]
    L4 = tmp + 79; QJ = FL + 5
    stamp(a, 2, 1)
    RECS = tmp; LW = tmp + 16; DLS = tmp + 24; RK = tmp + 40; BS = tmp + 56
    AR = tmp + 72; AL = tmp + 73; ONE = tmp + 74; PV = tmp + 75
    AR2 = [AR, FL]; AL2 = [AL, FL + 1]; REM = [FL + 3, FL + 4]
    a.label("K2_ROUND")
    a(f"""
    s_mov_b32 s{sTMP}, {128*PSTR}
    s_movk_i32 s{sTMP+1}, {L_OFF}
    s_mov_b32 s{sTMP+2}, {128*PSTR + L_OFF}
    """)
    for x in range(2):
        a(f"""
        v_lshl_add_u32 v{AR2[x]}, v{START[x]}, 2, v1
        v_add_u32 v{AL2[x]}, v{START[x]}, v1
        buffer_load_dwordx4 {vr(RECS+8*x,4)}, v{AR2[x]}, {sr(sWS,4)}, {'s%d' % sTMP if x else 0} offen
        v_and_b32 v{AL2[x]}, -4, v{AL2[x]}
        buffer_load_dwordx2 {vr(LW+4*x,2)}, v{AL2[x]}, {sr(sWS,4)}, s{sTMP+1+x} offen
        """)
    a(f"v_sub_u32 v{QJ}, s{sQ}, v{J4}")
    for x in range(2):
        a(f"""
        v_sub_u32_sdwa v{REM[x]}, v{OFFV[x]}, v{START[x]} dst_sel:DWORD dst_unused:UNUSED_PAD src0_sel:WORD_1 src1_sel:DWORD
        s_nop 0
        v_cmp_gt_i32 {sr(sF0+2*x)}, v{REM[x]}, v{QJ}
        v_min_i32 v{REM[x]}, v{REM[x]}, v{QJ}
        v_cmp_lt_i32 vcc, 16, v{REM[x]}
        s_or_b64 exec, vcc, 1
        buffer_load_dwordx4 {vr(RECS+8*x+4,4)}, v{AR2[x]}, {sr(sWS,4)}, {'s%d' % sTMP if x else 0} offen offset:64
        buffer_load_dwordx2 {vr(LW+4*x+2,2)}, v{AL2[x]}, {sr(sWS,4)}, s{sTMP+1+x} offen offset:16
        s_mov_b64 exec, -1
        """)
    ntouch = 1 if OPT.touch else 0
    a(f"""
    v_mov_b32 v{ONE}, 1
    v_lshrrev_b32 v{L4}, 1, v{LANE8}
    s_cmp_eq_u32 s{sFIRST}, 0
    s_cbranch_scc1 K2_NOTFIRST
    """)
    HF = 16; WFR = S; DD_ = R8; ZR = vr(ZERO, 4)
    a("s_cmp_eq_u32 s92, 0\ns_cbranch_scc1 K2_NOAJ")
    for s in range(4):
        for jj in range(2):
            a(f"ds_read_b64_tr_b16 {vr(WFR+4*s+2*jj,2)}, v12 offset:{4096 + (16*s+4*jj)*64}")
    a(f"""
    v_lshrrev_b32 v14, 4, v6
    v_bfe_u32 v15, v6, 2, 2
    v_lshl_add_u32 v14, v14, 3, v15
    v_and_b32 v15, 3, v6
    v_lshlrev_b32 v15, 4, v15
    v_lshl_add_u32 v14, v14, 7, v15
    s_lshl_b32 s44, s3, 12
    s_add_u32 s44, s44, {SB}
    v_add_u32 v14, s44, v14
    s_lshl_b32 s48, s3, 10
    s_add_u32 s48, s48, {WHB - 4096}
    v_add_u32 v15, s48, v7
    """)
    def whr(c):
        for jj in range(2):
            a(f"ds_read_b64_tr_b16 {vr(EW+4*(c & 1)+2*jj,2)}, v14 offset:{512*jj + 64*(c >> 1) + 8*(c & 1)}")
    whr(0); whr(1)
    for s in range(4):
        a(f"s_waitcnt lgkmcnt({10 - 2*s})")
        a(mfma32(DD_, WFR+4*s, HF+4*s, None if s == 0 else DD_))
    a(f"""
    s_lshl_b32 s48, s60, 5
    v_add_u32 v9, s48, v9
    v_mul_u32_u24 v13, {ARS}, v9
    v_lshl_add_u32 v13, v8, 3, v13
    s_lshl_b32 s48, s61, 6
    v_add_u32 v13, s48, v13
    s_mov_b32 s55, {f32(-L2E)}
    s_waitcnt lgkmcnt(0)
    ds_write_b128 v15, {vr(EW,4)}
    ds_write_b128 v15, {vr(EW+4,4)} offset:4096
    """)
    whr(2); whr(3)
    a(f"v_add_u32 v14, s44, v7")
    for q in range(4):
        for r in range(4):
            a(f"v_mul_f32 v{DD_+4*q+r}, s55, v{DD_+4*q+r}")
        a(f"v_cvt_pk_bf16_f32 v{DD_+4*q}, v{DD_+4*q}, v{DD_+4*q+1}\nv_cvt_pk_bf16_f32 v{DD_+4*q+1}, v{DD_+4*q+2}, v{DD_+4*q+3}")
        a(f"ds_write_b64 v13, {vr(DD_+4*q,2)} offset:{AT + 16*q}")
    a(f"""
    s_waitcnt lgkmcnt(4)
    ds_write_b128 v15, {vr(EW,4)} offset:8192
    ds_write_b128 v15, {vr(EW+4,4)} offset:12288
    """)
    for i in range(4):
        a(f"ds_write_b128 v14, {ZR} offset:{1024*i}")
    a("K2_NOAJ:")
    a(f"""
    v_cmp_gt_u32 vcc, 32, v6
    s_mov_b32 s48, {f32(-LN2)}
    s_mov_b32 s55, {f32(-L2E)}
    """)
    for h in range(2):
        wd, wa, o = XX + 2*h, XX + 1 + 2*h, WX[h]
        a(f"""
        v_lshlrev_b32 v{wd}, 16, v{wd}
        v_lshlrev_b32 v{wa}, 16, v{wa}
        v_mul_f32 v{wd}, s55, v{wd}
        v_mul_f32 v{wa}, s55, v{wa}
        v_cvt_pk_bf16_f32 v24, v{wd}, v{wd}
        v_lshlrev_b32 v24, 16, v24
        v_sub_f32 v25, v{wd}, v24
        v_cvt_pk_bf16_f32 v26, v24, v25
        v_cvt_pk_bf16_f32 v27, 0, v{wa}
        v_cndmask_b32 v{o}, v26, 0, vcc
        v_cndmask_b32 v{o+1}, v27, 0, vcc
        v_cndmask_b32 v{o+4}, 0, v26, vcc
        v_cndmask_b32 v{o+5}, 0, v27, vcc
        v_lshlrev_b32 v{WXS[h]}, 16, v{WXS[h]}
        v_mul_f32 v{WXS[h]}, s48, v{WXS[h]}
        """)
    a("s_waitcnt vmcnt(0)")
    if OPT.touch:
        a(f"""
        s_mul_i32 s{sTMP+1}, s{sROT}, {392*128}
        s_mul_i32 s{sTMP+2}, s3, {49*128}
        s_add_u32 s{sTMP+1}, s{sTMP+1}, s{sTMP+2}
        s_add_u32 s{sTMP+1}, s{sTMP+1}, {BTAB}
        v_lshlrev_b32 v{TCH}, 4, v{LANE8}
        v_add_u32 v{TCH}, s{sTMP+1}, v{TCH}
        s_lshl3_add_u32 s{sTMP+1}, s{sROT}, s3
        s_lshl_b32 s{sTMP+1}, s{sTMP+1}, 9
        s_add_u32 s{sTMP+1}, s{sTMP+1}, {P8 - 49*128}
        v_lshl_add_u32 v{T1}, v{LANE8}, 4, s{sTMP+1}
        v_cmp_gt_u32 vcc, {49*8}, v{LANE8}
        s_mov_b32 exec_lo, {hex((1 << min(32, OPT.touch)) - 1)}
        s_mov_b32 exec_hi, {hex(((1 << max(0, OPT.touch - 32)) - 1) | (15 << 17))}
        v_cndmask_b32 v{TCH}, v{T1}, v{TCH}, vcc
        buffer_load_dword v{TCH}, v{TCH}, {sr(sWS,4)}, 0 offen
        s_mov_b64 exec, -1
        """)
    a(f"""
    s_branch K2_COUNT
    K2_NOTFIRST:
    s_waitcnt lgkmcnt(0)
    s_barrier
    s_waitcnt vmcnt(0)
    K2_COUNT:
    """)
    stamp(a, 2, 2)
    a(f"""
    s_or_b64 vcc, {sr(sF0)}, {sr(sF0+2)}
    s_cbranch_scc0 K2_NOFLAG
    v_mov_b32 v{PV}, {FLAG}
    ds_write_b32 v{PV}, v{ONE}
    K2_NOFLAG:
    """)
    for x in range(2):
        for i in range(2):
            g = 2*x + i
            for k in range(4):
                s = 4*g + k
                a(f"v_cmpx_lt_i32 vcc, {16*i+k}, v{REM[x]}")
                if i == 1:
                    a(f"s_cbranch_execz K2_CNT_{x}")
                if k == 0:
                    a(f"v_alignbyte_b32 v{LW+2*g}, v{LW+2*g+1}, v{LW+2*g}, v{START[x]}")
                a(f"v_lshlrev_b32_sdwa v{DLS+s}, 2, v{LW+2*g} dst_sel:DWORD dst_unused:UNUSED_PAD src0_sel:DWORD src1_sel:BYTE_{k}")
                a(f"ds_add_rtn_u32 v{RK+s}, v{DLS+s}, v{ONE} offset:{CNT2}")
        a(f"K2_CNT_{x}:\ns_mov_b64 exec, -1")
    a(f"""
    v_mov_b32 v{AR}, {FLAG}
    s_movk_i32 s{sTMP}, {LIST}
    s_waitcnt lgkmcnt(0)
    s_barrier
    """)
    stamp(a, 2, 3)
    a(f"""
    s_or_b32 s{sTMP+1}, s2, s3
    s_cbranch_scc0 K2_EPOCH
    K2_EPOCH_RET:
    """)
    a(f"""
    ds_read_b32 v{PV}, v{L4} offset:{CNT2}
    ds_read_b32 v{AL}, v{AR}
    s_waitcnt lgkmcnt(1)
    v_mov_b32 v{AR}, v{PV}
    """)
    wave_scan(a, AR)
    a(f"""
    v_sub_u32 v{PV}, v{AR}, v{PV}
    v_readlane_b32 s{sT}, v{AR}, 63
    v_lshl_add_u32 v{PV}, v{PV}, 3, s{sTMP}
    ds_write_b32 v{L4}, v{PV} offset:{PRE2}
    """)
    for x in range(2):
        for k in range(4):
            s = 8*x + k
            a(f"ds_read_b32 v{BS+s}, v{DLS+s} offset:{PRE2}")
    for x in range(2):
        a(f"v_cmpx_lt_i32 vcc, 16, v{REM[x]}\ns_cbranch_execz K2_SR_{x}")
        for k in range(4):
            s = 8*x + 4 + k
            a(f"ds_read_b32 v{BS+s}, v{DLS+s} offset:{PRE2}")
        a(f"K2_SR_{x}:\ns_mov_b64 exec, -1")
    a(f"""
    s_cmp_gt_u32 s{sT}, {CAP}
    s_cbranch_scc1 K2_OVER
    s_add_u32 s{sTMP+4}, s{sT}, 63
    s_lshr_b32 s{sTMP+4}, s{sTMP+4}, 6
    s_lshr_b32 s{sTMP+1}, s{sTMP+4}, 3
    s_and_b32 s{sTMP+2}, s{sTMP+4}, 7
    s_mul_i32 s{sPN8}, s3, s{sTMP+1}
    s_min_u32 s{sTMP+3}, s3, s{sTMP+2}
    s_add_u32 s{sPN8}, s{sPN8}, s{sTMP+3}
    s_cmp_lt_u32 s3, s{sTMP+2}
    s_addc_u32 s{sTMP+1}, s{sTMP+1}, s{sPN8}
    s_lshl_b32 s{sPN8}, s{sPN8}, 9
    s_lshl_b32 s{sEND}, s{sTMP+1}, 9
    s_lshl_b32 s{sT}, s{sT}, 3
    s_min_u32 s{sEND}, s{sEND}, s{sT}
    s_lshl2_add_u32 m0, s{sW10}, {STG}
    s_mov_b64 {sr(sFWX)}, 0
    s_movk_i32 s{sTHR}, {512*OPT.prio}
    s_cmp_lg_u32 s3, 0
    s_cbranch_scc1 K2_NOPAD
    v_add_u32 v{AR}, s{sT}, v{LANE8}
    v_mov_b32 v{FL+6}, 0
    v_mov_b32 v{FL+7}, {16*NPB}
    ds_write_b64 v{AR}, {vr(FL+6,2)} offset:{LIST}
    K2_NOPAD:
    s_waitcnt lgkmcnt(0)
    v_readfirstlane_b32 s{sMORE}, v{AL}
    """)
    if OPT.stamps != 4: stamp(a, 2, 11)
    for x in range(2):
        for i in range(2):
            for k in range(4):
                s = 8*x + 4*i + k
                pr = FL + 6 + 2 * (s % 4)
                a(f"v_cmpx_lt_i32 vcc, {16*i+k}, v{REM[x]}")
                if i == 1: a(f"s_cbranch_execz K2_SC_{x}")
                a(f"""
                v_lshl_add_u32 v{BS+s}, v{RK+s}, 3, v{BS+s}
                v_mov_b32 v{pr}, v{RECS+s}
                v_lshlrev_b32 v{pr+1}, 2, v{DLS+s}
                ds_write_b64 v{BS+s}, {vr(pr,2)}
                """)
        a(f"K2_SC_{x}:\ns_mov_b64 exec, -1")
    a(f"""
    v_add_u32 v{TA}, s{sPN8}, v{LANE8}
    v_add_u32 v{A4}, s{sPN8}, v{G8}
    {mfma32(ACC[0], ZERO, ZERO, None)}
    {mfma32(ACC[1], ZERO, ZERO, None)}
    s_sub_u32 s{sREM}, s{sEND}, s{sPN8}
    v_cmp_gt_i32 {sr(sMR)}, s{sREM}, v{LANE8}
    {mfma32(S, ZERO, ZERO, None)}
    """)
    if OPT.stamps != 4: stamp(a, 2, 10)
    a("s_waitcnt lgkmcnt(0)\ns_barrier")
    stamp(a, 2, 4)
    a(f"""
    s_cmp_ge_u32 s{sPN8}, s{sEND}
    s_cbranch_scc1 K2_NOWORK
    """)
    RB4 = D[1]
    if OPT.abl:
        a(f"s_add_u32 s67, s{sREM}, 511\ns_lshr_b32 s67, s67, 9")
    plain(a, r_read(0))
    plain(a, list_reads()[1:2])
    plain(a, r_read(1, RB4))
    a(mfma32(D[1] + 14, ZERO, ZERO, None))
    a("s_waitcnt lgkmcnt(3)")
    plain(a, mads(R8))
    plain(a, dma_ops())
    a("s_waitcnt lgkmcnt(0)")
    plain(a, pos_load())
    a(f"""
    v_readfirstlane_b32 s{sWB}, v{DL}
    v_mov_b32 v{T+6}, 1.0
    v_mov_b32 v{T+7}, 1.0
    s_min_u32 s{sWB}, s{sWB}, {16*(NPB-8)}
    """)
    window_masks(a)
    wx_load(a)
    plain(a, geo_addr())
    plain(a, geo_lut())
    plain(a, advance())
    plain(a, mads(RB4))
    a("s_waitcnt lgkmcnt(0)")
    plain(a, geo_fin()[1:])
    a("s_waitcnt vmcnt(1)")
    plain(a, x_read(0)[1:])
    a("s_waitcnt vmcnt(0)")
    plain(a, geo_diff())
    a("s_waitcnt lgkmcnt(2)")
    a(mfma32(D[0], X[0], ID, None))
    plain(a, geo_cvt())
    a(mfma32(D[0], X[0] + 4, ID + 4, D[0]))
    plain(a, geo_d2())
    a("s_waitcnt lgkmcnt(0)")
    plain(a, dma_ops()[:2])
    plain(a, geo_fin()[:1])
    plain(a, dma_ops()[2:])
    a(mfma32(D[0], XX, WX[0] + 2, D[0]))
    plain(a, s_write())
    a("s_nop 7")
    if OPT.prio: a("s_setprio 3")
    stamp(a, 2, 5)
    gen_main_loop(a)
    stamp(a, 2, 6)
    t2 = T + 2 * (7 % 4); y2 = D[1] + 14; t6 = T + 2 * (6 % 4)
    a(f"""
    {mfma32(ACC[1], S, M[1], ACC[1])}
    v_rcp_f32 v{t2}, v{t2}
    v_rcp_f32 v{t2+1}, v{t2+1}
    v_cvt_pk_bf16_f32 v{M[1]+6}, v{t6}, v{t6+1}
    v_mul_f32 v{t2}, v{t2}, v{y2}
    v_mul_f32 v{t2+1}, v{t2+1}, v{y2+1}
    v_cvt_pk_bf16_f32 v{M[1]+7}, v{t2}, v{t2+1}
    s_mov_b32 s{sWBO}, s{sWB}
    s_nop 0
    {mfma32(ACC[1], S+4, M[1]+4, ACC[1])}
    """)
    epi_reads(a)
    flush_code(a, False, 'A')
    a.label("K2_WDONE")
    stamp(a, 2, 7)
    a(f"""
    s_cmp_lg_u32 s{sMORE}, 0
    s_cbranch_scc1 K2_MORE
    """)
    MB_ = M[0]; U = ACC[0]; HR = D[0]; EX = D[0] + 8; MFS = [D[1], ACC[1]]
    a(f"""
    s_movk_i32 s{sTMP+3}, 21846
    v_mul_u32_u24 v{DX}, s{sTMP+3}, v0
    s_mul_i32 s{sTMP+4}, s{sNB}, 6
    s_add_u32 s{sTMP+4}, s{sTMP+4}, {N*128}
    v_add_u32_sdwa v{DX}, v{DX}, v0 dst_sel:DWORD dst_unused:UNUSED_PAD src0_sel:WORD_1 src1_sel:DWORD
    v_lshlrev_b32 v{PD}, 1, v0
    s_mul_i32 s{sTMP+5}, s{sNN}, 3
    v_cmp_gt_u32 {sr(sF0+2)}, s{sTMP+5}, v0
    v_lshlrev_b32 v{DX+1}, 2, v{DX}
    v_lshlrev_b32 v{DX}, 3, v{DX}
    s_and_b32 s{sTMP}, s3, 3
    s_lshl_b32 s{sTMP}, s{sTMP}, 4
    s_sub_i32 s{sTMP+5}, s{sNN}, s{sTMP}
    s_lshl_b32 s{sTMP+5}, s{sTMP+5}, 7
    v_cmp_gt_i32 {sr(sF0)}, s{sTMP+5}, v{EO}
    s_add_u32 s{sTMP}, s{sTMP}, s{sNB}
    s_lshl_b32 s{sTMP}, s{sTMP}, 7
    s_lshr_b32 s{sTMP+1}, s3, 2
    s_lshl_b32 s{sTMP+1}, s{sTMP+1}, 6
    s_add_u32 s{sTMP}, s{sTMP}, s{sTMP+1}
    s_mov_b32 s{sTMP+2}, {f32(-LN2)}
    s_mov_b32 s{sTMP+3}, 0xffff0000
    s_waitcnt lgkmcnt(0)
    {mfma16(U, X[0], EW, None)}
    {mfma16(U+4, X[0]+16, EW, None)}
    {mfma16(U, X[0]+4, EW+4, U)}
    {mfma16(U+4, X[0]+20, EW+4, U+4)}
    s_cmp_lt_u32 s3, 4
    s_cbranch_scc1 K2_HLO
    """)
    for r in range(4):
        a(f"v_lshlrev_b32 v{HR+2*r}, 16, v{EW+4+r}\nv_and_b32 v{HR+2*r+1}, s{sTMP+3}, v{EW+4+r}")
    a("s_branch K2_HOK\nK2_HLO:")
    for r in range(4):
        a(f"v_lshlrev_b32 v{HR+2*r}, 16, v{EW+r}\nv_and_b32 v{HR+2*r+1}, s{sTMP+3}, v{EW+r}")
    a("K2_HOK:\ns_barrier")
    stamp(a, 2, 8)
    for s in range(2):
        for k in range(4):
            a(f"ds_read_b128 {vr(MFS[s]+4*k,4)}, v{EA_} offset:{256*s + 16*k}")
    a(f"ds_read_b32 v{DX+1}, v{DX+1} offset:{POSD}\nds_read_b64 {vr(PS,2)}, v{DX} offset:{ACCP}")
    for s in range(2):
        for k in range(4):
            a(f"s_waitcnt lgkmcnt({9 - 4*s - k})")
            a(f"v_cvt_f32_f64 v{MFS[s]+4*k}, {vr(MFS[s]+4*k,2)}")
            a(f"v_cvt_f32_f64 v{MFS[s]+4*k+1}, {vr(MFS[s]+4*k+2,2)}")
            a(f"v_mul_f32 v{MFS[s]+4*k}, s{sTMP+2}, v{MFS[s]+4*k}")
            a(f"v_mul_f32 v{MFS[s]+4*k+1}, s{sTMP+2}, v{MFS[s]+4*k+1}")
            a(f"v_cvt_pk_bf16_f32 v{MB_+4*s+k}, v{MFS[s]+4*k}, v{MFS[s]+4*k+1}")
        a("s_nop 1")
        a(mfma16(U, X[0]+8+4*s, MB_+4*s, U))
        a(mfma16(U+4, X[0]+24+4*s, MB_+4*s, U+4))
    a(f"""
    s_mov_b32 s{sTMP+2}, {f32(-L2E)}
    s_mov_b64 exec, {sr(sF0+2)}
    s_cbranch_execz K2_NOPOS
    s_waitcnt lgkmcnt(0)
    v_cvt_f32_f64 v{DX+2}, {vr(PS,2)}
    v_add_f32 v{DX+1}, v{DX+1}, v{DX+2}
    v_cvt_pk_bf16_f32 v{DX+1}, v{DX+1}, v{DX+1}
    buffer_store_short v{DX+1}, v{PD}, {sr(sOUT,4)}, s{sTMP+4} offen{OPT.ost}
    K2_NOPOS:
    s_mov_b64 exec, -1
    s_nop 4
    """)
    for r in range(8):
        a(f"v_mul_f32 v{EX+r}, s{sTMP+2}, v{U+r}")
    for r in range(8):
        a(f"v_exp_f32 v{EX+r}, v{EX+r}")
    for r in range(0, 8, 2):
        a(f"v_pk_add_f32 {vr(EX+r,2)}, {vr(EX+r,2)}, 1.0 op_sel_hi:[1,0]")
    for r in range(8):
        a(f"v_rcp_f32 v{EX+r}, v{EX+r}")
    for r in range(0, 8, 2):
        a(f"v_pk_fma_f32 {vr(HR+r,2)}, {vr(EX+r,2)}, {vr(U+r,2)}, {vr(HR+r,2)}")
    for r in range(4):
        a(f"v_cvt_pk_bf16_f32 v{EX+r}, v{HR+2*r}, v{HR+2*r+1}")
    a(f"""
    s_mov_b64 exec, {sr(sF0)}
    s_cbranch_execz K2_END
    buffer_store_dwordx4 {vr(EX,4)}, v{EO}, {sr(sOUT,4)}, s{sTMP} offen{OPT.ost}
    """)
    if OPT.stamps:
        a("s_waitcnt vmcnt(0)")
    stamp(a, 2, 9); stamp(a, 2, 15, True)
    a("K2_END:\ns_endpgm")
    a.label("K2_NOWORK")
    epi_reads(a)
    a("s_branch K2_WDONE")
    a.label("K2_FLUSH")
    flush_code(a, True, 'B')
    a(f"s_mov_b32 s{sFFL}, 0\ns_branch K2_FLUSH_RET")
    a.label("K2_REBASE")
    a(f"""
    s_mov_b32 s{sWBO}, s{sWB}
    v_readfirstlane_b32 s{sWB}, v{DL}
    s_mov_b32 s{sFWX}, 1
    s_mov_b32 s{sFFL}, 1
    s_min_u32 s{sWB}, s{sWB}, {16*(NPB-8)}
    """)
    window_masks(a)
    a("s_branch K2_REBASE_RET")
    a.label("K2_WXL")
    wx_load(a)
    a(f"s_mov_b32 s{sFWX}, 0\ns_branch K2_WXL_RET")
    if OPT.prio:
        a(f"""
        K2_PRIO:
        s_cmp_gt_i32 s{sREM}, 0
        s_cbranch_scc0 K2_PRIO1
        s_setprio 2
        s_mov_b32 s{sTHR}, 0
        s_branch K2_PRIO_RET
        K2_PRIO1:
        s_setprio 1
        s_branch K2_PRIO_RET
        K2_PRIO0:
        s_setprio 0
        s_branch K2_PRIO0_RET
        """)
    a(f"""
    K2_EPOCH:
    v_mov_b32 v{T1}, s{sTOK+1}
    v_mov_b32 v{T2}, s{sTOK+2}
    v_mov_b32 v{TA}, {EPO}
    s_mov_b64 exec, 1
    buffer_store_dwordx2 {vr(T1,2)}, v{TA}, {sr(sWS,4)}, 0 offen
    s_mov_b64 exec, -1
    s_branch K2_EPOCH_RET
    K2_OVER:
    s_mov_b32 s{sQ}, 16
    s_branch K2_AGAIN
    K2_MORE:
    """)
    for x in range(2):
        a(f"""
        v_add_u32_sdwa v{T1}, v{J4}, v{OFFV[x]} dst_sel:DWORD dst_unused:UNUSED_PAD src0_sel:DWORD src1_sel:WORD_1
        v_add_u32 v{START[x]}, s{sQ}, v{START[x]}
        v_min_u32 v{START[x]}, v{START[x]}, v{T1}
        """)
    a(f"""
    K2_AGAIN:
    s_waitcnt vmcnt(0) lgkmcnt(0)
    s_barrier
    s_mov_b32 s{sFIRST}, 0
    s_cmp_lg_u32 s3, 0
    s_cbranch_scc1 K2_ROUND
    v_lshrrev_b32 v{T1}, 1, v{LANE8}
    ds_write_b32 v{T1}, v{ZERO} offset:{CNT2}
    v_mov_b32 v{T1}, {FLAG}
    ds_write_b32 v{T1}, v{ZERO}
    s_branch K2_ROUND
    """)

HEADER = """; EGNN layer (gather / edge MLP / scatter) for gfx950, one workgroup per CU
; Kernarg: h 0, pos 8, e_attr 16, src 24, dst 32, w_e 40, w_x 48, w_h 56, out 64, debug 72, ws 80
; @launch grid=(256,1,1) block=(512,1,1) lds={l2}
.amdgcn_target "amdgcn-amd-amdhsa--gfx950"
.text
"""
KD = """.amdhsa_kernel {name}
  .amdhsa_next_free_vgpr {nv}
  .amdhsa_next_free_sgpr 96
  .amdhsa_accum_offset {nv}
  .amdhsa_group_segment_fixed_size 0
  .amdhsa_kernarg_size 88
  .amdhsa_user_sgpr_count 2
  .amdhsa_user_sgpr_kernarg_segment_ptr 1
  .amdhsa_system_sgpr_workgroup_id_x 1
.end_amdhsa_kernel
"""

def generate(stamps=0, gate=4, warm=0, prio=2, touch=49, g0=3, g1=5, abl='', tb2=1, st=2, twprio=1, slp=8, ost=0, og=1, slp0=0, samp=0, lcpost=1, pbar=0):
    OPT.stamps = stamps; OPT.gate = gate; OPT.warm = warm; OPT.prio = prio; OPT.touch = touch; OPT.g0 = g0; OPT.g1 = g1; OPT.abl = abl
    OPT.tb2 = tb2; OPT.st = ['', ' nt', ' sc1', ' sc0 sc1'][st]; OPT.twprio = twprio; OPT.slp = slp; OPT.og = og; OPT.samp = samp; OPT.pbar = pbar; OPT.lcpost = lcpost; OPT.slp0 = slp0
    OPT.ost = ['', ' nt', ' sc1', ' sc0 sc1'][ost]
    a = Asm(); gen_phase1(a); gen_k2(a)
    k2n = "gather_scatter__cheap_equivariant_egnn__graph_kernel"
    s = HEADER.format(l2=LDS2)
    s += f".globl {k2n}\n.p2align 8\n.type {k2n},@function\n" + a.text()
    s += '.section .rodata,"a"\n.p2align 6\n' + KD.format(name=k2n, nv=NV2 if stamps else 248)
    return s

if __name__ == "__main__":
    out = sys.argv[1]
    kw = {}
    for x in sys.argv[2:]:
        k, v = x.split("=", 1); kw[k] = v if k == 'abl' else int(v)
    open(out, "w").write(generate(**kw))
```

```python
import sys, struct

N = 12500; E = 800000
NPB = 49
CH = 3136
PSTR = 15744
L_OFF = CH * 4
RL_END = L_OFF + CH
OSTR = 2176; OGS = 8320
OFFT = 256 * PSTR
EPO = OFFT + 256 * OSTR
P8 = EPO + 128
BTAB = P8 + 12544 * 8
WS_USED = BTAB + 12560 * 128
DBG_WS = WS_USED + 4096
WS_SRD = 32 << 20
L2E = 1.4426950408889634
LN2 = 0.6931471805599453

def f32(x):
    return "0x%08x" % struct.unpack("<I", struct.pack("<f", x))[0]

class Asm:
    def __init__(self):
        self.L = []
    def __call__(self, s):
        for ln in s.strip("\n").split("\n"):
            ln = ln.strip()
            if ln:
                self.L.append(ln if ln.endswith(":") else "    " + ln)
    def label(self, s):
        self.L.append(s + ":")
    def text(self):
        return "\n".join(self.L) + "\n"

def vr(a, n):
    return f"v[{a}:{a+n-1}]"
def sr(a, n=2):
    return f"s[{a}:{a+n-1}]"

def srd(a, base, nbytes, add=0):
    o = []
    if add:
        o += [f"s_add_u32 s{a}, s{base}, {add}", f"s_addc_u32 s{a+1}, s{base+1}, 0"]
    else:
        o += [f"s_mov_b32 s{a}, s{base}", f"s_mov_b32 s{a+1}, s{base+1}"]
    o += [f"s_mov_b32 s{a+2}, {nbytes}", f"s_mov_b32 s{a+3}, 0x00020000"]
    return "\n".join(o)

def wave_scan(a, v):
    for ctl in ("row_shr:1", "row_shr:2", "row_shr:4", "row_shr:8"):
        a("s_nop 1")
        a(f"v_add_u32_dpp v{v}, v{v}, v{v} {ctl} row_mask:0xf bank_mask:0xf bound_ctrl:0")
    a("s_nop 1")
    a(f"v_add_u32_dpp v{v}, v{v}, v{v} row_bcast:15 row_mask:0xa bank_mask:0xf")
    a("s_nop 1")
    a(f"v_add_u32_dpp v{v}, v{v}, v{v} row_bcast:31 row_mask:0xc bank_mask:0xf")

def mfma32(d, a_, b_, c):
    cc = "0" if c is None else vr(c, 16)
    return f"v_mfma_f32_32x32x16_bf16 {vr(d,16)}, {vr(a_,4)}, {vr(b_,4)}, {cc}"
def mfma16(d, a_, b_, c):
    cc = "0" if c is None else vr(c, 4)
    return f"v_mfma_f32_16x16x32_bf16 {vr(d,4)}, {vr(a_,4)}, {vr(b_,4)}, {cc}"

class Opt:
    pass
OPT = Opt()

def stamp(a, kern, idx, real=False):
    if not OPT.stamps:
        return
    if OPT.stamps == 5 and not real:
        if (kern, idx) in ((2, 5), (2, 6)):
            stamp(a, kern, idx + 7, True)
        if not (kern == 2 and idx in (0, 5, 6)): return
    if OPT.stamps == 4:
        idx = {(2, 5): 12, (2, 6): 13, (2, 2): 11, (2, 4): 10}.get((kern, idx), idx) if not real else idx
        if idx < 10 or (not real and idx in (10, 11) and (kern, idx) == (2, idx) and not getattr(stamp, 'ok', True)): return
        real = True
    if not real and OPT.stamps == 6 and not (idx == 0 or (kern == 2 and idx in (4, 5, 6, 9, 10, 11, 12))):
        return
    if not real and OPT.stamps == 2 and idx not in (0, 3, 9):
        return
    if not real and OPT.stamps == 3 and idx not in ((0, 3) if kern == 1 else (0, 5, 6, 9)):
        return
    sv = 252
    st = 64
    w = 12
    a(f"""
    {'s_memrealtime' if real else 's_memtime'} s[{st}:{st+1}]
    s_waitcnt lgkmcnt(0)
    v_mov_b32 v{sv}, s{st}
    v_mov_b32 v{sv+1}, s{st+2}
    s_mov_b64 s[{st}:{st+1}], exec
    s_mov_b64 exec, 1
    buffer_store_dword v{sv}, v{sv+1}, s[{w}:{w+3}], 0 offen offset:{idx*4}
    s_mov_b64 exec, s[{st}:{st+1}]
    """)

CAP = 4096
RS = 528
CNT2 = 0; PRE2 = 256; FLAG = 512; LUT = 528; ACCP = LUT + 800; POSD = 3072
assert ACCP + NPB * 32 <= POSD
LIST = 4096
AT = LIST + (CAP + 64) * 8
ARS = 144
HRB = AT + 64 * ARS
WHB = HRB + 8192
ACCM = WHB + 16384
SB = (ACCM + NPB * RS + 127) // 128 * 128
STG = SB + 8 * 4096
LDS2 = STG + 8 * 4096
XTR = LIST + 24576
assert LDS2 <= 163840 and HRB % 128 == 0

ACC = [2, 18]; D = [34, 50]; M = [66, 74]; X = [82, 98]
WX = [114, 120]; XX = 126; S = 132; T = 140; TCH = 148; J4 = 149
REC = 150; DL = 151; R8 = 152; REL = 160; TA = 161; PD = 162; DX = 166; DD = 169; DXY = 170
SAD = 172; A4 = 173; PS = 174; ZERO = 176; WXS = [180, 182]
T1 = 184; T2 = 185; START = [186, 187]; OFFV = [188, 189]
FL = 190
EW = 208
CB = 216
CDMA = CB; AX = CB + 4; AS = CB + 8; SROW = CB + 12; G8 = CB + 13; MADDR = CB + 14; POFF = CB + 15
ID = CB + 16; AWT = CB + 24; LANE8 = CB + 25; LUA = CB + 26; LUV = CB + 27
EA_ = CB + 28; EH = CB + 29; EO = CB + 31
DUMMY = LANE8
NV2 = 256
sWS, sOUT, sH = 12, 20, 24
sNB, sNN, sC128, sM10, s0M1, sP8, sBT = 28, 29, 30, 31, 32, 33, 34
sEND, sWB, sWBO, sFWX, sFFL = 35, 36, 37, 38, 39
sREM, sTHR, sW10, sNC = 40, 41, 42, 43
sVN, sMR = 44, 46
sNX, sQ, sFIRST, sT, sPN8, sMORE, sROT = 48, 49, 50, 51, 52, 53, 54
sTMP = 56
sTOK = 68
sPM, sCM, sF0 = 72, 74, 76

def lane_consts(a, o, base):
    L = base; HH, A31, R2, C2, GP, U1, U2 = [base + 1 + i for i in range(7)]
    CD, AXo, ASo = o, o + 4, o + 8
    SROWo, G8o, MADo, POFo = o + 12, o + 13, o + 14, o + 15
    IDo = o + 16; AWo, L8o, LUA, LUV = o + 24, o + 25, o + 26, o + 27
    EAo, EH0, EH1, EOo = o + 28, o + 29, o + 30, o + 31
    a(f"""
    v_lshrrev_b32 v{HH}, 5, v{L}
    v_and_b32 v{A31}, 31, v{L}
    v_bfe_u32 v{R2}, v{L}, 2, 2
    v_and_b32 v{C2}, 3, v{L}
    v_bfe_u32 v{GP}, v{L}, 4, 1
    v_lshrrev_b32 v{U1}, 3, v{L}
    v_lshlrev_b32 v{G8o}, 5, v{U1}
    v_and_b32 v{U1}, 7, v{L}
    v_lshlrev_b32 v{U2}, 2, v{HH}
    v_xor_b32 v{U1}, v{U1}, v{U2}
    """)
    for i in range(4):
        a(f"v_xor_b32 v{CD+i}, {i}, v{U1}\nv_lshlrev_b32 v{CD+i}, 4, v{CD+i}\nv_add_u32 v{CD+i}, {3072 - 1024*i}, v{CD+i}")
    a(f"""
    v_bfe_u32 v{U1}, v{L}, 2, 3
    v_lshl_add_u32 v{U1}, v{C2}, 3, v{U1}
    v_lshlrev_b32 v{U1}, 7, v{U1}
    v_add_u32 v{U1}, {STG}, v{U1}
    v_lshl_or_b32 v{U2}, v{GP}, 2, v{C2}
    v_xor_b32 v{U2}, v{U2}, v{HH}
    """)
    for k in range(4):
        a(f"v_xor_b32 v{AXo+k}, {2*k}, v{U2}\nv_lshl_add_u32 v{AXo+k}, v{AXo+k}, 4, v{U1}")
    a(f"""
    v_lshlrev_b32 v{SROWo}, 7, v{A31}
    v_add_u32 v{SROWo}, {SB}, v{SROWo}
    v_and_b32 v{U1}, 1, v{L}
    v_lshl_or_b32 v{U1}, v{R2}, 1, v{U1}
    v_lshl_add_u32 v{SROWo}, v{U1}, 4, v{SROWo}
    v_bfe_u32 v{U1}, v{L}, 1, 1
    v_xor_b32 v{U1}, v{U1}, v{HH}
    v_lshl_add_u32 v{SROWo}, v{U1}, 3, v{SROWo}
    v_lshl_add_u32 v{C2}, v{GP}, 2, v{C2}
    v_and_b32 v{U1}, 1, v{R2}
    v_lshl_or_b32 v{U1}, v{HH}, 1, v{U1}
    v_xor_b32 v{U1}, v{U1}, v{C2}
    v_lshrrev_b32 v{U2}, 1, v{R2}
    v_lshl_add_u32 v{R2}, v{HH}, 2, v{R2}
    v_lshlrev_b32 v{AWo}, 7, v{R2}
    v_lshl_add_u32 v{ASo}, v{U2}, 3, v{AWo}
    v_add_u32 v{ASo}, {SB}, v{ASo}
    v_xor_b32 v{U2}, 4, v{U1}
    v_lshl_add_u32 v{ASo+1}, v{U2}, 4, v{ASo}
    v_add_u32 v{ASo+1}, 1024, v{ASo+1}
    v_lshl_add_u32 v{ASo}, v{U1}, 4, v{ASo}
    v_xor_b32 v{ASo+2}, 8, v{ASo}
    v_xor_b32 v{ASo+3}, 8, v{ASo+1}
    v_mul_u32_u24 v{AWo}, {ARS}, v{R2}
    v_lshl_add_u32 v{AWo}, v{C2}, 3, v{AWo}
    v_add_u32 v{AWo}, {AT}, v{AWo}
    v_mul_u32_u24 v{MADo}, {RS}, v{HH}
    v_lshl_add_u32 v{MADo}, v{A31}, 3, v{MADo}
    v_add_u32 v{MADo}, {ACCM}, v{MADo}
    v_bfe_u32 v{U1}, v{L}, 3, 2
    v_lshl_add_u32 v{U1}, v{U1}, 1, v{HH}
    v_lshlrev_b32 v{POFo}, 5, v{U1}
    v_and_b32 v{U1}, 4, v{L}
    v_lshl_add_u32 v{POFo}, v{U1}, 1, v{POFo}
    v_and_b32 v{U1}, 1, v{L}
    v_lshl_add_u32 v{POFo}, v{U1}, 4, v{POFo}
    v_lshlrev_b32 v{L8o}, 3, v{L}
    v_lshlrev_b32 v{U1}, 4, v{U1}
    v_mov_b32 v{LUV}, 0x3f80
    v_lshlrev_b32 v{LUV}, v{U1}, v{LUV}
    v_lshrrev_b32 v{U1}, 1, v{L}
    v_lshlrev_b32 v{U1}, 2, v{U1}
    v_lshl_add_u32 v{LUA}, v{L}, 4, v{U1}
    v_lshrrev_b32 v{U1}, 1, v{A31}
    v_lshlrev_b32 v{U2}, 2, v{HH}
    v_sub_u32 v{U1}, v{U1}, v{U2}
    """)
    for t in range(2):
        for r in range(4):
            a(f"v_cmp_eq_u32 {sr(84 + 2*r)}, {8*t + r}, v{U1}")
        for r in range(4):
            a(f"v_cndmask_b32 v{IDo+4*t+r}, 0, v{LUV}, {sr(84 + 2*r)}")
    a(f"""
    v_and_b32 v{U1}, 15, v{L}
    v_lshrrev_b32 v{U2}, 4, v{L}
    v_mul_u32_u24 v{EAo}, {RS}, v{U1}
    v_lshl_add_u32 v{EAo}, v{U2}, 6, v{EAo}
    v_add_u32 v{EAo}, {ACCM}, v{EAo}
    v_lshlrev_b32 v{EOo}, 7, v{U1}
    v_bfe_u32 v{U1}, v{L}, 1, 3
    v_xor_b32 v{U1}, v{U1}, v{U2}
    v_lshl_add_u32 v{EH0}, v{U1}, 4, v{EOo}
    v_add_u32 v{EH0}, {HRB}, v{EH0}
    v_xor_b32 v{EH1}, 64, v{EH0}
    v_lshl_add_u32 v{EOo}, v{U2}, 4, v{EOo}
    """)
    a(f"""
    s_lshl_b32 s44, s3, 12
    s_and_b32 s45, s3, 3
    s_mul_i32 s46, s45, {16*RS}
    s_lshl_b32 s45, s45, 11
    """)
    for r in list(range(AXo, AXo + 8)) + [SROWo]:
        a(f"v_add_u32 v{r}, s44, v{r}")
    a(f"""
    v_add_u32 v{EAo}, s46, v{EAo}
    v_add_u32 v{EH0}, s45, v{EH0}
    v_add_u32 v{EH1}, s45, v{EH1}
    """)

def flush_code(a, rezero, tag):
    a(f"""
    s_mul_i32 s{sTMP}, s{sWBO}, {RS//16}
    s_lshl_b32 s{sTMP+1}, s{sWBO}, 1
    v_add_u32 v{T1}, s{sTMP}, v{MADDR}
    v_add_u32 v{T2}, s{sTMP+1}, v{POFF}
    """)
    for q in range(4):
        for h in range(2):
            t = FL + 2 * (2*q + h)
            a(f"v_mul_f32 v{t}, {f32(-LN2)}, v{ACC[h]+4*q+3}")
            a(f"v_cvt_f64_f32 {vr(t,2)}, v{t}")
            a(f"ds_add_f64 v{T1}, {vr(t,2)} offset:{2*q*RS + 256*h}")
    for q in range(4):
        r0 = ACC[0] + 4*q; r1 = ACC[1] + 4*q
        a(f"v_pk_mul_f32 {vr(r0,2)}, {vr(r0,2)}, {vr(WXS[0],2)} op_sel_hi:[1,0]")
        a(f"v_mul_f32 v{r0+2}, v{r0+2}, v{WXS[0]}")
        a(f"v_pk_fma_f32 {vr(r0,2)}, {vr(r1,2)}, {vr(WXS[1],2)}, {vr(r0,2)} op_sel_hi:[1,0,1]")
        a(f"v_fmac_f32 v{r0+2}, v{r1+2}, v{WXS[1]}")
    if rezero:
        a(mfma32(ACC[1], ZERO, ZERO, None))
    else:
        a("s_nop 0")
    for q in range(2):
        for c in range(3):
            a(f"v_permlane16_swap_b32 v{ACC[0]+4*q+c}, v{ACC[0]+4*(q+2)+c}")
    a("s_nop 0")
    for q in range(2):
        for c in range(3):
            a(f"v_add_f32 v{ACC[0]+4*q+c}, v{ACC[0]+4*q+c}, v{ACC[0]+4*(q+2)+c}")
    c0 = ACC[0]
    for c in range(3):
        a(f"v_add_f32_dpp v{c0+c}, v{c0+c}, v{c0+c} row_ror:8 row_mask:0xf bank_mask:0x3")
    for c in range(3):
        a(f"v_add_f32_dpp v{c0+c}, v{c0+4+c}, v{c0+4+c} row_ror:8 row_mask:0xf bank_mask:0xc")
    a(f"""
    v_add_f32_dpp v{c0}, v{c0}, v{c0} row_half_mirror row_mask:0xf bank_mask:0x5
    s_nop 0
    v_add_f32_dpp v{c0+2}, v{c0+2}, v{c0+2} row_half_mirror row_mask:0xf bank_mask:0xf
    v_add_f32_dpp v{c0}, v{c0+1}, v{c0+1} row_half_mirror row_mask:0xf bank_mask:0xa
    s_nop 0
    v_add_f32_dpp v{c0+2}, v{c0+2}, v{c0+2} quad_perm:[1,0,3,2] row_mask:0xf bank_mask:0xf
    v_add_f32_dpp v{c0}, v{c0}, v{c0} quad_perm:[1,0,3,2] row_mask:0xf bank_mask:0xf
    s_nop 0
    v_add_f32_dpp v{c0+2}, v{c0+2}, v{c0+2} quad_perm:[2,3,0,1] row_mask:0xf bank_mask:0xf
    v_add_f32_dpp v{c0}, v{c0}, v{c0} quad_perm:[2,3,0,1] row_mask:0xf bank_mask:0xf
    v_cndmask_b32 v{c0}, v{c0}, v{c0+2}, {sr(sCM)}
    v_cvt_f64_f32 {vr(FL+16,2)}, v{c0}
    s_mov_b64 exec, {sr(sPM)}
    ds_add_f64 v{T2}, {vr(FL+16,2)} offset:{ACCP}
    s_mov_b64 exec, -1
    """)
    if rezero:
        a(mfma32(ACC[0], ZERO, ZERO, None))

def window_masks(a):
    a(f"""
    v_subrev_u32 v{REL}, s{sWB}, v{DL}
    v_cmp_gt_u32 vcc, s{sC128}, v{REL}
    s_and_b64 {sr(sVN)}, vcc, {sr(sMR)}
    """)

def wx_load(a):
    a(f"""
    s_mul_i32 s{sTMP}, s{sWB}, {ARS//16}
    v_add_u32 v{T1}, s{sTMP}, v{AWT}
    ds_read_b64_tr_b16 {vr(WX[0]+2,2)}, v{T1}
    ds_read_b64_tr_b16 {vr(WX[1]+2,2)}, v{T1} offset:64
    """)

def mads(src):
    return [f"v_mad_u32_u16 v{R8+2*i}, v{src+2*i}, s{sC128}, v{CDMA+i}" for i in range(4)]
def dma_ops():
    return [f"buffer_load_dwordx4 v{R8+2*i}, {sr(sWS,4)}, s{sBT} offen offset:{1024*i} lds" for i in range(4)]

class Body:
    def __init__(self):
        self.it = []
    def op(self, s): self.it.append(("op", s))
    def ds(self, s, tag=None): self.it.append(("ds", s, tag))
    def wait(self, tag): self.it.append(("wait", tag))
    def emit(self, a):
        if OPT.abl:
            import re
            rx = re.compile(OPT.abl)
            drop = lambda x: bool(rx.search(x[1] if x[0] != "wait" else "WAIT"))
            tags = {x[2] for x in self.it if x[0] == "ds" and drop(x)}
            self.it = [x for x in self.it if not drop(x) and not (x[0] == "wait" and x[1] in tags)]
        n = len(self.it)
        out = []
        real_a = a
        a = out.append
        for i, x in enumerate(self.it):
            if x[0] == "wait":
                cnt = 0; j = i - 1; found = False
                for _ in range(n):
                    y = self.it[j % n]
                    if y[0] == "ds":
                        if y[2] == x[1]:
                            found = True; break
                        cnt += 1
                    j -= 1
                assert found, x
                a(f"s_waitcnt lgkmcnt({min(cnt,15)})")
            else:
                a(x[1])
        k = 0
        while k < len(out):
            if k + 1 < len(out) and out[k].startswith("s_waitcnt") and out[k+1].startswith("s_waitcnt"):
                real_a(out[k] + " " + out[k+1].split()[1]); k += 2
            else:
                real_a(out[k]); k += 1

def unit_groups(b, u, pre, post):
    h = u % 2; ph = 1 - h
    ntile = (u + 1) // 2 % 2
    xx = XX if ntile == 0 else XX + 2
    wx = WX[ph] + 2 if ntile == 0 else WX[ph]
    mf = {0: mfma32(ACC[ph], S, M[ph], ACC[ph]),
          1: mfma32(D[ph], xx, wx, None),
          2: mfma32(ACC[ph], S + 4, M[ph] + 4, ACC[ph]),
          OPT.g0: mfma32(D[ph], X[ntile] + 8*ph, ID, D[ph]),
          OPT.g1: mfma32(D[ph], X[ntile] + 8*ph + 4, ID + 4, D[ph])}
    def put(lst):
        for x in lst:
            if isinstance(x, str): b.op(x)
            elif x[0] == "ds": b.ds(x[1], x[2] if len(x) > 2 else None)
            elif x[0] == "wait": b.wait(x[1])
    for g in range(8):
        put(pre.get(g, []))
        if g in mf: b.op(mf[g])
        p = g - 2; hh = h
        if p < 0: p += 8; hh = ph
        t = T + 2 * (p % 4)
        b.op(f"v_cvt_pk_bf16_f32 v{M[hh]+p}, v{t}, v{t+1}")
        t = T + 2 * (g % 4); y = D[h] + 2 * g
        b.op(f"v_exp_f32 v{t}, v{y}")
        b.op(f"v_exp_f32 v{t+1}, v{y+1}")
        p = g - 1; hh = h
        if p < 0: p += 8; hh = ph
        t2 = T + 2 * (p % 4); y2 = D[hh] + 2 * p
        b.op(f"v_rcp_f32 v{t2}, v{t2}")
        b.op(f"v_rcp_f32 v{t2+1}, v{t2+1}")
        b.op(f"v_pk_add_f32 {vr(t,2)}, {vr(t,2)}, 1.0 op_sel_hi:[1,0]")
        b.op(f"v_pk_mul_f32 {vr(t2,2)}, {vr(t2,2)}, {vr(y2,2)}")
        put(post.get(g, []))

def s_read(t):
    return [("ds", f"ds_read_b64_tr_b16 {vr(S+2*k,2)}, v{AS + 2*t + (k & 1)} offset:{2048*(k>>1)}", "S" if k == 3 else None) for k in range(4)]
def s_write():
    return [("ds", f"ds_write_b64 v{SAD}, {vr(DXY,2)}")]
def s_clear():
    return [("ds", f"ds_write_b64 v{SAD}, {vr(ZERO,2)}")]
def r_read(t, dst=None):
    d = R8 if dst is None else dst
    return [("ds", f"ds_read_b128 {vr(d,4)}, v{A4} offset:{LIST + 256*t}"),
            ("ds", f"ds_read_b128 {vr(d+4,4)}, v{A4} offset:{LIST + 256*t + 16}", "R")]
def x_read(t):
    o = ["s_waitcnt vmcnt(0)"]
    for k in range(4):
        o.append(("ds", f"ds_read_b128 {vr(X[t]+4*k,4)}, v{AX+k}", "X" if k == 3 else None))
    return o
def pos_load():
    return [f"v_mad_u32_u16 v{TA}, v{REC}, 8, 0",
            f"buffer_load_dwordx2 {vr(PS,2)}, v{TA}, {sr(sWS,4)}, s{sP8} offen"]
def geo_addr():
    return [("ds", f"ds_read_b128 {vr(PD,4)}, v{DL} offset:{POSD}", "P")]
def geo_lut():
    return [("ds", f"ds_read_b64 {vr(XX,2)}, v{REL} offset:{LUT}"),
            ("ds", f"ds_read_b64 {vr(XX+4,2)}, v{REL} offset:{LUT+8}", "L"),
            f"v_mov_b32 v{XX+3}, v{REC}"]
def geo_diff():
    return [f"v_dot2_f32_bf16 v{DX}, v{PS}, s{sM10}, v{PD}",
            f"v_dot2_f32_bf16 v{DX+1}, v{PS}, s{s0M1}, v{PD+1}",
            f"v_dot2_f32_bf16 v{DX+2}, v{PS+1}, s{sM10}, v{PD+2}"]
def geo_cvt():
    return [f"v_xor_b32 v{TA}, v{REL}, v{SROW}",
            f"v_cndmask_b32 v{SAD}, v{DUMMY}, v{TA}, {sr(sVN)}",
            f"v_cvt_pk_bf16_f32 v{DXY}, v{DX}, v{DX+1}",
            f"v_cvt_pk_bf16_f32 v{DXY+1}, v{DX+2}, 1.0"]
def geo_d2():
    return [f"v_dot2_f32_bf16 v{DD}, v{DXY+1}, v{DXY+1}, -1.0",
            f"v_dot2_f32_bf16 v{DD}, v{DXY}, v{DXY}, v{DD}"]
def geo_fin():
    return [f"v_cvt_pk_bf16_f32 v{XX+2}, v{DD}, v{DD}",
            f"v_permlane32_swap_b32 v{XX}, v{XX+4}",
            f"v_permlane32_swap_b32 v{XX+1}, v{XX+5}"]
def list_reads():
    return [f"v_add_u32 v{TA}, s{sPN8}, v{LANE8}",
            ("ds", f"ds_read_b64 {vr(REC,2)}, v{TA} offset:{LIST}", "E"),
            f"v_add_u32 v{A4}, s{sPN8}, v{G8}"] + r_read(0)
def advance():
    return [f"s_mov_b32 s{sNC}, s{sNX}",
            f"s_bcnt1_i32_b64 s{sNX}, {sr(sVN)}",
            f"s_lshl3_add_u32 s{sPN8}, s{sNX}, s{sPN8}"]
def plain(a, lst):
    for x in lst:
        a(x if isinstance(x, str) else x[1])

def gen_main_loop(a):
    b = Body()
    unit_groups(b, 0,
        pre={3: s_read(0),
             4: list_reads(),
             5: [f"s_cmp_lg_u32 s{sFFL}, 0", "s_cbranch_scc1 K2_FLUSH", "K2_FLUSH_RET:"],
             6: [("wait", "E")] + x_read(1) + pos_load(),
             7: [("wait", "R")] + mads(R8)},
        post={})
    unit_groups(b, 1,
        pre={0: [f"v_subrev_u32 v{REL}, s{sWB}, v{DL}",
                 f"v_cmp_gt_i32 {sr(sMR)}, s{sREM}, v{LANE8}",
                 f"v_cmp_gt_u32 vcc, s{sC128}, v{REL}"],
             1: [f"s_and_b64 {sr(sVN)}, vcc, {sr(sMR)}",
                 f"s_cmp_lg_u64 {sr(sVN)}, {sr(sMR)}",
                 "s_cbranch_scc1 K2_REBASE", "K2_REBASE_RET:"] + advance() + [("wait", "X")] + dma_ops(),
             2: geo_addr()},
        post={})
    unit_groups(b, 2,
        pre={0: ([f"s_cmp_eq_u32 s{sNX}, 0", "s_cbranch_scc1 K2_PRIO0", "K2_PRIO0_RET:"] if OPT.prio else []),
             2: [f"s_cmp_lg_u32 s{sFWX}, 0", "s_cbranch_scc1 K2_WXL", "K2_WXL_RET:"] + geo_lut(),
             3: s_read(1) + s_clear(),
             4: r_read(1) + geo_cvt(),
             5: s_write(),
             6: x_read(0) + [("wait", "L")] + geo_fin(),
             7: [("wait", "R")] + mads(R8)},
        post={2: ["s_waitcnt vmcnt(4)", ("wait", "P")] + geo_diff(),
              4: geo_d2()})
    unit_groups(b, 3,
        pre={1: [("wait", "X")] + dma_ops()},
        post={})
    a(".p2align 6")
    a.label("K2_LOOP")
    a(f"s_sub_u32 s{sREM}, s{sEND}, s{sPN8}")
    if OPT.prio:
        a(f"s_cmp_le_i32 s{sREM}, s{sTHR}\ns_cbranch_scc1 K2_PRIO\nK2_PRIO_RET:")
    b.emit(a)
    if OPT.abl:
        a("s_sub_u32 s67, s67, 1\ns_cmp_lg_u32 s67, 0\ns_cbranch_scc1 K2_LOOP")
    else:
        a(f"s_cmp_lg_u32 s{sNX}, 0\ns_cbranch_scc1 K2_LOOP")


def epi_reads(a):
    a(f"""
    s_lshr_b32 s{sTMP}, s3, 2
    s_lshl_b32 s{sTMP}, s{sTMP}, 13
    s_add_u32 s{sTMP}, s{sTMP}, {WHB}
    v_lshl_add_u32 v{TA}, v{LANE8}, 1, s{sTMP}
    """)
    for i in range(8):
        a(f"ds_read_b128 {vr(X[0]+4*i,4)}, v{TA} offset:{1024*i}")
    a(f"ds_read_b128 {vr(EW,4)}, v{EH}\nds_read_b128 {vr(EW+4,4)}, v{EH+1}")

def gen_phase1(a):
    CNT, PRE, RB = LIST, LIST + 1024, LIST + 2048
    ST = OPT.st
    WE = CH // 4
    DST = 8; SRC = 24; EA = 40; B4 = 48; RK = 64; PB = 80
    MSK = 76
    sPID = 43
    ZR = vr(ZERO, 4)
    a.label("gather_scatter__cheap_equivariant_egnn__graph_kernel")
    if OPT.stamps == 4: a("s_memrealtime s[94:95]")
    a(f"""
    s_cmp_ge_u32 s2, 256
    s_cbranch_scc1 K2_END
    s_load_dwordx2 {sr(sWS)}, s[0:1], 80
    v_readfirstlane_b32 s3, v0
    v_and_b32 v6, 63, v0
    s_mov_b32 s{sWS+2}, {WS_SRD}
    s_mov_b32 s{sWS+3}, 0x00020000
    s_lshr_b32 s3, s3, 6
    v_lshlrev_b32 v7, 4, v6
    s_mov_b32 s{sPID}, s2
    s_cmp_ge_u32 s3, 4
    s_cbranch_scc1 K1_TW
    s_load_dwordx2 s[8:9], s[0:1], 32
    s_load_dwordx2 s[16:17], s[0:1], 24
    s_load_dwordx2 s[4:5], s[0:1], 16
    v_lshlrev_b32 v2, 2, v0
    v_mov_b32 v{ZERO}, 0
    ds_write_b32 v2, v{ZERO} offset:{CNT}
    s_mov_b32 s10, {E*4}
    s_mov_b32 s11, 0x00020000
    s_mov_b64 s[18:19], s[10:11]
    s_mov_b32 s6, {E*2}
    s_mov_b32 s7, 0x00020000
    s_mul_i32 s44, s2, {CH}
    s_mul_i32 s45, s3, {WE}
    s_add_u32 s44, s44, s45
    s_lshl_b32 s46, s44, 2
    s_lshl_b32 s47, s44, 1
    s_sub_i32 s45, {E}, s44
    v_lshlrev_b32 v2, 2, v6
    v_lshlrev_b32 v5, 3, v6
    v_lshlrev_b32 v3, 1, v6
    s_waitcnt lgkmcnt(0)
    """)
    for j in range(3):
        a(f"buffer_load_dwordx4 {vr(DST+4*j,4)}, v7, s[8:11], s46 offen offset:{1024*j}")
    a(f"buffer_load_dword v{DST+12}, v2, s[8:11], s46 offen offset:3072")
    def ids():
        a(f"""
        s_lshr_b32 s{sROT}, s2, 3
        s_and_b32 s2, s2, 7
        s_lshl_b32 s2, s2, 5
        s_add_u32 s2, s2, s{sROT}
        s_add_u32 s62, s{sWS}, {EPO}
        s_addc_u32 s63, s{sWS+1}, 0
        s_load_dwordx2 s[70:71], s[62:63], 0
        s_load_dwordx2 {sr(sOUT)}, s[0:1], 64
        """)
        if OPT.warm:
            a(f"""
            v_lshrrev_b32 v112, 2, v0
            v_lshlrev_b32 v112, 5, v112
            s_lshr_b32 s62, s2, 2
            s_mul_i32 s62, s62, {OGS}
            s_add_u32 s62, s62, {OFFT}
            buffer_load_dword v113, v112, {sr(sWS,4)}, s62 offen sc1
            s_add_u32 s62, s62, 4096
            buffer_load_dword v113, v112, {sr(sWS,4)}, s62 offen sc1
            """)
        if OPT.stamps:
            a(f"s_lshl_b32 s66, s2, 4\ns_add_u32 s66, s66, s3\ns_lshl_b32 s66, s66, 6\ns_add_u32 s66, s66, {DBG_WS}")
        stamp(a, 1, 0); stamp(a, 1, 14, True)
        if OPT.stamps == 4:
            a("v_mov_b32 v252, s94\ns_mov_b64 s[64:65], exec\ns_mov_b64 exec, 1\nbuffer_store_dword v252, v253, s[12:15], 0 offen offset:32\ns_mov_b64 exec, s[64:65]")
    ids()
    nst0 = (2 if OPT.stamps else 0) + (2 if OPT.warm else 0)
    a(f"""
    v_cmp_gt_i32 {sr(MSK)}, s45, v2
    s_sub_i32 s48, s45, 256
    v_cmp_gt_i32 {sr(MSK+2)}, s48, v2
    s_sub_i32 s48, s45, 512
    v_cmp_gt_i32 {sr(MSK+4)}, s48, v2
    s_sub_i32 s48, s45, 768
    s_min_i32 s48, s48, 16
    v_cmp_gt_i32 {sr(MSK+6)}, s48, v6
    s_movk_i32 s50, {-NPB}
    v_mov_b32 v4, 1
    s_barrier
    """)
    def src_loads():
        for j in range(3):
            a(f"buffer_load_dwordx4 {vr(SRC+4*j,4)}, v7, s[16:19], s46 offen offset:{1024*j}")
            a(f"buffer_load_dwordx2 {vr(EA+2*j,2)}, v5, s[4:7], s47 offen offset:{512*j}")
        a(f"buffer_load_dword v{SRC+12}, v2, s[16:19], s46 offen offset:3072")
        a(f"buffer_load_ushort v{EA+6}, v3, s[4:7], s47 offen offset:1536")
    if not OPT.hfirst: src_loads()
    a(f"""
    v_mov_b32 v{ZERO+1}, 0
    v_mov_b32 v{ZERO+2}, 0
    v_mov_b32 v{ZERO+3}, 0
    s_lshl_b32 s48, s3, 12
    s_add_u32 s48, s48, {SB}
    v_add_u32 v106, s48, v7
    """)
    for i in range(4):
        a(f"ds_write_b128 v106, {ZR} offset:{1024*i}")
    if OPT.hfirst == 2: a('s_barrier')
    if OPT.hfirst: src_loads()
    nst = 0
    for j in range(4):
        a(f"s_mov_b64 exec, {sr(MSK+2*j)}\ns_waitcnt vmcnt({11 - j + nst + nst0})")
        if OPT.stamps == 1 and j in (0, 3):
            stamp(a, 1, 7 if j == 0 else 8); nst += 1
        for k in range(4 if j < 3 else 1):
            s = 4*j + k
            a(f"""
            v_mul_u32_u24 v{B4+s}, 21400, v{DST+s}
            v_lshrrev_b32 v{B4+s}, 20, v{B4+s}
            v_mad_i32_i24 v{DST+s}, v{B4+s}, s50, v{DST+s}
            v_lshlrev_b32 v{B4+s}, 2, v{B4+s}
            ds_add_rtn_u32 v{RK+s}, v{B4+s}, v4 offset:{CNT}
            """)
    a(f"""
    s_mov_b64 exec, -1
    s_mov_b32 s51, 0xffff0000
    s_waitcnt lgkmcnt(0)
    s_barrier
    """)
    stamp(a, 1, 1)
    a(f"""
    ds_read_b128 v[96:99], v7 offset:{CNT}
    s_waitcnt lgkmcnt(0)
    v_add_u32 v97, v96, v97
    v_add_u32 v98, v97, v98
    v_add_u32 v99, v98, v99
    v_mov_b32 v100, v99
    """)
    wave_scan(a, 100)
    a(f"""
    v_sub_u32 v102, v100, v99
    v_add_u32 v103, v102, v96
    v_add_u32 v104, v102, v97
    v_add_u32 v105, v102, v98
    ds_write_b128 v7, v[102:105] offset:{PRE}
    """)
    for s in range(13):
        a(f"ds_read_b32 v{PB+s}, v{B4+s} offset:{PRE}")
    a("s_waitcnt lgkmcnt(0)")
    stamp(a, 1, 10)
    for j in range(4):
        a(f"s_mov_b64 exec, {sr(MSK+2*j)}")
        for k in range(4 if j < 3 else 1):
            s = 4*j + k
            a(f"""
            v_add_u32 v{PB+s}, v{PB+s}, v{RK+s}
            ds_write_b8 v{PB+s}, v{DST+s} offset:{RB + L_OFF}
            v_lshlrev_b32 v{RK+s}, 2, v{PB+s}
            """)
    stamp(a, 1, 9)
    nl = (5 if OPT.stamps == 1 else 0)
    for j in range(4):
        a(f"s_mov_b64 exec, {sr(MSK+2*j)}\ns_waitcnt vmcnt({6 - 2*j + nl})")
        if j < 3:
            for k in range(4):
                op = (f"v_lshl_or_b32 v{SRC+4*j+k}, v{EA+2*j+(k>>1)}, 16, v{SRC+4*j+k}" if k % 2 == 0
                      else f"v_and_or_b32 v{SRC+4*j+k}, v{EA+2*j+(k>>1)}, s51, v{SRC+4*j+k}")
                a(op + f"\nds_write_b32 v{RK+4*j+k}, v{SRC+4*j+k} offset:{RB}")
        else:
            a(f"v_lshl_or_b32 v{SRC+12}, v{EA+6}, 16, v{SRC+12}\nds_write_b32 v{RK+12}, v{SRC+12} offset:{RB}")
    a("s_mov_b64 exec, -1")
    stamp(a, 1, 11)
    def copy_out():
        a(f"""
        v_lshlrev_b32 v4, 4, v0
        v_cmp_gt_u32 vcc, {RL_END//16 - 512}, v0
        s_mul_i32 s49, s{sPID}, {PSTR}
        s_add_u32 s48, s49, 8192
        s_waitcnt lgkmcnt(0)
        s_barrier
        """)
        stamp(a, 1, 2)
        a(f"""
        ds_read_b128 v[108:111], v4 offset:{RB}
        ds_read_b128 {vr(FL,4)}, v4 offset:{RB + 8192}
        s_waitcnt lgkmcnt(1)
        buffer_store_dwordx4 v[108:111], v4, {sr(sWS,4)}, s49 offen{ST}
        s_mov_b64 exec, vcc
        s_waitcnt lgkmcnt(0)
        buffer_store_dwordx4 {vr(FL,4)}, v4, {sr(sWS,4)}, s48 offen{ST}
        s_mov_b64 exec, -1
        """)
    copy_out()
    a("v_mov_b32 v8, v6")
    lane_consts(a, CB, 8)
    a("s_mov_b32 s92, 0\ns_branch K1_JOIN")
    HF = 16; WFR = 32; DD_ = 64
    a(f"""
    K1_TW:
    s_load_dwordx2 s[8:9], s[0:1], 40
    s_load_dwordx2 {sr(sH)}, s[0:1], 0
    s_load_dwordx2 s[16:17], s[0:1], 8
    s_load_dwordx2 s[4:5], s[0:1], 56
    s_mov_b32 s10, {130*128}
    s_mov_b32 s11, 0x00020000
    s_mov_b32 s{sH+2}, {N*128}
    s_mov_b32 s{sH+3}, 0x00020000
    s_mov_b32 s6, {128*128}
    s_mov_b32 s7, 0x00020000
    s_and_b32 s61, s3, 1
    s_bfe_u32 s60, s3, 0x10001
    s_lshl_b32 s57, s3, 13
    s_add_u32 s57, s57, {STG - 4*8192}
    v_and_b32 v9, 48, v6
    v_xor_b32 v9, v9, v7
    v_xor_b32 v10, 64, v9
    v_lshrrev_b32 v11, 2, v6
    v_and_b32 v12, 3, v6
    v_lshlrev_b32 v12, 4, v12
    v_lshl_add_u32 v11, v11, 7, v12
    v_mov_b32 v{ZERO}, 0
    v_mov_b32 v{ZERO+1}, 0
    v_mov_b32 v{ZERO+2}, 0
    v_mov_b32 v{ZERO+3}, 0
    s_waitcnt lgkmcnt(0)
    """)
    ids()
    a(f"""
    s_mul_i32 s{sNB}, s2, {NPB}
    s_lshl_b32 s56, s60, 5
    s_add_u32 s56, s56, s{sNB}
    s_lshl_b32 s56, s56, 7
    s_lshl_b32 s58, s60, 12
    s_add_u32 m0, s58, {HRB}
    s_lshl_b32 s59, s61, 6
    s_add_u32 s55, s59, {64*128}
    s_barrier
    """)
    for i in range(4):
        a(f"buffer_load_dwordx4 v{9 + (i & 1)}, {sr(sH,4)}, s56 offen offset:{1024*i} lds")
    a(f"s_mov_b32 m0, s57\ns_mov_b32 s18, {N*6}")
    for i in range(4):
        a(f"buffer_load_dwordx4 v11, s[8:11], s55 offen offset:{1024*i} lds")
        if i < 3: a("s_add_u32 s55, s55, 1024")
    a(f"""
    s_mov_b32 s19, 0x00020000
    s_cmp_lg_u32 s3, 7
    s_cbranch_scc1 K1_NOP8
    v_add_u32 v100, s{sNB}, v6
    v_mul_u32_u24 v101, 6, v100
    buffer_load_ushort v102, v101, s[16:19], 0 offen
    buffer_load_ushort v104, v101, s[16:19], 0 offen offset:2
    buffer_load_ushort v103, v101, s[16:19], 0 offen offset:4
    K1_NOP8:
    {'s_barrier' if OPT.hfirst == 2 else ''}
    v_lshlrev_b32 v106, 4, v0
    v_add_u32 v106, {ACCM - 4096}, v106
    """)
    nz = (SB - ACCM) // 4096
    for i in range(nz):
        a(f"ds_write_b128 v106, {ZR} offset:{4096*i}")
    a(f"""
    v_cmp_gt_u32 vcc, {256 + (SB - ACCM - 4096*nz) // 16}, v0
    s_and_saveexec_b64 s[44:45], vcc
    ds_write_b128 v106, {ZR} offset:{4096*nz}
    s_mov_b64 exec, -1
    """)
    def tw_consts():
        a(f"""
        {'' if OPT.tbe == 2 else 's_barrier'}
        v_mov_b32 v80, v6
        """)
        lane_consts(a, CB, 80)
        a(f"""
        s_cmp_lg_u32 s3, 4
        s_cbranch_scc1 K1_NOLOW
        ds_write_b128 v7, {ZR}
        ds_write_b128 v7, {ZR} offset:1024
        ds_write_b128 v7, {ZR} offset:2048
        s_mov_b64 exec, 0xff
        ds_write_b32 v{LUA}, v{LUV} offset:{LUT}
        s_mov_b64 exec, -1
        K1_NOLOW:
        """)
    if not OPT.tbe: tw_consts()
    a(f"""
    v_lshrrev_b32 v8, 5, v6
    v_and_b32 v9, 31, v6
    v_bfe_u32 v12, v6, 2, 2
    v_lshl_add_u32 v12, v8, 3, v12
    v_lshlrev_b32 v12, 6, v12
    v_bfe_u32 v13, v6, 4, 1
    v_lshl_add_u32 v12, v13, 5, v12
    v_and_b32 v13, 3, v6
    v_lshl_add_u32 v12, v13, 3, v12
    v_add_u32 v12, s57, v12
    v_bfe_u32 v10, v6, 1, 3
    v_xor_b32 v10, v10, v8
    s_lshl_b32 s58, s60, 12
    s_add_u32 s58, s58, {HRB}
    v_lshlrev_b32 v14, 7, v9
    v_add_u32 v14, s58, v14
    """)
    for s in range(4):
        a(f"v_xor_b32 v{96+s}, {2*s}, v10\nv_lshl_add_u32 v{96+s}, v{96+s}, 4, v14")
    a(f"""
    v_mul_u32_u24 v13, 80, v9
    v_lshl_add_u32 v13, v8, 3, v13
    v_add_u32 v13, s57, v13
    v_lshrrev_b32 v14, 2, v6
    v_mul_u32_u24 v15, 80, v14
    v_and_b32 v14, 3, v6
    v_lshl_add_u32 v15, v14, 4, v15
    v_add_u32 v15, s57, v15
    s_mov_b32 s55, {f32(-L2E)}
    s_lshl_b32 s59, s61, 6
    s_add_u32 s56, s56, {BTAB}
    s_add_u32 s56, s56, s59
    {'s_barrier' if OPT.tbe == 2 else ''}
    s_waitcnt vmcnt(0)
    {'s_setprio 3' if OPT.twprio else ''}
    """)
    stamp(a, 1, 5)
    for s in range(4):
        a(f"ds_read_b128 {vr(HF+4*s,4)}, v{96+s}")
        for jj in range(2):
            a(f"ds_read_b64_tr_b16 {vr(WFR+4*s+2*jj,2)}, v12 offset:{(16*s+4*jj)*64}")
    for s in range(4):
        a(f"s_waitcnt lgkmcnt({9 - 3*s})")
        a(mfma32(DD_, WFR+4*s, HF+4*s, None if s == 0 else DD_))
    stamp(a, 1, 6)
    if OPT.tb2 == 0: copy_out()
    else: a("s_nop 11")
    def scale_cvt(q, base):
        for r in range(4):
            a(f"v_mul_f32 v{base+4*q+r}, s55, v{base+4*q+r}")
        a(f"v_cvt_pk_bf16_f32 v{base+4*q}, v{base+4*q}, v{base+4*q+1}\nv_cvt_pk_bf16_f32 v{base+4*q+1}, v{base+4*q+2}, v{base+4*q+3}")
    for q in range(4):
        scale_cvt(q, DD_)
        a(f"ds_write_b64 v13, {vr(DD_+4*q,2)} offset:{16*q}")
    a(f"""
    ds_read_b128 {vr(WFR,4)}, v15
    ds_read_b128 {vr(WFR+4,4)}, v15 offset:{16*80}
    s_cmp_lg_u32 s60, 0
    s_waitcnt lgkmcnt(1)
    buffer_store_dwordx4 {vr(WFR,4)}, v11, {sr(sWS,4)}, s56 offen{ST}
    s_cselect_b64 exec, 15, -1
    s_waitcnt lgkmcnt(0)
    buffer_store_dwordx4 {vr(WFR+4,4)}, v11, {sr(sWS,4)}, s56 offen offset:2048{ST}
    s_mov_b64 exec, -1
    s_cmp_lg_u32 s3, 7
    s_cbranch_scc1 K1_NOP8S
    v_lshlrev_b32 v108, 16, v102
    v_lshlrev_b32 v109, 16, v104
    v_lshlrev_b32 v110, 16, v103
    ds_write_b128 v7, v[108:111] offset:{POSD}
    v_lshl_or_b32 v102, v104, 16, v102
    v_lshlrev_b32 v100, 3, v100
    s_mov_b32 s58, {P8}
    v_cmp_gt_u32 vcc, {NPB}, v6
    s_and_b64 exec, exec, vcc
    buffer_store_dwordx2 v[102:103], v100, {sr(sWS,4)}, s58 offen{ST}
    s_mov_b64 exec, -1
    K1_NOP8S:
    """)
    stamp(a, 1, 4)
    if OPT.tbe:
        if OPT.twprio: a("s_setprio 0")
        tw_consts()
    if OPT.tb2 != 0: copy_out()
    a(f"""
    {'s_setprio 0' if OPT.twprio else ''}
    s_mov_b32 s92, 1
    s_mov_b32 s47, s57
    """)
    a(f"""
    K1_JOIN:
    s_load_dwordx2 s[84:85], s[0:1], 40
    s_load_dwordx2 s[88:89], s[0:1], 48
    s_mov_b32 s86, {130*128}
    s_mov_b32 s87, 0x00020000
    s_mov_b32 s90, 128
    s_mov_b32 s91, 0x00020000
    v_and_b32 v107, 31, v6
    v_lshlrev_b32 v107, 1, v107
    s_movk_i32 s93, {128*128}
    s_mul_i32 s{sNB}, s2, {NPB}
    s_lshl_b32 s{sW10}, s3, 10
    s_sub_u32 s{sNN}, {N}, s{sNB}
    s_min_u32 s{sNN}, s{sNN}, {NPB}
    s_mov_b32 s{sOUT+2}, {N*134}
    s_mov_b32 s{sOUT+3}, 0x00020000
    s_movk_i32 s{sC128}, 128
    s_mov_b32 s{sM10}, 0x0000bf80
    s_mov_b32 s{s0M1}, 0xbf800000
    s_mov_b32 s{sP8}, {P8}
    s_mov_b32 s{sBT}, {BTAB - 3072}
    s_mov_b32 s{sQ}, 32
    s_mov_b32 s{sFIRST}, 1
    s_mov_b32 s{sPM}, 0x13131313
    s_mov_b32 s{sPM+1}, 0x13131313
    s_mov_b32 s{sCM}, 0x02020202
    s_mov_b32 s{sCM+1}, 0x02020202
    s_add_u32 s{sTOK+1}, s70, 1
    s_addc_u32 s{sTOK+2}, s71, 0
    s_and_b32 s{sTMP}, s{sTOK+2}, 15
    s_bfe_u32 s{sTMP+1}, s{sTOK+2}, 0x40004
    s_lshl_b32 s{sTMP}, s{sTMP}, 12
    s_lshl_b32 s{sTMP+1}, s{sTMP+1}, 28
    s_or_b32 s{sTOK}, s{sTMP}, s{sTMP+1}
    v_and_b32 v{J4}, 3, v0
    v_lshlrev_b32 v{J4}, 2, v{J4}
    v_lshrrev_b32 v2, 2, v0
    v_mul_u32_u24 v1, {PSTR}, v2
    """)
    if OPT.og == 2:
        a(f"""
        v_lshlrev_b32 v2, 4, v2
        s_lshr_b32 s62, s2, 1
        s_mul_i32 s62, s62, 4224
        s_and_b32 s63, s2, 1
        s_lshl3_add_u32 s62, s63, s62
        s_add_u32 s62, s62, {OFFT}
        s_add_u32 s63, s62, 2048
        """)
    elif OPT.og:
        a(f"""
        v_lshlrev_b32 v2, 5, v2
        s_lshr_b32 s62, s2, 2
        s_mul_i32 s62, s62, {OGS}
        s_and_b32 s63, s2, 3
        s_lshl3_add_u32 s62, s63, s62
        s_add_u32 s62, s62, {OFFT}
        s_add_u32 s63, s62, 4096
        """)
    else:
        a(f"""
        v_mul_u32_u24 v2, {OSTR}, v2
        s_lshl3_add_u32 s62, s2, {OFFT}
        s_add_u32 s63, s62, {128*OSTR}
        """)
    a(f"""
    s_cmp_lg_u32 s3, 0
    s_cbranch_scc1 K1_NOOFF
    v_lshl_or_b32 v16, v103, 16, v102
    v_lshl_or_b32 v18, v104, 16, v103
    v_lshl_or_b32 v20, v105, 16, v104
    v_lshl_or_b32 v22, v100, 16, v105
    v_or_b32 v16, s{sTOK}, v16
    v_or_b32 v18, s{sTOK}, v18
    v_or_b32 v20, s{sTOK}, v20
    v_or_b32 v22, s{sTOK}, v22
    v_mov_b32 v17, s{sTOK+1}
    v_mov_b32 v19, s{sTOK+1}
    v_mov_b32 v21, s{sTOK+1}
    v_mov_b32 v23, s{sTOK+1}
    s_mul_i32 s48, s{sPID}, {[OSTR, 32, 16][OPT.og]}
    s_add_u32 s48, s48, {OFFT}
    {['v_lshlrev_b32 v4, 1, v7', f'v_mul_u32_u24 v4, {OGS}, v6', 'v_mul_u32_u24 v4, 8448, v6'][OPT.og]}
    s_add_u32 s{sTMP+3}, s48, {4224 if OPT.og == 2 else 16}
    s_waitcnt vmcnt(0) lgkmcnt(0)
    s_barrier
    buffer_store_dwordx4 v[16:19], v4, {sr(sWS,4)}, s48 offen sc1
    buffer_store_dwordx4 v[20:23], v4, {sr(sWS,4)}, s{sTMP+3} offen sc1
    s_branch K1_PUB
    K1_NOOFF:
    s_waitcnt vmcnt(0) lgkmcnt(0)
    s_barrier
    K1_PUB:
    """)
    stamp(a, 1, 3); stamp(a, 1, 15, True)
    if OPT.stamps:
        a(f"s_add_u32 s66, s66, {256*16*64}")
    stamp(a, 2, 0); stamp(a, 2, 14, True)
    a(f"""
    buffer_load_ushort v{XX}, v107, s[84:87], s93 offen
    buffer_load_ushort v{XX+1}, v107, s[84:87], s93 offen offset:128
    buffer_load_ushort v{XX+2}, v107, s[84:87], s93 offen offset:64
    buffer_load_ushort v{XX+3}, v107, s[84:87], s93 offen offset:192
    buffer_load_ushort v{WXS[0]}, v107, s[88:91], 0 offen
    buffer_load_ushort v{WXS[1]}, v107, s[88:91], 0 offen offset:64
    s_cmp_eq_u32 s92, 0
    s_cbranch_scc1 K1_NOAJ
    s_add_u32 m0, s47, 4096
    s_mov_b32 s48, s59
    """)
    for i in range(4):
        a(f"buffer_load_dwordx4 v11, s[8:11], s48 offen offset:{1024*i} lds")
        if i < 3: a("s_add_u32 s48, s48, 1024")
    a(f"""
    s_lshl_b32 s48, s3, 12
    s_add_u32 m0, s48, {SB}
    s_sub_u32 s48, s48, 16384
    """)
    for i in range(4):
        a(f"buffer_load_dwordx4 v7, s[4:7], s48 offen offset:{1024*i} lds")
    a(f"""
    K1_NOAJ:
    """)
    a(f"""
    s_mov_b32 s{sTMP}, 0xf000f000
    s_mov_b32 s{sTMP+1}, {1 << 20}
    {'s_barrier' if OPT.pbar else ''}
    {f's_sleep {OPT.slp0}' if OPT.slp0 else ''}
    """)
    if OPT.pre:
        a(f"""
        s_and_b32 s44, s{sROT}, 15
        s_lshl4_add_u32 s44, s3, s44
        s_lshr_b32 s45, s{sROT}, 4
        s_lshl_b32 s45, s45, 7
        s_add_u32 s44, s44, s45
        s_lshl_b32 s45, s44, 5
        v_mov_b32 v{T1}, s45
        s_and_b32 s45, s44, 7
        s_lshl_b32 s45, s45, 5
        s_lshr_b32 s44, s44, 3
        s_add_u32 s44, s44, s45
        s_mul_i32 s44, s44, {NPB*128}
        s_add_u32 s44, s44, {BTAB}
        v_lshlrev_b32 v{TCH}, 4, v{LANE8}
        s_mov_b64 exec, 1
        K1_PRE:
        buffer_load_dwordx2 v[164:165], v{T1}, {sr(sWS,4)}, s62 offen sc1
        s_sub_u32 s{sTMP+1}, s{sTMP+1}, 1
        s_cbranch_scc1 K1_PRED
        s_waitcnt vmcnt(0)
        v_and_b32 v164, s{sTMP}, v164
        v_cmp_ne_u64 vcc, {sr(sTOK)}, v[164:165]
        s_cbranch_vccz K1_PREOK
        s_sleep {OPT.pre}
        s_branch K1_PRE
        K1_PREOK:
        s_mov_b32 exec_lo, -1
        s_mov_b32 exec_hi, 0x1ffff
        buffer_load_dword v{FL+17}, v{TCH}, {sr(sWS,4)}, s44 offen
        K1_PRED:
        s_mov_b64 exec, -1
        """)
    if OPT.gate:
        a(f"""
        s_cmp_lg_u32 s3, 7
        s_cbranch_scc1 K1_GATED
        K1_GATE:
        buffer_load_dwordx2 v[164:165], v2, {sr(sWS,4)}, s63 offen sc1
        s_sub_u32 s{sTMP+1}, s{sTMP+1}, 1
        s_cbranch_scc1 K1_GATED
        s_waitcnt vmcnt(0)
        v_cmp_ne_u32 vcc, s{sTOK+1}, v165
        s_cbranch_vccz K1_GATED
        s_sleep {OPT.gate}
        s_branch K1_GATE
        K1_GATED:
        s_barrier
        """)
    a(f"""
    K1_POLL:
    buffer_load_dwordx2 v[162:163], v2, {sr(sWS,4)}, s62 offen sc1
    buffer_load_dwordx2 v[164:165], v2, {sr(sWS,4)}, s63 offen sc1
    s_sub_u32 s{sTMP+1}, s{sTMP+1}, 1
    s_cbranch_scc1 K1_GOT
    s_waitcnt vmcnt(0)
    v_and_b32 v166, s{sTMP}, v162
    v_mov_b32 v167, v163
    v_and_b32 v168, s{sTMP}, v164
    v_mov_b32 v169, v165
    v_cmp_ne_u64 vcc, {sr(sTOK)}, v[166:167]
    v_cmp_ne_u64 {sr(sTMP+2)}, {sr(sTOK)}, v[168:169]
    s_or_b64 exec, vcc, {sr(sTMP+2)}
    s_cbranch_execz K1_GOT
    s_sleep {OPT.slp}
    s_branch K1_POLL
    K1_GOT:
    s_mov_b64 exec, -1
    s_not_b32 s{sTMP}, s{sTMP}
    s_waitcnt vmcnt(0)
    v_and_b32 v{OFFV[0]}, s{sTMP}, v162
    v_and_b32 v{OFFV[1]}, s{sTMP}, v164
    v_add_u32_sdwa v{START[0]}, v{J4}, v{OFFV[0]} dst_sel:DWORD dst_unused:UNUSED_PAD src0_sel:DWORD src1_sel:WORD_0
    v_add_u32_sdwa v{START[1]}, v{J4}, v{OFFV[1]} dst_sel:DWORD dst_unused:UNUSED_PAD src0_sel:DWORD src1_sel:WORD_0
    """)

def gen_k2(a):
    tmp = D[0]
    L4 = tmp + 79; QJ = FL + 5
    stamp(a, 2, 1)
    RECS = tmp; LW = tmp + 16; DLS = tmp + 24; RK = tmp + 40; BS = tmp + 56
    AR = tmp + 72; AL = tmp + 73; ONE = tmp + 74; PV = tmp + 75
    AR2 = [AR, FL]; AL2 = [AL, FL + 1]; REM = [FL + 3, FL + 4]
    a.label("K2_ROUND")
    a(f"""
    s_mov_b32 s{sTMP}, {128*PSTR}
    s_movk_i32 s{sTMP+1}, {L_OFF}
    s_mov_b32 s{sTMP+2}, {128*PSTR + L_OFF}
    """)
    for x in range(2):
        a(f"""
        v_lshl_add_u32 v{AR2[x]}, v{START[x]}, 2, v1
        v_add_u32 v{AL2[x]}, v{START[x]}, v1
        buffer_load_dwordx4 {vr(RECS+8*x,4)}, v{AR2[x]}, {sr(sWS,4)}, {'s%d' % sTMP if x else 0} offen
        v_and_b32 v{AL2[x]}, -4, v{AL2[x]}
        buffer_load_dwordx2 {vr(LW+4*x,2)}, v{AL2[x]}, {sr(sWS,4)}, s{sTMP+1+x} offen
        """)
    a(f"v_sub_u32 v{QJ}, s{sQ}, v{J4}")
    for x in range(2):
        a(f"""
        v_sub_u32_sdwa v{REM[x]}, v{OFFV[x]}, v{START[x]} dst_sel:DWORD dst_unused:UNUSED_PAD src0_sel:WORD_1 src1_sel:DWORD
        s_nop 0
        v_cmp_gt_i32 {sr(sF0+2*x)}, v{REM[x]}, v{QJ}
        v_min_i32 v{REM[x]}, v{REM[x]}, v{QJ}
        v_cmp_lt_i32 vcc, 16, v{REM[x]}
        s_or_b64 exec, vcc, 1
        buffer_load_dwordx4 {vr(RECS+8*x+4,4)}, v{AR2[x]}, {sr(sWS,4)}, {'s%d' % sTMP if x else 0} offen offset:64
        buffer_load_dwordx2 {vr(LW+4*x+2,2)}, v{AL2[x]}, {sr(sWS,4)}, s{sTMP+1+x} offen offset:16
        s_mov_b64 exec, -1
        """)
    ntouch = 1 if OPT.touch else 0
    a(f"""
    v_mov_b32 v{ONE}, 1
    v_lshrrev_b32 v{L4}, 1, v{LANE8}
    s_cmp_eq_u32 s{sFIRST}, 0
    s_cbranch_scc1 K2_NOTFIRST
    {'s_barrier' if OPT.tpos == 1 else ''}
    """)
    HF = 16; WFR = S; DD_ = R8; ZR = vr(ZERO, 4)
    a("s_cmp_eq_u32 s92, 0\ns_cbranch_scc1 K2_NOAJ")
    for s in range(4):
        for jj in range(2):
            a(f"ds_read_b64_tr_b16 {vr(WFR+4*s+2*jj,2)}, v12 offset:{4096 + (16*s+4*jj)*64}")
    a(f"""
    v_lshrrev_b32 v14, 4, v6
    v_bfe_u32 v15, v6, 2, 2
    v_lshl_add_u32 v14, v14, 3, v15
    v_and_b32 v15, 3, v6
    v_lshlrev_b32 v15, 4, v15
    v_lshl_add_u32 v14, v14, 7, v15
    s_lshl_b32 s44, s3, 12
    s_add_u32 s44, s44, {SB}
    v_add_u32 v14, s44, v14
    s_lshl_b32 s48, s3, 10
    s_add_u32 s48, s48, {WHB - 4096}
    v_add_u32 v15, s48, v7
    """)
    def whr(c):
        for jj in range(2):
            a(f"ds_read_b64_tr_b16 {vr(EW+4*(c & 1)+2*jj,2)}, v14 offset:{512*jj + 64*(c >> 1) + 8*(c & 1)}")
    whr(0); whr(1)
    for s in range(4):
        a(f"s_waitcnt lgkmcnt({10 - 2*s})")
        a(mfma32(DD_, WFR+4*s, HF+4*s, None if s == 0 else DD_))
    a(f"""
    s_lshl_b32 s48, s60, 5
    v_add_u32 v9, s48, v9
    v_mul_u32_u24 v13, {ARS}, v9
    v_lshl_add_u32 v13, v8, 3, v13
    s_lshl_b32 s48, s61, 6
    v_add_u32 v13, s48, v13
    s_mov_b32 s55, {f32(-L2E)}
    s_waitcnt lgkmcnt(0)
    ds_write_b128 v15, {vr(EW,4)}
    ds_write_b128 v15, {vr(EW+4,4)} offset:4096
    """)
    whr(2); whr(3)
    a(f"v_add_u32 v14, s44, v7")
    for q in range(4):
        for r in range(4):
            a(f"v_mul_f32 v{DD_+4*q+r}, s55, v{DD_+4*q+r}")
        a(f"v_cvt_pk_bf16_f32 v{DD_+4*q}, v{DD_+4*q}, v{DD_+4*q+1}\nv_cvt_pk_bf16_f32 v{DD_+4*q+1}, v{DD_+4*q+2}, v{DD_+4*q+3}")
        a(f"ds_write_b64 v13, {vr(DD_+4*q,2)} offset:{AT + 16*q}")
    a(f"""
    s_waitcnt lgkmcnt(4)
    ds_write_b128 v15, {vr(EW,4)} offset:8192
    ds_write_b128 v15, {vr(EW+4,4)} offset:12288
    """)
    for i in range(4):
        a(f"ds_write_b128 v14, {ZR} offset:{1024*i}")
    a("K2_NOAJ:")
    a(f"""
    v_cmp_gt_u32 vcc, 32, v6
    s_mov_b32 s48, {f32(-LN2)}
    s_mov_b32 s55, {f32(-L2E)}
    """)
    for h in range(2):
        wd, wa, o = XX + 2*h, XX + 1 + 2*h, WX[h]
        a(f"""
        v_lshlrev_b32 v{wd}, 16, v{wd}
        v_lshlrev_b32 v{wa}, 16, v{wa}
        v_mul_f32 v{wd}, s55, v{wd}
        v_mul_f32 v{wa}, s55, v{wa}
        v_cvt_pk_bf16_f32 v24, v{wd}, v{wd}
        v_lshlrev_b32 v24, 16, v24
        v_sub_f32 v25, v{wd}, v24
        v_cvt_pk_bf16_f32 v26, v24, v25
        v_cvt_pk_bf16_f32 v27, 0, v{wa}
        v_cndmask_b32 v{o}, v26, 0, vcc
        v_cndmask_b32 v{o+1}, v27, 0, vcc
        v_cndmask_b32 v{o+4}, 0, v26, vcc
        v_cndmask_b32 v{o+5}, 0, v27, vcc
        v_lshlrev_b32 v{WXS[h]}, 16, v{WXS[h]}
        v_mul_f32 v{WXS[h]}, s48, v{WXS[h]}
        """)
    if OPT.touch:
        a(f"""
        s_mul_i32 s{sTMP+1}, s{sROT}, {392*128}
        s_mul_i32 s{sTMP+2}, s3, {49*128}
        s_add_u32 s{sTMP+1}, s{sTMP+1}, s{sTMP+2}
        s_add_u32 s{sTMP+1}, s{sTMP+1}, {BTAB}
        v_lshlrev_b32 v{TCH}, 4, v{LANE8}
        v_add_u32 v{TCH}, s{sTMP+1}, v{TCH}
        s_lshl3_add_u32 s{sTMP+1}, s{sROT}, s3
        s_lshl_b32 s{sTMP+1}, s{sTMP+1}, 9
        s_add_u32 s{sTMP+1}, s{sTMP+1}, {P8 - 49*128}
        v_lshl_add_u32 v{T1}, v{LANE8}, 4, s{sTMP+1}
        v_cmp_gt_u32 vcc, {49*8}, v{LANE8}
        s_nop 1
        v_cndmask_b32 v{TCH}, v{T1}, v{TCH}, vcc
        """)
    a("s_waitcnt vmcnt(0)")
    if OPT.touch and OPT.tpos == 1:
        a(f"""
        s_mov_b32 exec_lo, {hex((1 << min(32, max(0, OPT.touch))) - 1)}
        s_mov_b32 exec_hi, {hex(((1 << max(0, OPT.touch - 32)) - 1) | (15 << 17))}
        buffer_load_dword v{TCH}, v{TCH}, {sr(sWS,4)}, 0 offen
        s_mov_b64 exec, -1
        """)
    a(f"""
    s_branch K2_COUNT
    K2_NOTFIRST:
    s_waitcnt lgkmcnt(0)
    s_barrier
    s_waitcnt vmcnt(0)
    K2_COUNT:
    """)
    stamp(a, 2, 2)
    a(f"""
    s_or_b64 vcc, {sr(sF0)}, {sr(sF0+2)}
    s_cbranch_scc0 K2_NOFLAG
    v_mov_b32 v{PV}, {FLAG}
    ds_write_b32 v{PV}, v{ONE}
    K2_NOFLAG:
    """)
    for x in range(2):
        for i in range(2):
            g = 2*x + i
            for k in range(4):
                s = 4*g + k
                a(f"v_cmpx_lt_i32 vcc, {16*i+k}, v{REM[x]}")
                if i == 1:
                    a(f"s_cbranch_execz K2_CNT_{x}")
                if k == 0:
                    a(f"v_alignbyte_b32 v{LW+2*g}, v{LW+2*g+1}, v{LW+2*g}, v{START[x]}")
                a(f"v_lshlrev_b32_sdwa v{DLS+s}, 2, v{LW+2*g} dst_sel:DWORD dst_unused:UNUSED_PAD src0_sel:DWORD src1_sel:BYTE_{k}")
                a(f"ds_add_rtn_u32 v{RK+s}, v{DLS+s}, v{ONE} offset:{CNT2}")
        a(f"K2_CNT_{x}:\ns_mov_b64 exec, -1")
    a(f"""
    v_mov_b32 v{AR}, {FLAG}
    s_movk_i32 s{sTMP}, {LIST}
    s_waitcnt lgkmcnt(0)
    s_barrier
    """)
    stamp(a, 2, 3)
    if OPT.touch and OPT.tpos == 0:
        a(f"""
        s_cmp_eq_u32 s{sFIRST}, 0
        s_cbranch_scc1 K2_NOTOUCH
        s_mov_b32 exec_lo, {hex((1 << min(32, max(0, OPT.touch))) - 1)}
        s_mov_b32 exec_hi, {hex(((1 << max(0, OPT.touch - 32)) - 1) | (15 << 17))}
        buffer_load_dword v{TCH}, v{TCH}, {sr(sWS,4)}, 0 offen
        s_mov_b64 exec, -1
        K2_NOTOUCH:
        """)
    a(f"""
    s_or_b32 s{sTMP+1}, s2, s3
    s_cbranch_scc0 K2_EPOCH
    K2_EPOCH_RET:
    """)
    a(f"""
    ds_read_b32 v{PV}, v{L4} offset:{CNT2}
    ds_read_b32 v{AL}, v{AR}
    s_waitcnt lgkmcnt(1)
    v_mov_b32 v{AR}, v{PV}
    """)
    wave_scan(a, AR)
    a(f"""
    v_sub_u32 v{PV}, v{AR}, v{PV}
    v_readlane_b32 s{sT}, v{AR}, 63
    v_lshl_add_u32 v{PV}, v{PV}, 3, s{sTMP}
    ds_write_b32 v{L4}, v{PV} offset:{PRE2}
    """)
    for x in range(2):
        for k in range(4):
            s = 8*x + k
            a(f"ds_read_b32 v{BS+s}, v{DLS+s} offset:{PRE2}")
    for x in range(2):
        a(f"v_cmpx_lt_i32 vcc, 16, v{REM[x]}\ns_cbranch_execz K2_SR_{x}")
        for k in range(4):
            s = 8*x + 4 + k
            a(f"ds_read_b32 v{BS+s}, v{DLS+s} offset:{PRE2}")
        a(f"K2_SR_{x}:\ns_mov_b64 exec, -1")
    a(f"""
    s_cmp_gt_u32 s{sT}, {CAP}
    s_cbranch_scc1 K2_OVER
    s_add_u32 s{sTMP+4}, s{sT}, {31 if OPT.half else 63}
    s_lshr_b32 s{sTMP+4}, s{sTMP+4}, {5 if OPT.half else 6}
    s_lshr_b32 s{sTMP+1}, s{sTMP+4}, 3
    s_and_b32 s{sTMP+2}, s{sTMP+4}, 7
    s_mul_i32 s{sPN8}, s3, s{sTMP+1}
    s_min_u32 s{sTMP+3}, s3, s{sTMP+2}
    s_add_u32 s{sPN8}, s{sPN8}, s{sTMP+3}
    s_cmp_lt_u32 s3, s{sTMP+2}
    s_addc_u32 s{sTMP+1}, s{sTMP+1}, s{sPN8}
    s_lshl_b32 s{sPN8}, s{sPN8}, {8 if OPT.half else 9}
    s_lshl_b32 s{sEND}, s{sTMP+1}, {8 if OPT.half else 9}
    s_lshl_b32 s{sT}, s{sT}, 3
    s_min_u32 s{sEND}, s{sEND}, s{sT}
    s_lshl2_add_u32 m0, s{sW10}, {STG}
    s_mov_b64 {sr(sFWX)}, 0
    s_movk_i32 s{sTHR}, {512*OPT.prio}
    s_cmp_lg_u32 s3, 0
    s_cbranch_scc1 K2_NOPAD
    v_add_u32 v{AR}, s{sT}, v{LANE8}
    v_mov_b32 v{FL+6}, 0
    v_mov_b32 v{FL+7}, {16*NPB}
    ds_write_b64 v{AR}, {vr(FL+6,2)} offset:{LIST}
    K2_NOPAD:
    s_waitcnt lgkmcnt(0)
    v_readfirstlane_b32 s{sMORE}, v{AL}
    """)
    if OPT.stamps == 1: stamp(a, 2, 11)
    for x in range(2):
        for i in range(2):
            for k in range(4):
                s = 8*x + 4*i + k
                pr = FL + 6 + 2 * (s % 4)
                a(f"v_cmpx_lt_i32 vcc, {16*i+k}, v{REM[x]}")
                if i == 1: a(f"s_cbranch_execz K2_SC_{x}")
                a(f"""
                v_lshl_add_u32 v{BS+s}, v{RK+s}, 3, v{BS+s}
                v_mov_b32 v{pr}, v{RECS+s}
                v_lshlrev_b32 v{pr+1}, 2, v{DLS+s}
                ds_write_b64 v{BS+s}, {vr(pr,2)}
                """)
        a(f"K2_SC_{x}:\ns_mov_b64 exec, -1")
    a(f"""
    v_add_u32 v{TA}, s{sPN8}, v{LANE8}
    v_add_u32 v{A4}, s{sPN8}, v{G8}
    {mfma32(ACC[0], ZERO, ZERO, None)}
    {mfma32(ACC[1], ZERO, ZERO, None)}
    s_sub_u32 s{sREM}, s{sEND}, s{sPN8}
    v_cmp_gt_i32 {sr(sMR)}, s{sREM}, v{LANE8}
    {mfma32(S, ZERO, ZERO, None)}
    """)
    if OPT.stamps == 1: stamp(a, 2, 10)
    a("s_waitcnt lgkmcnt(0)\ns_barrier")
    stamp(a, 2, 4)
    a(f"""
    s_cmp_ge_u32 s{sPN8}, s{sEND}
    s_cbranch_scc1 K2_NOWORK
    """)
    RB4 = D[1]
    if OPT.abl:
        a(f"s_add_u32 s67, s{sREM}, 511\ns_lshr_b32 s67, s67, 9")
    plain(a, r_read(0))
    plain(a, list_reads()[1:2])
    plain(a, r_read(1, RB4))
    a(mfma32(D[1] + 14, ZERO, ZERO, None))
    a("s_waitcnt lgkmcnt(3)")
    plain(a, mads(R8))
    plain(a, dma_ops())
    a("s_waitcnt lgkmcnt(0)")
    plain(a, pos_load())
    a(f"""
    v_readfirstlane_b32 s{sWB}, v{DL}
    v_mov_b32 v{T+6}, 1.0
    v_mov_b32 v{T+7}, 1.0
    s_min_u32 s{sWB}, s{sWB}, {16*(NPB-8)}
    """)
    window_masks(a)
    wx_load(a)
    plain(a, geo_addr())
    plain(a, geo_lut())
    plain(a, advance())
    plain(a, mads(RB4))
    a("s_waitcnt lgkmcnt(0)")
    plain(a, geo_fin()[1:])
    if OPT.stamps == 6: stamp(a, 2, 10)
    a(f"s_waitcnt vmcnt({2 if OPT.stamps == 6 else 1})")
    if OPT.stamps == 6: stamp(a, 2, 11)
    plain(a, x_read(0)[1:])
    a(f"s_waitcnt vmcnt({2 if OPT.stamps == 6 else 0})")
    if OPT.stamps == 6: stamp(a, 2, 12)
    plain(a, geo_diff())
    a("s_waitcnt lgkmcnt(2)")
    a(mfma32(D[0], X[0], ID, None))
    plain(a, geo_cvt())
    a(mfma32(D[0], X[0] + 4, ID + 4, D[0]))
    plain(a, geo_d2())
    a("s_waitcnt lgkmcnt(0)")
    plain(a, dma_ops()[:2])
    plain(a, geo_fin()[:1])
    plain(a, dma_ops()[2:])
    a(mfma32(D[0], XX, WX[0] + 2, D[0]))
    plain(a, s_write())
    a("s_nop 7")
    if OPT.prio: a("s_setprio 3")
    stamp(a, 2, 5)
    gen_main_loop(a)
    a.label("K2_DRAIN")
    stamp(a, 2, 6)
    t2 = T + 2 * (7 % 4); y2 = D[1] + 14; t6 = T + 2 * (6 % 4)
    a(f"""
    {mfma32(ACC[1], S, M[1], ACC[1])}
    v_rcp_f32 v{t2}, v{t2}
    v_rcp_f32 v{t2+1}, v{t2+1}
    v_cvt_pk_bf16_f32 v{M[1]+6}, v{t6}, v{t6+1}
    v_mul_f32 v{t2}, v{t2}, v{y2}
    v_mul_f32 v{t2+1}, v{t2+1}, v{y2+1}
    v_cvt_pk_bf16_f32 v{M[1]+7}, v{t2}, v{t2+1}
    s_mov_b32 s{sWBO}, s{sWB}
    s_nop 0
    {mfma32(ACC[1], S+4, M[1]+4, ACC[1])}
    """)
    epi_reads(a)
    flush_code(a, False, 'A')
    a.label("K2_WDONE")
    stamp(a, 2, 7)
    a(f"""
    s_cmp_lg_u32 s{sMORE}, 0
    s_cbranch_scc1 K2_MORE
    """)
    MB_ = M[0]; U = ACC[0]; HR = D[0]; EX = D[0] + 8; MFS = [D[1], ACC[1]]
    a(f"""
    s_movk_i32 s{sTMP+3}, 21846
    v_mul_u32_u24 v{DX}, s{sTMP+3}, v0
    s_mul_i32 s{sTMP+4}, s{sNB}, 6
    s_add_u32 s{sTMP+4}, s{sTMP+4}, {N*128}
    v_add_u32_sdwa v{DX}, v{DX}, v0 dst_sel:DWORD dst_unused:UNUSED_PAD src0_sel:WORD_1 src1_sel:DWORD
    v_lshlrev_b32 v{PD}, 1, v0
    s_mul_i32 s{sTMP+5}, s{sNN}, 3
    v_cmp_gt_u32 {sr(sF0+2)}, s{sTMP+5}, v0
    v_lshlrev_b32 v{DX+1}, 2, v{DX}
    v_lshlrev_b32 v{DX}, 3, v{DX}
    s_and_b32 s{sTMP}, s3, 3
    s_lshl_b32 s{sTMP}, s{sTMP}, 4
    s_sub_i32 s{sTMP+5}, s{sNN}, s{sTMP}
    s_lshl_b32 s{sTMP+5}, s{sTMP+5}, 7
    v_cmp_gt_i32 {sr(sF0)}, s{sTMP+5}, v{EO}
    s_add_u32 s{sTMP}, s{sTMP}, s{sNB}
    s_lshl_b32 s{sTMP}, s{sTMP}, 7
    s_lshr_b32 s{sTMP+1}, s3, 2
    s_lshl_b32 s{sTMP+1}, s{sTMP+1}, 6
    s_add_u32 s{sTMP}, s{sTMP}, s{sTMP+1}
    s_mov_b32 s{sTMP+3}, 0xffff0000
    s_waitcnt lgkmcnt(0)
    {mfma16(U, X[0], EW, None)}
    {mfma16(U+4, X[0]+16, EW, None)}
    {mfma16(U, X[0]+4, EW+4, U)}
    {mfma16(U+4, X[0]+20, EW+4, U+4)}
    s_cmp_lt_u32 s3, 4
    s_cbranch_scc1 K2_HLO
    """)
    for r in range(4):
        a(f"v_lshlrev_b32 v{HR+2*r}, 16, v{EW+4+r}\nv_and_b32 v{HR+2*r+1}, s{sTMP+3}, v{EW+4+r}")
    a("s_branch K2_HOK\nK2_HLO:")
    for r in range(4):
        a(f"v_lshlrev_b32 v{HR+2*r}, 16, v{EW+r}\nv_and_b32 v{HR+2*r+1}, s{sTMP+3}, v{EW+r}")
    a("K2_HOK:\ns_barrier")
    stamp(a, 2, 8)
    for s in range(2):
        for k in range(4):
            a(f"ds_read_b128 {vr(MFS[s]+4*k,4)}, v{EA_} offset:{256*s + 16*k}")
    a(f"ds_read_b32 v{DX+1}, v{DX+1} offset:{POSD}\nds_read_b64 {vr(PS,2)}, v{DX} offset:{ACCP}")
    for s in range(2):
        for k in range(4):
            a(f"s_waitcnt lgkmcnt({9 - 4*s - k})")
            a(f"v_cvt_f32_f64 v{MFS[s]+4*k}, {vr(MFS[s]+4*k,2)}")
            a(f"v_cvt_f32_f64 v{MFS[s]+4*k+1}, {vr(MFS[s]+4*k+2,2)}")
            a(f"v_cvt_pk_bf16_f32 v{MB_+4*s+k}, v{MFS[s]+4*k}, v{MFS[s]+4*k+1}")
        a("s_nop 1")
        a(mfma16(U, X[0]+8+4*s, MB_+4*s, U))
        a(mfma16(U+4, X[0]+24+4*s, MB_+4*s, U+4))
    a(f"""
    s_mov_b32 s{sTMP+2}, {f32(-L2E)}
    s_mov_b64 exec, {sr(sF0+2)}
    s_cbranch_execz K2_NOPOS
    s_waitcnt lgkmcnt(0)
    v_cvt_f32_f64 v{DX+2}, {vr(PS,2)}
    v_add_f32 v{DX+1}, v{DX+1}, v{DX+2}
    v_cvt_pk_bf16_f32 v{DX+1}, v{DX+1}, v{DX+1}
    buffer_store_short v{DX+1}, v{PD}, {sr(sOUT,4)}, s{sTMP+4} offen{OPT.ost}
    K2_NOPOS:
    s_mov_b64 exec, -1
    s_nop 4
    """)
    for r in range(8):
        a(f"v_mul_f32 v{EX+r}, s{sTMP+2}, v{U+r}")
    for r in range(8):
        a(f"v_exp_f32 v{EX+r}, v{EX+r}")
    for r in range(0, 8, 2):
        a(f"v_pk_add_f32 {vr(EX+r,2)}, {vr(EX+r,2)}, 1.0 op_sel_hi:[1,0]")
    for r in range(8):
        a(f"v_rcp_f32 v{EX+r}, v{EX+r}")
    for r in range(0, 8, 2):
        a(f"v_pk_fma_f32 {vr(HR+r,2)}, {vr(EX+r,2)}, {vr(U+r,2)}, {vr(HR+r,2)}")
    for r in range(4):
        a(f"v_cvt_pk_bf16_f32 v{EX+r}, v{HR+2*r}, v{HR+2*r+1}")
    a(f"""
    s_mov_b64 exec, {sr(sF0)}
    s_cbranch_execz K2_END
    buffer_store_dwordx4 {vr(EX,4)}, v{EO}, {sr(sOUT,4)}, s{sTMP} offen{OPT.ost}
    """)
    if OPT.stamps:
        a("s_waitcnt vmcnt(0)")
    stamp(a, 2, 9); stamp(a, 2, 15, True)
    a("K2_END:\ns_endpgm")
    a.label("K2_NOWORK")
    epi_reads(a)
    a("s_branch K2_WDONE")
    a.label("K2_FLUSH")
    flush_code(a, True, 'B')
    a(f"s_mov_b32 s{sFFL}, 0\ns_branch K2_FLUSH_RET")
    a.label("K2_REBASE")
    a(f"""
    s_mov_b32 s{sWBO}, s{sWB}
    v_readfirstlane_b32 s{sWB}, v{DL}
    s_mov_b32 s{sFWX}, 1
    s_mov_b32 s{sFFL}, 1
    s_min_u32 s{sWB}, s{sWB}, {16*(NPB-8)}
    """)
    window_masks(a)
    a("s_branch K2_REBASE_RET")
    a.label("K2_WXL")
    wx_load(a)
    a(f"s_mov_b32 s{sFWX}, 0\ns_branch K2_WXL_RET")
    if OPT.prio:
        a(f"""
        K2_PRIO:
        s_cmp_gt_i32 s{sREM}, 0
        s_cbranch_scc0 K2_PRIO1
        s_setprio 2
        s_mov_b32 s{sTHR}, 0
        s_branch K2_PRIO_RET
        K2_PRIO1:
        s_setprio 1
        s_branch K2_PRIO_RET
        K2_PRIO0:
        s_setprio 0
        s_cmp_gt_u32 s{sNC}, 32
        s_cbranch_scc1 K2_PRIO0_RET
        ds_write_b64 v{SAD}, {vr(ZERO,2)}
        s_branch K2_DRAIN
        """)
    a(f"""
    K2_EPOCH:
    v_mov_b32 v{T1}, s{sTOK+1}
    v_mov_b32 v{T2}, s{sTOK+2}
    v_mov_b32 v{TA}, {EPO}
    s_mov_b64 exec, 1
    buffer_store_dwordx2 {vr(T1,2)}, v{TA}, {sr(sWS,4)}, 0 offen
    s_mov_b64 exec, -1
    s_branch K2_EPOCH_RET
    K2_OVER:
    s_mov_b32 s{sQ}, 16
    s_branch K2_AGAIN
    K2_MORE:
    """)
    for x in range(2):
        a(f"""
        v_add_u32_sdwa v{T1}, v{J4}, v{OFFV[x]} dst_sel:DWORD dst_unused:UNUSED_PAD src0_sel:DWORD src1_sel:WORD_1
        v_add_u32 v{START[x]}, s{sQ}, v{START[x]}
        v_min_u32 v{START[x]}, v{START[x]}, v{T1}
        """)
    a(f"""
    K2_AGAIN:
    s_waitcnt vmcnt(0) lgkmcnt(0)
    s_barrier
    s_mov_b32 s{sFIRST}, 0
    s_cmp_lg_u32 s3, 0
    s_cbranch_scc1 K2_ROUND
    v_lshrrev_b32 v{T1}, 1, v{LANE8}
    ds_write_b32 v{T1}, v{ZERO} offset:{CNT2}
    v_mov_b32 v{T1}, {FLAG}
    ds_write_b32 v{T1}, v{ZERO}
    s_branch K2_ROUND
    """)

HEADER = """; EGNN layer (gather / edge MLP / scatter) for gfx950, one workgroup per CU
; Kernarg: h 0, pos 8, e_attr 16, src 24, dst 32, w_e 40, w_x 48, w_h 56, out 64, debug 72, ws 80
; @launch grid=(256,1,1) block=(512,1,1) lds={l2}
.amdgcn_target "amdgcn-amd-amdhsa--gfx950"
.text
"""
KD = """.amdhsa_kernel {name}
  .amdhsa_next_free_vgpr {nv}
  .amdhsa_next_free_sgpr 96
  .amdhsa_accum_offset {nv}
  .amdhsa_group_segment_fixed_size 0
  .amdhsa_kernarg_size 88
  .amdhsa_user_sgpr_count 2
  .amdhsa_user_sgpr_kernarg_segment_ptr 1
  .amdhsa_system_sgpr_workgroup_id_x 1
.end_amdhsa_kernel
"""

def generate(stamps=0, half=1, pre=0, tbe=1, hfirst=2, tpos=0, gate=8, warm=0, prio=2, touch=24, g0=3, g1=5, abl='', tb2=1, st=2, twprio=1, slp=8, ost=2, og=1, slp0=0, samp=0, lcpost=1, pbar=0):
    OPT.stamps = stamps; OPT.half = half; OPT.pre = pre; OPT.tbe = tbe; OPT.hfirst = hfirst; OPT.tpos = tpos; OPT.gate = gate; OPT.warm = warm; OPT.prio = prio; OPT.touch = touch; OPT.g0 = g0; OPT.g1 = g1; OPT.abl = abl
    OPT.tb2 = tb2; OPT.st = ['', ' nt', ' sc1', ' sc0 sc1'][st]; OPT.twprio = twprio; OPT.slp = slp; OPT.og = og; OPT.samp = samp; OPT.pbar = pbar; OPT.lcpost = lcpost; OPT.slp0 = slp0
    OPT.ost = ['', ' nt', ' sc1', ' sc0 sc1'][ost]
    a = Asm(); gen_phase1(a); gen_k2(a)
    k2n = "gather_scatter__cheap_equivariant_egnn__graph_kernel"
    s = HEADER.format(l2=LDS2)
    s += f".globl {k2n}\n.p2align 8\n.type {k2n},@function\n" + a.text()
    s += '.section .rodata,"a"\n.p2align 6\n' + KD.format(name=k2n, nv=NV2 if stamps else 248)
    return s

if __name__ == "__main__":
    out = sys.argv[1]
    kw = {}
    for x in sys.argv[2:]:
        k, v = x.split("=", 1); kw[k] = v if k == 'abl' else int(v)
    open(out, "w").write(generate(**kw))
```

```python
import sys, struct

N = 12500; E = 800000
NPB = 49
CH = 3136
PSTR = 15744
L_OFF = CH * 4
RL_END = L_OFF + CH
OSTR = 2176; OGS = 8320
OFFT = 256 * PSTR
EPO = OFFT + 256 * OSTR
P8 = EPO + 128
BTAB = P8 + 12544 * 8
WS_USED = BTAB + 12560 * 128
DBG_WS = WS_USED + 4096
WS_SRD = 32 << 20
L2E = 1.4426950408889634
LN2 = 0.6931471805599453

def f32(x):
    return "0x%08x" % struct.unpack("<I", struct.pack("<f", x))[0]

class Asm:
    def __init__(self):
        self.L = []
    def __call__(self, s):
        for ln in s.strip("\n").split("\n"):
            ln = ln.strip()
            if ln:
                self.L.append(ln if ln.endswith(":") else "    " + ln)
    def label(self, s):
        self.L.append(s + ":")
    def text(self):
        return "\n".join(self.L) + "\n"

def vr(a, n):
    return f"v[{a}:{a+n-1}]"
def sr(a, n=2):
    return f"s[{a}:{a+n-1}]"

def srd(a, base, nbytes, add=0):
    o = []
    if add:
        o += [f"s_add_u32 s{a}, s{base}, {add}", f"s_addc_u32 s{a+1}, s{base+1}, 0"]
    else:
        o += [f"s_mov_b32 s{a}, s{base}", f"s_mov_b32 s{a+1}, s{base+1}"]
    o += [f"s_mov_b32 s{a+2}, {nbytes}", f"s_mov_b32 s{a+3}, 0x00020000"]
    return "\n".join(o)

def wave_scan(a, v):
    for ctl in ("row_shr:1", "row_shr:2", "row_shr:4", "row_shr:8"):
        a("s_nop 1")
        a(f"v_add_u32_dpp v{v}, v{v}, v{v} {ctl} row_mask:0xf bank_mask:0xf bound_ctrl:0")
    a("s_nop 1")
    a(f"v_add_u32_dpp v{v}, v{v}, v{v} row_bcast:15 row_mask:0xa bank_mask:0xf")
    a("s_nop 1")
    a(f"v_add_u32_dpp v{v}, v{v}, v{v} row_bcast:31 row_mask:0xc bank_mask:0xf")

def mfma32(d, a_, b_, c):
    cc = "0" if c is None else vr(c, 16)
    return f"v_mfma_f32_32x32x16_bf16 {vr(d,16)}, {vr(a_,4)}, {vr(b_,4)}, {cc}"
def mfma16(d, a_, b_, c):
    cc = "0" if c is None else vr(c, 4)
    return f"v_mfma_f32_16x16x32_bf16 {vr(d,4)}, {vr(a_,4)}, {vr(b_,4)}, {cc}"

class Opt:
    pass
OPT = Opt()

def stamp(a, kern, idx, real=False):
    if not OPT.stamps:
        return
    if OPT.stamps == 5 and not real:
        if (kern, idx) in ((2, 5), (2, 6)):
            stamp(a, kern, idx + 7, True)
        if not (kern == 2 and idx in (0, 5, 6)): return
    if OPT.stamps == 4:
        idx = {(2, 5): 12, (2, 6): 13, (2, 2): 11, (2, 4): 10}.get((kern, idx), idx) if not real else idx
        if idx < 10 or (not real and idx in (10, 11) and (kern, idx) == (2, idx) and not getattr(stamp, 'ok', True)): return
        real = True
    if not real and OPT.stamps == 6 and not (idx == 0 or (kern == 2 and idx in (4, 5, 6, 9, 10, 11, 12))):
        return
    if not real and OPT.stamps == 2 and idx not in (0, 3, 9):
        return
    if not real and OPT.stamps == 3 and idx not in ((0, 3) if kern == 1 else (0, 5, 6, 9)):
        return
    sv = 252
    st = 64
    w = 12
    a(f"""
    {'s_memrealtime' if real else 's_memtime'} s[{st}:{st+1}]
    s_waitcnt lgkmcnt(0)
    v_mov_b32 v{sv}, s{st}
    v_mov_b32 v{sv+1}, s{st+2}
    s_mov_b64 s[{st}:{st+1}], exec
    s_mov_b64 exec, 1
    buffer_store_dword v{sv}, v{sv+1}, s[{w}:{w+3}], 0 offen offset:{idx*4}
    s_mov_b64 exec, s[{st}:{st+1}]
    """)

CAP = 4096
RS = 528
CNT2 = 0; PRE2 = 256; FLAG = 512; LUT = 528; ACCP = LUT + 800; POSD = 3072
assert ACCP + NPB * 32 <= POSD
LIST = 4096
AT = LIST + (CAP + 64) * 8
ARS = 144
HRB = AT + 64 * ARS
WHB = HRB + 8192
ACCM = WHB + 16384
SB = (ACCM + NPB * RS + 127) // 128 * 128
STG = SB + 8 * 4096
LDS2 = STG + 8 * 4096
XTR = LIST + 24576
assert LDS2 <= 163840 and HRB % 128 == 0

ACC = [2, 18]; D = [34, 50]; M = [66, 74]; X = [82, 98]
WX = [114, 120]; XX = 126; S = 132; T = 140; TCH = 148; J4 = 149
REC = 150; DL = 151; R8 = 152; REL = 160; TA = 161; PD = 162; DX = 166; DD = 169; DXY = 170
SAD = 172; A4 = 173; PS = 174; ZERO = 176; WXS = [180, 182]
T1 = 184; T2 = 185; START = [186, 187]; OFFV = [188, 189]
FL = 190
EW = 208
CB = 216
CDMA = CB; AX = CB + 4; AS = CB + 8; SROW = CB + 12; G8 = CB + 13; MADDR = CB + 14; POFF = CB + 15
ID = CB + 16; AWT = CB + 24; LANE8 = CB + 25; LUA = CB + 26; LUV = CB + 27
EA_ = CB + 28; EH = CB + 29; EO = CB + 31
DUMMY = LANE8
NV2 = 256
sWS, sOUT, sH = 12, 20, 24
sNB, sNN, sC128, sM10, s0M1, sP8, sBT = 28, 29, 30, 31, 32, 33, 34
sEND, sWB, sWBO, sFWX, sFFL = 35, 36, 37, 38, 39
sREM, sTHR, sW10, sNC = 40, 41, 42, 43
sVN, sMR = 44, 46
sNX, sQ, sFIRST, sT, sPN8, sMORE, sROT = 48, 49, 50, 51, 52, 53, 54
sTMP = 56
sTOK = 68
sPM, sCM, sF0 = 72, 74, 76

def lane_consts(a, o, base):
    L = base; HH, A31, R2, C2, GP, U1, U2 = [base + 1 + i for i in range(7)]
    CD, AXo, ASo = o, o + 4, o + 8
    SROWo, G8o, MADo, POFo = o + 12, o + 13, o + 14, o + 15
    IDo = o + 16; AWo, L8o, LUA, LUV = o + 24, o + 25, o + 26, o + 27
    EAo, EH0, EH1, EOo = o + 28, o + 29, o + 30, o + 31
    a(f"""
    v_lshrrev_b32 v{HH}, 5, v{L}
    v_and_b32 v{A31}, 31, v{L}
    v_bfe_u32 v{R2}, v{L}, 2, 2
    v_and_b32 v{C2}, 3, v{L}
    v_bfe_u32 v{GP}, v{L}, 4, 1
    v_lshrrev_b32 v{U1}, 3, v{L}
    v_lshlrev_b32 v{G8o}, 5, v{U1}
    v_and_b32 v{U1}, 7, v{L}
    v_lshlrev_b32 v{U2}, 2, v{HH}
    v_xor_b32 v{U1}, v{U1}, v{U2}
    """)
    for i in range(4):
        a(f"v_xor_b32 v{CD+i}, {i}, v{U1}\nv_lshlrev_b32 v{CD+i}, 4, v{CD+i}\nv_add_u32 v{CD+i}, {3072 - 1024*i}, v{CD+i}")
    a(f"""
    v_bfe_u32 v{U1}, v{L}, 2, 3
    v_lshl_add_u32 v{U1}, v{C2}, 3, v{U1}
    v_lshlrev_b32 v{U1}, 7, v{U1}
    v_add_u32 v{U1}, {STG}, v{U1}
    v_lshl_or_b32 v{U2}, v{GP}, 2, v{C2}
    v_xor_b32 v{U2}, v{U2}, v{HH}
    """)
    for k in range(4):
        a(f"v_xor_b32 v{AXo+k}, {2*k}, v{U2}\nv_lshl_add_u32 v{AXo+k}, v{AXo+k}, 4, v{U1}")
    a(f"""
    v_lshlrev_b32 v{SROWo}, 7, v{A31}
    v_add_u32 v{SROWo}, {SB}, v{SROWo}
    v_and_b32 v{U1}, 1, v{L}
    v_lshl_or_b32 v{U1}, v{R2}, 1, v{U1}
    v_lshl_add_u32 v{SROWo}, v{U1}, 4, v{SROWo}
    v_bfe_u32 v{U1}, v{L}, 1, 1
    v_xor_b32 v{U1}, v{U1}, v{HH}
    v_lshl_add_u32 v{SROWo}, v{U1}, 3, v{SROWo}
    v_lshl_add_u32 v{C2}, v{GP}, 2, v{C2}
    v_and_b32 v{U1}, 1, v{R2}
    v_lshl_or_b32 v{U1}, v{HH}, 1, v{U1}
    v_xor_b32 v{U1}, v{U1}, v{C2}
    v_lshrrev_b32 v{U2}, 1, v{R2}
    v_lshl_add_u32 v{R2}, v{HH}, 2, v{R2}
    v_lshlrev_b32 v{AWo}, 7, v{R2}
    v_lshl_add_u32 v{ASo}, v{U2}, 3, v{AWo}
    v_add_u32 v{ASo}, {SB}, v{ASo}
    v_xor_b32 v{U2}, 4, v{U1}
    v_lshl_add_u32 v{ASo+1}, v{U2}, 4, v{ASo}
    v_add_u32 v{ASo+1}, 1024, v{ASo+1}
    v_lshl_add_u32 v{ASo}, v{U1}, 4, v{ASo}
    v_xor_b32 v{ASo+2}, 8, v{ASo}
    v_xor_b32 v{ASo+3}, 8, v{ASo+1}
    v_mul_u32_u24 v{AWo}, {ARS}, v{R2}
    v_lshl_add_u32 v{AWo}, v{C2}, 3, v{AWo}
    v_add_u32 v{AWo}, {AT}, v{AWo}
    v_mul_u32_u24 v{MADo}, {RS}, v{HH}
    v_lshl_add_u32 v{MADo}, v{A31}, 3, v{MADo}
    v_add_u32 v{MADo}, {ACCM}, v{MADo}
    v_bfe_u32 v{U1}, v{L}, 3, 2
    v_lshl_add_u32 v{U1}, v{U1}, 1, v{HH}
    v_lshlrev_b32 v{POFo}, 5, v{U1}
    v_and_b32 v{U1}, 4, v{L}
    v_lshl_add_u32 v{POFo}, v{U1}, 1, v{POFo}
    v_and_b32 v{U1}, 1, v{L}
    v_lshl_add_u32 v{POFo}, v{U1}, 4, v{POFo}
    v_lshlrev_b32 v{L8o}, 3, v{L}
    v_lshlrev_b32 v{U1}, 4, v{U1}
    v_mov_b32 v{LUV}, 0x3f80
    v_lshlrev_b32 v{LUV}, v{U1}, v{LUV}
    v_lshrrev_b32 v{U1}, 1, v{L}
    v_lshlrev_b32 v{U1}, 2, v{U1}
    v_lshl_add_u32 v{LUA}, v{L}, 4, v{U1}
    v_lshrrev_b32 v{U1}, 1, v{A31}
    v_lshlrev_b32 v{U2}, 2, v{HH}
    v_sub_u32 v{U1}, v{U1}, v{U2}
    """)
    for t in range(2):
        for r in range(4):
            a(f"v_cmp_eq_u32 {sr(84 + 2*r)}, {8*t + r}, v{U1}")
        for r in range(4):
            a(f"v_cndmask_b32 v{IDo+4*t+r}, 0, v{LUV}, {sr(84 + 2*r)}")
    a(f"""
    v_and_b32 v{U1}, 15, v{L}
    v_lshrrev_b32 v{U2}, 4, v{L}
    v_mul_u32_u24 v{EAo}, {RS}, v{U1}
    v_lshl_add_u32 v{EAo}, v{U2}, 6, v{EAo}
    v_add_u32 v{EAo}, {ACCM}, v{EAo}
    v_lshlrev_b32 v{EOo}, 7, v{U1}
    v_bfe_u32 v{U1}, v{L}, 1, 3
    v_xor_b32 v{U1}, v{U1}, v{U2}
    v_lshl_add_u32 v{EH0}, v{U1}, 4, v{EOo}
    v_add_u32 v{EH0}, {HRB}, v{EH0}
    v_xor_b32 v{EH1}, 64, v{EH0}
    v_lshl_add_u32 v{EOo}, v{U2}, 4, v{EOo}
    """)
    a(f"""
    s_lshl_b32 s44, s3, 12
    s_and_b32 s45, s3, 3
    s_mul_i32 s46, s45, {16*RS}
    s_lshl_b32 s45, s45, 11
    """)
    for r in list(range(AXo, AXo + 8)) + [SROWo]:
        a(f"v_add_u32 v{r}, s44, v{r}")
    a(f"""
    v_add_u32 v{EAo}, s46, v{EAo}
    v_add_u32 v{EH0}, s45, v{EH0}
    v_add_u32 v{EH1}, s45, v{EH1}
    """)

def flush_code(a, rezero, tag):
    a(f"""
    s_mul_i32 s{sTMP}, s{sWBO}, {RS//16}
    s_lshl_b32 s{sTMP+1}, s{sWBO}, 1
    v_add_u32 v{T1}, s{sTMP}, v{MADDR}
    v_add_u32 v{T2}, s{sTMP+1}, v{POFF}
    """)
    for q in range(4):
        for h in range(2):
            t = FL + 2 * (2*q + h)
            a(f"v_mul_f32 v{t}, {f32(-LN2)}, v{ACC[h]+4*q+3}")
            a(f"v_cvt_f64_f32 {vr(t,2)}, v{t}")
            a(f"ds_add_f64 v{T1}, {vr(t,2)} offset:{2*q*RS + 256*h}")
    for q in range(4):
        r0 = ACC[0] + 4*q; r1 = ACC[1] + 4*q
        a(f"v_pk_mul_f32 {vr(r0,2)}, {vr(r0,2)}, {vr(WXS[0],2)} op_sel_hi:[1,0]")
        a(f"v_mul_f32 v{r0+2}, v{r0+2}, v{WXS[0]}")
        a(f"v_pk_fma_f32 {vr(r0,2)}, {vr(r1,2)}, {vr(WXS[1],2)}, {vr(r0,2)} op_sel_hi:[1,0,1]")
        a(f"v_fmac_f32 v{r0+2}, v{r1+2}, v{WXS[1]}")
    if rezero:
        a(mfma32(ACC[1], ZERO, ZERO, None))
    else:
        a("s_nop 0")
    for q in range(2):
        for c in range(3):
            a(f"v_permlane16_swap_b32 v{ACC[0]+4*q+c}, v{ACC[0]+4*(q+2)+c}")
    a("s_nop 0")
    for q in range(2):
        for c in range(3):
            a(f"v_add_f32 v{ACC[0]+4*q+c}, v{ACC[0]+4*q+c}, v{ACC[0]+4*(q+2)+c}")
    c0 = ACC[0]
    for c in range(3):
        a(f"v_add_f32_dpp v{c0+c}, v{c0+c}, v{c0+c} row_ror:8 row_mask:0xf bank_mask:0x3")
    for c in range(3):
        a(f"v_add_f32_dpp v{c0+c}, v{c0+4+c}, v{c0+4+c} row_ror:8 row_mask:0xf bank_mask:0xc")
    a(f"""
    v_add_f32_dpp v{c0}, v{c0}, v{c0} row_half_mirror row_mask:0xf bank_mask:0x5
    s_nop 0
    v_add_f32_dpp v{c0+2}, v{c0+2}, v{c0+2} row_half_mirror row_mask:0xf bank_mask:0xf
    v_add_f32_dpp v{c0}, v{c0+1}, v{c0+1} row_half_mirror row_mask:0xf bank_mask:0xa
    s_nop 0
    v_add_f32_dpp v{c0+2}, v{c0+2}, v{c0+2} quad_perm:[1,0,3,2] row_mask:0xf bank_mask:0xf
    v_add_f32_dpp v{c0}, v{c0}, v{c0} quad_perm:[1,0,3,2] row_mask:0xf bank_mask:0xf
    s_nop 0
    v_add_f32_dpp v{c0+2}, v{c0+2}, v{c0+2} quad_perm:[2,3,0,1] row_mask:0xf bank_mask:0xf
    v_add_f32_dpp v{c0}, v{c0}, v{c0} quad_perm:[2,3,0,1] row_mask:0xf bank_mask:0xf
    v_cndmask_b32 v{c0}, v{c0}, v{c0+2}, {sr(sCM)}
    v_cvt_f64_f32 {vr(FL+16,2)}, v{c0}
    s_mov_b64 exec, {sr(sPM)}
    ds_add_f64 v{T2}, {vr(FL+16,2)} offset:{ACCP}
    s_mov_b64 exec, -1
    """)
    if rezero:
        a(mfma32(ACC[0], ZERO, ZERO, None))

def window_masks(a):
    a(f"""
    v_subrev_u32 v{REL}, s{sWB}, v{DL}
    v_cmp_gt_u32 vcc, s{sC128}, v{REL}
    s_and_b64 {sr(sVN)}, vcc, {sr(sMR)}
    """)

def wx_load(a):
    a(f"""
    s_mul_i32 s{sTMP}, s{sWB}, {ARS//16}
    v_add_u32 v{T1}, s{sTMP}, v{AWT}
    ds_read_b64_tr_b16 {vr(WX[0]+2,2)}, v{T1}
    ds_read_b64_tr_b16 {vr(WX[1]+2,2)}, v{T1} offset:64
    """)

def mads(src):
    return [f"v_mad_u32_u16 v{R8+2*i}, v{src+2*i}, s{sC128}, v{CDMA+i}" for i in range(4)]
def dma_ops():
    return [f"buffer_load_dwordx4 v{R8+2*i}, {sr(sWS,4)}, s{sBT} offen offset:{1024*i} lds" for i in range(4)]

class Body:
    def __init__(self):
        self.it = []
    def op(self, s): self.it.append(("op", s))
    def ds(self, s, tag=None): self.it.append(("ds", s, tag))
    def wait(self, tag): self.it.append(("wait", tag))
    def emit(self, a):
        if OPT.abl:
            import re
            rx = re.compile(OPT.abl)
            drop = lambda x: bool(rx.search(x[1] if x[0] != "wait" else "WAIT"))
            tags = {x[2] for x in self.it if x[0] == "ds" and drop(x)}
            self.it = [x for x in self.it if not drop(x) and not (x[0] == "wait" and x[1] in tags)]
        n = len(self.it)
        out = []
        real_a = a
        a = out.append
        for i, x in enumerate(self.it):
            if x[0] == "wait":
                cnt = 0; j = i - 1; found = False
                for _ in range(n):
                    y = self.it[j % n]
                    if y[0] == "ds":
                        if y[2] == x[1]:
                            found = True; break
                        cnt += 1
                    j -= 1
                assert found, x
                a(f"s_waitcnt lgkmcnt({min(cnt,15)})")
            else:
                a(x[1])
        k = 0
        while k < len(out):
            if k + 1 < len(out) and out[k].startswith("s_waitcnt") and out[k+1].startswith("s_waitcnt"):
                real_a(out[k] + " " + out[k+1].split()[1]); k += 2
            else:
                real_a(out[k]); k += 1

def unit_groups(b, u, pre, post):
    h = u % 2; ph = 1 - h
    ntile = (u + 1) // 2 % 2
    xx = XX if ntile == 0 else XX + 2
    wx = WX[ph] + 2 if ntile == 0 else WX[ph]
    mf = {0: mfma32(ACC[ph], S, M[ph], ACC[ph]),
          1: mfma32(D[ph], xx, wx, None),
          2: mfma32(ACC[ph], S + 4, M[ph] + 4, ACC[ph]),
          OPT.g0: mfma32(D[ph], X[ntile] + 8*ph, ID, D[ph]),
          OPT.g1: mfma32(D[ph], X[ntile] + 8*ph + 4, ID + 4, D[ph])}
    def put(lst):
        for x in lst:
            if isinstance(x, str): b.op(x)
            elif x[0] == "ds": b.ds(x[1], x[2] if len(x) > 2 else None)
            elif x[0] == "wait": b.wait(x[1])
    for g in range(8):
        put(pre.get(g, []))
        if g in mf: b.op(mf[g])
        p = g - 2; hh = h
        if p < 0: p += 8; hh = ph
        t = T + 2 * (p % 4)
        b.op(f"v_cvt_pk_bf16_f32 v{M[hh]+p}, v{t}, v{t+1}")
        t = T + 2 * (g % 4); y = D[h] + 2 * g
        b.op(f"v_exp_f32 v{t}, v{y}")
        b.op(f"v_exp_f32 v{t+1}, v{y+1}")
        p = g - 1; hh = h
        if p < 0: p += 8; hh = ph
        t2 = T + 2 * (p % 4); y2 = D[hh] + 2 * p
        b.op(f"v_rcp_f32 v{t2}, v{t2}")
        b.op(f"v_rcp_f32 v{t2+1}, v{t2+1}")
        b.op(f"v_pk_add_f32 {vr(t,2)}, {vr(t,2)}, 1.0 op_sel_hi:[1,0]")
        b.op(f"v_pk_mul_f32 {vr(t2,2)}, {vr(t2,2)}, {vr(y2,2)}")
        put(post.get(g, []))

def s_read(t):
    return [("ds", f"ds_read_b64_tr_b16 {vr(S+2*k,2)}, v{AS + 2*t + (k & 1)} offset:{2048*(k>>1)}", "S" if k == 3 else None) for k in range(4)]
def s_write():
    return [("ds", f"ds_write_b64 v{SAD}, {vr(DXY,2)}")]
def s_clear():
    return [("ds", f"ds_write_b64 v{SAD}, {vr(ZERO,2)}")]
def r_read(t, dst=None):
    d = R8 if dst is None else dst
    return [("ds", f"ds_read_b128 {vr(d,4)}, v{A4} offset:{LIST + 256*t}"),
            ("ds", f"ds_read_b128 {vr(d+4,4)}, v{A4} offset:{LIST + 256*t + 16}", "R")]
def x_read(t):
    o = ["s_waitcnt vmcnt(0)"]
    for k in range(4):
        o.append(("ds", f"ds_read_b128 {vr(X[t]+4*k,4)}, v{AX+k}", "X" if k == 3 else None))
    return o
def pos_load():
    return [f"v_mad_u32_u16 v{TA}, v{REC}, 8, 0",
            f"buffer_load_dwordx2 {vr(PS,2)}, v{TA}, {sr(sWS,4)}, s{sP8} offen"]
def geo_addr():
    return [("ds", f"ds_read_b128 {vr(PD,4)}, v{DL} offset:{POSD}", "P")]
def geo_lut():
    return [("ds", f"ds_read_b64 {vr(XX,2)}, v{REL} offset:{LUT}"),
            ("ds", f"ds_read_b64 {vr(XX+4,2)}, v{REL} offset:{LUT+8}", "L"),
            f"v_mov_b32 v{XX+3}, v{REC}"]
def geo_diff():
    return [f"v_dot2_f32_bf16 v{DX}, v{PS}, s{sM10}, v{PD}",
            f"v_dot2_f32_bf16 v{DX+1}, v{PS}, s{s0M1}, v{PD+1}",
            f"v_dot2_f32_bf16 v{DX+2}, v{PS+1}, s{sM10}, v{PD+2}"]
def geo_cvt():
    return [f"v_xor_b32 v{TA}, v{REL}, v{SROW}",
            f"v_cndmask_b32 v{SAD}, v{DUMMY}, v{TA}, {sr(sVN)}",
            f"v_cvt_pk_bf16_f32 v{DXY}, v{DX}, v{DX+1}",
            f"v_cvt_pk_bf16_f32 v{DXY+1}, v{DX+2}, 1.0"]
def geo_d2():
    return [f"v_dot2_f32_bf16 v{DD}, v{DXY+1}, v{DXY+1}, -1.0",
            f"v_dot2_f32_bf16 v{DD}, v{DXY}, v{DXY}, v{DD}"]
def geo_fin():
    return [f"v_cvt_pk_bf16_f32 v{XX+2}, v{DD}, v{DD}",
            f"v_permlane32_swap_b32 v{XX}, v{XX+4}",
            f"v_permlane32_swap_b32 v{XX+1}, v{XX+5}"]
def list_reads():
    return [f"v_add_u32 v{TA}, s{sPN8}, v{LANE8}",
            ("ds", f"ds_read_b64 {vr(REC,2)}, v{TA} offset:{LIST}", "E"),
            f"v_add_u32 v{A4}, s{sPN8}, v{G8}"] + r_read(0)
def advance():
    return [f"s_mov_b32 s{sNC}, s{sNX}",
            f"s_bcnt1_i32_b64 s{sNX}, {sr(sVN)}",
            f"s_lshl3_add_u32 s{sPN8}, s{sNX}, s{sPN8}"]
def plain(a, lst):
    for x in lst:
        a(x if isinstance(x, str) else x[1])

def gen_main_loop(a):
    b = Body()
    unit_groups(b, 0,
        pre={3: s_read(0),
             4: list_reads(),
             5: [f"s_cmp_lg_u32 s{sFFL}, 0", "s_cbranch_scc1 K2_FLUSH", "K2_FLUSH_RET:"],
             6: [("wait", "E")] + x_read(1) + pos_load(),
             7: [("wait", "R")] + mads(R8)},
        post={})
    unit_groups(b, 1,
        pre={0: [f"v_subrev_u32 v{REL}, s{sWB}, v{DL}",
                 f"v_cmp_gt_i32 {sr(sMR)}, s{sREM}, v{LANE8}",
                 f"v_cmp_gt_u32 vcc, s{sC128}, v{REL}"],
             1: [f"s_and_b64 {sr(sVN)}, vcc, {sr(sMR)}",
                 f"s_cmp_lg_u64 {sr(sVN)}, {sr(sMR)}",
                 "s_cbranch_scc1 K2_REBASE", "K2_REBASE_RET:"] + advance() + [("wait", "X")] + dma_ops(),
             2: geo_addr()},
        post={})
    unit_groups(b, 2,
        pre={0: ([f"s_cmp_eq_u32 s{sNX}, 0", "s_cbranch_scc1 K2_PRIO0", "K2_PRIO0_RET:"] if OPT.prio else []),
             2: [f"s_cmp_lg_u32 s{sFWX}, 0", "s_cbranch_scc1 K2_WXL", "K2_WXL_RET:"] + geo_lut(),
             3: s_read(1) + s_clear(),
             4: r_read(1) + geo_cvt(),
             5: s_write(),
             6: x_read(0) + [("wait", "L")] + geo_fin(),
             7: [("wait", "R")] + mads(R8)},
        post={2: ["s_waitcnt vmcnt(4)", ("wait", "P")] + geo_diff(),
              4: geo_d2()})
    unit_groups(b, 3,
        pre={1: [("wait", "X")] + dma_ops()},
        post={})
    a(".p2align 6")
    a.label("K2_LOOP")
    a(f"s_sub_u32 s{sREM}, s{sEND}, s{sPN8}")
    if OPT.prio:
        a(f"s_cmp_le_i32 s{sREM}, s{sTHR}\ns_cbranch_scc1 K2_PRIO\nK2_PRIO_RET:")
    b.emit(a)
    if OPT.abl:
        a("s_sub_u32 s67, s67, 1\ns_cmp_lg_u32 s67, 0\ns_cbranch_scc1 K2_LOOP")
    else:
        a(f"s_cmp_lg_u32 s{sNX}, 0\ns_cbranch_scc1 K2_LOOP")


def epi_reads(a):
    a(f"""
    s_lshr_b32 s{sTMP}, s3, 2
    s_lshl_b32 s{sTMP}, s{sTMP}, 13
    s_add_u32 s{sTMP}, s{sTMP}, {WHB}
    v_lshl_add_u32 v{TA}, v{LANE8}, 1, s{sTMP}
    """)
    for i in range(8):
        a(f"ds_read_b128 {vr(X[0]+4*i,4)}, v{TA} offset:{1024*i}")
    a(f"ds_read_b128 {vr(EW,4)}, v{EH}\nds_read_b128 {vr(EW+4,4)}, v{EH+1}")

def gen_phase1(a):
    CNT, PRE, RB = LIST, LIST + 1024, LIST + 2048
    ST = OPT.st
    WE = CH // 4
    DST = 8; SRC = 24; EA = 40; B4 = 48; RK = 64; PB = 80
    MSK = 76
    sPID = 43
    ZR = vr(ZERO, 4)
    a.label("gather_scatter__cheap_equivariant_egnn__graph_kernel")
    if OPT.stamps == 4: a("s_memrealtime s[94:95]")
    a(f"""
    s_cmp_ge_u32 s2, 256
    s_cbranch_scc1 K2_END
    s_load_dwordx2 {sr(sWS)}, s[0:1], 80
    v_readfirstlane_b32 s3, v0
    v_and_b32 v6, 63, v0
    s_mov_b32 s{sWS+2}, {WS_SRD}
    s_mov_b32 s{sWS+3}, 0x00020000
    s_lshr_b32 s3, s3, 6
    v_lshlrev_b32 v7, 4, v6
    s_mov_b32 s{sPID}, s2
    s_cmp_ge_u32 s3, 4
    s_cbranch_scc1 K1_TW
    s_load_dwordx2 s[8:9], s[0:1], 32
    s_load_dwordx2 s[16:17], s[0:1], 24
    s_load_dwordx2 s[4:5], s[0:1], 16
    v_lshlrev_b32 v2, 2, v0
    v_mov_b32 v{ZERO}, 0
    ds_write_b32 v2, v{ZERO} offset:{CNT}
    s_mov_b32 s10, {E*4}
    s_mov_b32 s11, 0x00020000
    s_mov_b64 s[18:19], s[10:11]
    s_mov_b32 s6, {E*2}
    s_mov_b32 s7, 0x00020000
    s_mul_i32 s44, s2, {CH}
    s_mul_i32 s45, s3, {WE}
    s_add_u32 s44, s44, s45
    s_lshl_b32 s46, s44, 2
    s_lshl_b32 s47, s44, 1
    s_sub_i32 s45, {E}, s44
    v_lshlrev_b32 v2, 2, v6
    v_lshlrev_b32 v5, 3, v6
    v_lshlrev_b32 v3, 1, v6
    s_waitcnt lgkmcnt(0)
    """)
    for j in range(3):
        a(f"buffer_load_dwordx4 {vr(DST+4*j,4)}, v7, s[8:11], s46 offen offset:{1024*j}")
    a(f"buffer_load_dword v{DST+12}, v2, s[8:11], s46 offen offset:3072")
    def ids():
        a(f"""
        s_lshr_b32 s{sROT}, s2, 3
        s_and_b32 s2, s2, 7
        s_lshl_b32 s2, s2, 5
        s_add_u32 s2, s2, s{sROT}
        s_add_u32 s62, s{sWS}, {EPO}
        s_addc_u32 s63, s{sWS+1}, 0
        s_load_dwordx2 s[70:71], s[62:63], 0
        s_load_dwordx2 {sr(sOUT)}, s[0:1], 64
        """)
        if OPT.warm:
            a(f"""
            v_lshrrev_b32 v112, 2, v0
            v_lshlrev_b32 v112, 5, v112
            s_lshr_b32 s62, s2, 2
            s_mul_i32 s62, s62, {OGS}
            s_add_u32 s62, s62, {OFFT}
            buffer_load_dword v113, v112, {sr(sWS,4)}, s62 offen sc1
            s_add_u32 s62, s62, 4096
            buffer_load_dword v113, v112, {sr(sWS,4)}, s62 offen sc1
            """)
        if OPT.stamps:
            a(f"s_lshl_b32 s66, s2, 4\ns_add_u32 s66, s66, s3\ns_lshl_b32 s66, s66, 6\ns_add_u32 s66, s66, {DBG_WS}")
        stamp(a, 1, 0); stamp(a, 1, 14, True)
        if OPT.stamps == 4:
            a("v_mov_b32 v252, s94\ns_mov_b64 s[64:65], exec\ns_mov_b64 exec, 1\nbuffer_store_dword v252, v253, s[12:15], 0 offen offset:32\ns_mov_b64 exec, s[64:65]")
    ids()
    nst0 = (2 if OPT.stamps else 0) + (2 if OPT.warm else 0)
    a(f"""
    v_cmp_gt_i32 {sr(MSK)}, s45, v2
    s_sub_i32 s48, s45, 256
    v_cmp_gt_i32 {sr(MSK+2)}, s48, v2
    s_sub_i32 s48, s45, 512
    v_cmp_gt_i32 {sr(MSK+4)}, s48, v2
    s_sub_i32 s48, s45, 768
    s_min_i32 s48, s48, 16
    v_cmp_gt_i32 {sr(MSK+6)}, s48, v6
    s_movk_i32 s50, {-NPB}
    v_mov_b32 v4, 1
    s_barrier
    """)
    def src_loads():
        for j in range(3):
            a(f"buffer_load_dwordx4 {vr(SRC+4*j,4)}, v7, s[16:19], s46 offen offset:{1024*j}")
            a(f"buffer_load_dwordx2 {vr(EA+2*j,2)}, v5, s[4:7], s47 offen offset:{512*j}")
        a(f"buffer_load_dword v{SRC+12}, v2, s[16:19], s46 offen offset:3072")
        a(f"buffer_load_ushort v{EA+6}, v3, s[4:7], s47 offen offset:1536")
    if not OPT.hfirst: src_loads()
    a(f"""
    v_mov_b32 v{ZERO+1}, 0
    v_mov_b32 v{ZERO+2}, 0
    v_mov_b32 v{ZERO+3}, 0
    s_lshl_b32 s48, s3, 12
    s_add_u32 s48, s48, {SB}
    v_add_u32 v106, s48, v7
    """)
    for i in range(4):
        a(f"ds_write_b128 v106, {ZR} offset:{1024*i}")
    if OPT.hfirst == 2: a('s_barrier')
    if OPT.hfirst: src_loads()
    nst = 0
    for j in range(4):
        a(f"s_mov_b64 exec, {sr(MSK+2*j)}\ns_waitcnt vmcnt({11 - j + nst + nst0})")
        if OPT.stamps == 1 and j in (0, 3):
            stamp(a, 1, 7 if j == 0 else 8); nst += 1
        for k in range(4 if j < 3 else 1):
            s = 4*j + k
            a(f"""
            v_mul_u32_u24 v{B4+s}, 21400, v{DST+s}
            v_lshrrev_b32 v{B4+s}, 20, v{B4+s}
            v_mad_i32_i24 v{DST+s}, v{B4+s}, s50, v{DST+s}
            v_lshlrev_b32 v{B4+s}, 2, v{B4+s}
            ds_add_rtn_u32 v{RK+s}, v{B4+s}, v4 offset:{CNT}
            """)
    a(f"""
    s_mov_b64 exec, -1
    s_mov_b32 s51, 0xffff0000
    s_waitcnt lgkmcnt(0)
    s_barrier
    """)
    stamp(a, 1, 1)
    a(f"""
    ds_read_b128 v[96:99], v7 offset:{CNT}
    s_waitcnt lgkmcnt(0)
    v_add_u32 v97, v96, v97
    v_add_u32 v98, v97, v98
    v_add_u32 v99, v98, v99
    v_mov_b32 v100, v99
    """)
    wave_scan(a, 100)
    a(f"""
    v_sub_u32 v102, v100, v99
    v_add_u32 v103, v102, v96
    v_add_u32 v104, v102, v97
    v_add_u32 v105, v102, v98
    ds_write_b128 v7, v[102:105] offset:{PRE}
    """)
    for s in range(13):
        a(f"ds_read_b32 v{PB+s}, v{B4+s} offset:{PRE}")
    a("s_waitcnt lgkmcnt(0)")
    stamp(a, 1, 10)
    for j in range(4):
        a(f"s_mov_b64 exec, {sr(MSK+2*j)}")
        for k in range(4 if j < 3 else 1):
            s = 4*j + k
            a(f"""
            v_add_u32 v{PB+s}, v{PB+s}, v{RK+s}
            ds_write_b8 v{PB+s}, v{DST+s} offset:{RB + L_OFF}
            v_lshlrev_b32 v{RK+s}, 2, v{PB+s}
            """)
    stamp(a, 1, 9)
    nl = (5 if OPT.stamps == 1 else 0)
    for j in range(4):
        a(f"s_mov_b64 exec, {sr(MSK+2*j)}\ns_waitcnt vmcnt({6 - 2*j + nl})")
        if j < 3:
            for k in range(4):
                op = (f"v_lshl_or_b32 v{SRC+4*j+k}, v{EA+2*j+(k>>1)}, 16, v{SRC+4*j+k}" if k % 2 == 0
                      else f"v_and_or_b32 v{SRC+4*j+k}, v{EA+2*j+(k>>1)}, s51, v{SRC+4*j+k}")
                a(op + f"\nds_write_b32 v{RK+4*j+k}, v{SRC+4*j+k} offset:{RB}")
        else:
            a(f"v_lshl_or_b32 v{SRC+12}, v{EA+6}, 16, v{SRC+12}\nds_write_b32 v{RK+12}, v{SRC+12} offset:{RB}")
    a("s_mov_b64 exec, -1")
    stamp(a, 1, 11)
    def copy_out():
        a(f"""
        v_lshlrev_b32 v4, 4, v0
        v_cmp_gt_u32 vcc, {RL_END//16 - 512}, v0
        s_mul_i32 s49, s{sPID}, {PSTR}
        s_add_u32 s48, s49, 8192
        s_waitcnt lgkmcnt(0)
        s_barrier
        """)
        stamp(a, 1, 2)
        a(f"""
        ds_read_b128 v[108:111], v4 offset:{RB}
        ds_read_b128 {vr(FL,4)}, v4 offset:{RB + 8192}
        s_waitcnt lgkmcnt(1)
        buffer_store_dwordx4 v[108:111], v4, {sr(sWS,4)}, s49 offen{ST}
        s_mov_b64 exec, vcc
        s_waitcnt lgkmcnt(0)
        buffer_store_dwordx4 {vr(FL,4)}, v4, {sr(sWS,4)}, s48 offen{ST}
        s_mov_b64 exec, -1
        """)
    copy_out()
    a("v_mov_b32 v8, v6")
    lane_consts(a, CB, 8)
    a("s_mov_b32 s92, 0\ns_branch K1_JOIN")
    HF = 16; WFR = 32; DD_ = 64
    a(f"""
    K1_TW:
    s_load_dwordx2 s[8:9], s[0:1], 40
    s_load_dwordx2 {sr(sH)}, s[0:1], 0
    s_load_dwordx2 s[16:17], s[0:1], 8
    s_load_dwordx2 s[4:5], s[0:1], 56
    s_mov_b32 s10, {130*128}
    s_mov_b32 s11, 0x00020000
    s_mov_b32 s{sH+2}, {N*128}
    s_mov_b32 s{sH+3}, 0x00020000
    s_mov_b32 s6, {128*128}
    s_mov_b32 s7, 0x00020000
    s_and_b32 s61, s3, 1
    s_bfe_u32 s60, s3, 0x10001
    s_lshl_b32 s57, s3, 13
    s_add_u32 s57, s57, {STG - 4*8192}
    v_and_b32 v9, 48, v6
    v_xor_b32 v9, v9, v7
    v_xor_b32 v10, 64, v9
    v_lshrrev_b32 v11, 2, v6
    v_and_b32 v12, 3, v6
    v_lshlrev_b32 v12, 4, v12
    v_lshl_add_u32 v11, v11, 7, v12
    v_mov_b32 v{ZERO}, 0
    v_mov_b32 v{ZERO+1}, 0
    v_mov_b32 v{ZERO+2}, 0
    v_mov_b32 v{ZERO+3}, 0
    s_waitcnt lgkmcnt(0)
    """)
    ids()
    a(f"""
    s_mul_i32 s{sNB}, s2, {NPB}
    s_lshl_b32 s56, s60, 5
    s_add_u32 s56, s56, s{sNB}
    s_lshl_b32 s56, s56, 7
    s_lshl_b32 s58, s60, 12
    s_add_u32 m0, s58, {HRB}
    s_lshl_b32 s59, s61, 6
    s_add_u32 s55, s59, {64*128}
    s_barrier
    """)
    for i in range(4):
        a(f"buffer_load_dwordx4 v{9 + (i & 1)}, {sr(sH,4)}, s56 offen offset:{1024*i} lds")
    a(f"s_mov_b32 m0, s57\ns_mov_b32 s18, {N*6}")
    for i in range(4):
        a(f"buffer_load_dwordx4 v11, s[8:11], s55 offen offset:{1024*i} lds")
        if i < 3: a("s_add_u32 s55, s55, 1024")
    a(f"""
    s_mov_b32 s19, 0x00020000
    s_cmp_lg_u32 s3, 7
    s_cbranch_scc1 K1_NOP8
    v_add_u32 v100, s{sNB}, v6
    v_mul_u32_u24 v101, 6, v100
    buffer_load_ushort v102, v101, s[16:19], 0 offen
    buffer_load_ushort v104, v101, s[16:19], 0 offen offset:2
    buffer_load_ushort v103, v101, s[16:19], 0 offen offset:4
    K1_NOP8:
    {'s_barrier' if OPT.hfirst == 2 else ''}
    v_lshlrev_b32 v106, 4, v0
    v_add_u32 v106, {ACCM - 4096}, v106
    """)
    nz = (SB - ACCM) // 4096
    for i in range(nz):
        a(f"ds_write_b128 v106, {ZR} offset:{4096*i}")
    a(f"""
    v_cmp_gt_u32 vcc, {256 + (SB - ACCM - 4096*nz) // 16}, v0
    s_and_saveexec_b64 s[44:45], vcc
    ds_write_b128 v106, {ZR} offset:{4096*nz}
    s_mov_b64 exec, -1
    """)
    def tw_consts():
        a(f"""
        {'' if OPT.tbe == 2 else 's_barrier'}
        v_mov_b32 v80, v6
        """)
        lane_consts(a, CB, 80)
        a(f"""
        s_cmp_lg_u32 s3, 4
        s_cbranch_scc1 K1_NOLOW
        ds_write_b128 v7, {ZR}
        ds_write_b128 v7, {ZR} offset:1024
        ds_write_b128 v7, {ZR} offset:2048
        s_mov_b64 exec, 0xff
        ds_write_b32 v{LUA}, v{LUV} offset:{LUT}
        s_mov_b64 exec, -1
        K1_NOLOW:
        """)
    if not OPT.tbe: tw_consts()
    a(f"""
    v_lshrrev_b32 v8, 5, v6
    v_and_b32 v9, 31, v6
    v_bfe_u32 v12, v6, 2, 2
    v_lshl_add_u32 v12, v8, 3, v12
    v_lshlrev_b32 v12, 6, v12
    v_bfe_u32 v13, v6, 4, 1
    v_lshl_add_u32 v12, v13, 5, v12
    v_and_b32 v13, 3, v6
    v_lshl_add_u32 v12, v13, 3, v12
    v_add_u32 v12, s57, v12
    v_bfe_u32 v10, v6, 1, 3
    v_xor_b32 v10, v10, v8
    s_lshl_b32 s58, s60, 12
    s_add_u32 s58, s58, {HRB}
    v_lshlrev_b32 v14, 7, v9
    v_add_u32 v14, s58, v14
    """)
    for s in range(4):
        a(f"v_xor_b32 v{96+s}, {2*s}, v10\nv_lshl_add_u32 v{96+s}, v{96+s}, 4, v14")
    a(f"""
    v_mul_u32_u24 v13, 80, v9
    v_lshl_add_u32 v13, v8, 3, v13
    v_add_u32 v13, s57, v13
    v_lshrrev_b32 v14, 2, v6
    v_mul_u32_u24 v15, 80, v14
    v_and_b32 v14, 3, v6
    v_lshl_add_u32 v15, v14, 4, v15
    v_add_u32 v15, s57, v15
    s_mov_b32 s55, {f32(-L2E)}
    s_lshl_b32 s59, s61, 6
    s_add_u32 s56, s56, {BTAB}
    s_add_u32 s56, s56, s59
    {'s_barrier' if OPT.tbe == 2 else ''}
    s_waitcnt vmcnt(0)
    {'s_setprio 3' if OPT.twprio else ''}
    """)
    stamp(a, 1, 5)
    for s in range(4):
        a(f"ds_read_b128 {vr(HF+4*s,4)}, v{96+s}")
        for jj in range(2):
            a(f"ds_read_b64_tr_b16 {vr(WFR+4*s+2*jj,2)}, v12 offset:{(16*s+4*jj)*64}")
    for s in range(4):
        a(f"s_waitcnt lgkmcnt({9 - 3*s})")
        a(mfma32(DD_, WFR+4*s, HF+4*s, None if s == 0 else DD_))
    stamp(a, 1, 6)
    if OPT.tb2 == 0: copy_out()
    else: a("s_nop 11")
    def scale_cvt(q, base):
        for r in range(4):
            a(f"v_mul_f32 v{base+4*q+r}, s55, v{base+4*q+r}")
        a(f"v_cvt_pk_bf16_f32 v{base+4*q}, v{base+4*q}, v{base+4*q+1}\nv_cvt_pk_bf16_f32 v{base+4*q+1}, v{base+4*q+2}, v{base+4*q+3}")
    for q in range(4):
        scale_cvt(q, DD_)
        a(f"ds_write_b64 v13, {vr(DD_+4*q,2)} offset:{16*q}")
    a(f"""
    ds_read_b128 {vr(WFR,4)}, v15
    ds_read_b128 {vr(WFR+4,4)}, v15 offset:{16*80}
    s_cmp_lg_u32 s60, 0
    s_waitcnt lgkmcnt(1)
    buffer_store_dwordx4 {vr(WFR,4)}, v11, {sr(sWS,4)}, s56 offen{ST}
    s_cselect_b64 exec, 15, -1
    s_waitcnt lgkmcnt(0)
    buffer_store_dwordx4 {vr(WFR+4,4)}, v11, {sr(sWS,4)}, s56 offen offset:2048{ST}
    s_mov_b64 exec, -1
    s_cmp_lg_u32 s3, 7
    s_cbranch_scc1 K1_NOP8S
    v_lshlrev_b32 v108, 16, v102
    v_lshlrev_b32 v109, 16, v104
    v_lshlrev_b32 v110, 16, v103
    ds_write_b128 v7, v[108:111] offset:{POSD}
    v_lshl_or_b32 v102, v104, 16, v102
    v_lshlrev_b32 v100, 3, v100
    s_mov_b32 s58, {P8}
    v_cmp_gt_u32 vcc, {NPB}, v6
    s_and_b64 exec, exec, vcc
    buffer_store_dwordx2 v[102:103], v100, {sr(sWS,4)}, s58 offen{ST}
    s_mov_b64 exec, -1
    K1_NOP8S:
    """)
    stamp(a, 1, 4)
    if OPT.tbe:
        if OPT.twprio: a("s_setprio 0")
        tw_consts()
    if OPT.tb2 != 0: copy_out()
    a(f"""
    {'s_setprio 0' if OPT.twprio else ''}
    s_mov_b32 s92, 1
    s_mov_b32 s47, s57
    """)
    a(f"""
    K1_JOIN:
    s_load_dwordx2 s[84:85], s[0:1], 40
    s_load_dwordx2 s[88:89], s[0:1], 48
    s_mov_b32 s86, {130*128}
    s_mov_b32 s87, 0x00020000
    s_mov_b32 s90, 128
    s_mov_b32 s91, 0x00020000
    v_and_b32 v107, 31, v6
    v_lshlrev_b32 v107, 1, v107
    s_movk_i32 s93, {128*128}
    s_mul_i32 s{sNB}, s2, {NPB}
    s_lshl_b32 s{sW10}, s3, 10
    s_sub_u32 s{sNN}, {N}, s{sNB}
    s_min_u32 s{sNN}, s{sNN}, {NPB}
    s_mov_b32 s{sOUT+2}, {N*134}
    s_mov_b32 s{sOUT+3}, 0x00020000
    s_movk_i32 s{sC128}, 128
    s_mov_b32 s{sM10}, 0x0000bf80
    s_mov_b32 s{s0M1}, 0xbf800000
    s_mov_b32 s{sP8}, {P8}
    s_mov_b32 s{sBT}, {BTAB - 3072}
    s_mov_b32 s{sQ}, 32
    s_mov_b32 s{sFIRST}, 1
    s_mov_b32 s{sPM}, 0x13131313
    s_mov_b32 s{sPM+1}, 0x13131313
    s_mov_b32 s{sCM}, 0x02020202
    s_mov_b32 s{sCM+1}, 0x02020202
    s_add_u32 s{sTOK+1}, s70, 1
    s_addc_u32 s{sTOK+2}, s71, 0
    s_and_b32 s{sTMP}, s{sTOK+2}, 15
    s_bfe_u32 s{sTMP+1}, s{sTOK+2}, 0x40004
    s_lshl_b32 s{sTMP}, s{sTMP}, 12
    s_lshl_b32 s{sTMP+1}, s{sTMP+1}, 28
    s_or_b32 s{sTOK}, s{sTMP}, s{sTMP+1}
    v_and_b32 v{J4}, 3, v0
    v_lshlrev_b32 v{J4}, 2, v{J4}
    v_lshrrev_b32 v2, 2, v0
    v_mul_u32_u24 v1, {PSTR}, v2
    """)
    if OPT.og == 2:
        a(f"""
        v_lshlrev_b32 v2, 4, v2
        s_lshr_b32 s62, s2, 1
        s_mul_i32 s62, s62, 4224
        s_and_b32 s63, s2, 1
        s_lshl3_add_u32 s62, s63, s62
        s_add_u32 s62, s62, {OFFT}
        s_add_u32 s63, s62, 2048
        """)
    elif OPT.og:
        a(f"""
        v_lshlrev_b32 v2, 5, v2
        s_lshr_b32 s62, s2, 2
        s_mul_i32 s62, s62, {OGS}
        s_and_b32 s63, s2, 3
        s_lshl3_add_u32 s62, s63, s62
        s_add_u32 s62, s62, {OFFT}
        s_add_u32 s63, s62, 4096
        """)
    else:
        a(f"""
        v_mul_u32_u24 v2, {OSTR}, v2
        s_lshl3_add_u32 s62, s2, {OFFT}
        s_add_u32 s63, s62, {128*OSTR}
        """)
    a(f"""
    s_cmp_lg_u32 s3, 0
    s_cbranch_scc1 K1_NOOFF
    v_lshl_or_b32 v16, v103, 16, v102
    v_lshl_or_b32 v18, v104, 16, v103
    v_lshl_or_b32 v20, v105, 16, v104
    v_lshl_or_b32 v22, v100, 16, v105
    v_or_b32 v16, s{sTOK}, v16
    v_or_b32 v18, s{sTOK}, v18
    v_or_b32 v20, s{sTOK}, v20
    v_or_b32 v22, s{sTOK}, v22
    v_mov_b32 v17, s{sTOK+1}
    v_mov_b32 v19, s{sTOK+1}
    v_mov_b32 v21, s{sTOK+1}
    v_mov_b32 v23, s{sTOK+1}
    s_mul_i32 s48, s{sPID}, {[OSTR, 32, 16][OPT.og]}
    s_add_u32 s48, s48, {OFFT}
    {['v_lshlrev_b32 v4, 1, v7', f'v_mul_u32_u24 v4, {OGS}, v6', 'v_mul_u32_u24 v4, 8448, v6'][OPT.og]}
    s_add_u32 s{sTMP+3}, s48, {4224 if OPT.og == 2 else 16}
    s_waitcnt vmcnt(0) lgkmcnt(0)
    s_barrier
    buffer_store_dwordx4 v[16:19], v4, {sr(sWS,4)}, s48 offen sc1
    buffer_store_dwordx4 v[20:23], v4, {sr(sWS,4)}, s{sTMP+3} offen sc1
    s_branch K1_PUB
    K1_NOOFF:
    s_waitcnt vmcnt(0) lgkmcnt(0)
    s_barrier
    K1_PUB:
    """)
    stamp(a, 1, 3); stamp(a, 1, 15, True)
    if OPT.stamps:
        a(f"s_add_u32 s66, s66, {256*16*64}")
    stamp(a, 2, 0); stamp(a, 2, 14, True)
    a(f"""
    buffer_load_ushort v{XX}, v107, s[84:87], s93 offen
    buffer_load_ushort v{XX+1}, v107, s[84:87], s93 offen offset:128
    buffer_load_ushort v{XX+2}, v107, s[84:87], s93 offen offset:64
    buffer_load_ushort v{XX+3}, v107, s[84:87], s93 offen offset:192
    buffer_load_ushort v{WXS[0]}, v107, s[88:91], 0 offen
    buffer_load_ushort v{WXS[1]}, v107, s[88:91], 0 offen offset:64
    s_cmp_eq_u32 s92, 0
    s_cbranch_scc1 K1_NOAJ
    s_add_u32 m0, s47, 4096
    s_mov_b32 s48, s59
    """)
    for i in range(4):
        a(f"buffer_load_dwordx4 v11, s[8:11], s48 offen offset:{1024*i} lds")
        if i < 3: a("s_add_u32 s48, s48, 1024")
    a(f"""
    s_lshl_b32 s48, s3, 12
    s_add_u32 m0, s48, {SB}
    s_sub_u32 s48, s48, 16384
    """)
    for i in range(4):
        a(f"buffer_load_dwordx4 v7, s[4:7], s48 offen offset:{1024*i} lds")
    a(f"""
    K1_NOAJ:
    """)
    a(f"""
    s_mov_b32 s{sTMP}, 0xf000f000
    s_mov_b32 s{sTMP+1}, {1 << 20}
    {'s_barrier' if OPT.pbar else ''}
    {f's_sleep {OPT.slp0}' if OPT.slp0 else ''}
    """)
    if OPT.pre:
        a(f"""
        s_and_b32 s44, s{sROT}, 15
        s_lshl4_add_u32 s44, s3, s44
        s_lshr_b32 s45, s{sROT}, 4
        s_lshl_b32 s45, s45, 7
        s_add_u32 s44, s44, s45
        s_lshl_b32 s45, s44, 5
        v_mov_b32 v{T1}, s45
        s_and_b32 s45, s44, 7
        s_lshl_b32 s45, s45, 5
        s_lshr_b32 s44, s44, 3
        s_add_u32 s44, s44, s45
        s_mul_i32 s44, s44, {NPB*128}
        s_add_u32 s44, s44, {BTAB}
        v_lshlrev_b32 v{TCH}, 4, v{LANE8}
        s_mov_b64 exec, 1
        K1_PRE:
        buffer_load_dwordx2 v[164:165], v{T1}, {sr(sWS,4)}, s62 offen sc1
        s_sub_u32 s{sTMP+1}, s{sTMP+1}, 1
        s_cbranch_scc1 K1_PRED
        s_waitcnt vmcnt(0)
        v_and_b32 v164, s{sTMP}, v164
        v_cmp_ne_u64 vcc, {sr(sTOK)}, v[164:165]
        s_cbranch_vccz K1_PREOK
        s_sleep {OPT.pre}
        s_branch K1_PRE
        K1_PREOK:
        s_mov_b32 exec_lo, -1
        s_mov_b32 exec_hi, 0x1ffff
        buffer_load_dword v{FL+17}, v{TCH}, {sr(sWS,4)}, s44 offen
        K1_PRED:
        s_mov_b64 exec, -1
        """)
    if OPT.gate:
        a(f"""
        s_cmp_lg_u32 s3, 7
        s_cbranch_scc1 K1_GATED
        s_mov_b64 exec, {hex((1 << (4*OPT.gn)) - 1) if OPT.gn <= 8 else -1}
        K1_GATE:
        buffer_load_dwordx2 v[164:165], v2, {sr(sWS,4)}, s63 offen sc1
        s_sub_u32 s{sTMP+1}, s{sTMP+1}, 1
        s_cbranch_scc1 K1_GATED
        s_waitcnt vmcnt(0)
        v_cmp_ne_u32 vcc, s{sTOK+1}, v165
        s_cbranch_vccz K1_GATED
        s_sleep {OPT.gate}
        s_branch K1_GATE
        K1_GATED:
        s_mov_b64 exec, -1
        s_barrier
        """)
    a(f"""
    K1_POLL:
    buffer_load_dwordx2 v[162:163], v2, {sr(sWS,4)}, s62 offen sc1
    buffer_load_dwordx2 v[164:165], v2, {sr(sWS,4)}, s63 offen sc1
    s_sub_u32 s{sTMP+1}, s{sTMP+1}, 1
    s_cbranch_scc1 K1_GOT
    s_waitcnt vmcnt(0)
    v_and_b32 v166, s{sTMP}, v162
    v_mov_b32 v167, v163
    v_and_b32 v168, s{sTMP}, v164
    v_mov_b32 v169, v165
    v_cmp_ne_u64 vcc, {sr(sTOK)}, v[166:167]
    v_cmp_ne_u64 {sr(sTMP+2)}, {sr(sTOK)}, v[168:169]
    s_or_b64 exec, vcc, {sr(sTMP+2)}
    s_cbranch_execz K1_GOT
    s_sleep {OPT.slp}
    s_branch K1_POLL
    K1_GOT:
    s_mov_b64 exec, -1
    s_not_b32 s{sTMP}, s{sTMP}
    s_waitcnt vmcnt(0)
    v_and_b32 v{OFFV[0]}, s{sTMP}, v162
    v_and_b32 v{OFFV[1]}, s{sTMP}, v164
    v_add_u32_sdwa v{START[0]}, v{J4}, v{OFFV[0]} dst_sel:DWORD dst_unused:UNUSED_PAD src0_sel:DWORD src1_sel:WORD_0
    v_add_u32_sdwa v{START[1]}, v{J4}, v{OFFV[1]} dst_sel:DWORD dst_unused:UNUSED_PAD src0_sel:DWORD src1_sel:WORD_0
    """)

def gen_k2(a):
    tmp = D[0]
    L4 = tmp + 79; QJ = FL + 5
    stamp(a, 2, 1)
    RECS = tmp; LW = tmp + 16; DLS = tmp + 24; RK = tmp + 40; BS = tmp + 56
    AR = tmp + 72; AL = tmp + 73; ONE = tmp + 74; PV = tmp + 75
    AR2 = [AR, FL]; AL2 = [AL, FL + 1]; REM = [FL + 3, FL + 4]
    a.label("K2_ROUND")
    a(f"""
    s_mov_b32 s{sTMP}, {128*PSTR}
    s_movk_i32 s{sTMP+1}, {L_OFF}
    s_mov_b32 s{sTMP+2}, {128*PSTR + L_OFF}
    """)
    for x in range(2):
        a(f"""
        v_lshl_add_u32 v{AR2[x]}, v{START[x]}, 2, v1
        v_add_u32 v{AL2[x]}, v{START[x]}, v1
        buffer_load_dwordx4 {vr(RECS+8*x,4)}, v{AR2[x]}, {sr(sWS,4)}, {'s%d' % sTMP if x else 0} offen
        v_and_b32 v{AL2[x]}, -4, v{AL2[x]}
        buffer_load_dwordx2 {vr(LW+4*x,2)}, v{AL2[x]}, {sr(sWS,4)}, s{sTMP+1+x} offen
        """)
    a(f"v_sub_u32 v{QJ}, s{sQ}, v{J4}")
    for x in range(2):
        a(f"""
        v_sub_u32_sdwa v{REM[x]}, v{OFFV[x]}, v{START[x]} dst_sel:DWORD dst_unused:UNUSED_PAD src0_sel:WORD_1 src1_sel:DWORD
        s_nop 0
        v_cmp_gt_i32 {sr(sF0+2*x)}, v{REM[x]}, v{QJ}
        v_min_i32 v{REM[x]}, v{REM[x]}, v{QJ}
        v_cmp_lt_i32 vcc, 16, v{REM[x]}
        s_or_b64 exec, vcc, 1
        buffer_load_dwordx4 {vr(RECS+8*x+4,4)}, v{AR2[x]}, {sr(sWS,4)}, {'s%d' % sTMP if x else 0} offen offset:64
        buffer_load_dwordx2 {vr(LW+4*x+2,2)}, v{AL2[x]}, {sr(sWS,4)}, s{sTMP+1+x} offen offset:16
        s_mov_b64 exec, -1
        """)
    ntouch = 1 if OPT.touch else 0
    a(f"""
    v_mov_b32 v{ONE}, 1
    v_lshrrev_b32 v{L4}, 1, v{LANE8}
    s_cmp_eq_u32 s{sFIRST}, 0
    s_cbranch_scc1 K2_NOTFIRST
    {'s_barrier' if OPT.tpos == 1 else ''}
    """)
    HF = 16; WFR = S; DD_ = R8; ZR = vr(ZERO, 4)
    a("s_cmp_eq_u32 s92, 0\ns_cbranch_scc1 K2_NOAJ")
    for s in range(4):
        for jj in range(2):
            a(f"ds_read_b64_tr_b16 {vr(WFR+4*s+2*jj,2)}, v12 offset:{4096 + (16*s+4*jj)*64}")
    a(f"""
    v_lshrrev_b32 v14, 4, v6
    v_bfe_u32 v15, v6, 2, 2
    v_lshl_add_u32 v14, v14, 3, v15
    v_and_b32 v15, 3, v6
    v_lshlrev_b32 v15, 4, v15
    v_lshl_add_u32 v14, v14, 7, v15
    s_lshl_b32 s44, s3, 12
    s_add_u32 s44, s44, {SB}
    v_add_u32 v14, s44, v14
    s_lshl_b32 s48, s3, 10
    s_add_u32 s48, s48, {WHB - 4096}
    v_add_u32 v15, s48, v7
    """)
    def whr(c):
        for jj in range(2):
            a(f"ds_read_b64_tr_b16 {vr(EW+4*(c & 1)+2*jj,2)}, v14 offset:{512*jj + 64*(c >> 1) + 8*(c & 1)}")
    whr(0); whr(1)
    for s in range(4):
        a(f"s_waitcnt lgkmcnt({10 - 2*s})")
        a(mfma32(DD_, WFR+4*s, HF+4*s, None if s == 0 else DD_))
    a(f"""
    s_lshl_b32 s48, s60, 5
    v_add_u32 v9, s48, v9
    v_mul_u32_u24 v13, {ARS}, v9
    v_lshl_add_u32 v13, v8, 3, v13
    s_lshl_b32 s48, s61, 6
    v_add_u32 v13, s48, v13
    s_mov_b32 s55, {f32(-L2E)}
    s_waitcnt lgkmcnt(0)
    ds_write_b128 v15, {vr(EW,4)}
    ds_write_b128 v15, {vr(EW+4,4)} offset:4096
    """)
    whr(2); whr(3)
    a(f"v_add_u32 v14, s44, v7")
    for q in range(4):
        for r in range(4):
            a(f"v_mul_f32 v{DD_+4*q+r}, s55, v{DD_+4*q+r}")
        a(f"v_cvt_pk_bf16_f32 v{DD_+4*q}, v{DD_+4*q}, v{DD_+4*q+1}\nv_cvt_pk_bf16_f32 v{DD_+4*q+1}, v{DD_+4*q+2}, v{DD_+4*q+3}")
        a(f"ds_write_b64 v13, {vr(DD_+4*q,2)} offset:{AT + 16*q}")
    a(f"""
    s_waitcnt lgkmcnt(4)
    ds_write_b128 v15, {vr(EW,4)} offset:8192
    ds_write_b128 v15, {vr(EW+4,4)} offset:12288
    """)
    for i in range(4):
        a(f"ds_write_b128 v14, {ZR} offset:{1024*i}")
    a("K2_NOAJ:")
    a(f"""
    v_cmp_gt_u32 vcc, 32, v6
    s_mov_b32 s48, {f32(-LN2)}
    s_mov_b32 s55, {f32(-L2E)}
    """)
    for h in range(2):
        wd, wa, o = XX + 2*h, XX + 1 + 2*h, WX[h]
        a(f"""
        v_lshlrev_b32 v{wd}, 16, v{wd}
        v_lshlrev_b32 v{wa}, 16, v{wa}
        v_mul_f32 v{wd}, s55, v{wd}
        v_mul_f32 v{wa}, s55, v{wa}
        v_cvt_pk_bf16_f32 v24, v{wd}, v{wd}
        v_lshlrev_b32 v24, 16, v24
        v_sub_f32 v25, v{wd}, v24
        v_cvt_pk_bf16_f32 v26, v24, v25
        v_cvt_pk_bf16_f32 v27, 0, v{wa}
        v_cndmask_b32 v{o}, v26, 0, vcc
        v_cndmask_b32 v{o+1}, v27, 0, vcc
        v_cndmask_b32 v{o+4}, 0, v26, vcc
        v_cndmask_b32 v{o+5}, 0, v27, vcc
        v_lshlrev_b32 v{WXS[h]}, 16, v{WXS[h]}
        v_mul_f32 v{WXS[h]}, s48, v{WXS[h]}
        """)
    if OPT.touch:
        a(f"""
        s_mul_i32 s{sTMP+1}, s{sROT}, {392*128}
        s_mul_i32 s{sTMP+2}, s3, {49*128}
        s_add_u32 s{sTMP+1}, s{sTMP+1}, s{sTMP+2}
        s_add_u32 s{sTMP+1}, s{sTMP+1}, {BTAB}
        v_lshlrev_b32 v{TCH}, 4, v{LANE8}
        v_add_u32 v{TCH}, s{sTMP+1}, v{TCH}
        s_lshl3_add_u32 s{sTMP+1}, s{sROT}, s3
        s_lshl_b32 s{sTMP+1}, s{sTMP+1}, 9
        s_add_u32 s{sTMP+1}, s{sTMP+1}, {P8 - 49*128}
        v_lshl_add_u32 v{T1}, v{LANE8}, 4, s{sTMP+1}
        v_cmp_gt_u32 vcc, {49*8}, v{LANE8}
        s_nop 1
        v_cndmask_b32 v{TCH}, v{T1}, v{TCH}, vcc
        """)
    a("s_waitcnt vmcnt(0)")
    if OPT.touch and OPT.tpos == 1:
        a(f"""
        s_mov_b32 exec_lo, {hex((1 << min(32, max(0, OPT.touch))) - 1)}
        s_mov_b32 exec_hi, {hex(((1 << max(0, OPT.touch - 32)) - 1) | (15 << 17))}
        buffer_load_dword v{TCH}, v{TCH}, {sr(sWS,4)}, 0 offen
        s_mov_b64 exec, -1
        """)
    a(f"""
    s_branch K2_COUNT
    K2_NOTFIRST:
    s_waitcnt lgkmcnt(0)
    s_barrier
    s_waitcnt vmcnt(0)
    K2_COUNT:
    """)
    stamp(a, 2, 2)
    a(f"""
    s_or_b64 vcc, {sr(sF0)}, {sr(sF0+2)}
    s_cbranch_scc0 K2_NOFLAG
    v_mov_b32 v{PV}, {FLAG}
    ds_write_b32 v{PV}, v{ONE}
    K2_NOFLAG:
    """)
    for x in range(2):
        for i in range(2):
            g = 2*x + i
            for k in range(4):
                s = 4*g + k
                a(f"v_cmpx_lt_i32 vcc, {16*i+k}, v{REM[x]}")
                if i == 1:
                    a(f"s_cbranch_execz K2_CNT_{x}")
                if k == 0:
                    a(f"v_alignbyte_b32 v{LW+2*g}, v{LW+2*g+1}, v{LW+2*g}, v{START[x]}")
                a(f"v_lshlrev_b32_sdwa v{DLS+s}, 2, v{LW+2*g} dst_sel:DWORD dst_unused:UNUSED_PAD src0_sel:DWORD src1_sel:BYTE_{k}")
                a(f"ds_add_rtn_u32 v{RK+s}, v{DLS+s}, v{ONE} offset:{CNT2}")
        a(f"K2_CNT_{x}:\ns_mov_b64 exec, -1")
    a(f"""
    v_mov_b32 v{AR}, {FLAG}
    s_movk_i32 s{sTMP}, {LIST}
    s_waitcnt lgkmcnt(0)
    s_barrier
    """)
    stamp(a, 2, 3)
    if OPT.touch and OPT.tpos == 0:
        a(f"""
        s_cmp_eq_u32 s{sFIRST}, 0
        s_cbranch_scc1 K2_NOTOUCH
        s_mov_b32 exec_lo, {hex((1 << min(32, max(0, OPT.touch))) - 1)}
        s_mov_b32 exec_hi, {hex(((1 << max(0, OPT.touch - 32)) - 1) | (15 << 17))}
        buffer_load_dword v{TCH}, v{TCH}, {sr(sWS,4)}, 0 offen
        s_mov_b64 exec, -1
        K2_NOTOUCH:
        """)
    a(f"""
    s_or_b32 s{sTMP+1}, s2, s3
    s_cbranch_scc0 K2_EPOCH
    K2_EPOCH_RET:
    """)
    a(f"""
    ds_read_b32 v{PV}, v{L4} offset:{CNT2}
    ds_read_b32 v{AL}, v{AR}
    s_waitcnt lgkmcnt(1)
    v_mov_b32 v{AR}, v{PV}
    """)
    wave_scan(a, AR)
    a(f"""
    v_sub_u32 v{PV}, v{AR}, v{PV}
    v_readlane_b32 s{sT}, v{AR}, 63
    v_lshl_add_u32 v{PV}, v{PV}, 3, s{sTMP}
    ds_write_b32 v{L4}, v{PV} offset:{PRE2}
    """)
    for x in range(2):
        for k in range(4):
            s = 8*x + k
            a(f"ds_read_b32 v{BS+s}, v{DLS+s} offset:{PRE2}")
    for x in range(2):
        a(f"v_cmpx_lt_i32 vcc, 16, v{REM[x]}\ns_cbranch_execz K2_SR_{x}")
        for k in range(4):
            s = 8*x + 4 + k
            a(f"ds_read_b32 v{BS+s}, v{DLS+s} offset:{PRE2}")
        a(f"K2_SR_{x}:\ns_mov_b64 exec, -1")
    a(f"""
    s_cmp_gt_u32 s{sT}, {CAP}
    s_cbranch_scc1 K2_OVER
    s_add_u32 s{sTMP+4}, s{sT}, {31 if OPT.half else 63}
    s_lshr_b32 s{sTMP+4}, s{sTMP+4}, {5 if OPT.half else 6}
    s_lshr_b32 s{sTMP+1}, s{sTMP+4}, 3
    s_and_b32 s{sTMP+2}, s{sTMP+4}, 7
    s_mul_i32 s{sPN8}, s3, s{sTMP+1}
    s_min_u32 s{sTMP+3}, s3, s{sTMP+2}
    s_add_u32 s{sPN8}, s{sPN8}, s{sTMP+3}
    s_cmp_lt_u32 s3, s{sTMP+2}
    s_addc_u32 s{sTMP+1}, s{sTMP+1}, s{sPN8}
    s_lshl_b32 s{sPN8}, s{sPN8}, {8 if OPT.half else 9}
    s_lshl_b32 s{sEND}, s{sTMP+1}, {8 if OPT.half else 9}
    s_lshl_b32 s{sT}, s{sT}, 3
    s_min_u32 s{sEND}, s{sEND}, s{sT}
    s_lshl2_add_u32 m0, s{sW10}, {STG}
    s_mov_b64 {sr(sFWX)}, 0
    s_movk_i32 s{sTHR}, {512*OPT.prio}
    s_cmp_lg_u32 s3, 0
    s_cbranch_scc1 K2_NOPAD
    v_add_u32 v{AR}, s{sT}, v{LANE8}
    v_mov_b32 v{FL+6}, 0
    v_mov_b32 v{FL+7}, {16*NPB}
    ds_write_b64 v{AR}, {vr(FL+6,2)} offset:{LIST}
    K2_NOPAD:
    s_waitcnt lgkmcnt(0)
    v_readfirstlane_b32 s{sMORE}, v{AL}
    """)
    if OPT.stamps == 1: stamp(a, 2, 11)
    for x in range(2):
        for i in range(2):
            for k in range(4):
                s = 8*x + 4*i + k
                pr = FL + 6 + 2 * (s % 4)
                a(f"v_cmpx_lt_i32 vcc, {16*i+k}, v{REM[x]}")
                if i == 1: a(f"s_cbranch_execz K2_SC_{x}")
                a(f"""
                v_lshl_add_u32 v{BS+s}, v{RK+s}, 3, v{BS+s}
                v_mov_b32 v{pr}, v{RECS+s}
                v_lshlrev_b32 v{pr+1}, 2, v{DLS+s}
                ds_write_b64 v{BS+s}, {vr(pr,2)}
                """)
        a(f"K2_SC_{x}:\ns_mov_b64 exec, -1")
    a(f"""
    v_add_u32 v{TA}, s{sPN8}, v{LANE8}
    v_add_u32 v{A4}, s{sPN8}, v{G8}
    {mfma32(ACC[0], ZERO, ZERO, None)}
    {mfma32(ACC[1], ZERO, ZERO, None)}
    s_sub_u32 s{sREM}, s{sEND}, s{sPN8}
    v_cmp_gt_i32 {sr(sMR)}, s{sREM}, v{LANE8}
    {mfma32(S, ZERO, ZERO, None)}
    """)
    if OPT.stamps == 1: stamp(a, 2, 10)
    a("s_waitcnt lgkmcnt(0)\ns_barrier")
    stamp(a, 2, 4)
    a(f"""
    s_cmp_ge_u32 s{sPN8}, s{sEND}
    s_cbranch_scc1 K2_NOWORK
    """)
    RB4 = D[1]
    if OPT.abl:
        a(f"s_add_u32 s67, s{sREM}, 511\ns_lshr_b32 s67, s67, 9")
    plain(a, r_read(0))
    plain(a, list_reads()[1:2])
    plain(a, r_read(1, RB4))
    a(mfma32(D[1] + 14, ZERO, ZERO, None))
    a("s_waitcnt lgkmcnt(3)")
    plain(a, mads(R8))
    plain(a, dma_ops())
    a("s_waitcnt lgkmcnt(0)")
    plain(a, pos_load())
    a(f"""
    v_readfirstlane_b32 s{sWB}, v{DL}
    v_mov_b32 v{T+6}, 1.0
    v_mov_b32 v{T+7}, 1.0
    s_min_u32 s{sWB}, s{sWB}, {16*(NPB-8)}
    """)
    window_masks(a)
    wx_load(a)
    plain(a, geo_addr())
    plain(a, geo_lut())
    plain(a, advance())
    plain(a, mads(RB4))
    a("s_waitcnt lgkmcnt(0)")
    plain(a, geo_fin()[1:])
    if OPT.stamps == 6: stamp(a, 2, 10)
    a(f"s_waitcnt vmcnt({2 if OPT.stamps == 6 else 1})")
    if OPT.stamps == 6: stamp(a, 2, 11)
    plain(a, x_read(0)[1:])
    a(f"s_waitcnt vmcnt({2 if OPT.stamps == 6 else 0})")
    if OPT.stamps == 6: stamp(a, 2, 12)
    plain(a, geo_diff())
    a("s_waitcnt lgkmcnt(2)")
    a(mfma32(D[0], X[0], ID, None))
    plain(a, geo_cvt())
    a(mfma32(D[0], X[0] + 4, ID + 4, D[0]))
    plain(a, geo_d2())
    a("s_waitcnt lgkmcnt(0)")
    plain(a, dma_ops()[:2])
    plain(a, geo_fin()[:1])
    plain(a, dma_ops()[2:])
    a(mfma32(D[0], XX, WX[0] + 2, D[0]))
    plain(a, s_write())
    a("s_nop 7")
    if OPT.prio: a("s_setprio 3")
    stamp(a, 2, 5)
    gen_main_loop(a)
    a.label("K2_DRAIN")
    stamp(a, 2, 6)
    t2 = T + 2 * (7 % 4); y2 = D[1] + 14; t6 = T + 2 * (6 % 4)
    a(f"""
    {mfma32(ACC[1], S, M[1], ACC[1])}
    v_rcp_f32 v{t2}, v{t2}
    v_rcp_f32 v{t2+1}, v{t2+1}
    v_cvt_pk_bf16_f32 v{M[1]+6}, v{t6}, v{t6+1}
    v_mul_f32 v{t2}, v{t2}, v{y2}
    v_mul_f32 v{t2+1}, v{t2+1}, v{y2+1}
    v_cvt_pk_bf16_f32 v{M[1]+7}, v{t2}, v{t2+1}
    s_mov_b32 s{sWBO}, s{sWB}
    s_nop 0
    {mfma32(ACC[1], S+4, M[1]+4, ACC[1])}
    """)
    epi_reads(a)
    flush_code(a, False, 'A')
    a.label("K2_WDONE")
    stamp(a, 2, 7)
    a(f"""
    s_cmp_lg_u32 s{sMORE}, 0
    s_cbranch_scc1 K2_MORE
    """)
    MB_ = M[0]; U = ACC[0]; HR = D[0]; EX = D[0] + 8; MFS = [D[1], ACC[1]]
    a(f"""
    s_movk_i32 s{sTMP+3}, 21846
    v_mul_u32_u24 v{DX}, s{sTMP+3}, v0
    s_mul_i32 s{sTMP+4}, s{sNB}, 6
    s_add_u32 s{sTMP+4}, s{sTMP+4}, {N*128}
    v_add_u32_sdwa v{DX}, v{DX}, v0 dst_sel:DWORD dst_unused:UNUSED_PAD src0_sel:WORD_1 src1_sel:DWORD
    v_lshlrev_b32 v{PD}, 1, v0
    s_mul_i32 s{sTMP+5}, s{sNN}, 3
    v_cmp_gt_u32 {sr(sF0+2)}, s{sTMP+5}, v0
    v_lshlrev_b32 v{DX+1}, 2, v{DX}
    v_lshlrev_b32 v{DX}, 3, v{DX}
    s_and_b32 s{sTMP}, s3, 3
    s_lshl_b32 s{sTMP}, s{sTMP}, 4
    s_sub_i32 s{sTMP+5}, s{sNN}, s{sTMP}
    s_lshl_b32 s{sTMP+5}, s{sTMP+5}, 7
    v_cmp_gt_i32 {sr(sF0)}, s{sTMP+5}, v{EO}
    s_add_u32 s{sTMP}, s{sTMP}, s{sNB}
    s_lshl_b32 s{sTMP}, s{sTMP}, 7
    s_lshr_b32 s{sTMP+1}, s3, 2
    s_lshl_b32 s{sTMP+1}, s{sTMP+1}, 6
    s_add_u32 s{sTMP}, s{sTMP}, s{sTMP+1}
    s_mov_b32 s{sTMP+3}, 0xffff0000
    s_waitcnt lgkmcnt(0)
    {mfma16(U, X[0], EW, None)}
    {mfma16(U+4, X[0]+16, EW, None)}
    {mfma16(U, X[0]+4, EW+4, U)}
    {mfma16(U+4, X[0]+20, EW+4, U+4)}
    s_cmp_lt_u32 s3, 4
    s_cbranch_scc1 K2_HLO
    """)
    for r in range(4):
        a(f"v_lshlrev_b32 v{HR+2*r}, 16, v{EW+4+r}\nv_and_b32 v{HR+2*r+1}, s{sTMP+3}, v{EW+4+r}")
    a("s_branch K2_HOK\nK2_HLO:")
    for r in range(4):
        a(f"v_lshlrev_b32 v{HR+2*r}, 16, v{EW+r}\nv_and_b32 v{HR+2*r+1}, s{sTMP+3}, v{EW+r}")
    a("K2_HOK:\ns_barrier")
    stamp(a, 2, 8)
    for s in range(2):
        for k in range(4):
            a(f"ds_read_b128 {vr(MFS[s]+4*k,4)}, v{EA_} offset:{256*s + 16*k}")
    a(f"ds_read_b32 v{DX+1}, v{DX+1} offset:{POSD}\nds_read_b64 {vr(PS,2)}, v{DX} offset:{ACCP}")
    for s in range(2):
        for k in range(4):
            a(f"s_waitcnt lgkmcnt({9 - 4*s - k})")
            a(f"v_cvt_f32_f64 v{MFS[s]+4*k}, {vr(MFS[s]+4*k,2)}")
            a(f"v_cvt_f32_f64 v{MFS[s]+4*k+1}, {vr(MFS[s]+4*k+2,2)}")
            a(f"v_cvt_pk_bf16_f32 v{MB_+4*s+k}, v{MFS[s]+4*k}, v{MFS[s]+4*k+1}")
        a("s_nop 1")
        a(mfma16(U, X[0]+8+4*s, MB_+4*s, U))
        a(mfma16(U+4, X[0]+24+4*s, MB_+4*s, U+4))
    a(f"""
    s_mov_b32 s{sTMP+2}, {f32(-L2E)}
    s_mov_b64 exec, {sr(sF0+2)}
    s_cbranch_execz K2_NOPOS
    s_waitcnt lgkmcnt(0)
    v_cvt_f32_f64 v{DX+2}, {vr(PS,2)}
    v_add_f32 v{DX+1}, v{DX+1}, v{DX+2}
    v_cvt_pk_bf16_f32 v{DX+1}, v{DX+1}, v{DX+1}
    buffer_store_short v{DX+1}, v{PD}, {sr(sOUT,4)}, s{sTMP+4} offen{OPT.ost}
    K2_NOPOS:
    s_mov_b64 exec, -1
    s_nop 4
    """)
    for r in range(8):
        a(f"v_mul_f32 v{EX+r}, s{sTMP+2}, v{U+r}")
    for r in range(8):
        a(f"v_exp_f32 v{EX+r}, v{EX+r}")
    for r in range(0, 8, 2):
        a(f"v_pk_add_f32 {vr(EX+r,2)}, {vr(EX+r,2)}, 1.0 op_sel_hi:[1,0]")
    for r in range(8):
        a(f"v_rcp_f32 v{EX+r}, v{EX+r}")
    for r in range(0, 8, 2):
        a(f"v_pk_fma_f32 {vr(HR+r,2)}, {vr(EX+r,2)}, {vr(U+r,2)}, {vr(HR+r,2)}")
    for r in range(4):
        a(f"v_cvt_pk_bf16_f32 v{EX+r}, v{HR+2*r}, v{HR+2*r+1}")
    a(f"""
    s_mov_b64 exec, {sr(sF0)}
    s_cbranch_execz K2_END
    buffer_store_dwordx4 {vr(EX,4)}, v{EO}, {sr(sOUT,4)}, s{sTMP} offen{OPT.ost}
    """)
    if OPT.stamps:
        a("s_waitcnt vmcnt(0)")
    stamp(a, 2, 9); stamp(a, 2, 15, True)
    a("K2_END:\ns_endpgm")
    a.label("K2_NOWORK")
    epi_reads(a)
    a("s_branch K2_WDONE")
    a.label("K2_FLUSH")
    flush_code(a, True, 'B')
    a(f"s_mov_b32 s{sFFL}, 0\ns_branch K2_FLUSH_RET")
    a.label("K2_REBASE")
    a(f"""
    s_mov_b32 s{sWBO}, s{sWB}
    v_readfirstlane_b32 s{sWB}, v{DL}
    s_mov_b32 s{sFWX}, 1
    s_mov_b32 s{sFFL}, 1
    s_min_u32 s{sWB}, s{sWB}, {16*(NPB-8)}
    """)
    window_masks(a)
    a("s_branch K2_REBASE_RET")
    a.label("K2_WXL")
    wx_load(a)
    a(f"s_mov_b32 s{sFWX}, 0\ns_branch K2_WXL_RET")
    if OPT.prio:
        a(f"""
        K2_PRIO:
        s_cmp_gt_i32 s{sREM}, 0
        s_cbranch_scc0 K2_PRIO1
        s_setprio 2
        s_mov_b32 s{sTHR}, 0
        s_branch K2_PRIO_RET
        K2_PRIO1:
        s_setprio 1
        s_branch K2_PRIO_RET
        K2_PRIO0:
        s_setprio 0
        s_cmp_gt_u32 s{sNC}, 32
        s_cbranch_scc1 K2_PRIO0_RET
        ds_write_b64 v{SAD}, {vr(ZERO,2)}
        s_branch K2_DRAIN
        """)
    a(f"""
    K2_EPOCH:
    v_mov_b32 v{T1}, s{sTOK+1}
    v_mov_b32 v{T2}, s{sTOK+2}
    v_mov_b32 v{TA}, {EPO}
    s_mov_b64 exec, 1
    buffer_store_dwordx2 {vr(T1,2)}, v{TA}, {sr(sWS,4)}, 0 offen
    s_mov_b64 exec, -1
    s_branch K2_EPOCH_RET
    K2_OVER:
    s_mov_b32 s{sQ}, 16
    s_branch K2_AGAIN
    K2_MORE:
    """)
    for x in range(2):
        a(f"""
        v_add_u32_sdwa v{T1}, v{J4}, v{OFFV[x]} dst_sel:DWORD dst_unused:UNUSED_PAD src0_sel:DWORD src1_sel:WORD_1
        v_add_u32 v{START[x]}, s{sQ}, v{START[x]}
        v_min_u32 v{START[x]}, v{START[x]}, v{T1}
        """)
    a(f"""
    K2_AGAIN:
    s_waitcnt vmcnt(0) lgkmcnt(0)
    s_barrier
    s_mov_b32 s{sFIRST}, 0
    s_cmp_lg_u32 s3, 0
    s_cbranch_scc1 K2_ROUND
    v_lshrrev_b32 v{T1}, 1, v{LANE8}
    ds_write_b32 v{T1}, v{ZERO} offset:{CNT2}
    v_mov_b32 v{T1}, {FLAG}
    ds_write_b32 v{T1}, v{ZERO}
    s_branch K2_ROUND
    """)

HEADER = """; EGNN layer (gather / edge MLP / scatter) for gfx950, one workgroup per CU
; Kernarg: h 0, pos 8, e_attr 16, src 24, dst 32, w_e 40, w_x 48, w_h 56, out 64, debug 72, ws 80
; @launch grid=(256,1,1) block=(512,1,1) lds={l2}
.amdgcn_target "amdgcn-amd-amdhsa--gfx950"
.text
"""
KD = """.amdhsa_kernel {name}
  .amdhsa_next_free_vgpr {nv}
  .amdhsa_next_free_sgpr 96
  .amdhsa_accum_offset {nv}
  .amdhsa_group_segment_fixed_size 0
  .amdhsa_kernarg_size 88
  .amdhsa_user_sgpr_count 2
  .amdhsa_user_sgpr_kernarg_segment_ptr 1
  .amdhsa_system_sgpr_workgroup_id_x 1
.end_amdhsa_kernel
"""

def generate(stamps=0, gn=16, half=1, pre=0, tbe=1, hfirst=2, tpos=0, gate=8, warm=0, prio=2, touch=24, g0=3, g1=5, abl='', tb2=1, st=2, twprio=1, slp=8, ost=2, og=1, slp0=0, samp=0, lcpost=1, pbar=0):
    OPT.stamps = stamps; OPT.gn = gn; OPT.half = half; OPT.pre = pre; OPT.tbe = tbe; OPT.hfirst = hfirst; OPT.tpos = tpos; OPT.gate = gate; OPT.warm = warm; OPT.prio = prio; OPT.touch = touch; OPT.g0 = g0; OPT.g1 = g1; OPT.abl = abl
    OPT.tb2 = tb2; OPT.st = ['', ' nt', ' sc1', ' sc0 sc1'][st]; OPT.twprio = twprio; OPT.slp = slp; OPT.og = og; OPT.samp = samp; OPT.pbar = pbar; OPT.lcpost = lcpost; OPT.slp0 = slp0
    OPT.ost = ['', ' nt', ' sc1', ' sc0 sc1'][ost]
    a = Asm(); gen_phase1(a); gen_k2(a)
    k2n = "gather_scatter__cheap_equivariant_egnn__graph_kernel"
    s = HEADER.format(l2=LDS2)
    s += f".globl {k2n}\n.p2align 8\n.type {k2n},@function\n" + a.text()
    s += '.section .rodata,"a"\n.p2align 6\n' + KD.format(name=k2n, nv=NV2 if stamps else 248)
    return s

if __name__ == "__main__":
    out = sys.argv[1]
    kw = {}
    for x in sys.argv[2:]:
        k, v = x.split("=", 1); kw[k] = v if k == 'abl' else int(v)
    open(out, "w").write(generate(**kw))
```
